```python
import torch

def _softmax(x, axis=-1):
    return torch.softmax(x, dim=axis)
def _gelu(x):
    return torch.nn.functional.gelu(x, approximate="tanh")
def _silu(x):
    return torch.nn.functional.silu(x)
def _sigmoid(x):
    return torch.sigmoid(x)
def _layernorm(x, axis=-1, eps=1e-5):
    m = x.mean(dim=axis, keepdim=True)
    v = x.var(dim=axis, keepdim=True, unbiased=False)
    return (x - m) / torch.sqrt(v + eps)
def _scatter_add(tgt, idx, src, axis=0):
    return tgt.clone().index_add_(axis, idx, src)
def _segment_sum(src, seg, n):
    out = torch.zeros((n,) + src.shape[1:], dtype=src.dtype)
    return out.index_add_(0, seg, src)
def _pad(x, pw):
    flat = tuple(v for pair in reversed(pw) for v in pair)
    return torch.nn.functional.pad(x, flat)

kernel_name = 'gated_mix__gqa_block_cached__dense_activation_mish__decode'

def setup_inputs():

    _w = (lambda a: (lambda t: t.to(torch.bfloat16) if t.is_floating_point() else t)(torch.as_tensor(a)))
    def _A_setup():
        B, Sq, D = 2, 1, 640
        Hq, Hkv, Sk, Dh = 32, 32, 4096, 192
        assert Hq % Hkv == 0, (Hq, Hkv)
        return {
            "x": _w((lambda *s: torch.randn(*s, dtype=torch.bfloat16) * 0.05)(B, Sq, D)),
            "k_cache": _w((lambda *s: torch.randn(*s, dtype=torch.bfloat16) * 6.4)(B, Hkv, Sk, Dh)),
            "v_cache": _w((lambda *s: torch.randn(*s, dtype=torch.bfloat16) * 0.1)(B, Hkv, Sk, Dh)),
            "wq": _w((lambda *s: torch.randn(*s, dtype=torch.bfloat16) * 6.4)(D, Hq * Dh) * (D ** -0.5)),
            "wo": _w((lambda *s: torch.randn(*s, dtype=torch.bfloat16) * 0.1)(Hq * Dh, D) * ((Hq * Dh) ** -0.5)),
        }
    _A_in = _A_setup()

    def _B_setup():
        B, S, D, F = 2, 1, 640, 1536
        return {
            "x": _w((lambda *s: torch.randn(*s, dtype=torch.bfloat16) * 0.05)(B, S, D)),
            "w1": _w((lambda *s: torch.randn(*s, dtype=torch.bfloat16) * 3.2)(D, F) * (D ** -0.5)),
            "b1": _w((lambda *s: torch.randn(*s, dtype=torch.bfloat16) * 0.05)(F)),
            "w2": _w((lambda *s: torch.randn(*s, dtype=torch.bfloat16) * 0.05)(F, D) * (F ** -0.5)),
        }
    _B_in = _B_setup()

    return {
        "A_x": _A_in["x"],
        "A_k_cache": _A_in["k_cache"],
        "A_v_cache": _A_in["v_cache"],
        "A_wq": _A_in["wq"],
        "A_wo": _A_in["wo"],
        "B_x": _B_in["x"],
        "B_w1": _B_in["w1"],
        "B_b1": _B_in["b1"],
        "B_w2": _B_in["w2"],
        "gate_w": _w((lambda *s: torch.randn(*s, dtype=torch.bfloat16) * 0.05)(640) * 16.0),
    }

def reference(A_x, A_k_cache, A_v_cache, A_wq, A_wo, B_x, B_w1, B_b1, B_w2, gate_w):
    def _A_ref(x, k_cache, v_cache, wq, wo):
        B, Sq, D = x.shape
        Hq, Dh = 32, 192
        Hkv = k_cache.shape[1]
        rep = Hq // Hkv
        q = (lambda x, *d: x.permute(*d))((x @ wq).reshape(B, Sq, Hq, Dh), 0, 2, 1, 3)
        k = (lambda x, n, axis: torch.repeat_interleave(x, n, dim=axis))(k_cache, rep, axis=1)
        v = (lambda x, n, axis: torch.repeat_interleave(x, n, dim=axis))(v_cache, rep, axis=1)
        scores = torch.einsum("bhqd,bhkd->bhqk", q, k) * (Dh ** -0.5)
        p = _softmax(scores, axis=-1)
        o = torch.einsum("bhqk,bhkd->bhqd", p, v)
        return (lambda x, *d: x.permute(*d))(o, 0, 2, 1, 3).reshape(B, Sq, Hq * Dh) @ wo

    def _B_ref(x, w1, b1, w2):
        h = torch.einsum("bsd,df->bsf", x, w1) + b1
        sp = torch.log1p(torch.exp(-torch.abs(h))) + torch.where(h > 0, h, torch.zeros_like(h))
        act = h * torch.tanh(sp)
        return torch.einsum("bsf,fd->bsd", act, w2)

    x = A_x
    g = _sigmoid((x * gate_w).sum(-1, keepdims=True))
    a = _A_ref(x, A_k_cache, A_v_cache, A_wq, A_wo)
    b = _B_ref(x, B_w1, B_b1, B_w2)
    return g * a + (1 - g) * b
```

```python
import re

def regs_of(tok):
    tok = tok.strip()
    tok = re.sub(r'^-', '', tok)
    m = re.match(r'^(?:abs|neg)\((.*)\)$', tok)
    if m: tok = m.group(1)
    tok = tok.strip('|')
    m = re.match(r'^([vsa])(\d+)$', tok)
    if m: return {(m.group(1), int(m.group(2)))}
    m = re.match(r'^([vsa])\[(\d+):(\d+)\]$', tok)
    if m: return {(m.group(1), i) for i in range(int(m.group(2)), int(m.group(3)) + 1)}
    if tok == 'vcc': return {('s', 'vcc')}
    if tok in ('vcc_lo', 'vcc_hi'): return {('s', 'vcc')}
    if tok == 'exec': return {('s', 'exec')}
    if tok == 'm0': return {('s', 'm0')}
    return set()

TRANS = ('v_exp_f32', 'v_log_f32', 'v_rcp_f32', 'v_rsq_f32', 'v_sqrt_f32', 'v_sin_f32', 'v_cos_f32')

class Ins:
    def __init__(self, text):
        self.text = text
        t = text.split(';')[0].strip()
        self.label = t.endswith(':')
        self.directive = t.startswith('.')
        parts = t.split(None, 1)
        self.op = parts[0] if parts else ''
        rest = parts[1] if len(parts) > 1 else ''
        ops = []; depth = 0; cur = ''
        for ch in rest:
            if ch in '[(': depth += 1
            if ch in '])': depth -= 1
            if ch == ',' and depth == 0:
                ops.append(cur.strip()); cur = ''
            else:
                cur += ch
        if cur.strip(): ops.append(cur.strip())
        mods = ''
        if ops:
            sp = ops[-1].split(None, 1)
            ops[-1] = sp[0]
            mods = sp[1] if len(sp) > 1 else ''
        self.ops = ops; self.mods = mods
        op = self.op
        base = re.sub(r'_(e32|e64|dpp|sdwa)$', '', op)
        self.base = base
        self.valu = op.startswith('v_')
        self.mfma = op.startswith('v_mfma') or op.startswith('v_smfmac')
        self.dot = op.startswith('v_dot')
        self.trans = base in TRANS
        self.dpp = op.endswith('_dpp') or 'quad_perm' in mods or 'row_' in mods
        self.permlane = op.startswith('v_permlane')
        self.readlane = base in ('v_readlane_b32', 'v_readfirstlane_b32')
        self.writelane = base == 'v_writelane_b32'
        self.vmem = op.startswith('buffer_') or op.startswith('global_')
        self.ds = op.startswith('ds_')
        self.salu = op.startswith('s_')
        self.w = set(); self.r = set(); self.srcc = set(); self.srcab = set()
        self.widestore = set()
        R = [regs_of(o) for o in ops]
        if self.label or self.directive or not op:
            return
        if self.mfma:
            self.w = R[0]; self.srcab = R[1] | R[2]
            if op.startswith('v_smfmac'):
                self.srcc = R[0]; self.srcab |= R[3]
            else:
                self.srcc = R[3] if len(R) > 3 else set()
            self.r = self.srcab | self.srcc
        elif self.valu:
            if self.permlane:
                self.w = R[0] | R[1]; self.r = R[0] | R[1]
            else:
                self.w = set(R[0]); nd = 1
                if base in ('v_add_co_u32', 'v_sub_co_u32', 'v_addc_co_u32', 'v_subb_co_u32', 'v_mad_u64_u32', 'v_div_scale_f32'):
                    self.w |= R[1]; nd = 2
                for x in R[nd:]: self.r |= x
                if base in ('v_fmac_f32', 'v_dot2c_f32_bf16', 'v_writelane_b32', 'v_pk_fmac_f16') or self.dpp:
                    self.r |= R[0]
                if base == 'v_cndmask_b32' and len(ops) == 3: self.r |= {('s', 'vcc')}
                if base.startswith('v_cmpx'): self.w |= {('s', 'exec')}
                if self.dot:
                    if base == 'v_dot2c_f32_bf16':
                        self.srcab = R[1] | R[2]; self.srcc = R[0]
                    else:
                        self.srcab = R[1] | R[2]; self.srcc = R[3]
        elif self.vmem:
            isload = '_load' in op
            islds = ' lds' in (' ' + mods)
            if op.startswith('buffer_'):
                if op in ('buffer_wbl2', 'buffer_inv'): return
                if isload and not islds:
                    self.w = R[0]
                    for x in R[1:]: self.r |= x
                else:
                    for x in R: self.r |= x
                    if 'atomic' in op and 'sc0' in mods: self.w = R[0]
                    if op.endswith('x3') or op.endswith('x4'): self.widestore = R[0]
            else:
                if isload:
                    self.w = R[0]
                    for x in R[1:]: self.r |= x
                else:
                    for x in R: self.r |= x
                    if op.endswith('x3') or op.endswith('x4'): self.widestore = R[1]
        elif self.ds:
            if op.startswith('ds_read') or op.startswith('ds_bpermute') or op.startswith('ds_swizzle') or op.startswith('ds_permute'):
                self.w = R[0]
                for x in R[1:]: self.r |= x
            else:
                for x in R: self.r |= x
        elif self.salu:
            if op.startswith('s_cmp') or op.startswith('s_cbranch') or op in ('s_waitcnt', 's_barrier', 's_nop', 's_branch', 's_endpgm', 's_sleep', 's_setprio') or op.startswith('s_bitcmp'):
                for x in R: self.r |= x
            else:
                if R: self.w = R[0]
                for x in R[1:]: self.r |= x
                if 'saveexec' in op: self.w |= {('s', 'exec')}; self.r |= {('s', 'exec')}
    def states(self):
        if self.label or self.directive or not self.op: return 0
        if self.op == 's_nop': return int(self.ops[0], 0) + 1
        return 1

def mfma_passes(op):
    if '16x16x32' in op and 'smfmac' not in op: return 4
    if 'smfmac' in op and '16x16x64' in op: return 4
    if '32x32x16' in op: return 8
    if '16x16x4_f32' in op: return 8
    raise ValueError(op)

def need(p, c):
    n = 0
    vw = {x for x in p.w if x[0] in 'va'}
    sw = {x for x in p.w if x[0] == 's'}
    if p.mfma:
        ps = mfma_passes(p.op)
        tab_ab = {2: 5, 4: 8, 8: 12, 16: 20}[ps]
        tab_c_ov = {2: 4, 4: 6, 8: 10, 16: 18}[ps]
        if c.mfma:
            if vw & c.srcab: n = max(n, tab_ab)
            if vw & c.srcc:
                if c.srcc == vw and mfma_passes(c.op) == ps: n = max(n, 2 if ps == 2 else 0)
                else: n = max(n, tab_c_ov)
            if (vw & c.w) and not (vw & c.srcc): n = max(n, tab_ab)
        elif c.valu or c.vmem or c.ds:
            if vw & (c.r | c.w): n = max(n, tab_ab)
        if c.valu and not c.mfma and (p.srcc & c.w):
            n = max(n, {2: 1, 4: 3, 8: 7, 16: 15}[ps])
    elif p.valu:
        if c.mfma and (vw & c.r): n = max(n, 3 if p.dot else 2)
        if c.valu and c.dpp and (vw & c.r): n = max(n, 2)
        if c.permlane and (vw & c.r): n = max(n, 2)
        if p.trans and c.valu and not c.trans and (vw & c.r): n = max(n, 1)
        if p.trans and c.valu and c.trans and (vw & c.r): n = max(n, 1)
        if c.readlane and (vw & c.r): n = max(n, 1)
        if sw:
            if c.valu and (sw & c.r):
                n = max(n, 4 if (c.readlane or c.writelane) else 2)
            if c.vmem and (sw & c.r): n = max(n, 5)
            if ('s', 'exec') in sw:
                if c.dpp: n = max(n, 5)
                if c.mfma or c.permlane or c.readlane or c.writelane: n = max(n, 4)
        if p.dot:
            if c.dot and c.base == p.base:
                if vw & c.srcab: n = max(n, 3)
            elif (c.valu or c.vmem or c.ds) and (vw & (c.r | c.w)): n = max(n, 3)
    elif p.vmem and p.widestore:
        if c.valu and (p.widestore & c.w): n = max(n, 2)
        elif (p.widestore & c.w): n = max(n, 1)
    elif p.salu:
        if ('s', 'm0') in sw and ((c.vmem and ' lds' in ' ' + c.mods) or 'addtid' in c.op): n = max(n, 1)
    return n

class Asm:
    def __init__(self):
        self.lines = []
        self.vm = []
        self.vm_done = 0
    def __call__(self, text):
        for t in text.split('\n'):
            t = t.strip()
            if t: self.lines.append(t)
    def vmem(self, text, tag=None):
        self(text)
        self.vm.append(tag if tag is not None else object())
    def outstanding(self):
        return len(self.vm) - self.vm_done
    def wait_out(self, n):
        if self.outstanding() > n:
            self(f's_waitcnt vmcnt({n})')
            self.vm_done = len(self.vm) - n
    def is_done(self, tag):
        return self.vm.index(tag) < self.vm_done
    def issued(self, tag):
        return tag in self.vm
    def wait_tag(self, tag):
        i = self.vm.index(tag)
        if i >= self.vm_done:
            n = len(self.vm) - 1 - i
            assert n <= 63, n
            self(f's_waitcnt vmcnt({n})')
            self.vm_done = i + 1
    def finalize(self):
        out = []
        hist = []
        pos = 0
        snaps = {}
        for t in self.lines:
            ins = Ins(t)
            if ins.label:
                name = t.split(':')[0].strip()
                for (p, dist) in snaps.get(name, []):
                    hist.append((p, pos - dist))
                hist.sort(key=lambda e: e[1])
            elif not (ins.directive or not ins.op):
                req = 0
                for (p, ppos) in hist:
                    if pos - ppos >= 24: continue
                    n = need(p, ins)
                    if n:
                        req = max(req, n - (pos - ppos))
                while req > 0:
                    k = min(req, 16)
                    out.append(f's_nop {k-1}')
                    pos += k
                    req -= k
                pos += ins.states()
                hist.append((ins, pos))
                hist = [e for e in hist if pos - e[1] < 24]
                if ins.op.startswith('s_cbranch') or ins.op == 's_branch':
                    snaps.setdefault(ins.ops[0], []).extend([(p, pos - pp) for (p, pp) in hist])
            out.append(t)
        return out
```

```python
import sys, math, struct
from asmlib import Asm
KNAME = 'gated_mix__gqa_block_cached__dense_activation_mish__decode'
HEADER = open('cdna_kernels/' + KNAME + '.s.ref').read().split('; Override launch')[0]

def f2u(x): return struct.unpack('<I', struct.pack('<f', x))[0]
LOG2E = 1.4426950408889634
OOB = 0x80000000
YOFF = 256 * 1024
STAMP_OFF = 1 << 20
WS_REC = 2 << 20
QPART = 0; QBF = 16384; GV = 16896; MW = 16912; YP = 17408; OS = 848
LDS_BYTES = YP + 8 * 640 + 256

def gen(D=6, kq=2, Dq=None, burst=6, catchup=2, stamps=False, kv_cache='nt', w_cache='nt', late=True, poll_cap=1 << 16, Dv=None):
    W = 8
    Dq = Dq or D
    Dv = Dv or D
    a = Asm()
    nst = [0]
    def stamp():
        if stamps:
            a('s_memrealtime s[96:97]')
            a('s_waitcnt lgkmcnt(0)')
            a(f'v_writelane_b32 v95, s96, {nst[0]}')
            nst[0] += 1
    a(f'{KNAME}_kernel:')
    a('s_cmp_ge_u32 s2, 256')
    a('s_cbranch_scc1 L_end')
    a('s_load_dwordx16 s[4:19], s[0:1], 0')
    a('s_load_dwordx8 s[20:27], s[0:1], 64')
    a('s_load_dwordx2 s[28:29], s[0:1], 96')
    if stamps:
        a('v_mov_b32 v95, 0')
        stamp()
    a('v_lshrrev_b32 v5, 6, v0')
    a('v_and_b32 v1, 63, v0')
    a('v_readfirstlane_b32 s3, v5')
    a('s_and_b32 s82, s2, 7')
    a('s_lshr_b32 s83, s2, 6')
    a('s_lshl_b32 s30, s82, 2')
    a('s_add_u32 s30, s30, s83')
    a(f's_bfe_u32 s31, s2, {3 | (3 << 16)}')
    a('s_lshr_b32 s80, s31, 2')
    a('s_and_b32 s81, s31, 3')
    a('v_lshrrev_b32 v6, 3, v1')
    a('v_and_b32 v7, 7, v1')
    a('v_lshlrev_b32 v5, 4, v7')
    a('v_mul_u32_u24 v2, 384, v6')
    a('v_add_u32 v2, v2, v5')
    a('v_mul_u32_u24 v3, 122880, v6')
    a('v_add_u32 v3, v3, v5')
    a('v_mul_u32_u24 v4, 30720, v6')
    a('v_add_u32 v4, v4, v5')
    a('v_cmp_gt_u32 vcc, 2, v7')
    a(f'v_mov_b32 v76, {OOB}')
    a('v_cndmask_b32 v4, v76, v4, vcc')
    a('v_mul_u32_u24 v77, 20, v6')
    a('v_and_b32 v78, 15, v1')
    a('v_lshlrev_b32 v78, 1, v78')
    a('s_lshl_b32 s82, s80, 5')
    a('s_add_u32 s82, s82, s30')
    a('s_lshl_b32 s82, s82, 2')
    a('s_add_u32 s82, s82, s81')
    a('s_lshl_b32 s82, s82, 3')
    a('s_add_u32 s82, s82, s3')
    a('s_mul_i32 s82, s82, 49152')
    a('s_mul_i32 s83, s30, 384')
    a('s_mul_i32 s84, s3, 983040')
    a('s_add_u32 s83, s83, s84')
    a('s_lshl_b32 s84, s30, 2')
    a('s_add_u32 s84, s84, s81')
    a('s_mul_i32 s84, s84, 24')
    a('s_mul_i32 s85, s3, 245760')
    a('s_add_u32 s85, s85, s84')
    a('s_mul_i32 s98, s3, 160')
    a('s_mul_i32 s99, s80, 1280')
    a('s_add_u32 s99, s99, s98')
    for r in (35, 39, 43, 47, 51, 55, 59, 63, 67, 71, 75, 79):
        a(f's_mov_b32 s{r}, 0x20000')
    a('s_mov_b32 s34, 49152')
    a('s_mov_b32 s38, 49152')
    a('s_sub_u32 s42, 7864320, s83')
    a('s_sub_u32 s46, 1966080, s85')
    a('s_mov_b32 s58, 160')
    a('s_mov_b32 s62, 160')
    a('s_sub_u32 s66, 3072, s84')
    a(f's_mov_b32 s70, {WS_REC}')
    a('s_mov_b32 s74, 2560')
    a('s_mov_b32 s78, 256')
    a('s_mov_b32 s89, 0x01000100')
    a('s_mov_b32 s90, 0x03020302')
    a(f's_mov_b32 s91, {f2u(LOG2E / math.sqrt(192.0))}')
    a('s_lshl_b32 s100, s30, 3')
    a('s_add_u32 s100, s100, s31')
    a('s_lshl_b32 s100, s100, 10')
    a('s_lshl_b32 s101, s31, 5')
    a('s_add_u32 s101, s101, s30')
    a('s_mul_i32 s101, s101, 640')
    a(f's_add_u32 s101, s101, {YOFF}')
    a('s_waitcnt lgkmcnt(0)')
    def srd(r, p, off):
        if off is None:
            a(f's_mov_b32 s{r}, s{p}'); a(f's_mov_b32 s{r+1}, s{p+1}')
        else:
            a(f's_add_u32 s{r}, s{p}, {off}'); a(f's_addc_u32 s{r+1}, s{p+1}, 0')
    srd(56, 4, 's99'); srd(40, 10, 's83'); srd(32, 6, 's82'); srd(44, 16, 's85')
    free = list(range(96, 256, 4))
    slot = {}
    def alloc(tag):
        r = free.pop(0); slot[tag] = r; return r
    def release(tag):
        free.append(slot[tag])
    a.vmem('buffer_load_dwordx4 v[64:67], v77, s[56:59], 0 offen', 'x0')
    a.vmem('buffer_load_dword v68, v77, s[56:59], 0 offen offset:16', 'x1')
    cur = {'kv': None, 'wq': None, 'w1': None}
    def setoff(key, sreg, val):
        if val == 0: return '0'
        if cur[key] != val:
            a(f's_mov_b32 {sreg}, {val}'); cur[key] = val
        return sreg
    def issue(tag):
        kind = tag[0]
        r = alloc(tag)
        if kind == 'wq':
            so = setoff('wq', 's87', tag[1] * 12288)
            a.vmem(f'buffer_load_dwordx4 v[{r}:{r+3}], v3, s[40:43], {so} offen offset:{tag[2]*128} {w_cache}', tag)
        elif kind == 'w1':
            so = setoff('w1', 's88', tag[1] * 3072)
            a.vmem(f'buffer_load_dwordx4 v[{r}:{r+3}], v4, s[44:47], {so} offen {w_cache}', tag)
        elif kind in ('k', 'v'):
            so = setoff('kv', 's86', tag[1] * 3072)
            s0 = 32 if kind == 'k' else 36
            a.vmem(f'buffer_load_dwordx4 v[{r}:{r+3}], v2, s[{s0}:{s0+3}], {so} offen offset:{tag[2]*128} {kv_cache}', tag)
        elif kind == 'wo':
            rg = tag[1]
            if rg < 4: so, im = '0', rg * 1280
            else: so, im = setoff('wq', 's87', 5120), (rg - 4) * 1280
            a.vmem(f'buffer_load_dwordx4 v[{r}:{r+3}], v3, s[48:51], {so} offen offset:{im} {w_cache}', tag)
        elif kind == 'w2':
            a.vmem(f'buffer_load_dwordx4 v[{r}:{r+3}], v4, s[52:55], 0 offen offset:{tag[1]*1280} {w_cache}', tag)
    kl = [('k', k, s) for k in range(16) for s in range(3)]
    vl = [('v', k, s) for k in range(16) for s in range(3)]
    ql = []
    ki = 0
    for t in range(10):
        grp = [('wq', t, 0), ('wq', t, 1), ('wq', t, 2), ('w1', t)]
        pos = [int((i + 1) * 4 / kq) for i in range(kq)] if kq else []
        for i in range(4):
            ql.append(grp[i])
            for p in pos:
                if p == i + 1:
                    ql.append(kl[ki]); ki += 1
    rest = kl[ki:] + vl
    NPRE = min(Dq - 2, 4)
    for tag in ql[:NPRE]: issue(tag)
    ql = ql[NPRE:]
    srd(60, 22, 's98'); srd(64, 18, 's84'); srd(36, 8, 's82'); srd(68, 28, None); srd(72, 24, None); srd(76, 26, None)
    a.vmem('buffer_load_dwordx4 v[70:73], v77, s[60:63], 0 offen', 'g0')
    a.vmem('buffer_load_dword v74, v77, s[60:63], 0 offen offset:16', 'g1')
    a.vmem('buffer_load_ushort v75, v78, s[64:67], 0 offen', 'b1')
    a('s_cmp_gt_u32 s3, 1')
    a('s_cbranch_scc1 L_noinit')
    a('s_cmp_eq_u32 s3, 0')
    a('s_cselect_b32 s82, s100, s101')
    a('s_cselect_b32 s83, 64, 40')
    a('v_lshlrev_b32 v79, 4, v1')
    a('v_add_u32 v79, s82, v79')
    a('v_cmp_gt_u32 vcc, s83, v1')
    a('v_cndmask_b32 v79, v76, v79, vcc')
    a('v_mov_b32 v80, -1'); a('v_mov_b32 v81, -1'); a('v_mov_b32 v82, -1'); a('v_mov_b32 v83, -1')
    a('buffer_store_dwordx4 v[80:83], v79, s[68:71], 0 offen sc1')
    a('L_noinit:')
    a('v_and_b32 v84, 1, v1')
    a('v_lshlrev_b32 v84, 4, v84')
    a('v_mov_b32 v85, 0xffff')
    a('v_lshlrev_b32 v84, v84, v85')
    a('v_bfe_u32 v85, v1, 1, 2')
    for r in range(4):
        a(f'v_cmp_eq_u32 vcc, {r}, v85')
        a(f'v_cndmask_b32 v{8+r}, 0, v84, vcc')
    a('s_mul_i32 s82, s30, 192')
    a('s_mul_i32 s83, s3, 24')
    a('s_add_u32 s82, s82, s83')
    a('s_mul_i32 s82, s82, 1280')
    a('s_mul_i32 s83, s31, 160')
    a('s_add_u32 s82, s82, s83')
    srd(48, 12, 's82')
    a('s_sub_u32 s50, 7864320, s82')
    a('s_mul_i32 s82, s30, 48')
    a('s_mul_i32 s84, s3, 6')
    a('s_add_u32 s82, s82, s84')
    a('s_mul_i32 s82, s82, 1280')
    a('s_add_u32 s82, s82, s83')
    srd(52, 20, 's82')
    a('s_sub_u32 s54, 1966080, s82')

    abuf = [12, 16]; abi = [0]
    def build_A(src):
        A = abuf[abi[0] & 1]; abi[0] += 1
        for r in range(4):
            a(f'v_and_b32 v{A+r}, {src}, v{8+r}')
        return A
    def task_q(t):
        a(f'v_perm_b32 v5, v{64 + t//2}, v{64 + t//2}, s{89 + (t & 1)}')
        A = build_A('v5')
        for s in range(4):
            tag = ('wq', t, s) if s < 3 else ('w1', t)
            r = slot[tag]; acc = 20 + 4 * s
            c = '0' if t == 0 else f'v[{acc}:{acc+3}]'
            a(f'v_mfma_f32_16x16x32_bf16 v[{acc}:{acc+3}], v[{A}:{A+3}], v[{r}:{r+3}], {c}')
            release(tag)
    def task_k(k):
        S = 48 + k
        first = True
        for s in range(3):
            r = slot[('k', k, s)]
            for i in range(4):
                c = '0' if first else f'v{S}'
                a(f'v_dot2_f32_bf16 v{S}, v{r+i}, v{36 + s*4 + i}, {c}')
                first = False
            release(('k', k, s))
    def task_v(k):
        A = build_A(f'v{48+k}')
        for s in range(3):
            r = slot[('v', k, s)]; acc = 20 + 4 * s
            c = '0' if k == 0 else f'v[{acc}:{acc+3}]'
            a(f'v_mfma_f32_16x16x32_bf16 v[{acc}:{acc+3}], v[{A}:{A+3}], v[{r}:{r+3}], {c}')
            release(('v', k, s))
    DPP = 'row_mask:0xf bank_mask:0xf'
    def xlane(op, v, tmp):
        a(f'{op}_dpp v{v}, v{v}, v{v} row_ror:8 {DPP}')
        a(f'v_mov_b32 v{tmp}, v{v}')
        a(f'v_permlane16_swap_b32 v{v}, v{tmp}')
        a(f'{op} v{v}, v{v}, v{tmp}')
        a(f'v_mov_b32 v{tmp}, v{v}')
        a(f'v_permlane32_swap_b32 v{v}, v{tmp}')
        a(f'{op} v{v}, v{v}, v{tmp}')
    def task_softmax_a():
        for pat in ('quad_perm:[1,0,3,2]', 'quad_perm:[2,3,0,1]', 'row_half_mirror'):
            for k in range(16):
                a(f'v_add_f32_dpp v{48+k}, v{48+k}, v{48+k} {pat} {DPP}')
    def task_softmax_b():
        a('v_max3_f32 v76, v48, v49, v50')
        for k in range(3, 15, 2):
            a(f'v_max3_f32 v76, v76, v{48+k}, v{49+k}')
        a('v_max_f32 v76, v76, v63')
        xlane('v_max_f32', 76, 77)
        a('v_mul_f32 v92, s91, v76')
        for k in range(16):
            a(f'v_fma_f32 v{48+k}, v{48+k}, s91, -v92')
        for k in range(16):
            a(f'v_exp_f32 v{48+k}, v{48+k}')
        a('v_add_f32 v93, v48, v49')
        for k in range(2, 16):
            a(f'v_add_f32 v93, v93, v{48+k}')
        for k in range(16):
            a(f'v_mul_f32 v{48+k}, v{48+k}, v94')
        for k in range(16):
            a(f'v_cvt_pk_bf16_f32 v{48+k}, v{48+k}, v{48+k}')
        xlane('v_add_f32', 93, 77)
    def run(issue_list, tasks, win, per_issue):
        for tag in issue_list:
            while not free:
                fn, needs = tasks.pop(0)
                for n in needs: a.wait_tag(n)
                fn()
            a.wait_out(win - 1)
            issue(tag)
            n = 0
            while tasks and n < per_issue and all(a.issued(x) and a.is_done(x) for x in tasks[0][1]):
                fn, needs = tasks.pop(0); fn(); n += 1
    def drain(tasks):
        while tasks:
            fn, needs = tasks.pop(0)
            for n in needs: a.wait_tag(n)
            fn()
    def task_gate():
        a('v_dot2_f32_bf16 v69, v64, v70, 0')
        for i in range(1, 5):
            a(f'v_dot2_f32_bf16 v69, v{64+i}, v{70+i}, v69')
    qtasks = [(task_gate, ['x0', 'x1', 'g0', 'g1', 'b1'])]
    qtasks += [((lambda t=t: task_q(t)), [('wq', t, 0), ('wq', t, 1), ('wq', t, 2), ('w1', t)]) for t in range(10)]
    run(ql, qtasks, Dq, 2)
    lastq = ('w1', 9)
    for tag in rest[:burst]: issue(tag)
    rest = rest[burst:]
    a('v_lshrrev_b32 v76, 5, v1')
    a('s_lshl_b32 s82, s3, 1')
    a('v_add_u32 v76, s82, v76')
    a('v_lshlrev_b32 v77, 5, v7')
    a('v_bfe_u32 v78, v1, 4, 1')
    a('v_lshl_add_u32 v77, v78, 4, v77')
    a('v_lshl_add_u32 v86, v76, 10, v77')
    a(f'v_mul_u32_u24 v87, {OS}, v76')
    a('v_add_u32 v87, v87, v77')
    a('v_and_b32 v78, 1, v6')
    a('v_add_u32 v78, s82, v78')
    a('v_lshlrev_b32 v78, 10, v78')
    a('v_lshrrev_b32 v79, 1, v6')
    a('v_lshl_add_u32 v78, v79, 2, v78')
    drain(qtasks)
    stamp()
    a('s_mov_b32 exec_lo, 0x00ff00ff')
    a('s_mov_b32 exec_hi, 0xff00ff00')
    for s in range(4):
        a(f'ds_write_b128 v86, v[{20+4*s}:{23+4*s}] offset:{s*256}')
    a('s_mov_b32 exec_lo, 0x01010101')
    a('s_mov_b32 exec_hi, 0x01010101')
    a('ds_write_b32 v78, v69 offset:832')
    a('s_mov_b64 exec, -1')
    a('s_waitcnt lgkmcnt(0)')
    a('s_barrier')
    a('s_cmp_ge_u32 s3, 4')
    a('s_cbranch_scc1 L_b2')
    a('v_lshlrev_b32 v5, 2, v0')
    for k in range(8):
        a(f'ds_read2st64_b32 v[{20+2*k}:{21+2*k}], v5 offset0:{8*k} offset1:{8*k+4}')
    a('s_cmp_lg_u32 s3, 0')
    a('s_cbranch_scc1 L_noatom')
    a('v_mov_b32 v76, 1')
    a('s_mov_b64 exec, 1')
    a('buffer_atomic_add v76, off, s[76:79], 0 sc1')
    a('s_mov_b64 exec, -1')
    a('L_noatom:')
    a('v_lshlrev_b32 v5, 1, v0')
    a('s_waitcnt lgkmcnt(0)')
    for st in (1, 2, 4, 8):
        for k in range(0, 16, 2 * st):
            a(f'v_add_f32 v{20+k}, v{20+k}, v{20+k+st}')
    a('v_cvt_pk_bf16_f32 v21, v20, v20')
    a(f'ds_write_b16 v5, v21 offset:{QBF}')
    a('s_cmp_lg_u32 s3, 3')
    a('s_cbranch_scc1 L_b2w')
    a(f'v_add_f32_dpp v22, v20, v20 quad_perm:[1,0,3,2] {DPP}')
    a(f'v_add_f32_dpp v22, v22, v22 quad_perm:[2,3,0,1] {DPP}')
    a('v_cvt_pk_bf16_f32 v22, v22, v22')
    a('v_and_b32 v22, 0xffff0000, v22')
    a(f'v_mul_f32 v22, {f2u(-LOG2E)}, v22')
    a('v_exp_f32 v22, v22')
    a('v_add_f32 v22, 1.0, v22')
    a('v_rcp_f32 v22, v22')
    a('v_cvt_pk_bf16_f32 v22, v22, v22')
    a('v_and_b32 v22, 0xffff0000, v22')
    a('v_readlane_b32 s82, v22, 16')
    a('v_mov_b32 v22, s82')
    a('v_sub_f32 v23, 1.0, v22')
    a('v_cvt_pk_bf16_f32 v23, v23, v23')
    a('v_and_b32 v23, 0xffff0000, v23')
    a('v_mov_b32 v24, 0')
    a(f'ds_write_b32 v24, v22 offset:{GV}')
    a('v_and_b32 v21, 0xffff0000, v21')
    a('v_lshlrev_b32 v75, 16, v75')
    a('v_add_f32 v21, v21, v75')
    a('v_cvt_pk_bf16_f32 v21, v21, v21')
    a('v_and_b32 v21, 0xffff0000, v21')
    a(f's_mov_b32 s83, {f2u(-LOG2E)}')
    a('v_mul_f32 v25, s83, abs(v21)')
    a('v_exp_f32 v25, v25')
    a('v_mul_f32 v26, v25, v25')
    a('v_cmp_lt_f32 vcc, 0, v21')
    a('v_cndmask_b32 v27, v26, 1.0, vcc')
    a('v_cndmask_b32 v28, 1.0, v26, vcc')
    a('v_fma_f32 v27, v25, 2.0, v27')
    a('v_fma_f32 v28, v28, 2.0, v27')
    a('v_rcp_f32 v28, v28')
    a('v_mul_f32 v27, v27, v21')
    a('v_mul_f32 v27, v27, v28')
    a('v_cvt_pk_bf16_f32 v27, v27, v27')
    a('v_and_b32 v27, 0xffff0000, v27')
    a('v_mul_f32 v27, v27, v23')
    a('v_min_u32 v27, -2, v27')
    a('v_lshlrev_b32 v28, 2, v1')
    a('s_mov_b64 exec, 0xfff')
    a('buffer_store_dword v27, v28, s[68:71], s100 offen offset:784 sc1')
    a('s_mov_b64 exec, -1')
    a('L_b2w:')
    a('s_waitcnt lgkmcnt(0)')
    a('L_b2:')
    a('s_barrier')
    a('v_lshlrev_b32 v5, 4, v7')
    for s in range(3):
        a(f'ds_read_b128 v[{36+4*s}:{39+4*s}], v5 offset:{QBF + s*128}')
    a('v_mov_b32 v24, 0')
    a(f'ds_read_b32 v94, v24 offset:{GV}')
    a('v_and_b32 v76, 15, v1')
    a('v_lshrrev_b32 v77, 4, v1')
    a('v_mul_u32_u24 v3, 7680, v77')
    a('v_lshl_add_u32 v3, v76, 4, v3')
    a('v_mul_u32_u24 v4, 2560, v77')
    a('v_lshl_add_u32 v4, v76, 4, v4')
    a(f'v_mov_b32 v78, {OOB}')
    a('v_cmp_gt_u32 vcc, 10, v76')
    a('v_cndmask_b32 v3, v78, v3, vcc')
    a('v_cndmask_b32 v4, v78, v4, vcc')
    a('v_cmp_gt_u32 vcc, 3, v77')
    a('v_cndmask_b32 v4, v78, v4, vcc')
    a('s_waitcnt lgkmcnt(0)')
    stamp()
    tasks = [((lambda k=k: task_k(k)), [('k', k, s) for s in range(3)]) for k in range(16)]
    tasks += [(task_softmax_a, []), (task_softmax_b, [])]
    if stamps: tasks += [(stamp, [])]
    def task_addr():
        a('v_lshrrev_b32 v77, 4, v1')
        a(f'v_mov_b32 v78, {OOB}')
        a('s_mul_i32 s82, s3, 6')
        a('v_add_u32 v76, s82, v6')
        a('v_cmp_gt_u32 vcc, 6, v6')
        a('v_cndmask_b32 v76, 48, v76, vcc')
        a('v_lshlrev_b32 v76, 4, v76')
        a(f'v_mul_u32_u24 v64, {2*OS}, v7')
        a('v_add_u32 v64, v64, v76')
        a('s_cmp_eq_u32 s3, 0')
        a('s_cselect_b32 s83, 7, 6')
        a('v_cmp_gt_u32 vcc, s83, v6')
        a('v_cndmask_b32 v65, v78, v76, vcc')
        a('v_cmp_eq_u32 vcc, 0, v7')
        a('v_cndmask_b32 v65, v78, v65, vcc')
        a('v_and_b32 v76, 1, v6')
        a('v_lshlrev_b32 v76, 12, v76')
        a('v_and_b32 v79, 3, v1')
        a('v_lshl_add_u32 v67, v79, 10, v76')
        a('v_bfe_u32 v79, v1, 2, 1')
        a('v_mul_u32_u24 v79, 12, v79')
        a('v_mul_u32_u24 v80, 24, v77')
        a('v_add3_u32 v66, v67, v79, v80')
        a('s_mul_i32 s82, s3, 96')
        a('v_add_u32 v66, s82, v66')
        a('s_lshr_b32 s82, s3, 1')
        a('s_lshl_b32 s82, s82, 10')
        a('s_and_b32 s83, s3, 1')
        a('s_mul_i32 s83, s83, 24')
        a('s_add_u32 s82, s82, s83')
        a('v_lshl_add_u32 v68, v77, 3, v76')
        a('v_add_u32 v68, s82, v68')
        a('v_cmp_gt_u32 vcc, 3, v77')
        a('v_cndmask_b32 v68, v78, v68, vcc')
        a('s_lshl_b32 s93, s30, 13')
        a('v_and_b32 v76, 15, v1')
        a('v_lshlrev_b32 v76, 5, v76')
        a('v_lshrrev_b32 v79, 5, v1')
        a('v_mul_u32_u24 v79, 320, v79')
        a('v_and_b32 v80, 1, v77')
        a('v_lshlrev_b32 v80, 4, v80')
        a('v_add3_u32 v69, v76, v79, v80')
        a('s_mul_i32 s82, s3, 640')
        a('v_add_u32 v69, s82, v69')
        a('s_mul_i32 s82, s3, 5')
        a('v_add_u32 v76, s82, v6')
        a('v_lshlrev_b32 v76, 4, v76')
        a('v_mul_u32_u24 v70, 640, v7')
        a('v_add_u32 v70, v70, v76')
        a('v_cmp_gt_u32 vcc, 5, v6')
        a('v_cndmask_b32 v71, v78, v76, vcc')
        a('v_cmp_eq_u32 vcc, 0, v7')
        a('v_cndmask_b32 v71, v78, v71, vcc')
        a('v_lshlrev_b32 v72, 2, v7')
        a('s_lshl_b32 s82, s3, 2')
        a('v_mov_b32 v76, s82')
        a(f'ds_write_b32 v76, v92 offset:{MW}')
        a('v_mov_b32 v76, v93')
        a('v_writelane_b32 v76, 0, 40')
        a('v_mov_b32 v77, 0'); a('v_mov_b32 v78, 0'); a('v_mov_b32 v79, 0')
        a('s_mov_b32 exec_lo, 1')
        a('s_mov_b32 exec_hi, 0x100')
        a('ds_write_b128 v87, v[76:79] offset:768')
        a('s_mov_b64 exec, -1')
        a('s_mul_i32 s82, s2, 205')
        a('s_lshr_b32 s82, s82, 12')
        a('s_mul_i32 s83, s82, 20')
        a('s_sub_u32 s83, s2, s83')
        a('s_mul_i32 s84, s82, 20480')
        a('s_lshl_b32 s85, s83, 5')
        a('s_add_u32 s84, s84, s85')
        a(f's_add_u32 s98, s84, {YOFF}')
        a('v_lshrrev_b32 v73, 1, v1')
        a('v_mul_u32_u24 v73, 640, v73')
        a('v_and_b32 v76, 1, v1')
        a('v_lshl_add_u32 v73, v76, 4, v73')
        a('s_cmp_ge_u32 s83, 10')
        a('s_cselect_b32 s84, 1120, 0')
        a('s_lshl_b32 s85, s83, 4')
        a('s_add_u32 s84, s84, s85')
        a('s_mul_i32 s85, s82, 160')
        a('s_add_u32 s99, s84, s85')
        a('v_lshlrev_b32 v74, 3, v76')
        a('v_lshrrev_b32 v77, 4, v1')
        a('v_lshl_add_u32 v74, v77, 1, v74')
    tasks += [(task_addr, [])]
    tasks += [((lambda k=k: task_v(k)), [('v', k, s) for s in range(3)]) for k in range(16)]
    wl = [('wo', rg) for rg in range(6)] + [('w2', i) for i in range(2)]
    if late:
        full = rest + wl
    else:
        n = len(rest) - 30
        full = rest[:n] + wl + rest[n:]
    nk = sum(1 for t in rest if t[0] == 'k')
    run(full[:nk], tasks, D, catchup)
    run(full[nk:], tasks, Dv, catchup)
    a.vmem('buffer_load_dword v75, off, s[76:79], 0 sc1', 'cnt')
    drain(tasks)
    stamp()
    a('s_mov_b32 exec_lo, 0x00ff00ff')
    a('s_mov_b32 exec_hi, 0xff00ff00')
    for s in range(3):
        a(f'ds_write_b128 v87, v[{20+4*s}:{23+4*s}] offset:{s*256}')
    a('s_mov_b64 exec, -1')
    a('s_waitcnt lgkmcnt(0)')
    a('s_barrier')
    a(f'ds_read_b32 v76, v72 offset:{MW}')
    a('ds_read_b128 v[20:23], v64')
    a(f'ds_read_b128 v[24:27], v64 offset:{OS}')
    a('s_waitcnt lgkmcnt(2)')
    a(f'v_max_f32_dpp v77, v76, v76 quad_perm:[1,0,3,2] {DPP}')
    a(f'v_max_f32_dpp v77, v77, v77 quad_perm:[2,3,0,1] {DPP}')
    a(f'v_max_f32_dpp v77, v77, v77 row_half_mirror {DPP}')
    a('v_sub_f32 v76, v76, v77')
    a('v_exp_f32 v76, v76')
    a('s_waitcnt lgkmcnt(0)')
    for i in range(4): a(f'v_add_f32 v{20+i}, v{20+i}, v{24+i}')
    for i in range(4): a(f'v_mul_f32 v{20+i}, v{20+i}, v76')
    for pat in ('quad_perm:[1,0,3,2]', 'quad_perm:[2,3,0,1]', 'row_half_mirror'):
        for i in range(4):
            a(f'v_add_f32_dpp v{20+i}, v{20+i}, v{20+i} {pat} {DPP}')
    a('v_cmp_lt_u32 vcc, 5, v6')
    a('v_cndmask_b32 v21, v21, v77, vcc')
    for i in range(4): a(f'v_min_u32 v{20+i}, -2, v{20+i}')
    a.vmem('buffer_store_dwordx4 v[20:23], v65, s[68:71], s100 offen sc1', 'opub')
    stamp()
    a.wait_tag('cnt')
    a(f's_mov_b32 s92, {poll_cap}')
    a('L_cnt:')
    a('v_readfirstlane_b32 s82, v75')
    a('s_cmp_eq_u32 s82, 256')
    a('s_cbranch_scc1 L_poll1')
    a('buffer_load_dword v75, off, s[76:79], 0 sc1')
    a('s_waitcnt vmcnt(0)')
    a('s_sub_u32 s92, s92, 1')
    a('s_cbranch_scc0 L_cnt')
    a('s_endpgm')
    a('L_poll1:')
    a('buffer_load_dwordx3 v[76:78], v66, s[68:71], s93 offen sc1')
    a('buffer_load_dwordx2 v[80:81], v67, s[68:71], s93 offen offset:768 sc1')
    a('buffer_load_dwordx2 v[82:83], v68, s[68:71], s93 offen offset:784 sc1')
    a('s_waitcnt vmcnt(0)')
    a('v_max3_u32 v84, v76, v77, v78')
    a('v_max3_u32 v84, v84, v80, v81')
    a('v_max3_u32 v84, v84, v82, v83')
    a('v_cmp_eq_u32 vcc, -1, v84')
    a('s_cbranch_vccz L_poll1d')
    a('s_sub_u32 s92, s92, 1')
    a('s_cbranch_scc0 L_poll1')
    a('s_endpgm')
    a('L_poll1d:')
    a.vm_done = len(a.vm)
    stamp()
    a(f'v_max_f32_dpp v84, v81, v81 quad_perm:[1,0,3,2] {DPP}')
    a(f'v_max_f32_dpp v84, v84, v84 quad_perm:[2,3,0,1] {DPP}')
    a('v_sub_f32 v81, v81, v84')
    a('v_exp_f32 v81, v81')
    a('v_mul_f32 v80, v80, v81')
    for i in range(3): a(f'v_mul_f32 v{76+i}, v{76+i}, v81')
    for pat in ('quad_perm:[1,0,3,2]', 'quad_perm:[2,3,0,1]'):
        for r in (80, 76, 77, 78):
            a(f'v_add_f32_dpp v{r}, v{r}, v{r} {pat} {DPP}')
    a('v_rcp_f32 v80, v80')
    a('v_cvt_pk_bf16_f32 v82, v82, v82')
    a('v_cvt_pk_bf16_f32 v83, v83, v83')
    for i in range(3): a(f'v_mul_f32 v{76+i}, v{76+i}, v80')
    for i in range(3): a(f'v_cvt_pk_bf16_f32 v{76+i}, v{76+i}, v{76+i}')
    for i in range(3): a(f'v_mov_b32_dpp v{84+i}, v{76+i} row_half_mirror {DPP}')
    first = True
    for i in range(2):
        A = build_A(f'v{82+i}')
        r = slot[('w2', i)]
        a(f'v_mfma_f32_16x16x32_bf16 v[32:35], v[{A}:{A+3}], v[{r}:{r+3}], {"0" if first else "v[32:35]"}')
        first = False
    for rg in range(6):
        A = abuf[abi[0] & 1]; abi[0] += 1
        own, oth = 76 + rg % 3, 84 + rg % 3
        lo, hi = (own, oth) if rg < 3 else (oth, own)
        a(f'v_and_b32 v{A}, v{lo}, v8'); a(f'v_and_b32 v{A+1}, v{lo}, v9')
        a(f'v_and_b32 v{A+2}, v{hi}, v10'); a(f'v_and_b32 v{A+3}, v{hi}, v11')
        r = slot[('wo', rg)]
        a(f'v_mfma_f32_16x16x32_bf16 v[32:35], v[{A}:{A+3}], v[{r}:{r+3}], v[32:35]')
    a('s_mov_b32 exec_lo, 0x03ff03ff')
    a('s_mov_b32 exec_hi, 0x03ff03ff')
    a(f'ds_write_b128 v69, v[32:35] offset:{YP}')
    a('s_mov_b64 exec, -1')
    a('s_waitcnt lgkmcnt(0)')
    a('s_barrier')
    a(f'ds_read_b128 v[20:23], v70 offset:{YP}')
    a('s_waitcnt lgkmcnt(0)')
    for pat in ('quad_perm:[1,0,3,2]', 'quad_perm:[2,3,0,1]', 'row_half_mirror'):
        for i in range(4):
            a(f'v_add_f32_dpp v{20+i}, v{20+i}, v{20+i} {pat} {DPP}')
    for i in range(4): a(f'v_min_u32 v{20+i}, -2, v{20+i}')
    a('buffer_store_dwordx4 v[20:23], v71, s[68:71], s101 offen sc1')
    stamp()
    a('s_cmp_lg_u32 s3, 0')
    a('s_cbranch_scc1 L_fin')
    a('s_cmp_ge_u32 s2, 160')
    a('s_cbranch_scc1 L_fin')
    a('L_poll2:')
    a('buffer_load_dwordx4 v[24:27], v73, s[68:71], s98 offen sc1')
    a('s_waitcnt vmcnt(0)')
    a('v_max3_u32 v84, v24, v25, v26')
    a('v_max_u32 v84, v84, v27')
    a('v_cmp_eq_u32 vcc, -1, v84')
    a('s_cbranch_vccz L_poll2d')
    a('s_sub_u32 s92, s92, 1')
    a('s_cbranch_scc0 L_poll2')
    a('s_endpgm')
    a('L_poll2d:')
    a('v_permlane16_swap_b32 v24, v25')
    a('v_permlane16_swap_b32 v26, v27')
    a('v_add_f32 v24, v24, v25')
    a('v_add_f32 v26, v26, v27')
    a('v_permlane32_swap_b32 v24, v26')
    a('v_add_f32 v24, v24, v26')
    a(f'v_add_f32_dpp v24, v24, v24 quad_perm:[2,3,0,1] {DPP}')
    a(f'v_add_f32_dpp v24, v24, v24 row_ror:4 {DPP}')
    a(f'v_add_f32_dpp v24, v24, v24 row_ror:8 {DPP}')
    a('v_cvt_pk_bf16_f32 v24, v24, v24')
    a('s_mov_b32 exec_lo, 0x00030003')
    a('s_mov_b32 exec_hi, 0x00030003')
    a('buffer_store_short v24, v74, s[72:75], s99 offen')
    a('s_mov_b64 exec, -1')
    a('L_fin:')
    if stamps:
        stamp()
        a('s_lshl_b32 s82, s2, 3')
        a('s_add_u32 s82, s82, s3')
        a('s_lshl_b32 s82, s82, 8')
        a(f's_add_u32 s82, s82, {STAMP_OFF}')
        a('v_lshlrev_b32 v5, 2, v1')
        a('buffer_store_dword v95, v5, s[68:71], s82 offen')
    a('L_end:')
    a('s_endpgm')
    body = a.finalize()
    out = HEADER
    out += f'; @launch grid=(256,1,1) block=(512,1,1) lds={LDS_BYTES}\n'
    out += '.amdgcn_target "amdgcn-amd-amdhsa--gfx950"\n.text\n'
    out += f'.globl {KNAME}_kernel\n.p2align 8\n.type {KNAME}_kernel,@function\n'
    for l in body:
        out += (l if l.endswith(':') else '    ' + l) + '\n'
    out += f'''.section .rodata,"a"
.p2align 6
.amdhsa_kernel {KNAME}_kernel
  .amdhsa_next_free_vgpr 256
  .amdhsa_next_free_sgpr 102
  .amdhsa_accum_offset 256
  .amdhsa_group_segment_fixed_size 0
  .amdhsa_kernarg_size 104
  .amdhsa_user_sgpr_count 2
  .amdhsa_user_sgpr_kernarg_segment_ptr 1
  .amdhsa_system_sgpr_workgroup_id_x 1
  .amdhsa_float_denorm_mode_32 3
.end_amdhsa_kernel
'''
    return out

if __name__ == '__main__':
    kw = eval('dict(' + (sys.argv[2] if len(sys.argv) > 2 else '') + ')')
    open(sys.argv[1], 'w').write(gen(**kw))
```

```python
import sys, math, struct
from asmlib import Asm
KNAME = 'gated_mix__gqa_block_cached__dense_activation_mish__decode'
HEADER = open('cdna_kernels/' + KNAME + '.s.ref').read().split('; Override launch')[0]

def f2u(x): return struct.unpack('<I', struct.pack('<f', x))[0]
LOG2E = 1.4426950408889634
OOB = 0x80000000
YOFF = 256 * 1024
STAMP_OFF = 1 << 20
WS_REC = 2 << 20
QPART = 0; QBF = 16384; GV = 16896; MW = 16912; YP = 17408; OS = 848
LDS_BYTES = YP + 8 * 640 + 256

def gen(D=6, kq=2, Dq=None, burst=6, catchup=2, stamps=False, k_cache='nt', v_cache='nt', dbgstamps=False, w_cache='nt', late=True, poll_cap=1 << 16, Dv=None):
    W = 8
    Dq = Dq or D
    Dv = Dv or D
    a = Asm()
    nst = [0]
    def stamp():
        if stamps:
            a('s_memrealtime s[96:97]')
            a('s_waitcnt lgkmcnt(0)')
            a(f'v_writelane_b32 v95, s96, {nst[0]}')
            nst[0] += 1
    a(f'{KNAME}_kernel:')
    a('s_cmp_ge_u32 s2, 256')
    a('s_cbranch_scc1 L_end')
    a('s_load_dwordx16 s[4:19], s[0:1], 0')
    a('s_load_dwordx8 s[20:27], s[0:1], 64')
    a('s_load_dwordx2 s[28:29], s[0:1], 96')
    if stamps:
        a('v_mov_b32 v95, 0')
        stamp()
    a('v_lshrrev_b32 v5, 6, v0')
    a('v_and_b32 v1, 63, v0')
    a('v_readfirstlane_b32 s3, v5')
    a('s_and_b32 s82, s2, 7')
    a('s_lshr_b32 s83, s2, 6')
    a('s_lshl_b32 s30, s82, 2')
    a('s_add_u32 s30, s30, s83')
    a(f's_bfe_u32 s31, s2, {3 | (3 << 16)}')
    a('s_lshr_b32 s80, s31, 2')
    a('s_and_b32 s81, s31, 3')
    a('v_lshrrev_b32 v6, 3, v1')
    a('v_and_b32 v7, 7, v1')
    a('v_lshlrev_b32 v5, 4, v7')
    a('v_mul_u32_u24 v2, 384, v6')
    a('v_add_u32 v2, v2, v5')
    a('v_mul_u32_u24 v3, 122880, v6')
    a('v_add_u32 v3, v3, v5')
    a('v_mul_u32_u24 v4, 30720, v6')
    a('v_add_u32 v4, v4, v5')
    a('v_cmp_gt_u32 vcc, 2, v7')
    a(f'v_mov_b32 v76, {OOB}')
    a('v_cndmask_b32 v4, v76, v4, vcc')
    a('v_mul_u32_u24 v77, 20, v6')
    a('v_and_b32 v78, 15, v1')
    a('v_lshlrev_b32 v78, 1, v78')
    a('s_lshl_b32 s82, s80, 5')
    a('s_add_u32 s82, s82, s30')
    a('s_lshl_b32 s82, s82, 2')
    a('s_add_u32 s82, s82, s81')
    a('s_lshl_b32 s82, s82, 3')
    a('s_add_u32 s82, s82, s3')
    a('s_mul_i32 s82, s82, 49152')
    a('s_mul_i32 s83, s30, 384')
    a('s_mul_i32 s84, s3, 983040')
    a('s_add_u32 s83, s83, s84')
    a('s_lshl_b32 s84, s30, 2')
    a('s_add_u32 s84, s84, s81')
    a('s_mul_i32 s84, s84, 24')
    a('s_mul_i32 s85, s3, 245760')
    a('s_add_u32 s85, s85, s84')
    a('s_mul_i32 s98, s3, 160')
    a('s_mul_i32 s99, s80, 1280')
    a('s_add_u32 s99, s99, s98')
    for r in (35, 39, 43, 47, 51, 55, 59, 63, 67, 71, 75, 79):
        a(f's_mov_b32 s{r}, 0x20000')
    a('s_mov_b32 s34, 49152')
    a('s_mov_b32 s38, 49152')
    a('s_sub_u32 s42, 7864320, s83')
    a('s_sub_u32 s46, 1966080, s85')
    a('s_mov_b32 s58, 160')
    a('s_mov_b32 s62, 160')
    a('s_sub_u32 s66, 3072, s84')
    a(f's_mov_b32 s70, {WS_REC}')
    a('s_mov_b32 s74, 2560')
    a('s_mov_b32 s78, 256')
    a('s_mov_b32 s89, 0x01000100')
    a('s_mov_b32 s90, 0x03020302')
    a(f's_mov_b32 s91, {f2u(LOG2E / math.sqrt(192.0))}')
    a('s_lshl_b32 s100, s30, 3')
    a('s_add_u32 s100, s100, s31')
    a('s_lshl_b32 s100, s100, 10')
    a('s_lshl_b32 s101, s31, 5')
    a('s_add_u32 s101, s101, s30')
    a('s_mul_i32 s101, s101, 640')
    a(f's_add_u32 s101, s101, {YOFF}')
    a('s_waitcnt lgkmcnt(0)')
    def srd(r, p, off):
        if off is None:
            a(f's_mov_b32 s{r}, s{p}'); a(f's_mov_b32 s{r+1}, s{p+1}')
        else:
            a(f's_add_u32 s{r}, s{p}, {off}'); a(f's_addc_u32 s{r+1}, s{p+1}, 0')
    srd(56, 4, 's99'); srd(40, 10, 's83'); srd(32, 6, 's82'); srd(44, 16, 's85')
    free = list(range(96, 256, 4))
    slot = {}
    def alloc(tag):
        r = free.pop(0); slot[tag] = r; return r
    def release(tag):
        free.append(slot[tag])
    a.vmem('buffer_load_dwordx4 v[64:67], v77, s[56:59], 0 offen', 'x0')
    a.vmem('buffer_load_dword v68, v77, s[56:59], 0 offen offset:16', 'x1')
    cur = {'kv': None, 'wq': None, 'w1': None}
    def setoff(key, sreg, val):
        if val == 0: return '0'
        if cur[key] != val:
            a(f's_mov_b32 {sreg}, {val}'); cur[key] = val
        return sreg
    def issue(tag):
        kind = tag[0]
        r = alloc(tag)
        if kind == 'wq':
            so = setoff('wq', 's87', tag[1] * 12288)
            a.vmem(f'buffer_load_dwordx4 v[{r}:{r+3}], v3, s[40:43], {so} offen offset:{tag[2]*128} {w_cache}', tag)
        elif kind == 'w1':
            so = setoff('w1', 's88', tag[1] * 3072)
            a.vmem(f'buffer_load_dwordx4 v[{r}:{r+3}], v4, s[44:47], {so} offen {w_cache}', tag)
        elif kind in ('k', 'v'):
            so = setoff('kv', 's86', tag[1] * 3072)
            s0 = 32 if kind == 'k' else 36
            a.vmem(f'buffer_load_dwordx4 v[{r}:{r+3}], v2, s[{s0}:{s0+3}], {so} offen offset:{tag[2]*128} {k_cache if kind == "k" else v_cache}', tag)
        elif kind == 'wo':
            rg = tag[1]
            if rg < 4: so, im = '0', rg * 1280
            else: so, im = setoff('wq', 's87', 5120), (rg - 4) * 1280
            a.vmem(f'buffer_load_dwordx4 v[{r}:{r+3}], v3, s[48:51], {so} offen offset:{im} {w_cache}', tag)
        elif kind == 'w2':
            a.vmem(f'buffer_load_dwordx4 v[{r}:{r+3}], v4, s[52:55], 0 offen offset:{tag[1]*1280} {w_cache}', tag)
    kl = [('k', k, s) for k in range(16) for s in range(3)]
    vl = [('v', k, s) for k in range(16) for s in range(3)]
    ql = []
    ki = 0
    for t in range(10):
        grp = [('wq', t, 0), ('wq', t, 1), ('wq', t, 2), ('w1', t)]
        pos = [int((i + 1) * 4 / kq) for i in range(kq)] if kq else []
        for i in range(4):
            ql.append(grp[i])
            for p in pos:
                if p == i + 1:
                    ql.append(kl[ki]); ki += 1
    rest = kl[ki:] + vl
    NPRE = min(Dq - 2, 4)
    for tag in ql[:NPRE]: issue(tag)
    ql = ql[NPRE:]
    srd(60, 22, 's98'); srd(64, 18, 's84'); srd(36, 8, 's82'); srd(68, 28, None); srd(72, 24, None); srd(76, 26, None)
    a.vmem('buffer_load_dwordx4 v[70:73], v77, s[60:63], 0 offen', 'g0')
    a.vmem('buffer_load_dword v74, v77, s[60:63], 0 offen offset:16', 'g1')
    a.vmem('buffer_load_ushort v75, v78, s[64:67], 0 offen', 'b1')
    a('s_cmp_gt_u32 s3, 1')
    a('s_cbranch_scc1 L_noinit')
    a('s_cmp_eq_u32 s3, 0')
    a('s_cselect_b32 s82, s100, s101')
    a('s_cselect_b32 s83, 64, 40')
    a('v_lshlrev_b32 v79, 4, v1')
    a('v_add_u32 v79, s82, v79')
    a('v_cmp_gt_u32 vcc, s83, v1')
    a('v_cndmask_b32 v79, v76, v79, vcc')
    a('v_mov_b32 v80, -1'); a('v_mov_b32 v81, -1'); a('v_mov_b32 v82, -1'); a('v_mov_b32 v83, -1')
    a('buffer_store_dwordx4 v[80:83], v79, s[68:71], 0 offen sc1')
    a('L_noinit:')
    a('v_and_b32 v84, 1, v1')
    a('v_lshlrev_b32 v84, 4, v84')
    a('v_mov_b32 v85, 0xffff')
    a('v_lshlrev_b32 v84, v84, v85')
    a('v_bfe_u32 v85, v1, 1, 2')
    for r in range(4):
        a(f'v_cmp_eq_u32 vcc, {r}, v85')
        a(f'v_cndmask_b32 v{8+r}, 0, v84, vcc')
    a('s_mul_i32 s82, s30, 192')
    a('s_mul_i32 s83, s3, 24')
    a('s_add_u32 s82, s82, s83')
    a('s_mul_i32 s82, s82, 1280')
    a('s_mul_i32 s83, s31, 160')
    a('s_add_u32 s82, s82, s83')
    srd(48, 12, 's82')
    a('s_sub_u32 s50, 7864320, s82')
    a('s_mul_i32 s82, s30, 48')
    a('s_mul_i32 s84, s3, 6')
    a('s_add_u32 s82, s82, s84')
    a('s_mul_i32 s82, s82, 1280')
    a('s_add_u32 s82, s82, s83')
    srd(52, 20, 's82')
    a('s_sub_u32 s54, 1966080, s82')

    abuf = [12, 16]; abi = [0]
    def build_A(src):
        A = abuf[abi[0] & 1]; abi[0] += 1
        for r in range(4):
            a(f'v_and_b32 v{A+r}, {src}, v{8+r}')
        return A
    def task_q(t):
        a(f'v_perm_b32 v5, v{64 + t//2}, v{64 + t//2}, s{89 + (t & 1)}')
        A = build_A('v5')
        for s in range(4):
            tag = ('wq', t, s) if s < 3 else ('w1', t)
            r = slot[tag]; acc = 20 + 4 * s
            c = '0' if t == 0 else f'v[{acc}:{acc+3}]'
            a(f'v_mfma_f32_16x16x32_bf16 v[{acc}:{acc+3}], v[{A}:{A+3}], v[{r}:{r+3}], {c}')
            release(tag)
    def task_k(k):
        S = 48 + k
        first = True
        for s in range(3):
            r = slot[('k', k, s)]
            for i in range(4):
                c = '0' if first else f'v{S}'
                a(f'v_dot2_f32_bf16 v{S}, v{r+i}, v{36 + s*4 + i}, {c}')
                first = False
            release(('k', k, s))
    def task_v(k):
        A = build_A(f'v{48+k}')
        for s in range(3):
            r = slot[('v', k, s)]; acc = 20 + 4 * s
            c = '0' if k == 0 else f'v[{acc}:{acc+3}]'
            a(f'v_mfma_f32_16x16x32_bf16 v[{acc}:{acc+3}], v[{A}:{A+3}], v[{r}:{r+3}], {c}')
            release(('v', k, s))
    DPP = 'row_mask:0xf bank_mask:0xf'
    def xlane(op, v, tmp):
        a(f'{op}_dpp v{v}, v{v}, v{v} row_ror:8 {DPP}')
        a(f'v_mov_b32 v{tmp}, v{v}')
        a(f'v_permlane16_swap_b32 v{v}, v{tmp}')
        a(f'{op} v{v}, v{v}, v{tmp}')
        a(f'v_mov_b32 v{tmp}, v{v}')
        a(f'v_permlane32_swap_b32 v{v}, v{tmp}')
        a(f'{op} v{v}, v{v}, v{tmp}')
    def task_softmax_a():
        for pat in ('quad_perm:[1,0,3,2]', 'quad_perm:[2,3,0,1]', 'row_half_mirror'):
            for k in range(16):
                a(f'v_add_f32_dpp v{48+k}, v{48+k}, v{48+k} {pat} {DPP}')
    def task_softmax_b():
        a('v_max3_f32 v76, v48, v49, v50')
        for k in range(3, 15, 2):
            a(f'v_max3_f32 v76, v76, v{48+k}, v{49+k}')
        a('v_max_f32 v76, v76, v63')
        xlane('v_max_f32', 76, 77)
        a('v_mul_f32 v92, s91, v76')
        for k in range(16):
            a(f'v_fma_f32 v{48+k}, v{48+k}, s91, -v92')
        for k in range(16):
            a(f'v_exp_f32 v{48+k}, v{48+k}')
        a('v_add_f32 v93, v48, v49')
        for k in range(2, 16):
            a(f'v_add_f32 v93, v93, v{48+k}')
        for k in range(16):
            a(f'v_mul_f32 v{48+k}, v{48+k}, v94')
        for k in range(16):
            a(f'v_cvt_pk_bf16_f32 v{48+k}, v{48+k}, v{48+k}')
        xlane('v_add_f32', 93, 77)
    def run(issue_list, tasks, win, per_issue):
        for tag in issue_list:
            while not free:
                fn, needs = tasks.pop(0)
                for n in needs: a.wait_tag(n)
                fn()
            a.wait_out(win - 1)
            issue(tag)
            n = 0
            while tasks and n < per_issue and all(a.issued(x) and a.is_done(x) for x in tasks[0][1]):
                fn, needs = tasks.pop(0); fn(); n += 1
    def drain(tasks):
        while tasks:
            fn, needs = tasks.pop(0)
            for n in needs: a.wait_tag(n)
            fn()
    def task_gate():
        a('v_dot2_f32_bf16 v69, v64, v70, 0')
        for i in range(1, 5):
            a(f'v_dot2_f32_bf16 v69, v{64+i}, v{70+i}, v69')
    qtasks = [(task_gate, ['x0', 'x1', 'g0', 'g1', 'b1'])]
    qtasks += [((lambda t=t: task_q(t)), [('wq', t, 0), ('wq', t, 1), ('wq', t, 2), ('w1', t)]) for t in range(10)]
    run(ql, qtasks, Dq, 2)
    lastq = ('w1', 9)
    for tag in rest[:burst]: issue(tag)
    rest = rest[burst:]
    a('v_lshrrev_b32 v76, 5, v1')
    a('s_lshl_b32 s82, s3, 1')
    a('v_add_u32 v76, s82, v76')
    a('v_lshlrev_b32 v77, 5, v7')
    a('v_bfe_u32 v78, v1, 4, 1')
    a('v_lshl_add_u32 v77, v78, 4, v77')
    a('v_lshl_add_u32 v86, v76, 10, v77')
    a(f'v_mul_u32_u24 v87, {OS}, v76')
    a('v_add_u32 v87, v87, v77')
    a('v_and_b32 v78, 1, v6')
    a('v_add_u32 v78, s82, v78')
    a('v_lshlrev_b32 v78, 10, v78')
    a('v_lshrrev_b32 v79, 1, v6')
    a('v_lshl_add_u32 v78, v79, 2, v78')
    drain(qtasks)
    stamp()
    a('s_mov_b32 exec_lo, 0x00ff00ff')
    a('s_mov_b32 exec_hi, 0xff00ff00')
    for s in range(4):
        a(f'ds_write_b128 v86, v[{20+4*s}:{23+4*s}] offset:{s*256}')
    a('s_mov_b32 exec_lo, 0x01010101')
    a('s_mov_b32 exec_hi, 0x01010101')
    a('ds_write_b32 v78, v69 offset:832')
    a('s_mov_b64 exec, -1')
    a('s_waitcnt lgkmcnt(0)')
    a('s_barrier')
    a('s_cmp_ge_u32 s3, 4')
    a('s_cbranch_scc1 L_b2')
    a('v_lshlrev_b32 v5, 2, v0')
    for k in range(8):
        a(f'ds_read2st64_b32 v[{20+2*k}:{21+2*k}], v5 offset0:{8*k} offset1:{8*k+4}')
    a('s_cmp_lg_u32 s3, 0')
    a('s_cbranch_scc1 L_noatom')
    a('v_mov_b32 v76, 1')
    a('s_mov_b64 exec, 1')
    a('buffer_atomic_add v76, off, s[76:79], 0 sc1')
    a('s_mov_b64 exec, -1')
    a('L_noatom:')
    a('v_lshlrev_b32 v5, 1, v0')
    a('s_waitcnt lgkmcnt(0)')
    for st in (1, 2, 4, 8):
        for k in range(0, 16, 2 * st):
            a(f'v_add_f32 v{20+k}, v{20+k}, v{20+k+st}')
    a('v_cvt_pk_bf16_f32 v21, v20, v20')
    a(f'ds_write_b16 v5, v21 offset:{QBF}')
    a('s_cmp_lg_u32 s3, 3')
    a('s_cbranch_scc1 L_b2w')
    a(f'v_add_f32_dpp v22, v20, v20 quad_perm:[1,0,3,2] {DPP}')
    a(f'v_add_f32_dpp v22, v22, v22 quad_perm:[2,3,0,1] {DPP}')
    a('v_cvt_pk_bf16_f32 v22, v22, v22')
    a('v_and_b32 v22, 0xffff0000, v22')
    a(f'v_mul_f32 v22, {f2u(-LOG2E)}, v22')
    a('v_exp_f32 v22, v22')
    a('v_add_f32 v22, 1.0, v22')
    a('v_rcp_f32 v22, v22')
    a('v_cvt_pk_bf16_f32 v22, v22, v22')
    a('v_and_b32 v22, 0xffff0000, v22')
    a('v_readlane_b32 s82, v22, 16')
    a('v_mov_b32 v22, s82')
    a('v_sub_f32 v23, 1.0, v22')
    a('v_cvt_pk_bf16_f32 v23, v23, v23')
    a('v_and_b32 v23, 0xffff0000, v23')
    a('v_mov_b32 v24, 0')
    a(f'ds_write_b32 v24, v22 offset:{GV}')
    a('v_and_b32 v21, 0xffff0000, v21')
    a('v_lshlrev_b32 v75, 16, v75')
    a('v_add_f32 v21, v21, v75')
    a('v_cvt_pk_bf16_f32 v21, v21, v21')
    a('v_and_b32 v21, 0xffff0000, v21')
    a(f's_mov_b32 s83, {f2u(-LOG2E)}')
    a('v_mul_f32 v25, s83, abs(v21)')
    a('v_exp_f32 v25, v25')
    a('v_mul_f32 v26, v25, v25')
    a('v_cmp_lt_f32 vcc, 0, v21')
    a('v_cndmask_b32 v27, v26, 1.0, vcc')
    a('v_cndmask_b32 v28, 1.0, v26, vcc')
    a('v_fma_f32 v27, v25, 2.0, v27')
    a('v_fma_f32 v28, v28, 2.0, v27')
    a('v_rcp_f32 v28, v28')
    a('v_mul_f32 v27, v27, v21')
    a('v_mul_f32 v27, v27, v28')
    a('v_cvt_pk_bf16_f32 v27, v27, v27')
    a('v_and_b32 v27, 0xffff0000, v27')
    a('v_mul_f32 v27, v27, v23')
    a('v_min_u32 v27, -2, v27')
    a('v_lshlrev_b32 v28, 2, v1')
    a('s_mov_b64 exec, 0xfff')
    a('buffer_store_dword v27, v28, s[68:71], s100 offen offset:784 sc1')
    a('s_mov_b64 exec, -1')
    a('L_b2w:')
    a('s_waitcnt lgkmcnt(0)')
    a('L_b2:')
    a('s_barrier')
    a('v_lshlrev_b32 v5, 4, v7')
    for s in range(3):
        a(f'ds_read_b128 v[{36+4*s}:{39+4*s}], v5 offset:{QBF + s*128}')
    a('v_mov_b32 v24, 0')
    a(f'ds_read_b32 v94, v24 offset:{GV}')
    a('v_and_b32 v76, 15, v1')
    a('v_lshrrev_b32 v77, 4, v1')
    a('v_mul_u32_u24 v3, 7680, v77')
    a('v_lshl_add_u32 v3, v76, 4, v3')
    a('v_mul_u32_u24 v4, 2560, v77')
    a('v_lshl_add_u32 v4, v76, 4, v4')
    a(f'v_mov_b32 v78, {OOB}')
    a('v_cmp_gt_u32 vcc, 10, v76')
    a('v_cndmask_b32 v3, v78, v3, vcc')
    a('v_cndmask_b32 v4, v78, v4, vcc')
    a('v_cmp_gt_u32 vcc, 3, v77')
    a('v_cndmask_b32 v4, v78, v4, vcc')
    a('s_waitcnt lgkmcnt(0)')
    stamp()
    tasks = [((lambda k=k: task_k(k)), [('k', k, s) for s in range(3)]) for k in range(16)]
    tasks += [(task_softmax_a, []), (task_softmax_b, [])]
    if stamps: tasks += [(stamp, [])]
    def task_addr():
        a('v_lshrrev_b32 v77, 4, v1')
        a(f'v_mov_b32 v78, {OOB}')
        a('s_mul_i32 s82, s3, 6')
        a('v_add_u32 v76, s82, v6')
        a('v_cmp_gt_u32 vcc, 6, v6')
        a('v_cndmask_b32 v76, 48, v76, vcc')
        a('v_lshlrev_b32 v76, 4, v76')
        a(f'v_mul_u32_u24 v64, {2*OS}, v7')
        a('v_add_u32 v64, v64, v76')
        a('s_cmp_eq_u32 s3, 0')
        a('s_cselect_b32 s83, 7, 6')
        a('v_cmp_gt_u32 vcc, s83, v6')
        a('v_cndmask_b32 v65, v78, v76, vcc')
        a('v_cmp_eq_u32 vcc, 0, v7')
        a('v_cndmask_b32 v65, v78, v65, vcc')
        a('v_and_b32 v76, 1, v6')
        a('v_lshlrev_b32 v76, 12, v76')
        a('v_and_b32 v79, 3, v1')
        a('v_lshl_add_u32 v67, v79, 10, v76')
        a('v_bfe_u32 v79, v1, 2, 1')
        a('v_mul_u32_u24 v79, 12, v79')
        a('v_mul_u32_u24 v80, 24, v77')
        a('v_add3_u32 v66, v67, v79, v80')
        a('s_mul_i32 s82, s3, 96')
        a('v_add_u32 v66, s82, v66')
        a('s_lshr_b32 s82, s3, 1')
        a('s_lshl_b32 s82, s82, 10')
        a('s_and_b32 s83, s3, 1')
        a('s_mul_i32 s83, s83, 24')
        a('s_add_u32 s82, s82, s83')
        a('v_lshl_add_u32 v68, v77, 3, v76')
        a('v_add_u32 v68, s82, v68')
        a('v_cmp_gt_u32 vcc, 3, v77')
        a('v_cndmask_b32 v68, v78, v68, vcc')
        a('s_lshl_b32 s93, s30, 13')
        a('v_and_b32 v76, 15, v1')
        a('v_lshlrev_b32 v76, 5, v76')
        a('v_lshrrev_b32 v79, 5, v1')
        a('v_mul_u32_u24 v79, 320, v79')
        a('v_and_b32 v80, 1, v77')
        a('v_lshlrev_b32 v80, 4, v80')
        a('v_add3_u32 v69, v76, v79, v80')
        a('s_mul_i32 s82, s3, 640')
        a('v_add_u32 v69, s82, v69')
        a('s_mul_i32 s82, s3, 5')
        a('v_add_u32 v76, s82, v6')
        a('v_lshlrev_b32 v76, 4, v76')
        a('v_mul_u32_u24 v70, 640, v7')
        a('v_add_u32 v70, v70, v76')
        a('v_cmp_gt_u32 vcc, 5, v6')
        a('v_cndmask_b32 v71, v78, v76, vcc')
        a('v_cmp_eq_u32 vcc, 0, v7')
        a('v_cndmask_b32 v71, v78, v71, vcc')
        a('v_lshlrev_b32 v72, 2, v7')
        a('s_lshl_b32 s82, s3, 2')
        a('v_mov_b32 v76, s82')
        a(f'ds_write_b32 v76, v92 offset:{MW}')
        a('v_mov_b32 v76, v93')
        a('v_writelane_b32 v76, 0, 40')
        a('v_mov_b32 v77, 0'); a('v_mov_b32 v78, 0'); a('v_mov_b32 v79, 0')
        a('s_mov_b32 exec_lo, 1')
        a('s_mov_b32 exec_hi, 0x100')
        a('ds_write_b128 v87, v[76:79] offset:768')
        a('s_mov_b64 exec, -1')
        a('s_mul_i32 s82, s2, 205')
        a('s_lshr_b32 s82, s82, 12')
        a('s_mul_i32 s83, s82, 20')
        a('s_sub_u32 s83, s2, s83')
        a('s_mul_i32 s84, s82, 20480')
        a('s_lshl_b32 s85, s83, 5')
        a('s_add_u32 s84, s84, s85')
        a(f's_add_u32 s98, s84, {YOFF}')
        a('v_lshrrev_b32 v73, 1, v1')
        a('v_mul_u32_u24 v73, 640, v73')
        a('v_and_b32 v76, 1, v1')
        a('v_lshl_add_u32 v73, v76, 4, v73')
        a('s_cmp_ge_u32 s83, 10')
        a('s_cselect_b32 s84, 1120, 0')
        a('s_lshl_b32 s85, s83, 4')
        a('s_add_u32 s84, s84, s85')
        a('s_mul_i32 s85, s82, 160')
        a('s_add_u32 s99, s84, s85')
        a('v_lshlrev_b32 v74, 3, v76')
        a('v_lshrrev_b32 v77, 4, v1')
        a('v_lshl_add_u32 v74, v77, 1, v74')
    tasks += [(task_addr, [])]
    tasks += [((lambda k=k: task_v(k)), [('v', k, s) for s in range(3)]) for k in range(16)]
    wl = [('wo', rg) for rg in range(6)] + [('w2', i) for i in range(2)]
    if late:
        full = rest + wl
    else:
        n = len(rest) - 30
        full = rest[:n] + wl + rest[n:]
    nk = sum(1 for t in rest if t[0] == 'k')
    run(full[:nk], tasks, D, catchup)
    run(full[nk:], tasks, Dv, catchup)
    a.vmem('buffer_load_dword v75, off, s[76:79], 0 sc1', 'cnt')
    drain(tasks)
    stamp()
    a('s_mov_b32 exec_lo, 0x00ff00ff')
    a('s_mov_b32 exec_hi, 0xff00ff00')
    for s in range(3):
        a(f'ds_write_b128 v87, v[{20+4*s}:{23+4*s}] offset:{s*256}')
    a('s_mov_b64 exec, -1')
    a('s_waitcnt lgkmcnt(0)')
    a('s_barrier')
    a(f'ds_read_b32 v76, v72 offset:{MW}')
    a('ds_read_b128 v[20:23], v64')
    a(f'ds_read_b128 v[24:27], v64 offset:{OS}')
    a('s_waitcnt lgkmcnt(2)')
    a(f'v_max_f32_dpp v77, v76, v76 quad_perm:[1,0,3,2] {DPP}')
    a(f'v_max_f32_dpp v77, v77, v77 quad_perm:[2,3,0,1] {DPP}')
    a(f'v_max_f32_dpp v77, v77, v77 row_half_mirror {DPP}')
    a('v_sub_f32 v76, v76, v77')
    a('v_exp_f32 v76, v76')
    a('s_waitcnt lgkmcnt(0)')
    for i in range(4): a(f'v_add_f32 v{20+i}, v{20+i}, v{24+i}')
    for i in range(4): a(f'v_mul_f32 v{20+i}, v{20+i}, v76')
    for pat in ('quad_perm:[1,0,3,2]', 'quad_perm:[2,3,0,1]', 'row_half_mirror'):
        for i in range(4):
            a(f'v_add_f32_dpp v{20+i}, v{20+i}, v{20+i} {pat} {DPP}')
    a('v_cmp_lt_u32 vcc, 5, v6')
    a('v_cndmask_b32 v21, v21, v77, vcc')
    for i in range(4): a(f'v_min_u32 v{20+i}, -2, v{20+i}')
    a.vmem('buffer_store_dwordx4 v[20:23], v65, s[68:71], s100 offen sc1', 'opub')
    stamp()
    a.wait_tag('cnt')
    a(f's_mov_b32 s92, {poll_cap}')
    a('L_cnt:')
    a('v_readfirstlane_b32 s82, v75')
    a('s_cmp_ge_u32 s82, 256')
    a('s_cbranch_scc1 L_poll1')
    a('buffer_load_dword v75, off, s[76:79], 0 sc1')
    a('s_waitcnt vmcnt(0)')
    a('s_sub_u32 s92, s92, 1')
    a('s_cbranch_scc0 L_cnt')
    a('s_endpgm')
    a('L_poll1:')
    a('buffer_load_dwordx3 v[76:78], v66, s[68:71], s93 offen sc1')
    a('buffer_load_dwordx2 v[80:81], v67, s[68:71], s93 offen offset:768 sc1')
    a('buffer_load_dwordx2 v[82:83], v68, s[68:71], s93 offen offset:784 sc1')
    a('s_waitcnt vmcnt(0)')
    a('v_max3_u32 v84, v76, v77, v78')
    a('v_max3_u32 v84, v84, v80, v81')
    a('v_max3_u32 v84, v84, v82, v83')
    a('v_cmp_eq_u32 vcc, -1, v84')
    a('s_cbranch_vccz L_poll1d')
    a('s_sub_u32 s92, s92, 1')
    a('s_cbranch_scc0 L_poll1')
    a('s_endpgm')
    a('L_poll1d:')
    a.vm_done = len(a.vm)
    stamp()
    a(f'v_max_f32_dpp v84, v81, v81 quad_perm:[1,0,3,2] {DPP}')
    a(f'v_max_f32_dpp v84, v84, v84 quad_perm:[2,3,0,1] {DPP}')
    a('v_sub_f32 v81, v81, v84')
    a('v_exp_f32 v81, v81')
    a('v_mul_f32 v80, v80, v81')
    for i in range(3): a(f'v_mul_f32 v{76+i}, v{76+i}, v81')
    for pat in ('quad_perm:[1,0,3,2]', 'quad_perm:[2,3,0,1]'):
        for r in (80, 76, 77, 78):
            a(f'v_add_f32_dpp v{r}, v{r}, v{r} {pat} {DPP}')
    a('v_rcp_f32 v80, v80')
    a('v_cvt_pk_bf16_f32 v82, v82, v82')
    a('v_cvt_pk_bf16_f32 v83, v83, v83')
    for i in range(3): a(f'v_mul_f32 v{76+i}, v{76+i}, v80')
    for i in range(3): a(f'v_cvt_pk_bf16_f32 v{76+i}, v{76+i}, v{76+i}')
    for i in range(3): a(f'v_mov_b32_dpp v{84+i}, v{76+i} row_half_mirror {DPP}')
    first = True
    for i in range(2):
        A = build_A(f'v{82+i}')
        r = slot[('w2', i)]
        a(f'v_mfma_f32_16x16x32_bf16 v[32:35], v[{A}:{A+3}], v[{r}:{r+3}], {"0" if first else "v[32:35]"}')
        first = False
    for rg in range(6):
        A = abuf[abi[0] & 1]; abi[0] += 1
        own, oth = 76 + rg % 3, 84 + rg % 3
        lo, hi = (own, oth) if rg < 3 else (oth, own)
        a(f'v_and_b32 v{A}, v{lo}, v8'); a(f'v_and_b32 v{A+1}, v{lo}, v9')
        a(f'v_and_b32 v{A+2}, v{hi}, v10'); a(f'v_and_b32 v{A+3}, v{hi}, v11')
        r = slot[('wo', rg)]
        a(f'v_mfma_f32_16x16x32_bf16 v[32:35], v[{A}:{A+3}], v[{r}:{r+3}], v[32:35]')
    a('s_mov_b32 exec_lo, 0x03ff03ff')
    a('s_mov_b32 exec_hi, 0x03ff03ff')
    a(f'ds_write_b128 v69, v[32:35] offset:{YP}')
    a('s_mov_b64 exec, -1')
    a('s_waitcnt lgkmcnt(0)')
    a('s_barrier')
    a(f'ds_read_b128 v[20:23], v70 offset:{YP}')
    a('s_waitcnt lgkmcnt(0)')
    for pat in ('quad_perm:[1,0,3,2]', 'quad_perm:[2,3,0,1]', 'row_half_mirror'):
        for i in range(4):
            a(f'v_add_f32_dpp v{20+i}, v{20+i}, v{20+i} {pat} {DPP}')
    for i in range(4): a(f'v_min_u32 v{20+i}, -2, v{20+i}')
    a('buffer_store_dwordx4 v[20:23], v71, s[68:71], s101 offen sc1')
    stamp()
    a('s_cmp_lg_u32 s3, 0')
    a('s_cbranch_scc1 L_fin')
    a('s_cmp_ge_u32 s2, 160')
    a('s_cbranch_scc1 L_fin')
    a('L_poll2:')
    a('buffer_load_dwordx4 v[24:27], v73, s[68:71], s98 offen sc1')
    a('s_waitcnt vmcnt(0)')
    a('v_max3_u32 v84, v24, v25, v26')
    a('v_max_u32 v84, v84, v27')
    a('v_cmp_eq_u32 vcc, -1, v84')
    a('s_cbranch_vccz L_poll2d')
    a('s_sub_u32 s92, s92, 1')
    a('s_cbranch_scc0 L_poll2')
    a('s_endpgm')
    a('L_poll2d:')
    a('v_permlane16_swap_b32 v24, v25')
    a('v_permlane16_swap_b32 v26, v27')
    a('v_add_f32 v24, v24, v25')
    a('v_add_f32 v26, v26, v27')
    a('v_permlane32_swap_b32 v24, v26')
    a('v_add_f32 v24, v24, v26')
    a(f'v_add_f32_dpp v24, v24, v24 quad_perm:[2,3,0,1] {DPP}')
    a(f'v_add_f32_dpp v24, v24, v24 row_ror:4 {DPP}')
    a(f'v_add_f32_dpp v24, v24, v24 row_ror:8 {DPP}')
    a('v_cvt_pk_bf16_f32 v24, v24, v24')
    a('s_mov_b32 exec_lo, 0x00030003')
    a('s_mov_b32 exec_hi, 0x00030003')
    a('buffer_store_short v24, v74, s[72:75], s99 offen')
    a('s_mov_b64 exec, -1')
    a('L_fin:')
    if stamps:
        stamp()
        a('s_lshl_b32 s82, s2, 3')
        a('s_add_u32 s82, s82, s3')
        a('s_lshl_b32 s82, s82, 8')
        a(f's_add_u32 s82, s82, {STAMP_OFF}')
        a('v_lshlrev_b32 v5, 2, v1')
        if dbgstamps:
            a('v_not_b32 v6, v95')
            a('s_mov_b64 exec, 1')
            a('buffer_atomic_umax v6, v5, s[76:79], 0 offen offset:4 sc1')
            a(f's_mov_b64 exec, {(1 << nst[0]) - 1}')
            a('buffer_atomic_umax v95, v5, s[76:79], 0 offen offset:8 sc1')
        else:
            a('buffer_store_dword v95, v5, s[68:71], s82 offen')
    a('L_end:')
    a('s_endpgm')
    body = a.finalize()
    out = HEADER
    out += f'; @launch grid=(256,1,1) block=(512,1,1) lds={LDS_BYTES}\n'
    out += '.amdgcn_target "amdgcn-amd-amdhsa--gfx950"\n.text\n'
    out += f'.globl {KNAME}_kernel\n.p2align 8\n.type {KNAME}_kernel,@function\n'
    for l in body:
        out += (l if l.endswith(':') else '    ' + l) + '\n'
    out += f'''.section .rodata,"a"
.p2align 6
.amdhsa_kernel {KNAME}_kernel
  .amdhsa_next_free_vgpr 256
  .amdhsa_next_free_sgpr 102
  .amdhsa_accum_offset 256
  .amdhsa_group_segment_fixed_size 0
  .amdhsa_kernarg_size 104
  .amdhsa_user_sgpr_count 2
  .amdhsa_user_sgpr_kernarg_segment_ptr 1
  .amdhsa_system_sgpr_workgroup_id_x 1
  .amdhsa_float_denorm_mode_32 3
.end_amdhsa_kernel
'''
    return out

if __name__ == '__main__':
    kw = eval('dict(' + (sys.argv[2] if len(sys.argv) > 2 else '') + ')')
    open(sys.argv[1], 'w').write(gen(**kw))
```

```python
import sys, math, struct
from asmlib import Asm
KNAME = 'gated_mix__gqa_block_cached__dense_activation_mish__decode'
HEADER = open('cdna_kernels/' + KNAME + '.s.ref').read().split('; Override launch')[0]

def f2u(x): return struct.unpack('<I', struct.pack('<f', x))[0]
LOG2E = 1.4426950408889634
OOB = 0x80000000
YOFF = 256 * 1024
STAMP_OFF = 1 << 20
WS_REC = 2 << 20
QPART = 0; QBF = 16384; GV = 16896; MW = 16912; YP = 17408; OS = 848
LDS_BYTES = YP + 8 * 640 + 256

def gen(D=6, kq=2, Dq=None, burst=6, catchup=2, stamps=False, k_cache='nt', v_cache='nt', dbgstamps=False, probe=None, badmap=False, w_cache='nt', late=True, poll_cap=1 << 16, Dv=None):
    W = 8
    Dq = Dq or D
    Dv = Dv or D
    a = Asm()
    nst = [0]
    def stamp():
        if stamps:
            a('s_memrealtime s[96:97]')
            a('s_waitcnt lgkmcnt(0)')
            a(f'v_writelane_b32 v95, s96, {nst[0]}')
            nst[0] += 1
    a(f'{KNAME}_kernel:')
    a('s_cmp_ge_u32 s2, 256')
    a('s_cbranch_scc1 L_end')
    a('s_load_dwordx16 s[4:19], s[0:1], 0')
    a('s_load_dwordx8 s[20:27], s[0:1], 64')
    a('s_load_dwordx2 s[28:29], s[0:1], 96')
    if stamps:
        a('v_mov_b32 v95, 0')
        stamp()
    a('v_lshrrev_b32 v5, 6, v0')
    a('v_and_b32 v1, 63, v0')
    a('v_readfirstlane_b32 s3, v5')
    a('s_and_b32 s82, s2, 7')
    a('s_lshr_b32 s83, s2, 6')
    a('s_lshl_b32 s30, s82, 2')
    a('s_add_u32 s30, s30, s83')
    a(f's_bfe_u32 s31, s2, {3 | (3 << 16)}')
    if badmap:
        a('s_lshr_b32 s30, s2, 3')
        a('s_and_b32 s31, s2, 7')
    a('s_lshr_b32 s80, s31, 2')
    a('s_and_b32 s81, s31, 3')
    a('v_lshrrev_b32 v6, 3, v1')
    a('v_and_b32 v7, 7, v1')
    a('v_lshlrev_b32 v5, 4, v7')
    a('v_mul_u32_u24 v2, 384, v6')
    a('v_add_u32 v2, v2, v5')
    a('v_mul_u32_u24 v3, 122880, v6')
    a('v_add_u32 v3, v3, v5')
    a('v_mul_u32_u24 v4, 30720, v6')
    a('v_add_u32 v4, v4, v5')
    a('v_cmp_gt_u32 vcc, 2, v7')
    a(f'v_mov_b32 v76, {OOB}')
    a('v_cndmask_b32 v4, v76, v4, vcc')
    a('v_mul_u32_u24 v77, 20, v6')
    a('v_and_b32 v78, 15, v1')
    a('v_lshlrev_b32 v78, 1, v78')
    a('s_lshl_b32 s82, s80, 5')
    a('s_add_u32 s82, s82, s30')
    a('s_lshl_b32 s82, s82, 2')
    a('s_add_u32 s82, s82, s81')
    a('s_lshl_b32 s82, s82, 3')
    a('s_add_u32 s82, s82, s3')
    a('s_mul_i32 s82, s82, 49152')
    a('s_mul_i32 s83, s30, 384')
    a('s_mul_i32 s84, s3, 983040')
    a('s_add_u32 s83, s83, s84')
    a('s_lshl_b32 s84, s30, 2')
    a('s_add_u32 s84, s84, s81')
    a('s_mul_i32 s84, s84, 24')
    a('s_mul_i32 s85, s3, 245760')
    a('s_add_u32 s85, s85, s84')
    a('s_mul_i32 s98, s3, 160')
    a('s_mul_i32 s99, s80, 1280')
    a('s_add_u32 s99, s99, s98')
    for r in (35, 39, 43, 47, 51, 55, 59, 63, 67, 71, 75, 79):
        a(f's_mov_b32 s{r}, 0x20000')
    a('s_mov_b32 s34, 49152')
    a('s_mov_b32 s38, 49152')
    a('s_sub_u32 s42, 7864320, s83')
    a('s_sub_u32 s46, 1966080, s85')
    a('s_mov_b32 s58, 160')
    a('s_mov_b32 s62, 160')
    a('s_sub_u32 s66, 3072, s84')
    a(f's_mov_b32 s70, {WS_REC}')
    a('s_mov_b32 s74, 2560')
    a('s_mov_b32 s78, 256')
    a('s_mov_b32 s89, 0x01000100')
    a('s_mov_b32 s90, 0x03020302')
    a(f's_mov_b32 s91, {f2u(LOG2E / math.sqrt(192.0))}')
    a('s_lshl_b32 s100, s30, 3')
    a('s_add_u32 s100, s100, s31')
    a('s_lshl_b32 s100, s100, 10')
    a('s_lshl_b32 s101, s31, 5')
    a('s_add_u32 s101, s101, s30')
    a('s_mul_i32 s101, s101, 640')
    a(f's_add_u32 s101, s101, {YOFF}')
    a('s_waitcnt lgkmcnt(0)')
    def srd(r, p, off):
        if off is None:
            a(f's_mov_b32 s{r}, s{p}'); a(f's_mov_b32 s{r+1}, s{p+1}')
        else:
            a(f's_add_u32 s{r}, s{p}, {off}'); a(f's_addc_u32 s{r+1}, s{p+1}, 0')
    srd(56, 4, 's99'); srd(40, 10, 's83'); srd(32, 6, 's82'); srd(44, 16, 's85')
    free = list(range(96, 256, 4))
    slot = {}
    def alloc(tag):
        r = free.pop(0); slot[tag] = r; return r
    def release(tag):
        free.append(slot[tag])
    a.vmem('buffer_load_dwordx4 v[64:67], v77, s[56:59], 0 offen', 'x0')
    a.vmem('buffer_load_dword v68, v77, s[56:59], 0 offen offset:16', 'x1')
    cur = {'kv': None, 'wq': None, 'w1': None}
    def setoff(key, sreg, val):
        if val == 0: return '0'
        if cur[key] != val:
            a(f's_mov_b32 {sreg}, {val}'); cur[key] = val
        return sreg
    def issue(tag):
        kind = tag[0]
        r = alloc(tag)
        if kind == 'wq':
            so = setoff('wq', 's87', tag[1] * 12288)
            a.vmem(f'buffer_load_dwordx4 v[{r}:{r+3}], v3, s[40:43], {so} offen offset:{tag[2]*128} {w_cache}', tag)
        elif kind == 'w1':
            so = setoff('w1', 's88', tag[1] * 3072)
            a.vmem(f'buffer_load_dwordx4 v[{r}:{r+3}], v4, s[44:47], {so} offen {w_cache}', tag)
        elif kind in ('k', 'v'):
            so = setoff('kv', 's86', tag[1] * 3072)
            s0 = 32 if kind == 'k' else 36
            a.vmem(f'buffer_load_dwordx4 v[{r}:{r+3}], v2, s[{s0}:{s0+3}], {so} offen offset:{tag[2]*128} {k_cache if kind == "k" else v_cache}', tag)
        elif kind == 'wo':
            rg = tag[1]
            if rg < 4: so, im = '0', rg * 1280
            else: so, im = setoff('wq', 's87', 5120), (rg - 4) * 1280
            a.vmem(f'buffer_load_dwordx4 v[{r}:{r+3}], v3, s[48:51], {so} offen offset:{im} {w_cache}', tag)
        elif kind == 'w2':
            a.vmem(f'buffer_load_dwordx4 v[{r}:{r+3}], v4, s[52:55], 0 offen offset:{tag[1]*1280} {w_cache}', tag)
    kl = [('k', k, s) for k in range(16) for s in range(3)]
    vl = [('v', k, s) for k in range(16) for s in range(3)]
    ql = []
    ki = 0
    for t in range(10):
        grp = [('wq', t, 0), ('wq', t, 1), ('wq', t, 2), ('w1', t)]
        pos = [int((i + 1) * 4 / kq) for i in range(kq)] if kq else []
        for i in range(4):
            ql.append(grp[i])
            for p in pos:
                if p == i + 1:
                    ql.append(kl[ki]); ki += 1
    rest = kl[ki:] + vl
    NPRE = min(Dq - 2, 4)
    for tag in ql[:NPRE]: issue(tag)
    ql = ql[NPRE:]
    srd(60, 22, 's98'); srd(64, 18, 's84'); srd(36, 8, 's82'); srd(68, 28, None); srd(72, 24, None); srd(76, 26, None)
    a.vmem('buffer_load_dwordx4 v[70:73], v77, s[60:63], 0 offen', 'g0')
    a.vmem('buffer_load_dword v74, v77, s[60:63], 0 offen offset:16', 'g1')
    a.vmem('buffer_load_ushort v75, v78, s[64:67], 0 offen', 'b1')
    a('s_cmp_gt_u32 s3, 1')
    a('s_cbranch_scc1 L_noinit')
    a('s_cmp_eq_u32 s3, 0')
    a('s_cselect_b32 s82, s100, s101')
    a('s_cselect_b32 s83, 64, 40')
    a('v_lshlrev_b32 v79, 4, v1')
    a('v_add_u32 v79, s82, v79')
    a('v_cmp_gt_u32 vcc, s83, v1')
    a('v_cndmask_b32 v79, v76, v79, vcc')
    a('v_mov_b32 v80, -1'); a('v_mov_b32 v81, -1'); a('v_mov_b32 v82, -1'); a('v_mov_b32 v83, -1')
    a('buffer_store_dwordx4 v[80:83], v79, s[68:71], 0 offen sc1')
    a('L_noinit:')
    a('v_and_b32 v84, 1, v1')
    a('v_lshlrev_b32 v84, 4, v84')
    a('v_mov_b32 v85, 0xffff')
    a('v_lshlrev_b32 v84, v84, v85')
    a('v_bfe_u32 v85, v1, 1, 2')
    for r in range(4):
        a(f'v_cmp_eq_u32 vcc, {r}, v85')
        a(f'v_cndmask_b32 v{8+r}, 0, v84, vcc')
    a('s_mul_i32 s82, s30, 192')
    a('s_mul_i32 s83, s3, 24')
    a('s_add_u32 s82, s82, s83')
    a('s_mul_i32 s82, s82, 1280')
    a('s_mul_i32 s83, s31, 160')
    a('s_add_u32 s82, s82, s83')
    srd(48, 12, 's82')
    a('s_sub_u32 s50, 7864320, s82')
    a('s_mul_i32 s82, s30, 48')
    a('s_mul_i32 s84, s3, 6')
    a('s_add_u32 s82, s82, s84')
    a('s_mul_i32 s82, s82, 1280')
    a('s_add_u32 s82, s82, s83')
    srd(52, 20, 's82')
    a('s_sub_u32 s54, 1966080, s82')

    abuf = [12, 16]; abi = [0]
    def build_A(src):
        A = abuf[abi[0] & 1]; abi[0] += 1
        for r in range(4):
            a(f'v_and_b32 v{A+r}, {src}, v{8+r}')
        return A
    def task_q(t):
        a(f'v_perm_b32 v5, v{64 + t//2}, v{64 + t//2}, s{89 + (t & 1)}')
        A = build_A('v5')
        for s in range(4):
            tag = ('wq', t, s) if s < 3 else ('w1', t)
            r = slot[tag]; acc = 20 + 4 * s
            c = '0' if t == 0 else f'v[{acc}:{acc+3}]'
            a(f'v_mfma_f32_16x16x32_bf16 v[{acc}:{acc+3}], v[{A}:{A+3}], v[{r}:{r+3}], {c}')
            release(tag)
    def task_k(k):
        S = 48 + k
        first = True
        for s in range(3):
            r = slot[('k', k, s)]
            for i in range(4):
                c = '0' if first else f'v{S}'
                a(f'v_dot2_f32_bf16 v{S}, v{r+i}, v{36 + s*4 + i}, {c}')
                first = False
            release(('k', k, s))
    def task_v(k):
        A = build_A(f'v{48+k}')
        for s in range(3):
            r = slot[('v', k, s)]; acc = 20 + 4 * s
            c = '0' if k == 0 else f'v[{acc}:{acc+3}]'
            a(f'v_mfma_f32_16x16x32_bf16 v[{acc}:{acc+3}], v[{A}:{A+3}], v[{r}:{r+3}], {c}')
            release(('v', k, s))
    DPP = 'row_mask:0xf bank_mask:0xf'
    def xlane(op, v, tmp):
        a(f'{op}_dpp v{v}, v{v}, v{v} row_ror:8 {DPP}')
        a(f'v_mov_b32 v{tmp}, v{v}')
        a(f'v_permlane16_swap_b32 v{v}, v{tmp}')
        a(f'{op} v{v}, v{v}, v{tmp}')
        a(f'v_mov_b32 v{tmp}, v{v}')
        a(f'v_permlane32_swap_b32 v{v}, v{tmp}')
        a(f'{op} v{v}, v{v}, v{tmp}')
    def task_softmax_a():
        for pat in ('quad_perm:[1,0,3,2]', 'quad_perm:[2,3,0,1]', 'row_half_mirror'):
            for k in range(16):
                a(f'v_add_f32_dpp v{48+k}, v{48+k}, v{48+k} {pat} {DPP}')
    def task_softmax_b():
        a('v_max3_f32 v76, v48, v49, v50')
        for k in range(3, 15, 2):
            a(f'v_max3_f32 v76, v76, v{48+k}, v{49+k}')
        a('v_max_f32 v76, v76, v63')
        xlane('v_max_f32', 76, 77)
        a('v_mul_f32 v92, s91, v76')
        for k in range(16):
            a(f'v_fma_f32 v{48+k}, v{48+k}, s91, -v92')
        for k in range(16):
            a(f'v_exp_f32 v{48+k}, v{48+k}')
        a('v_add_f32 v93, v48, v49')
        for k in range(2, 16):
            a(f'v_add_f32 v93, v93, v{48+k}')
        for k in range(16):
            a(f'v_mul_f32 v{48+k}, v{48+k}, v94')
        for k in range(16):
            a(f'v_cvt_pk_bf16_f32 v{48+k}, v{48+k}, v{48+k}')
        xlane('v_add_f32', 93, 77)
    def run(issue_list, tasks, win, per_issue):
        for tag in issue_list:
            while not free:
                fn, needs = tasks.pop(0)
                for n in needs: a.wait_tag(n)
                fn()
            a.wait_out(win - 1)
            issue(tag)
            n = 0
            while tasks and n < per_issue and all(a.issued(x) and a.is_done(x) for x in tasks[0][1]):
                fn, needs = tasks.pop(0); fn(); n += 1
    def drain(tasks):
        while tasks:
            fn, needs = tasks.pop(0)
            for n in needs: a.wait_tag(n)
            fn()
    def task_gate():
        a('v_dot2_f32_bf16 v69, v64, v70, 0')
        for i in range(1, 5):
            a(f'v_dot2_f32_bf16 v69, v{64+i}, v{70+i}, v69')
    qtasks = [(task_gate, ['x0', 'x1', 'g0', 'g1', 'b1'])]
    qtasks += [((lambda t=t: task_q(t)), [('wq', t, 0), ('wq', t, 1), ('wq', t, 2), ('w1', t)]) for t in range(10)]
    run(ql, qtasks, Dq, 2)
    lastq = ('w1', 9)
    for tag in rest[:burst]: issue(tag)
    rest = rest[burst:]
    a('v_lshrrev_b32 v76, 5, v1')
    a('s_lshl_b32 s82, s3, 1')
    a('v_add_u32 v76, s82, v76')
    a('v_lshlrev_b32 v77, 5, v7')
    a('v_bfe_u32 v78, v1, 4, 1')
    a('v_lshl_add_u32 v77, v78, 4, v77')
    a('v_lshl_add_u32 v86, v76, 10, v77')
    a(f'v_mul_u32_u24 v87, {OS}, v76')
    a('v_add_u32 v87, v87, v77')
    a('v_and_b32 v78, 1, v6')
    a('v_add_u32 v78, s82, v78')
    a('v_lshlrev_b32 v78, 10, v78')
    a('v_lshrrev_b32 v79, 1, v6')
    a('v_lshl_add_u32 v78, v79, 2, v78')
    drain(qtasks)
    stamp()
    a('s_mov_b32 exec_lo, 0x00ff00ff')
    a('s_mov_b32 exec_hi, 0xff00ff00')
    for s in range(4):
        a(f'ds_write_b128 v86, v[{20+4*s}:{23+4*s}] offset:{s*256}')
    a('s_mov_b32 exec_lo, 0x01010101')
    a('s_mov_b32 exec_hi, 0x01010101')
    a('ds_write_b32 v78, v69 offset:832')
    a('s_mov_b64 exec, -1')
    a('s_waitcnt lgkmcnt(0)')
    a('s_barrier')
    a('s_cmp_ge_u32 s3, 4')
    a('s_cbranch_scc1 L_b2')
    a('v_lshlrev_b32 v5, 2, v0')
    for k in range(8):
        a(f'ds_read2st64_b32 v[{20+2*k}:{21+2*k}], v5 offset0:{8*k} offset1:{8*k+4}')
    a('s_cmp_lg_u32 s3, 0')
    a('s_cbranch_scc1 L_noatom')
    a('v_mov_b32 v76, 1')
    a('s_mov_b64 exec, 1')
    a('buffer_atomic_add v76, off, s[76:79], 0 sc1')
    a('s_mov_b64 exec, -1')
    a('L_noatom:')
    a('v_lshlrev_b32 v5, 1, v0')
    a('s_waitcnt lgkmcnt(0)')
    for st in (1, 2, 4, 8):
        for k in range(0, 16, 2 * st):
            a(f'v_add_f32 v{20+k}, v{20+k}, v{20+k+st}')
    a('v_cvt_pk_bf16_f32 v21, v20, v20')
    a(f'ds_write_b16 v5, v21 offset:{QBF}')
    a('s_cmp_lg_u32 s3, 3')
    a('s_cbranch_scc1 L_b2w')
    a(f'v_add_f32_dpp v22, v20, v20 quad_perm:[1,0,3,2] {DPP}')
    a(f'v_add_f32_dpp v22, v22, v22 quad_perm:[2,3,0,1] {DPP}')
    a('v_cvt_pk_bf16_f32 v22, v22, v22')
    a('v_and_b32 v22, 0xffff0000, v22')
    a(f'v_mul_f32 v22, {f2u(-LOG2E)}, v22')
    a('v_exp_f32 v22, v22')
    a('v_add_f32 v22, 1.0, v22')
    a('v_rcp_f32 v22, v22')
    a('v_cvt_pk_bf16_f32 v22, v22, v22')
    a('v_and_b32 v22, 0xffff0000, v22')
    a('v_readlane_b32 s82, v22, 16')
    a('v_mov_b32 v22, s82')
    a('v_sub_f32 v23, 1.0, v22')
    a('v_cvt_pk_bf16_f32 v23, v23, v23')
    a('v_and_b32 v23, 0xffff0000, v23')
    a('v_mov_b32 v24, 0')
    a(f'ds_write_b32 v24, v22 offset:{GV}')
    a('v_and_b32 v21, 0xffff0000, v21')
    a('v_lshlrev_b32 v75, 16, v75')
    a('v_add_f32 v21, v21, v75')
    a('v_cvt_pk_bf16_f32 v21, v21, v21')
    a('v_and_b32 v21, 0xffff0000, v21')
    a(f's_mov_b32 s83, {f2u(-LOG2E)}')
    a('v_mul_f32 v25, s83, abs(v21)')
    a('v_exp_f32 v25, v25')
    a('v_mul_f32 v26, v25, v25')
    a('v_cmp_lt_f32 vcc, 0, v21')
    a('v_cndmask_b32 v27, v26, 1.0, vcc')
    a('v_cndmask_b32 v28, 1.0, v26, vcc')
    a('v_fma_f32 v27, v25, 2.0, v27')
    a('v_fma_f32 v28, v28, 2.0, v27')
    a('v_rcp_f32 v28, v28')
    a('v_mul_f32 v27, v27, v21')
    a('v_mul_f32 v27, v27, v28')
    a('v_cvt_pk_bf16_f32 v27, v27, v27')
    a('v_and_b32 v27, 0xffff0000, v27')
    a('v_mul_f32 v27, v27, v23')
    a('v_min_u32 v27, -2, v27')
    a('v_lshlrev_b32 v28, 2, v1')
    a('s_mov_b64 exec, 0xfff')
    a('buffer_store_dword v27, v28, s[68:71], s100 offen offset:784 sc1')
    a('s_mov_b64 exec, -1')
    a('L_b2w:')
    a('s_waitcnt lgkmcnt(0)')
    a('L_b2:')
    a('s_barrier')
    a('v_lshlrev_b32 v5, 4, v7')
    for s in range(3):
        a(f'ds_read_b128 v[{36+4*s}:{39+4*s}], v5 offset:{QBF + s*128}')
    a('v_mov_b32 v24, 0')
    a(f'ds_read_b32 v94, v24 offset:{GV}')
    a('v_and_b32 v76, 15, v1')
    a('v_lshrrev_b32 v77, 4, v1')
    a('v_mul_u32_u24 v3, 7680, v77')
    a('v_lshl_add_u32 v3, v76, 4, v3')
    a('v_mul_u32_u24 v4, 2560, v77')
    a('v_lshl_add_u32 v4, v76, 4, v4')
    a(f'v_mov_b32 v78, {OOB}')
    a('v_cmp_gt_u32 vcc, 10, v76')
    a('v_cndmask_b32 v3, v78, v3, vcc')
    a('v_cndmask_b32 v4, v78, v4, vcc')
    a('v_cmp_gt_u32 vcc, 3, v77')
    a('v_cndmask_b32 v4, v78, v4, vcc')
    a('s_waitcnt lgkmcnt(0)')
    stamp()
    tasks = [((lambda k=k: task_k(k)), [('k', k, s) for s in range(3)]) for k in range(16)]
    tasks += [(task_softmax_a, []), (task_softmax_b, [])]
    if stamps: tasks += [(stamp, [])]
    def task_addr():
        a('v_lshrrev_b32 v77, 4, v1')
        a(f'v_mov_b32 v78, {OOB}')
        a('s_mul_i32 s82, s3, 6')
        a('v_add_u32 v76, s82, v6')
        a('v_cmp_gt_u32 vcc, 6, v6')
        a('v_cndmask_b32 v76, 48, v76, vcc')
        a('v_lshlrev_b32 v76, 4, v76')
        a(f'v_mul_u32_u24 v64, {2*OS}, v7')
        a('v_add_u32 v64, v64, v76')
        a('s_cmp_eq_u32 s3, 0')
        a('s_cselect_b32 s83, 7, 6')
        a('v_cmp_gt_u32 vcc, s83, v6')
        a('v_cndmask_b32 v65, v78, v76, vcc')
        a('v_cmp_eq_u32 vcc, 0, v7')
        a('v_cndmask_b32 v65, v78, v65, vcc')
        a('v_and_b32 v76, 1, v6')
        a('v_lshlrev_b32 v76, 12, v76')
        a('v_and_b32 v79, 3, v1')
        a('v_lshl_add_u32 v67, v79, 10, v76')
        a('v_bfe_u32 v79, v1, 2, 1')
        a('v_mul_u32_u24 v79, 12, v79')
        a('v_mul_u32_u24 v80, 24, v77')
        a('v_add3_u32 v66, v67, v79, v80')
        a('s_mul_i32 s82, s3, 96')
        a('v_add_u32 v66, s82, v66')
        a('s_lshr_b32 s82, s3, 1')
        a('s_lshl_b32 s82, s82, 10')
        a('s_and_b32 s83, s3, 1')
        a('s_mul_i32 s83, s83, 24')
        a('s_add_u32 s82, s82, s83')
        a('v_lshl_add_u32 v68, v77, 3, v76')
        a('v_add_u32 v68, s82, v68')
        a('v_cmp_gt_u32 vcc, 3, v77')
        a('v_cndmask_b32 v68, v78, v68, vcc')
        a('s_lshl_b32 s93, s30, 13')
        a('v_and_b32 v76, 15, v1')
        a('v_lshlrev_b32 v76, 5, v76')
        a('v_lshrrev_b32 v79, 5, v1')
        a('v_mul_u32_u24 v79, 320, v79')
        a('v_and_b32 v80, 1, v77')
        a('v_lshlrev_b32 v80, 4, v80')
        a('v_add3_u32 v69, v76, v79, v80')
        a('s_mul_i32 s82, s3, 640')
        a('v_add_u32 v69, s82, v69')
        a('s_mul_i32 s82, s3, 5')
        a('v_add_u32 v76, s82, v6')
        a('v_lshlrev_b32 v76, 4, v76')
        a('v_mul_u32_u24 v70, 640, v7')
        a('v_add_u32 v70, v70, v76')
        a('v_cmp_gt_u32 vcc, 5, v6')
        a('v_cndmask_b32 v71, v78, v76, vcc')
        a('v_cmp_eq_u32 vcc, 0, v7')
        a('v_cndmask_b32 v71, v78, v71, vcc')
        a('v_lshlrev_b32 v72, 2, v7')
        a('s_lshl_b32 s82, s3, 2')
        a('v_mov_b32 v76, s82')
        a(f'ds_write_b32 v76, v92 offset:{MW}')
        a('v_mov_b32 v76, v93')
        a('v_writelane_b32 v76, 0, 40')
        a('v_mov_b32 v77, 0'); a('v_mov_b32 v78, 0'); a('v_mov_b32 v79, 0')
        a('s_mov_b32 exec_lo, 1')
        a('s_mov_b32 exec_hi, 0x100')
        a('ds_write_b128 v87, v[76:79] offset:768')
        a('s_mov_b64 exec, -1')
        a('s_mul_i32 s82, s2, 205')
        a('s_lshr_b32 s82, s82, 12')
        a('s_mul_i32 s83, s82, 20')
        a('s_sub_u32 s83, s2, s83')
        a('s_mul_i32 s84, s82, 20480')
        a('s_lshl_b32 s85, s83, 5')
        a('s_add_u32 s84, s84, s85')
        a(f's_add_u32 s98, s84, {YOFF}')
        a('v_lshrrev_b32 v73, 1, v1')
        a('v_mul_u32_u24 v73, 640, v73')
        a('v_and_b32 v76, 1, v1')
        a('v_lshl_add_u32 v73, v76, 4, v73')
        a('s_cmp_ge_u32 s83, 10')
        a('s_cselect_b32 s84, 1120, 0')
        a('s_lshl_b32 s85, s83, 4')
        a('s_add_u32 s84, s84, s85')
        a('s_mul_i32 s85, s82, 160')
        a('s_add_u32 s99, s84, s85')
        a('v_lshlrev_b32 v74, 3, v76')
        a('v_lshrrev_b32 v77, 4, v1')
        a('v_lshl_add_u32 v74, v77, 1, v74')
    tasks += [(task_addr, [])]
    tasks += [((lambda k=k: task_v(k)), [('v', k, s) for s in range(3)]) for k in range(16)]
    wl = [('wo', rg) for rg in range(6)] + [('w2', i) for i in range(2)]
    if late:
        full = rest + wl
    else:
        n = len(rest) - 30
        full = rest[:n] + wl + rest[n:]
    nk = sum(1 for t in rest if t[0] == 'k')
    run(full[:nk], tasks, D, catchup)
    run(full[nk:], tasks, Dv, catchup)
    a.vmem('buffer_load_dword v75, off, s[76:79], 0 sc1', 'cnt')
    drain(tasks)
    stamp()
    a('s_mov_b32 exec_lo, 0x00ff00ff')
    a('s_mov_b32 exec_hi, 0xff00ff00')
    for s in range(3):
        a(f'ds_write_b128 v87, v[{20+4*s}:{23+4*s}] offset:{s*256}')
    a('s_mov_b64 exec, -1')
    a('s_waitcnt lgkmcnt(0)')
    a('s_barrier')
    a(f'ds_read_b32 v76, v72 offset:{MW}')
    a('ds_read_b128 v[20:23], v64')
    a(f'ds_read_b128 v[24:27], v64 offset:{OS}')
    a('s_waitcnt lgkmcnt(2)')
    a(f'v_max_f32_dpp v77, v76, v76 quad_perm:[1,0,3,2] {DPP}')
    a(f'v_max_f32_dpp v77, v77, v77 quad_perm:[2,3,0,1] {DPP}')
    a(f'v_max_f32_dpp v77, v77, v77 row_half_mirror {DPP}')
    a('v_sub_f32 v76, v76, v77')
    a('v_exp_f32 v76, v76')
    a('s_waitcnt lgkmcnt(0)')
    for i in range(4): a(f'v_add_f32 v{20+i}, v{20+i}, v{24+i}')
    for i in range(4): a(f'v_mul_f32 v{20+i}, v{20+i}, v76')
    for pat in ('quad_perm:[1,0,3,2]', 'quad_perm:[2,3,0,1]', 'row_half_mirror'):
        for i in range(4):
            a(f'v_add_f32_dpp v{20+i}, v{20+i}, v{20+i} {pat} {DPP}')
    a('v_cmp_lt_u32 vcc, 5, v6')
    a('v_cndmask_b32 v21, v21, v77, vcc')
    for i in range(4): a(f'v_min_u32 v{20+i}, -2, v{20+i}')
    a.vmem('buffer_store_dwordx4 v[20:23], v65, s[68:71], s100 offen sc1', 'opub')
    stamp()
    a.wait_tag('cnt')
    a(f's_mov_b32 s92, {poll_cap}')
    a('L_cnt:')
    a('v_readfirstlane_b32 s82, v75')
    a('s_cmp_ge_u32 s82, 256')
    a('s_cbranch_scc1 L_poll1')
    a('buffer_load_dword v75, off, s[76:79], 0 sc1')
    a('s_waitcnt vmcnt(0)')
    a('s_sub_u32 s92, s92, 1')
    a('s_cbranch_scc0 L_cnt')
    a('s_endpgm')
    a('L_poll1:')
    a('buffer_load_dwordx3 v[76:78], v66, s[68:71], s93 offen sc1')
    a('buffer_load_dwordx2 v[80:81], v67, s[68:71], s93 offen offset:768 sc1')
    a('buffer_load_dwordx2 v[82:83], v68, s[68:71], s93 offen offset:784 sc1')
    a('s_waitcnt vmcnt(0)')
    a('v_max3_u32 v84, v76, v77, v78')
    a('v_max3_u32 v84, v84, v80, v81')
    a('v_max3_u32 v84, v84, v82, v83')
    a('v_cmp_eq_u32 vcc, -1, v84')
    a('s_cbranch_vccz L_poll1d')
    a('s_sub_u32 s92, s92, 1')
    a('s_cbranch_scc0 L_poll1')
    a('s_endpgm')
    a('L_poll1d:')
    a.vm_done = len(a.vm)
    stamp()
    a(f'v_max_f32_dpp v84, v81, v81 quad_perm:[1,0,3,2] {DPP}')
    a(f'v_max_f32_dpp v84, v84, v84 quad_perm:[2,3,0,1] {DPP}')
    a('v_sub_f32 v81, v81, v84')
    a('v_exp_f32 v81, v81')
    a('v_mul_f32 v80, v80, v81')
    for i in range(3): a(f'v_mul_f32 v{76+i}, v{76+i}, v81')
    for pat in ('quad_perm:[1,0,3,2]', 'quad_perm:[2,3,0,1]'):
        for r in (80, 76, 77, 78):
            a(f'v_add_f32_dpp v{r}, v{r}, v{r} {pat} {DPP}')
    a('v_rcp_f32 v80, v80')
    a('v_cvt_pk_bf16_f32 v82, v82, v82')
    a('v_cvt_pk_bf16_f32 v83, v83, v83')
    for i in range(3): a(f'v_mul_f32 v{76+i}, v{76+i}, v80')
    for i in range(3): a(f'v_cvt_pk_bf16_f32 v{76+i}, v{76+i}, v{76+i}')
    for i in range(3): a(f'v_mov_b32_dpp v{84+i}, v{76+i} row_half_mirror {DPP}')
    first = True
    for i in range(2):
        A = build_A(f'v{82+i}')
        r = slot[('w2', i)]
        a(f'v_mfma_f32_16x16x32_bf16 v[32:35], v[{A}:{A+3}], v[{r}:{r+3}], {"0" if first else "v[32:35]"}')
        first = False
    for rg in range(6):
        A = abuf[abi[0] & 1]; abi[0] += 1
        own, oth = 76 + rg % 3, 84 + rg % 3
        lo, hi = (own, oth) if rg < 3 else (oth, own)
        a(f'v_and_b32 v{A}, v{lo}, v8'); a(f'v_and_b32 v{A+1}, v{lo}, v9')
        a(f'v_and_b32 v{A+2}, v{hi}, v10'); a(f'v_and_b32 v{A+3}, v{hi}, v11')
        r = slot[('wo', rg)]
        a(f'v_mfma_f32_16x16x32_bf16 v[32:35], v[{A}:{A+3}], v[{r}:{r+3}], v[32:35]')
    a('s_mov_b32 exec_lo, 0x03ff03ff')
    a('s_mov_b32 exec_hi, 0x03ff03ff')
    a(f'ds_write_b128 v69, v[32:35] offset:{YP}')
    a('s_mov_b64 exec, -1')
    a('s_waitcnt lgkmcnt(0)')
    a('s_barrier')
    a(f'ds_read_b128 v[20:23], v70 offset:{YP}')
    a('s_waitcnt lgkmcnt(0)')
    for pat in ('quad_perm:[1,0,3,2]', 'quad_perm:[2,3,0,1]', 'row_half_mirror'):
        for i in range(4):
            a(f'v_add_f32_dpp v{20+i}, v{20+i}, v{20+i} {pat} {DPP}')
    for i in range(4): a(f'v_min_u32 v{20+i}, -2, v{20+i}')
    a('buffer_store_dwordx4 v[20:23], v71, s[68:71], s101 offen sc1')
    stamp()
    a('s_cmp_lg_u32 s3, 0')
    a('s_cbranch_scc1 L_fin')
    a('s_cmp_ge_u32 s2, 160')
    a('s_cbranch_scc1 L_fin')
    a('L_poll2:')
    a('buffer_load_dwordx4 v[24:27], v73, s[68:71], s98 offen sc1')
    a('s_waitcnt vmcnt(0)')
    a('v_max3_u32 v84, v24, v25, v26')
    a('v_max_u32 v84, v84, v27')
    a('v_cmp_eq_u32 vcc, -1, v84')
    a('s_cbranch_vccz L_poll2d')
    a('s_sub_u32 s92, s92, 1')
    a('s_cbranch_scc0 L_poll2')
    a('s_endpgm')
    a('L_poll2d:')
    a('v_permlane16_swap_b32 v24, v25')
    a('v_permlane16_swap_b32 v26, v27')
    a('v_add_f32 v24, v24, v25')
    a('v_add_f32 v26, v26, v27')
    a('v_permlane32_swap_b32 v24, v26')
    a('v_add_f32 v24, v24, v26')
    a(f'v_add_f32_dpp v24, v24, v24 quad_perm:[2,3,0,1] {DPP}')
    a(f'v_add_f32_dpp v24, v24, v24 row_ror:4 {DPP}')
    a(f'v_add_f32_dpp v24, v24, v24 row_ror:8 {DPP}')
    a('v_cvt_pk_bf16_f32 v24, v24, v24')
    a('s_mov_b32 exec_lo, 0x00030003')
    a('s_mov_b32 exec_hi, 0x00030003')
    a('buffer_store_short v24, v74, s[72:75], s99 offen')
    a('s_mov_b64 exec, -1')
    a('L_fin:')
    if stamps:
        stamp()
        a('s_lshl_b32 s82, s2, 3')
        a('s_add_u32 s82, s82, s3')
        a('s_lshl_b32 s82, s82, 8')
        a(f's_add_u32 s82, s82, {STAMP_OFF}')
        a('v_lshlrev_b32 v5, 2, v1')
        if probe is not None:
            i, K, base = probe
            a('v_readlane_b32 s82, v95, 0')
            a(f'v_readlane_b32 s83, v95, {i}')
            a('s_sub_u32 s83, s83, s82')
            a(f's_mul_i32 s83, s83, {K}')
            a(f's_add_u32 s83, s83, {base}')
            a('L_spin:')
            a('s_sleep 2')
            a('s_memrealtime s[96:97]')
            a('s_waitcnt lgkmcnt(0)')
            a('s_sub_u32 s84, s96, s82')
            a('s_cmp_lt_u32 s84, s83')
            a('s_cbranch_scc1 L_spin')
        elif dbgstamps:
            a('v_not_b32 v6, v95')
            a('s_mov_b64 exec, 1')
            a('buffer_atomic_umax v6, v5, s[76:79], 0 offen offset:4 sc1')
            a(f's_mov_b64 exec, {(1 << nst[0]) - 1}')
            a('buffer_atomic_umax v95, v5, s[76:79], 0 offen offset:8 sc1')
        else:
            a('buffer_store_dword v95, v5, s[68:71], s82 offen')
    a('L_end:')
    a('s_endpgm')
    body = a.finalize()
    out = HEADER
    out += f'; @launch grid=(256,1,1) block=(512,1,1) lds={LDS_BYTES}\n'
    out += '.amdgcn_target "amdgcn-amd-amdhsa--gfx950"\n.text\n'
    out += f'.globl {KNAME}_kernel\n.p2align 8\n.type {KNAME}_kernel,@function\n'
    for l in body:
        out += (l if l.endswith(':') else '    ' + l) + '\n'
    out += f'''.section .rodata,"a"
.p2align 6
.amdhsa_kernel {KNAME}_kernel
  .amdhsa_next_free_vgpr 256
  .amdhsa_next_free_sgpr 102
  .amdhsa_accum_offset 256
  .amdhsa_group_segment_fixed_size 0
  .amdhsa_kernarg_size 104
  .amdhsa_user_sgpr_count 2
  .amdhsa_user_sgpr_kernarg_segment_ptr 1
  .amdhsa_system_sgpr_workgroup_id_x 1
  .amdhsa_float_denorm_mode_32 3
.end_amdhsa_kernel
'''
    return out

if __name__ == '__main__':
    kw = eval('dict(' + (sys.argv[2] if len(sys.argv) > 2 else '') + ')')
    open(sys.argv[1], 'w').write(gen(**kw))
```

```python
import sys, math, struct
from asmlib import Asm
KNAME = 'gated_mix__gqa_block_cached__dense_activation_mish__decode'
HEADER = open('cdna_kernels/' + KNAME + '.s.ref').read().split('; Override launch')[0]

def f2u(x): return struct.unpack('<I', struct.pack('<f', x))[0]
LOG2E = 1.4426950408889634
OOB = 0x80000000
QOFF = 0
OOFF = 512 * 1024
YOFF = 768 * 1024
EOFF = 960 * 1024
MBOX = 964 * 1024
STAMP_OFF = 1 << 20
FAST = 2 << 20
WS_REC = 4 << 20
TM = 0x3ff
OS = 848
QBF = 16 * OS
ACT = QBF + 512
GV = ACT + 512
FLAG = GV + 128
CNT = FLAG + 4
MW = FLAG + 16
YP = MW + 64
LDS_BYTES = YP + 8 * 640 + 256
DPP = 'row_mask:0xf bank_mask:0xf'
RED8 = ('quad_perm:[1,0,3,2]', 'quad_perm:[2,3,0,1]', 'row_half_mirror')
NV = 168

def gen(D=3, Dv=None, nb=30, catchup=2, stamps=False, k_cache='nt', v_cache='nt', w_cache='nt',
        late=0, poll_cap=1 << 18, probe=None, rot=True, hwin=24, hprio=0, fastq=True, fasto=True, nfast=48, psleep=0, qsleep=4, prio=0, Dend=None, nend=0, qind=True, Dpat=None, wo_cache=None, ymap=True, xchk=True, Dx=None, ctl=True, levels=((-4, 3), (13, 2)), Dmax=4, comp=14, gsh=0, xbox=True, cstart=6, csleep=0, cend=712, nlate=8, wv=None, np2=1, p2gap=0, early2=False, ypre=0, D0=None, n0=0, psleep2=0):
    Dv = Dv or D
    if wo_cache is None: wo_cache = w_cache
    a = Asm()
    nst = [0]
    VST = 167
    def stamp(i=None):
        if stamps:
            if i is None: i = nst[0]
            nst[0] = i + 1
            a('s_memrealtime s[96:97]')
            a('s_waitcnt lgkmcnt(0)')
            a(f'v_writelane_b32 v{VST}, s96, {i}')
    def srd(r, p, off):
        if off is None:
            a(f's_mov_b32 s{r}, s{p}'); a(f's_mov_b32 s{r+1}, s{p+1}')
        else:
            a(f's_add_u32 s{r}, s{p}, {off}'); a(f's_addc_u32 s{r+1}, s{p+1}, 0')
    def xlane(op, v, tmp):
        a(f'{op}_dpp v{v}, v{v}, v{v} row_ror:8 {DPP}')
        a(f'v_mov_b32 v{tmp}, v{v}')
        a(f'v_permlane16_swap_b32 v{v}, v{tmp}')
        a(f'{op} v{v}, v{v}, v{tmp}')
        a(f'v_mov_b32 v{tmp}, v{v}')
        a(f'v_permlane32_swap_b32 v{v}, v{tmp}')
        a(f'{op} v{v}, v{v}, v{tmp}')
    def masks(M, t0, t1):
        a(f'v_and_b32 v{t0}, 1, v1')
        a(f'v_lshlrev_b32 v{t0}, 4, v{t0}')
        a(f'v_mov_b32 v{t1}, 0xffff')
        a(f'v_lshlrev_b32 v{t0}, v{t0}, v{t1}')
        a(f'v_bfe_u32 v{t1}, v1, 1, 2')
        for r in range(4):
            a(f'v_cmp_eq_u32 vcc, {r}, v{t1}')
            a(f'v_cndmask_b32 v{M+r}, 0, v{t0}, vcc')
    def ws_srd_and_recs():
        srd(68, 28, None)
        a(f's_mov_b32 s70, {WS_REC}')
        a('s_mov_b32 s71, 0x20000')
        a('s_lshl_b32 s99, s30, 3')
        a('s_add_u32 s99, s99, s31')
        a('s_lshl_b32 s100, s99, 10')
        a(f's_add_u32 s100, s100, {OOFF}')
        a('s_lshl_b32 s99, s99, 11')
        a('s_lshl_b32 s101, s31, 5')
        a('s_add_u32 s101, s101, s30')
        a('s_mul_i32 s101, s101, 640')
        a(f's_add_u32 s101, s101, {YOFF}')
        a(f's_mov_b32 s92, {poll_cap}')
        a(f's_load_dword s79, s[28:29], {EOFF}')
        a(f's_mov_b32 s77, {0xffffffff ^ TM}')
    def tag_finish():
        a('s_add_u32 s79, s79, 1')
        a(f's_and_b32 s78, s79, {TM}')
    def tag_apply(regs, vt):
        for r in regs: a(f'v_and_or_b32 v{r}, v{r}, s77, v{vt}')
    def tag_check(regs, x0, x1):
        for r in regs: a(f'v_xor_b32 v{r}, s78, v{r}')
        rr = list(regs)
        acc = [x0, x1]; used = [False, False]; i = 0
        while rr:
            d = acc[i & 1]
            if not used[i & 1]:
                if len(rr) >= 3:
                    a(f'v_or3_b32 v{d}, v{rr[0]}, v{rr[1]}, v{rr[2]}'); rr = rr[3:]; used[i & 1] = True
                else:
                    d = acc[0]
                    if len(rr) == 2: a(f'v_or3_b32 v{d}, v{d}, v{rr[0]}, v{rr[1]}')
                    else: a(f'v_or_b32 v{d}, v{d}, v{rr[0]}')
                    rr = []
            elif len(rr) >= 2:
                a(f'v_or3_b32 v{d}, v{d}, v{rr[0]}, v{rr[1]}'); rr = rr[2:]
            else:
                a(f'v_or_b32 v{d}, v{d}, v{rr[0]}'); rr = []
            i += 1
        if used[1]: a(f'v_or_b32 v{x0}, v{x0}, v{x1}')
        a(f'v_and_b32 v{x0}, {TM}, v{x0}')
        a(f'v_cmp_ne_u32 vcc, 0, v{x0}')
    def stamp_out():
        if not stamps: return
        a('s_cmp_eq_u32 s3, 8')
        a('s_cbranch_scc1 L_nosl')
        a('s_sleep 127')
        a('s_sleep 127')
        a('L_nosl:')
        a(f'v_writelane_b32 v{VST}, s92, 63')
        a('s_mul_i32 s82, s2, 9')
        a('s_add_u32 s82, s82, s3')
        a('s_lshl_b32 s82, s82, 8')
        a(f's_add_u32 s82, s82, {STAMP_OFF}')
        a('v_lshlrev_b32 v5, 2, v1')
        a(f'buffer_store_dword v{VST}, v5, s[68:71], s82 offen')

    a(f'{KNAME}_kernel:')
    a('s_cmp_ge_u32 s2, 256')
    a('s_cbranch_scc1 L_end')
    a('s_load_dwordx16 s[4:19], s[0:1], 0')
    a('s_load_dwordx8 s[20:27], s[0:1], 64')
    a('s_load_dwordx2 s[28:29], s[0:1], 96')
    if stamps:
        a(f'v_mov_b32 v{VST}, 0')
        stamp()
    a('v_lshrrev_b32 v5, 6, v0')
    a('v_and_b32 v1, 63, v0')
    a('v_readfirstlane_b32 s3, v5')
    a('s_and_b32 s82, s2, 7')
    a('s_lshr_b32 s83, s2, 6')
    a('s_lshl_b32 s30, s82, 2')
    a('s_add_u32 s30, s30, s83')
    a(f's_bfe_u32 s31, s2, {3 | (3 << 16)}')
    a('s_lshr_b32 s80, s31, 2')
    a('v_lshrrev_b32 v6, 3, v1')
    a('v_and_b32 v7, 7, v1')
    a('v_lshlrev_b32 v5, 4, v7')
    a('s_cmp_eq_u32 s3, 8')
    a('s_cbranch_scc1 L_helper')
    a('v_mul_u32_u24 v2, 384, v6')
    a('v_add_u32 v2, v2, v5')
    a('s_lshl_b32 s82, s80, 5')
    a('s_add_u32 s82, s82, s30')
    a('s_lshl_b32 s82, s82, 2')
    a('s_and_b32 s81, s31, 3')
    a('s_add_u32 s82, s82, s81')
    a('s_lshl_b32 s82, s82, 7')
    a('s_add_u32 s82, s82, s3')
    a('s_mul_i32 s82, s82, 3072')
    a('s_mul_i32 s83, s3, 3072')
    a('s_sub_u32 s34, 393216, s83')
    a('s_mov_b32 s35, 0x20000')
    if rot == 'wg':
        a('s_mul_i32 s88, s2, 0x9E3779B1')
        a('s_lshr_b32 s88, s88, 28')
    elif rot == 'half':
        a('s_lshl_b32 s88, s2, 1')
        a('s_lshr_b32 s85, s3, 2')
        a('s_add_u32 s88, s88, s85')
        a('s_mul_i32 s88, s88, 0x9E3779B1')
        a('s_lshr_b32 s88, s88, 28')
    elif rot:
        a('s_lshl_b32 s88, s2, 3')
        a('s_add_u32 s88, s88, s3')
        a('s_mul_i32 s88, s88, 0x9E3779B1')
        a('s_lshr_b32 s88, s88, 28')
    else:
        a('s_mov_b32 s88, 0')
    a('s_mul_i32 s86, s88, 24576')
    a('s_waitcnt lgkmcnt(0)')
    srd(32, 6, 's82')
    S0 = 8; Q0 = 24; ACC = 24
    M0 = 36; A0 = 40
    vOW, vRA, vRG, vP1, vP2, vYW, vYR, vYG, vMW, vF, vOUT, vAC = range(48, 60)
    vM, vL = 60, 61
    SEL = [vP2, vF, vOUT, vL]
    T = list(range(62, 76))
    konly = list(range(36, 76, 4))
    top = NV - 4
    VZ = NV - 2
    free = konly + list(range(76, top, 4))
    slot = {}
    def alloc(tag):
        r = free.pop(0); slot[tag] = r; return r
    def release(tag):
        if slot[tag] not in konly: free.append(slot[tag])
    cur = {'kv': 0}
    def issue(tag):
        kind = tag[0]
        r = alloc(tag)
        if kind in ('k', 'v'):
            if cur['kv'] != tag[1]:
                a(f's_add_u32 s85, s88, {tag[1]}')
                a('s_and_b32 s85, s85, 15')
                a('s_mul_i32 s86, s85, 24576')
                cur['kv'] = tag[1]
            s0 = 32 if kind == 'k' else 36
            a.vmem(f'buffer_load_dwordx4 v[{r}:{r+3}], v2, s[{s0}:{s0+3}], s86 offen offset:{tag[2]*128} {k_cache if kind == "k" else v_cache}', tag)
            count()
        elif kind == 'wo':
            rg = tag[1]
            if rg: a(f's_mov_b32 s87, {rg*5120}')
            a.vmem(f'buffer_load_dwordx4 v[{r}:{r+3}], v3, s[48:51], {"s87" if rg else "0"} offen {wo_cache}', tag)
        elif kind == 'w2':
            a.vmem(f'buffer_load_dwordx4 v[{r}:{r+3}], v4, s[52:55], 0 offen offset:{tag[1]*1280} {wo_cache}', tag)
    kl = [('k', k, s) for k in range(16) for s in range(3)]
    vl = [('v', k, s) for k in range(16) for s in range(3)]
    wcnt = [0]
    nis = [0]
    def window(win):
        n = nis[0]
        wcnt[0] += 1
        if ctl and n >= cstart and win in (D, Dv):
            a.wait_out(Dmax - 1)
            a('s_waitcnt lgkmcnt(0)')
            a('v_readfirstlane_b32 s90, v0')
            for (delta, d) in levels:
                if Dpat and d == D: d = Dpat[n % len(Dpat)]
                a(f's_cmp_lt_i32 s90, {8*n - delta}')
                a(f's_cbranch_scc0 L_go{wcnt[0]}')
                a(f's_waitcnt vmcnt({d-1})')
            a(f'L_go{wcnt[0]}:')
            return
        if Dpat and win in (D, Dv):
            win = Dpat[n % len(Dpat)]
        if D0 and n < cstart: win = D0
        a.wait_out(win - 1)
    def count():
        nis[0] += 1
        if ctl and nis[0] > D:
            a('s_mov_b64 exec, 1')
            a(f'ds_add_rtn_u32 v0, v{VZ}, v{VZ} offset:{CNT - 1}')
            a('s_mov_b64 exec, -1')
    for tag in kl[:D]: issue(tag)
    srd(36, 8, 's82'); a('s_mov_b32 s38, s34'); a('s_mov_b32 s39, 0x20000')
    ws_srd_and_recs()
    a(f's_mov_b32 s91, {f2u(LOG2E / math.sqrt(192.0))}')
    a('s_mul_i32 s82, s30, 192')
    a('s_mul_i32 s83, s3, 24')
    a('s_add_u32 s82, s82, s83')
    a('s_mul_i32 s82, s82, 1280')
    a('s_mul_i32 s83, s31, 160')
    a('s_add_u32 s82, s82, s83')
    srd(48, 12, 's82')
    a('s_sub_u32 s50, 7864320, s82')
    a('s_mov_b32 s51, 0x20000')
    a('s_lshl_b32 s82, s30, 3')
    a('s_add_u32 s82, s82, s3')
    a('s_mul_i32 s82, s82, 7680')
    a('s_add_u32 s82, s82, s83')
    srd(52, 20, 's82')
    a('s_sub_u32 s54, 1966080, s82')
    a('s_mov_b32 s55, 0x20000')
    a('s_lshl_b32 s93, s30, 13')
    a(f's_add_u32 s93, s93, {OOFF}')
    a('v_lshrrev_b32 v8, 4, v1')
    a('v_and_b32 v9, 15, v1')
    a(f'v_mov_b32 v10, {OOB}')
    a('v_mul_u32_u24 v3, 1280, v8')
    a('v_lshl_add_u32 v3, v9, 4, v3')
    a('v_mul_u32_u24 v4, 2560, v8')
    a('v_lshl_add_u32 v4, v9, 4, v4')
    a('v_cmp_gt_u32 vcc, 3, v8')
    a('v_cndmask_b32 v4, v10, v4, vcc')
    a('v_cmp_gt_u32 vcc, 10, v9')
    a('v_cndmask_b32 v3, v10, v3, vcc')
    a('v_cndmask_b32 v4, v10, v4, vcc')
    if prio:
        a('s_cmp_lt_u32 s3, 4')
        a('s_cbranch_scc1 L_noprio')
        a(f's_setprio {prio}')
        a('L_noprio:')
    a('v_mov_b32 v9, 0')
    a(f'v_mov_b32 v{VZ}, 1')
    a('s_barrier')
    for tag in kl[D:nb]:
        window(D); issue(tag)
    a('s_waitcnt lgkmcnt(0)')
    tag_finish()
    a(f's_add_u32 s94, s100, {FAST}')
    a(f's_add_u32 s95, s93, {FAST}')
    stamp(1)
    a('L_qw:')
    a(f'ds_read_b32 v8, v9 offset:{FLAG}')
    for s in range(3):
        a(f'ds_read_b128 v[{Q0+4*s}:{Q0+3+4*s}], v5 offset:{QBF + s*128}')
    a('s_waitcnt lgkmcnt(0)')
    a('v_readfirstlane_b32 s89, v8')
    a('s_cmp_lg_u32 s89, 0')
    a('s_cbranch_scc1 L_qwd')
    a('s_sleep 2')
    a('s_sub_u32 s92, s92, 1')
    a('s_cbranch_scc0 L_qw')
    a('s_endpgm')
    a('L_qwd:')
    stamp(2)
    abi = [0]
    def nextA():
        A = A0 + 4 * (abi[0] & 1); abi[0] += 1; return A
    def build_A(src):
        A = nextA()
        for r in range(4):
            a(f'v_and_b32 v{A+r}, {src}, v{M0+r}')
        return A
    def task_k(k):
        S = S0 + k
        first = True
        for s in range(3):
            r = slot[('k', k, s)]
            for i in range(4):
                c = '0' if first else f'v{S}'
                a(f'v_dot2_f32_bf16 v{S}, v{r+i}, v{Q0 + s*4 + i}, {c}')
                first = False
            release(('k', k, s))
    def task_v(k):
        A = build_A(f'v{S0+k}')
        for s in range(3):
            r = slot[('v', k, s)]; acc = ACC + 4 * s
            c = '0' if k == 0 else f'v[{acc}:{acc+3}]'
            a(f'v_mfma_f32_16x16x32_bf16 v[{acc}:{acc+3}], v[{A}:{A+3}], v[{r}:{r+3}], {c}')
            release(('v', k, s))
    def task_red(ks):
        for pat in RED8:
            for k in ks:
                a(f'v_add_f32_dpp v{S0+k}, v{S0+k}, v{S0+k} {pat} {DPP}')
    def task_sm_b():
        t = T[0]
        a(f'v_max3_f32 v{t}, v{S0}, v{S0+1}, v{S0+2}')
        for k in range(3, 15, 2):
            a(f'v_max3_f32 v{t}, v{t}, v{S0+k}, v{S0+k+1}')
        a(f'v_max_f32 v{t}, v{t}, v{S0+15}')
        xlane('v_max_f32', t, T[1])
        a(f'v_mul_f32 v{vM}, s91, v{t}')
        for k in range(16):
            a(f'v_fma_f32 v{S0+k}, v{S0+k}, s91, -v{vM}')
    def task_sm_c():
        for k in range(16):
            a(f'v_exp_f32 v{S0+k}, v{S0+k}')
        masks(M0, T[0], T[1])
    def task_sm_d():
        a(f'v_add_f32 v{vL}, v{S0}, v{S0+1}')
        for k in range(2, 16):
            a(f'v_add_f32 v{vL}, v{vL}, v{S0+k}')
        for k in range(16):
            a(f'v_cvt_pk_bf16_f32 v{S0+k}, v{S0+k}, v{S0+k}')
    def run(issue_list, tasks, win, per_issue):
        for tag in issue_list:
            while not free:
                fn, needs = tasks.pop(0)
                for n in needs: a.wait_tag(n)
                fn()
            if win: window(win)
            issue(tag)
            n = 0
            while tasks and n < per_issue and all(a.issued(x) and a.is_done(x) for x in tasks[0][1]):
                fn, needs = tasks.pop(0); fn(); n += 1
    def drain(tasks):
        while tasks:
            fn, needs = tasks.pop(0)
            for n in needs: a.wait_tag(n)
            fn()
    t0, t1, t2, t3, t4 = T[0], T[1], T[2], T[3], T[4]
    def task_addr0():
        xlane('v_add_f32', vL, t0)
        a(f'v_lshrrev_b32 v{t0}, 5, v1')
        a('s_lshl_b32 s82, s3, 1')
        a(f'v_add_u32 v{t0}, s82, v{t0}')
        a(f'v_lshlrev_b32 v{t1}, 5, v7')
        a(f'v_bfe_u32 v{t2}, v1, 4, 1')
        a(f'v_lshl_add_u32 v{t1}, v{t2}, 4, v{t1}')
        a(f'v_mul_u32_u24 v{vOW}, {OS}, v{t0}')
        a(f'v_add_u32 v{vOW}, v{vOW}, v{t1}')
        a('s_lshl_b32 s82, s3, 2')
        a(f'v_mov_b32 v{t0}, s82')
        a(f'ds_write_b32 v{t0}, v{vM} offset:{MW}')
        u = 64
        a(f'v_mov_b32 v{u}, v{vL}')
        a(f'v_writelane_b32 v{u}, 0, 40')
        a(f'v_mov_b32 v{u+1}, v{u}'); a(f'v_mov_b32 v{u+2}, v{u}'); a(f'v_mov_b32 v{u+3}, v{u}')
        a('s_mov_b32 exec_lo, 1')
        a('s_mov_b32 exec_hi, 0x100')
        a(f'ds_write_b128 v{vOW}, v[{u}:{u+3}] offset:768')
        a('s_mov_b64 exec, -1')
    def task_addr1():
        g, ob, x, y, z = 68, 69, 70, 71, 72
        a(f'v_lshrrev_b32 v{g}, 4, v1')
        a(f'v_mov_b32 v{ob}, {OOB}')
        a('s_mul_i32 s82, s3, 6')
        a(f'v_add_u32 v{x}, s82, v6')
        a('v_cmp_gt_u32 vcc, 6, v6')
        a(f'v_cndmask_b32 v{x}, 48, v{x}, vcc')
        a(f'v_lshlrev_b32 v{x}, 4, v{x}')
        a(f'v_mul_u32_u24 v{vRA}, {2*OS}, v7')
        a(f'v_add_u32 v{vRA}, v{vRA}, v{x}')
        a('s_lshl_b32 s82, s3, 7')
        a(f'v_lshl_add_u32 v{x}, v6, 4, s82')
        a('v_cmp_eq_u32 vcc, 0, v7')
        a(f'v_cndmask_b32 v{vRG}, v{ob}, v{x}, vcc')
        a(f'v_and_b32 v{x}, 1, v6')
        a(f'v_lshlrev_b32 v{vAC}, 8, v{x}')
        a(f'v_lshlrev_b32 v{y}, 12, v{x}')
        a(f'v_lshl_add_u32 v{y}, v{g}, 10, v{y}')
        a(f'v_add3_u32 v{vP1}, v{y}, v5, s82')
        a(f'v_mul_u32_u24 v{y}, 0x0202, v{x}')
        a(f'v_lshl_or_b32 v{y}, v{y}, 16, v{y}')
        a(f'v_add_u32 v{y}, 0x01000100, v{y}')
        a('s_mov_b32 s83, 0x0c0c0c0c')
        for r in range(4):
            a(f'v_bfi_b32 v{SEL[r]}, v{M0+r}, v{y}, s83')
        a('s_mul_i32 s82, s3, 24')
        a(f'v_lshl_add_u32 v{vAC}, v{g}, 3, v{vAC}')
        a(f'v_add_u32 v{vAC}, s82, v{vAC}')
    def task_addr2():
        g, ob, x, y, z = 68, 69, 70, 71, 72
        a(f'v_and_b32 v{x}, 15, v1')
        a(f'v_lshlrev_b32 v{x}, 5, v{x}')
        a(f'v_lshrrev_b32 v{y}, 5, v1')
        a(f'v_mul_u32_u24 v{y}, 320, v{y}')
        a(f'v_and_b32 v{z}, 1, v{g}')
        a(f'v_lshlrev_b32 v{z}, 4, v{z}')
        a(f'v_add3_u32 v{vYW}, v{x}, v{y}, v{z}')
        a('s_mul_i32 s82, s3, 640')
        a(f'v_add_u32 v{vYW}, s82, v{vYW}')
        a('s_lshl_b32 s82, s3, 7')
        a(f'v_lshl_add_u32 v{x}, v6, 4, s82')
        a(f'v_mul_u32_u24 v{vYR}, 640, v7')
        a(f'v_add_u32 v{vYR}, v{vYR}, v{x}')
        a(f'v_lshlrev_b32 v{vMW}, 2, v7')
    kt = [((lambda k=k: task_k(k)), [('k', k, s) for s in range(3)]) for k in range(16)]
    tasks = kt[:12] + [(lambda: task_red(range(0, 6)), []), (lambda: task_red(range(6, 12)), [])] + kt[12:]
    tasks += [(lambda: task_red(range(12, 16)), []), (task_sm_b, []), (task_sm_c, []), (task_sm_d, [])]
    if stamps: tasks += [(lambda: stamp(3), [])]
    vt = [((lambda k=k: task_v(k)), [('v', k, s) for s in range(3)]) for k in range(16)]
    tasks += vt[:5] + [(task_addr0, [])] + vt[5:7] + [(task_addr1, [])] + vt[7:9] + [(task_addr2, [])] + vt[9:]
    wl = [('wo', rg) for rg in range(6)] + [('w2', i) for i in range(2)]
    run(kl[nb:], tasks, D, catchup)
    early = wl[nlate:][::-1]; latel = wl[:nlate]
    vseq = []
    for i, tag in enumerate(vl):
        vseq.append(tag)
        if i >= 9 and i % 4 == 1 and early: vseq.append(early.pop())
    run(vseq, tasks, Dv, catchup)
    if wv is not None:
        a.wait_out(wv)
    run(latel, tasks, 0, 0)
    drain(tasks)
    stamp(4)
    a('s_mov_b32 exec_lo, 0x00ff00ff')
    a('s_mov_b32 exec_hi, 0xff00ff00')
    for s in range(3):
        a(f'ds_write_b128 v{vOW}, v[{ACC+4*s}:{ACC+3+4*s}] offset:{s*256}')
    a('s_mov_b64 exec, -1')
    a('s_waitcnt lgkmcnt(0)')
    a('s_barrier')
    R = 8
    a(f'ds_read_b32 v{t0}, v{vMW} offset:{MW}')
    a(f'ds_read_b128 v[{R}:{R+3}], v{vRA}')
    a(f'ds_read_b128 v[{R+4}:{R+7}], v{vRA} offset:{OS}')
    a(f'ds_read_b64 v[72:73], v{vAC} offset:{ACT}')
    a(f'v_lshrrev_b32 v{t2}, 8, v{vAC}')
    a(f'v_lshlrev_b32 v{t2}, 6, v{t2}')
    a(f'ds_read_b32 v74, v{t2} offset:{GV}')
    a('v_mov_b32 v75, s78')
    a('s_waitcnt lgkmcnt(4)')
    a(f'v_max_f32_dpp v{t1}, v{t0}, v{t0} {RED8[0]} {DPP}')
    a(f'v_max_f32_dpp v{t1}, v{t1}, v{t1} {RED8[1]} {DPP}')
    a(f'v_max_f32_dpp v{t1}, v{t1}, v{t1} {RED8[2]} {DPP}')
    a(f'v_and_b32 v{t1}, s77, v{t1}')
    a(f'v_sub_f32 v{t0}, v{t0}, v{t1}')
    a(f'v_exp_f32 v{t0}, v{t0}')
    a('s_waitcnt lgkmcnt(2)')
    for i in range(4): a(f'v_add_f32 v{R+i}, v{R+i}, v{R+4+i}')
    for i in range(4): a(f'v_mul_f32 v{R+i}, v{R+i}, v{t0}')
    for pat in RED8:
        for i in range(4):
            a(f'v_add_f32_dpp v{R+i}, v{R+i}, v{R+i} {pat} {DPP}')
    a('v_cmp_eq_u32 vcc, 7, v6')
    a(f'v_cndmask_b32 v{R}, v{R}, v{t1}, vcc')
    tag_apply(range(R, R + 4), 75)
    O = 16; X = 20; X2 = 21; Y = 24
    slow_o = f'buffer_store_dwordx4 v[{R}:{R+3}], v{vRG}, s[68:71], s100 offen sc1'
    def poll1(base):
        a(f'buffer_load_dwordx4 v[{O}:{O+3}], v{vP1}, s[68:71], {base} offen sc1')
    def poll1c():
        a('s_waitcnt vmcnt(0)')
        tag_check(range(O, O + 4), X, X2)
    def w2part():
        a('s_waitcnt vmcnt(2) lgkmcnt(0)')
        for i in range(2):
            A = build_A(f'v{72+i}')
            r = slot[('w2', i)]
            a(f'v_mfma_f32_16x16x32_bf16 v[{Y}:{Y+3}], v[{A}:{A+3}], v[{r}:{r+3}], {"0" if i == 0 else f"v[{Y}:{Y+3}]"}')
    if xchk:
        a('s_cmp_eq_u32 s89, 1')
        a('s_cbranch_scc1 L_ofast')
        a(slow_o)
        a('s_branch L_odone')
        a('L_ofast:')
        a(f'buffer_store_dwordx4 v[{R}:{R+3}], v{vRG}, s[68:71], s100 offen')
        a('L_odone:')
        poll1('s93')
        stamp(5)
        w2part()
    elif fasto:
        a(f'buffer_store_dwordx4 v[{R}:{R+3}], v{vRG}, s[68:71], s94 offen')
        poll1('s95')
        stamp(5)
        w2part()
        a(f's_mov_b32 s76, {nfast*3}')
        a('L_poll1f:')
        poll1c()
        a('s_cbranch_vccz L_poll1s')
        if psleep: a(f's_sleep {psleep}')
        poll1('s95')
        a('s_sub_u32 s76, s76, 1')
        a('s_cbranch_scc0 L_poll1f')
        a(slow_o)
    else:
        a(slow_o)
        poll1('s93')
        stamp(5)
        w2part()
    a('L_poll1:')
    poll1c()
    a('s_cbranch_vccz L_poll1d')
    if psleep: a(f's_sleep {psleep}')
    poll1('s93')
    a('s_sub_u32 s92, s92, 1')
    a('s_cbranch_scc0 L_poll1')
    a('s_endpgm')
    if fasto and not xchk:
        a('L_poll1s:')
        a(slow_o)
    a('L_poll1d:')
    a.vm_done = len(a.vm)
    stamp(6)
    MQ = 20; MX = 21; TT = 22; PK = 23
    a(f'v_mov_b32_dpp v{MQ}, v{O} row_newbcast:7 row_mask:0xf bank_mask:0x3')
    a(f'v_mov_b32_dpp v{MQ}, v{O} row_newbcast:15 row_mask:0xf bank_mask:0xc')
    a(f'v_mov_b32 v{MX}, v{MQ}')
    a(f'v_mov_b32 v{TT}, v{MQ}')
    a(f'v_permlane16_swap_b32 v{MX}, v{TT}')
    a(f'v_max_f32 v{MX}, v{MX}, v{TT}')
    a(f'v_mov_b32 v{TT}, v{MX}')
    a(f'v_permlane32_swap_b32 v{MX}, v{TT}')
    a(f'v_max_f32 v{MX}, v{MX}, v{TT}')
    a(f'v_sub_f32 v{MQ}, v{MQ}, v{MX}')
    a(f'v_exp_f32 v{MQ}, v{MQ}')
    for i in range(4): a(f'v_mul_f32 v{O+i}, v{O+i}, v{MQ}')
    a(f'v_permlane16_swap_b32 v{O}, v{O+1}')
    a(f'v_permlane16_swap_b32 v{O+2}, v{O+3}')
    a(f'v_add_f32 v{O}, v{O}, v{O+1}')
    a(f'v_add_f32 v{O+2}, v{O+2}, v{O+3}')
    a(f'v_permlane32_swap_b32 v{O}, v{O+2}')
    a(f'v_add_f32 v{O}, v{O}, v{O+2}')
    a(f'v_rcp_f32 v{MX}, v{O}')
    a(f'v_mul_f32 v{O}, v{O}, v74')
    a(f'v_mul_f32_dpp v{O+1}, v{MX}, v{O} row_newbcast:6 row_mask:0xf bank_mask:0x3')
    a(f'v_mul_f32_dpp v{O+1}, v{MX}, v{O} row_newbcast:14 row_mask:0xf bank_mask:0xc')
    a(f'v_mov_b32_dpp v{TT}, v{O+1} row_ror:8 {DPP}')
    a(f'v_cvt_pk_bf16_f32 v{PK}, v{O+1}, v{TT}')
    BB = [62, 63, 64, 65, 66, 67]
    for p in range(6): a(f'v_mov_b32_dpp v{BB[p]}, v{PK} row_newbcast:{p} {DPP}')
    AB = [40, 44, 68, 12]
    for p in range(6):
        A = AB[p % 4]
        for r in range(4): a(f'v_perm_b32 v{A+r}, v{BB[p]}, v{BB[p]}, v{SEL[r]}')
        if p > 0:
            r0 = slot[('wo', p - 1)]; A0_ = AB[(p - 1) % 4]
            a(f'v_mfma_f32_16x16x32_bf16 v[{Y}:{Y+3}], v[{A0_}:{A0_+3}], v[{r0}:{r0+3}], v[{Y}:{Y+3}]')
    r0 = slot[('wo', 5)]; A0_ = AB[5 % 4]
    a(f'v_mfma_f32_16x16x32_bf16 v[{Y}:{Y+3}], v[{A0_}:{A0_+3}], v[{r0}:{r0+3}], v[{Y}:{Y+3}]')
    a('s_mov_b32 exec_lo, 0x03ff03ff')
    a('s_mov_b32 exec_hi, 0x03ff03ff')
    a(f'ds_write_b128 v{vYW}, v[{Y}:{Y+3}] offset:{YP}')
    a('s_mov_b64 exec, -1')
    a('s_cmp_ge_u32 s3, 5')
    a('s_waitcnt lgkmcnt(0)')
    a('s_barrier')
    a('s_cbranch_scc1 L_fin')
    R2 = 28
    a(f'ds_read_b128 v[{R2}:{R2+3}], v{vYR} offset:{YP}')
    a('s_waitcnt lgkmcnt(0)')
    for pat in RED8:
        for i in range(4):
            a(f'v_add_f32_dpp v{R2+i}, v{R2+i}, v{R2+i} {pat} {DPP}')
    tag_apply(range(R2, R2 + 4), 75)
    a(f'buffer_store_dwordx4 v[{R2}:{R2+3}], v{vRG}, s[68:71], s101 offen sc1')
    a('L_fin:')
    if stamps:
        stamp(7)
        a(f'v_writelane_b32 v{VST}, s96, 8')
        a('L_probe:')
        if probe is not None:
            i, K, base = probe
            a(f'v_readlane_b32 s82, v{VST}, 0')
            a(f'v_readlane_b32 s83, v{VST}, {i}')
            a('s_sub_u32 s83, s83, s82')
            a(f's_mul_i32 s83, s83, {K}')
            a(f's_add_u32 s83, s83, {base}')
            a('L_spin:')
            a('s_sleep 2')
            a('s_memrealtime s[96:97]')
            a('s_waitcnt lgkmcnt(0)')
            a('s_sub_u32 s84, s96, s82')
            a('s_cmp_lt_u32 s84, s83')
            a('s_cbranch_scc1 L_spin')
        else:
            stamp_out()
    a('L_end:')
    a('s_endpgm')

    a.vm = []; a.vm_done = 0
    a('L_helper:')
    if hprio: a(f's_setprio {hprio}')
    a('v_mul_u32_u24 v3, 122880, v6')
    a('v_add_u32 v3, v3, v5')
    a('v_mul_u32_u24 v4, 30720, v6')
    a('v_add_u32 v4, v4, v5')
    a(f'v_mov_b32 v2, {OOB}')
    a('v_cmp_gt_u32 vcc, 6, v7')
    a('v_cndmask_b32 v4, v2, v4, vcc')
    a('v_mul_u32_u24 v8, 20, v6')
    a('v_lshlrev_b32 v9, 4, v1')
    a('v_mov_b32 v73, 0')
    a(f'ds_write_b32 v73, v73 offset:{FLAG}')
    a(f'v_mov_b32 v10, {8*D}')
    a(f'ds_write_b32 v73, v10 offset:{CNT}')
    HM = 12; HA = 16; HACC = 24
    HX = 56
    a('s_mul_i32 s83, s31, 983040')
    a('s_mul_i32 s84, s30, 384')
    a('s_add_u32 s83, s83, s84')
    a('s_mul_i32 s85, s31, 245760')
    a('s_mul_i32 s84, s30, 96')
    a('s_add_u32 s85, s85, s84')
    a('s_mul_i32 s98, s31, 160')
    for r in (43, 47, 59, 63, 67):
        a(f's_mov_b32 s{r}, 0x20000')
    a('s_sub_u32 s42, 7864320, s83')
    a('s_sub_u32 s46, 1966080, s85')
    a('s_sub_u32 s58, 2560, s98')
    a('s_sub_u32 s62, 1280, s98')
    a('s_mov_b32 s66, 96')
    a('s_waitcnt lgkmcnt(0)')
    srd(56, 4, 's98'); srd(40, 10, 's83'); srd(44, 16, 's85'); srd(60, 22, 's98'); srd(64, 18, 's84')
    a.vmem(f'buffer_load_dwordx4 v[{HX}:{HX+3}], v8, s[56:59], 0 offen')
    a.vmem(f'buffer_load_dword v{HX+4}, v8, s[56:59], 0 offen offset:16')
    a.vmem(f'buffer_load_dwordx4 v[{HX+6}:{HX+9}], v8, s[56:59], 0 offen offset:1280')
    a.vmem(f'buffer_load_dword v{HX+10}, v8, s[56:59], 0 offen offset:1296', 'x')
    hfree = list(range(76, top, 4))
    hslot = {}
    def hissue(tag):
        r = hfree.pop(0); hslot[tag] = r
        t = tag[0]
        if tag[1] == 0 and t:
            a(f's_mov_b32 s87, {t*12288}'); a(f's_mov_b32 s86, {t*3072}')
        if tag[1] < 3:
            a.vmem(f'buffer_load_dwordx4 v[{r}:{r+3}], v3, s[40:43], {"s87" if t else "0"} offen offset:{tag[1]*128} {w_cache}', tag)
        else:
            a.vmem(f'buffer_load_dwordx4 v[{r}:{r+3}], v4, s[44:47], {"s86" if t else "0"} offen {w_cache}', tag)
    hl = [(t, s) for t in range(10) for s in range(4)]
    nfirst = min(hwin, len(hfree)) // 4 * 4
    for tag in hl[:nfirst]: hissue(tag)
    hl = hl[nfirst:]
    a.vmem(f'buffer_load_dwordx4 v[{HX+12}:{HX+15}], v8, s[60:63], 0 offen')
    a.vmem(f'buffer_load_dword v{HX+16}, v8, s[60:63], 0 offen offset:16', 'g')
    a('v_and_b32 v10, 15, v1')
    a('v_lshlrev_b32 v10, 3, v10')
    a.vmem(f'buffer_load_dwordx2 v[74:75], v10, s[64:67], 0 offen', 'b1')
    a('s_mov_b32 s89, 0x01000100')
    a('s_mov_b32 s90, 0x03020302')
    masks(HM, 10, 11)
    a('s_barrier')
    ws_srd_and_recs()
    stamp(1)
    hai = 0
    for t in range(10):
        a.wait_tag((t, 3))
        for bb in range(2):
            xr = HX + 6 * bb + t // 2
            a(f'v_perm_b32 v11, v{xr}, v{xr}, s{89 + (t & 1)}')
            A = HA + 4 * (hai & 1); hai += 1
            for r in range(4): a(f'v_and_b32 v{A+r}, v11, v{HM+r}')
            for s in range(4):
                r = hslot[(t, s)]; acc = HACC + 16 * bb + 4 * s
                c = '0' if t == 0 else f'v[{acc}:{acc+3}]'
                a(f'v_mfma_f32_16x16x32_bf16 v[{acc}:{acc+3}], v[{A}:{A+3}], v[{r}:{r+3}], {c}')
        for s in range(4): hfree.append(hslot[(t, s)])
        for tag in hl[:4]: hissue(tag)
        hl = hl[4:]
        if t == 6:
            a.wait_tag('b1')
            G0, G1 = 61, 67
            for bb, G in ((0, G0), (1, G1)):
                for i in range(5):
                    a(f'v_dot2_f32_bf16 v{G}, v{HX+6*bb+i}, v{HX+12+i}, {"0" if i == 0 else f"v{G}"}')
            xlane('v_add_f32', G0, 10)
            xlane('v_add_f32', G1, 10)
    stamp(2)
    a('v_lshrrev_b32 v10, 5, v1')
    a('v_lshlrev_b32 v10, 10, v10')
    a('v_and_b32 v11, 1, v6')
    a('v_lshl_add_u32 v10, v11, 8, v10')
    a('v_lshl_add_u32 v10, v7, 5, v10')
    a('v_bfe_u32 v11, v1, 4, 1')
    a('v_lshl_add_u32 v10, v11, 4, v10')
    for s in range(4):
        for r in range(4):
            a(f'v_permlane32_swap_b32 v{HACC+4*s+r}, v{HACC+16+4*s+r}')
    P = 76
    for u in range(2):
        for r in range(4):
            Ae, Be = HACC + 8 * u + r, HACC + 16 + 8 * u + r
            a(f'v_add_f32_dpp v{P+4*u+r}, v{Be}, v{Ae} row_ror:8 {DPP}')
        for r in range(4):
            Ao, Bo = HACC + 8 * u + 4 + r, HACC + 16 + 8 * u + 4 + r
            a(f'v_add_f32_dpp v{P+4*u+r}, v{Ao}, v{Bo} row_ror:8 row_mask:0xf bank_mask:0xc')
    a(f's_mov_b64 exec, {1 << 14}')
    a(f'v_mov_b32 v{P+4}, v61')
    a('s_mov_b32 exec_lo, 0')
    a(f's_mov_b32 exec_hi, {1 << 14}')
    a(f'v_mov_b32 v{P+4}, v67')
    a('s_mov_b64 exec, -1')
    if xchk:
        a('s_getreg_b32 s88, hwreg(HW_REG_XCC_ID)')
        a('s_and_b32 s88, s88, 15')
        a('s_lshl_b32 s88, s88, 23')
        a(f'v_writelane_b32 v{P+5}, s88, 14')
        a(f'v_writelane_b32 v{P+5}, s88, 46')
    a('s_waitcnt lgkmcnt(0)')
    tag_finish()
    a('v_mov_b32 v11, s78')
    tag_apply(range(P, P + 8), 11)
    slow_q = [f'buffer_store_dwordx4 v[{P}:{P+3}], v16, s[68:71], s99 offen sc1',
              f'buffer_store_dwordx4 v[{P+4}:{P+7}], v16, s[68:71], s99 offen offset:512 sc1']
    a('v_mov_b32 v16, v10')
    if fastq:
        a(f's_add_u32 s82, s99, {FAST}')
        a(f'buffer_store_dwordx4 v[{P}:{P+3}], v10, s[68:71], s82 offen')
        a(f'buffer_store_dwordx4 v[{P+4}:{P+7}], v10, s[68:71], s82 offen offset:512')
    else:
        for t in slow_q: a(t)
    stamp(3)
    a('v_cmp_gt_u32 vcc, 48, v1')
    a('v_cndmask_b32 v8, 0, v9, vcc')
    a('v_add_u32 v12, 4096, v8')
    a('v_and_b32 v11, 15, v1')
    a('v_lshlrev_b32 v11, 4, v11')
    a('v_lshrrev_b32 v10, 4, v1')
    a('v_lshl_add_u32 v11, v10, 10, v11')
    a('v_add_u32 v13, 4096, v11')
    stamp(4)
    QD = 24
    HD = 84
    regs = list(range(QD, QD + 32)) + list(range(HD, HD + 16))
    def qbase(off):
        a('s_lshl_b32 s93, s30, 14')
        if off: a(f's_add_u32 s93, s93, {off}')
        a('s_lshl_b32 s82, s80, 10')
        a('s_add_u32 s94, s93, s82')
        a('s_add_u32 s95, s94, 8192')
        a('s_add_u32 s81, s93, 8192')
    qbase(FAST if fastq else 0)
    a(f's_mov_b32 s76, {nfast if fastq else -1}')
    if qind:
        a('v_lshlrev_b32 v17, 11, v6')
        a('v_and_b32 v18, 3, v1')
        a('v_lshl_add_u32 v17, v18, 4, v17')
        a('v_bfe_u32 v18, v1, 2, 1')
        a('v_lshl_add_u32 v17, v18, 9, v17')
    a('L_qpoll:')
    if qind:
        a(f'buffer_load_dwordx4 v[{QD}:{QD+3}], v17, s[68:71], s94 offen sc1')
        a('s_waitcnt vmcnt(0)')
        tag_check(range(QD, QD + 4), 14, 15)
        a('s_cbranch_vccnz L_qfail')
    for p in range(8):
        vo = 'v8' if (p & 3) < 2 else 'v12'
        so = 's94' if p < 4 else 's95'
        a(f'buffer_load_dwordx4 v[{QD+4*p}:{QD+4*p+3}], {vo}, s[68:71], {so} offen offset:{(p & 1)*2048} sc1')
    for u in range(4):
        vo = 'v11' if (u & 1) == 0 else 'v13'
        so = 's93' if u < 2 else 's81'
        a(f'buffer_load_dwordx4 v[{HD+4*u}:{HD+4*u+3}], {vo}, s[68:71], {so} offen offset:768 sc1')
    a('s_waitcnt vmcnt(0)')
    tag_check(regs, 14, 15)
    a('s_cbranch_vccz L_qok0')
    a('L_qfail:')
    if qsleep: a(f's_sleep {qsleep}')
    if fastq:
        a('s_sub_u32 s76, s76, 1')
        a('s_cbranch_scc0 L_qnosw')
        for t in slow_q: a(t)
        a('L_qnosw:')
        a('s_cmp_lt_i32 s76, 0')
        a(f's_cselect_b32 s82, {FAST}, 0')
        for r in (93, 94, 95, 81): a(f's_xor_b32 s{r}, s{r}, s82')
    a('s_sub_u32 s92, s92, 1')
    a('s_cbranch_scc0 L_qpoll')
    a('s_endpgm')
    a('L_qok0:')
    if xchk:
        a(f'v_xor_b32 v14, s88, v{HD+1}')
        a(f'v_xor_b32 v15, s88, v{HD+5}')
        a(f'v_xor_b32 v17, s88, v{HD+9}')
        a(f'v_xor_b32 v18, s88, v{HD+13}')
        a('v_or3_b32 v14, v14, v15, v17')
        a('v_or_b32 v14, v14, v18')
        a('v_cmp_ne_u32 vcc, 0, v14')
        a('s_and_b32 s86, vcc_lo, 0x10001000')
        a('s_and_b32 s87, vcc_hi, 0x10001000')
        a('s_or_b32 s86, s86, s87')
        a('s_cselect_b32 s86, 2, 1')
        a('s_cbranch_scc0 L_qok')
    if fastq:
        a('s_cmp_lt_i32 s76, 0')
        a('s_cbranch_scc1 L_qok')
        for t in slow_q: a(t)
    a('L_qok:')
    for st in (4, 8, 16):
        for b0 in range(QD, QD + 32, 2 * st):
            for r in range(4): a(f'v_add_f32 v{b0+r}, v{b0+r}, v{b0+st+r}')
    a(f'v_cvt_pk_bf16_f32 v{QD}, v{QD}, v{QD+1}')
    a(f'v_cvt_pk_bf16_f32 v{QD+1}, v{QD+2}, v{QD+3}')
    a('v_lshlrev_b32 v10, 3, v1')
    a(f'ds_write_b64 v10, v[{QD}:{QD+1}] offset:{QBF}')
    a('v_mov_b32 v10, ' + ('s86' if xchk else '1'))
    a(f'ds_write_b32 v73, v10 offset:{FLAG}')
    stamp(5)
    for st in (4, 8):
        for b0 in range(HD, HD + 16, 2 * st):
            for r in range(4): a(f'v_add_f32 v{b0+r}, v{b0+r}, v{b0+st+r}')
    for r in range(4): a(f'v_mov_b32 v{HD+4+r}, v{HD+r}')
    for r in range(4): a(f'v_permlane32_swap_b32 v{HD+r}, v{HD+4+r}')
    for r in range(4): a(f'v_add_f32 v{HD+r}, v{HD+r}, v{HD+4+r}')
    G = 24; OMG = 25
    a(f'v_mov_b32_dpp v{G}, v{HD} row_newbcast:12 {DPP}')
    a(f'v_cvt_pk_bf16_f32 v{G}, v{G}, v{G}')
    a(f'v_and_b32 v{G}, 0xffff0000, v{G}')
    a(f'v_mul_f32 v{G}, {f2u(-LOG2E)}, v{G}')
    a(f'v_exp_f32 v{G}, v{G}')
    a(f'v_add_f32 v{G}, 1.0, v{G}')
    a(f'v_rcp_f32 v{G}, v{G}')
    a(f'v_cvt_pk_bf16_f32 v{G}, v{G}, v{G}')
    a(f'v_and_b32 v{G}, 0xffff0000, v{G}')
    a(f'v_sub_f32 v{OMG}, 1.0, v{G}')
    a(f'v_cvt_pk_bf16_f32 v{OMG}, v{OMG}, v{OMG}')
    a(f'v_and_b32 v{OMG}, 0xffff0000, v{OMG}')
    a('v_and_b32 v10, 31, v1')
    a('v_lshlrev_b32 v11, 2, v10')
    a(f'ds_write_b32 v11, v{G} offset:{GV}')
    a(f's_mov_b32 s83, {f2u(-LOG2E)}')
    for pr in range(2):
        h0, h1 = HD + 2 * pr, HD + 2 * pr + 1
        a(f'v_cvt_pk_bf16_f32 v{h0}, v{h0}, v{h1}')
        a(f'v_and_b32 v{h1}, 0xffff0000, v{h0}')
        a(f'v_lshlrev_b32 v{h0}, 16, v{h0}')
        a(f'v_and_b32 v27, 0xffff0000, v{74+pr}')
        a(f'v_lshlrev_b32 v26, 16, v{74+pr}')
        a(f'v_add_f32 v{h0}, v{h0}, v26')
        a(f'v_add_f32 v{h1}, v{h1}, v27')
        a(f'v_cvt_pk_bf16_f32 v{h0}, v{h0}, v{h1}')
        a(f'v_and_b32 v{h1}, 0xffff0000, v{h0}')
        a(f'v_lshlrev_b32 v{h0}, 16, v{h0}')
    for i in range(4):
        h = HD + i; t = 28; t2 = 29; nu = 30; de = 31
        a(f'v_mul_f32 v{t}, s83, abs(v{h})')
        a(f'v_exp_f32 v{t}, v{t}')
        a(f'v_cmp_lt_f32 vcc, 0, v{h}')
        a(f'v_mul_f32 v{t2}, v{t}, v{t}')
        a(f'v_cndmask_b32 v{nu}, v{t2}, 1.0, vcc')
        a(f'v_cndmask_b32 v{de}, 1.0, v{t2}, vcc')
        a(f'v_fma_f32 v{nu}, v{t}, 2.0, v{nu}')
        a(f'v_fma_f32 v{de}, v{de}, 2.0, v{nu}')
        a(f'v_rcp_f32 v{de}, v{de}')
        a(f'v_mul_f32 v{nu}, v{nu}, v{h}')
        a(f'v_mul_f32 v{nu}, v{nu}, v{de}')
        a(f'v_cvt_pk_bf16_f32 v{nu}, v{nu}, v{nu}')
        a(f'v_and_b32 v{nu}, 0xffff0000, v{nu}')
        a(f'v_mul_f32 v{nu}, v{nu}, v{OMG}')
        a(f'v_cvt_pk_bf16_f32 v{32+i}, v{nu}, v{nu}')
    a('v_lshlrev_b32 v11, 4, v10')
    a(f'ds_write_b128 v11, v[32:35] offset:{ACT}')
    a('s_waitcnt lgkmcnt(0)')
    stamp(6)
    if ypre == 1:
        a('s_mov_b32 exec_hi, 0xff')
        a('v_lshlrev_b32 v9, 4, v1')
        a('buffer_load_dwordx4 v[40:43], v9, s[68:71], s101 offen')
        a('s_mov_b32 exec_hi, -1')
    if ypre == 2:
        a('s_mov_b32 exec_hi, 0xff')
        a('v_lshlrev_b32 v9, 4, v1')
        a('s_add_u32 s82, s78, 1')
        for i in range(4): a(f'v_mov_b32 v{40+i}, s82')
        a('buffer_store_dwordx4 v[40:43], v9, s[68:71], s101 offen sc1')
        a('s_mov_b32 exec_hi, -1')
    if ctl and xbox:
        a('s_and_b32 s82, s2, 7')
        a('s_mul_i32 s82, s82, 4352')
        a(f's_add_u32 s82, s82, {MBOX}')
        a('s_lshr_b32 s83, s2, 3')
        a('s_lshl_b32 s83, s83, 2')
        a('s_add_u32 s83, s83, s82')
        a('s_and_b32 s84, s79, 0x3fffff')
        a('s_mov_b32 s85, 0')
        a('v_lshlrev_b32 v11, 2, v1')
        a('s_mov_b32 exec_hi, 0')
        a('L_c:')
        a(f'ds_read_b32 v10, v73 offset:{CNT}')
        a('s_waitcnt lgkmcnt(0)')
        a('v_subrev_u32 v10, s85, v10')
        a('v_lshl_or_b32 v12, v10, 22, s84')
        a('s_mov_b32 exec_lo, 1')
        a('buffer_store_dword v12, off, s[68:71], s83')
        a('s_mov_b32 exec_lo, -1')
        a('buffer_load_dword v9, v11, s[68:71], s82 offen sc1')
        a('v_readfirstlane_b32 s86, v10')
        a('s_waitcnt vmcnt(0)')
        a('v_and_b32 v12, 0x3fffff, v9')
        a('v_lshrrev_b32 v9, 22, v9')
        a(f'v_add_u32 v9, {comp}, v9')
        a('v_cmp_eq_u32 vcc, s84, v12')
        a('v_cndmask_b32 v9, v10, v9, vcc')
        for pat in RED8 + ('row_mirror',):
            a(f'v_add_u32_dpp v9, v9, v9 {pat} {DPP}')
        a('v_readlane_b32 s87, v9, 0')
        a('v_readlane_b32 s88, v9, 16')
        a('s_add_u32 s87, s87, s88')
        a('s_lshr_b32 s87, s87, 5')
        a('s_sub_i32 s87, s87, s86')
        if gsh: a(f's_ashr_i32 s87, s87, {gsh}')
        a('s_sub_i32 s88, s87, s85')
        a('s_mov_b32 s85, s87')
        a('v_mov_b32 v9, s88')
        a('s_mov_b32 exec_lo, 1')
        a(f'ds_add_u32 v73, v9 offset:{CNT}')
        a('s_mov_b32 exec_lo, -1')
        if csleep: a(f's_sleep {csleep}')
        a(f's_cmp_ge_u32 s86, {cend}')
        a('s_cbranch_scc1 L_cd')
        a('s_sub_u32 s92, s92, 1')
        a('s_cbranch_scc0 L_c')
        a('s_endpgm')
        a('L_cd:')
        a('s_mov_b64 exec, -1')
    a('s_cmp_ge_u32 s2, 160')
    a('s_cbranch_scc1 ' + ('L_end' if probe is not None else 'L_hend'))
    if ymap:
        a('s_lshr_b32 s82, s2, 5')
        a('s_lshl_b32 s82, s82, 3')
        a('s_and_b32 s83, s2, 7')
        a('s_add_u32 s82, s82, s83')
        a('s_lshl_b32 s82, s82, 2')
        a(f's_bfe_u32 s83, s2, {3 | (2 << 16)}')
        a('s_add_u32 s85, s82, s83')
    else:
        a('s_mov_b32 s85, s2')
    a('s_mul_i32 s82, s85, 205')
    a('s_lshr_b32 s82, s82, 12')
    a('s_mul_i32 s83, s82, 20')
    a('s_sub_u32 s83, s85, s83')
    a('s_mul_i32 s84, s82, 20480')
    a('s_lshl_b32 s81, s83, 5')
    a('s_add_u32 s84, s84, s81')
    a(f's_add_u32 s98, s84, {YOFF}')
    a('s_cmp_ge_u32 s83, 10')
    a('s_cselect_b32 s84, 1120, 0')
    a('s_lshl_b32 s81, s83, 4')
    a('s_add_u32 s84, s84, s81')
    a('s_mul_i32 s81, s82, 160')
    a('s_add_u32 s99, s84, s81')
    srd(72, 24, None); a('s_mov_b32 s74, 2560'); a('s_mov_b32 s75, 0x20000')
    vF, vOUT, F = 8, 9, 28
    a(f'v_lshrrev_b32 v{vF}, 1, v1')
    a(f'v_mul_u32_u24 v{vF}, 640, v{vF}')
    a('v_and_b32 v10, 1, v1')
    a(f'v_lshl_add_u32 v{vF}, v10, 4, v{vF}')
    a(f'v_lshlrev_b32 v{vOUT}, 3, v10')
    a('v_lshrrev_b32 v10, 4, v1')
    a(f'v_lshl_add_u32 v{vOUT}, v10, 1, v{vOUT}')
    a('v_mov_b32 v11, s79')
    a(f's_mov_b32 s82, {EOFF}')
    a('s_barrier')
    if not early2: a('s_barrier')
    stamp(7)
    if np2 == 1:
        a('L_poll2:')
        a(f'buffer_load_dwordx4 v[{F}:{F+3}], v{vF}, s[68:71], s98 offen sc1')
        a('s_waitcnt vmcnt(0)')
        tag_check(range(F, F + 4), 14, 15)
        a('s_cbranch_vccz L_poll2d')
        if psleep2: a(f's_sleep {psleep2}')
        a('s_sub_u32 s92, s92, 1')
        a('s_cbranch_scc0 L_poll2')
        a('s_endpgm')
    else:
        FS = [F + 4 + 4 * i for i in range(np2)]
        for i in range(np2):
            a(f'buffer_load_dwordx4 v[{FS[i]}:{FS[i]+3}], v{vF}, s[68:71], s98 offen sc1')
            if p2gap and i < np2 - 1: a(f's_sleep {p2gap}')
        a('L_poll2:')
        for i in range(np2):
            a(f's_waitcnt vmcnt({np2-1})')
            for r in range(4): a(f'v_xor_b32 v{F+r}, s78, v{FS[i]+r}')
            a(f'buffer_load_dwordx4 v[{FS[i]}:{FS[i]+3}], v{vF}, s[68:71], s98 offen sc1')
            a(f'v_or3_b32 v14, v{F}, v{F+1}, v{F+2}')
            a(f'v_or_b32 v14, v14, v{F+3}')
            a(f'v_and_b32 v14, {TM}, v14')
            a('v_cmp_ne_u32 vcc, 0, v14')
            a('s_cbranch_vccz L_poll2d')
            if p2gap: a(f's_sleep {p2gap}')
        a('s_sub_u32 s92, s92, 1')
        a('s_cbranch_scc0 L_poll2')
        a('s_endpgm')
    a('L_poll2d:')
    a(f'v_permlane16_swap_b32 v{F}, v{F+1}')
    a(f'v_permlane16_swap_b32 v{F+2}, v{F+3}')
    a(f'v_add_f32 v{F}, v{F}, v{F+1}')
    a(f'v_add_f32 v{F+2}, v{F+2}, v{F+3}')
    a(f'v_permlane32_swap_b32 v{F}, v{F+2}')
    a(f'v_add_f32 v{F}, v{F}, v{F+2}')
    a(f'v_add_f32_dpp v{F}, v{F}, v{F} quad_perm:[2,3,0,1] {DPP}')
    a(f'v_add_f32_dpp v{F}, v{F}, v{F} row_ror:4 {DPP}')
    a(f'v_add_f32_dpp v{F}, v{F}, v{F} row_ror:8 {DPP}')
    a(f'v_cvt_pk_bf16_f32 v{F}, v{F}, v{F}')
    a('s_mov_b32 exec_lo, 0x00030003')
    a('s_mov_b32 exec_hi, 0x00030003')
    a(f'buffer_store_short v{F}, v{vOUT}, s[72:75], s99 offen')
    a('s_cmp_lg_u32 s2, 0')
    a('s_cbranch_scc1 L_hend')
    a('s_mov_b64 exec, 1')
    a('buffer_store_dword v11, off, s[68:71], s82')
    a('L_hend:')
    if stamps:
        a('s_mov_b64 exec, -1')
        stamp(8)
        a('s_branch L_probe')
    a('s_endpgm')

    body = a.finalize()
    out = HEADER
    out += f'; @launch grid=(256,1,1) block=(576,1,1) lds={LDS_BYTES}\n'
    out += '.amdgcn_target "amdgcn-amd-amdhsa--gfx950"\n.text\n'
    out += f'.globl {KNAME}_kernel\n.p2align 8\n.type {KNAME}_kernel,@function\n'
    for l in body:
        out += (l if l.endswith(':') else '    ' + l) + '\n'
    out += f'''.section .rodata,"a"
.p2align 6
.amdhsa_kernel {KNAME}_kernel
  .amdhsa_next_free_vgpr {NV}
  .amdhsa_next_free_sgpr 102
  .amdhsa_accum_offset {NV}
  .amdhsa_group_segment_fixed_size 0
  .amdhsa_kernarg_size 104
  .amdhsa_user_sgpr_count 2
  .amdhsa_user_sgpr_kernarg_segment_ptr 1
  .amdhsa_system_sgpr_workgroup_id_x 1
  .amdhsa_float_denorm_mode_32 3
.end_amdhsa_kernel
'''
    return out

if __name__ == '__main__':
    kw = eval('dict(' + (sys.argv[2] if len(sys.argv) > 2 else '') + ')')
    open(sys.argv[1], 'w').write(gen(**kw))
```

```python
import sys, math, struct
from asmlib import Asm
KNAME = 'gated_mix__gqa_block_cached__dense_activation_mish__decode'
HEADER = open('cdna_kernels/' + KNAME + '.s.ref').read().split('; Override launch')[0]

def f2u(x): return struct.unpack('<I', struct.pack('<f', x))[0]
LOG2E = 1.4426950408889634
OOB = 0x80000000
QOFF = 0
OOFF = 512 * 1024
YOFF = 768 * 1024
EOFF = 960 * 1024
MBOX = 964 * 1024
STAMP_OFF = 1 << 20
FAST = 2 << 20
WS_REC = 4 << 20
TM = 0x3ff
OS = 848
QBF = 16 * OS
ACT = QBF + 512
GV = ACT + 512
FLAG = GV + 128
CNT = FLAG + 4
MW = FLAG + 16
YP = MW + 64
LDS_BYTES = YP + 8 * 640 + 256
DPP = 'row_mask:0xf bank_mask:0xf'
RED8 = ('quad_perm:[1,0,3,2]', 'quad_perm:[2,3,0,1]', 'row_half_mirror')
NV = 168

def gen(D=3, Dv=None, nb=30, catchup=2, stamps=False, k_cache='nt', v_cache='nt', w_cache='nt',
        late=0, poll_cap=1 << 18, probe=None, rot=True, hwin=24, hprio=0, fastq=True, fasto=True, nfast=48, psleep=0, qsleep=4, prio=0, Dend=None, nend=0, qind=True, Dpat=None, wo_cache=None, ymap=True, xchk=True, Dx=None, ctl=True, levels=((-4, 3), (13, 2)), Dmax=4, comp=14, gsh=0, xbox=True, cstart=6, csleep=0, cend=712, nlate=8, wv=None, np2=1, p2gap=0, early2=False, ypre=0, D0=None, n0=0, psleep2=0, G=256, gm=None, gs=0):
    Dv = Dv or D
    if wo_cache is None: wo_cache = w_cache
    a = Asm()
    nst = [0]
    VST = 167
    def stamp(i=None):
        if stamps:
            if i is None: i = nst[0]
            nst[0] = i + 1
            a('s_memrealtime s[96:97]')
            a('s_waitcnt lgkmcnt(0)')
            a(f'v_writelane_b32 v{VST}, s96, {i}')
    def srd(r, p, off):
        if off is None:
            a(f's_mov_b32 s{r}, s{p}'); a(f's_mov_b32 s{r+1}, s{p+1}')
        else:
            a(f's_add_u32 s{r}, s{p}, {off}'); a(f's_addc_u32 s{r+1}, s{p+1}, 0')
    def xlane(op, v, tmp):
        a(f'{op}_dpp v{v}, v{v}, v{v} row_ror:8 {DPP}')
        a(f'v_mov_b32 v{tmp}, v{v}')
        a(f'v_permlane16_swap_b32 v{v}, v{tmp}')
        a(f'{op} v{v}, v{v}, v{tmp}')
        a(f'v_mov_b32 v{tmp}, v{v}')
        a(f'v_permlane32_swap_b32 v{v}, v{tmp}')
        a(f'{op} v{v}, v{v}, v{tmp}')
    def masks(M, t0, t1):
        a(f'v_and_b32 v{t0}, 1, v1')
        a(f'v_lshlrev_b32 v{t0}, 4, v{t0}')
        a(f'v_mov_b32 v{t1}, 0xffff')
        a(f'v_lshlrev_b32 v{t0}, v{t0}, v{t1}')
        a(f'v_bfe_u32 v{t1}, v1, 1, 2')
        for r in range(4):
            a(f'v_cmp_eq_u32 vcc, {r}, v{t1}')
            a(f'v_cndmask_b32 v{M+r}, 0, v{t0}, vcc')
    def ws_srd_and_recs():
        srd(68, 28, None)
        a(f's_mov_b32 s70, {WS_REC}')
        a('s_mov_b32 s71, 0x20000')
        a('s_lshl_b32 s99, s30, 3')
        a('s_add_u32 s99, s99, s31')
        a('s_lshl_b32 s100, s99, 10')
        a(f's_add_u32 s100, s100, {OOFF}')
        a('s_lshl_b32 s99, s99, 11')
        a('s_lshl_b32 s101, s31, 5')
        a('s_add_u32 s101, s101, s30')
        a('s_mul_i32 s101, s101, 640')
        a(f's_add_u32 s101, s101, {YOFF}')
        a(f's_mov_b32 s92, {poll_cap}')
        a(f's_load_dword s79, s[28:29], {EOFF}')
        a(f's_mov_b32 s77, {0xffffffff ^ TM}')
    def tag_finish():
        a('s_add_u32 s79, s79, 1')
        a(f's_and_b32 s78, s79, {TM}')
    def tag_apply(regs, vt):
        for r in regs: a(f'v_and_or_b32 v{r}, v{r}, s77, v{vt}')
    def tag_check(regs, x0, x1):
        for r in regs: a(f'v_xor_b32 v{r}, s78, v{r}')
        rr = list(regs)
        acc = [x0, x1]; used = [False, False]; i = 0
        while rr:
            d = acc[i & 1]
            if not used[i & 1]:
                if len(rr) >= 3:
                    a(f'v_or3_b32 v{d}, v{rr[0]}, v{rr[1]}, v{rr[2]}'); rr = rr[3:]; used[i & 1] = True
                else:
                    d = acc[0]
                    if len(rr) == 2: a(f'v_or3_b32 v{d}, v{d}, v{rr[0]}, v{rr[1]}')
                    else: a(f'v_or_b32 v{d}, v{d}, v{rr[0]}')
                    rr = []
            elif len(rr) >= 2:
                a(f'v_or3_b32 v{d}, v{d}, v{rr[0]}, v{rr[1]}'); rr = rr[2:]
            else:
                a(f'v_or_b32 v{d}, v{d}, v{rr[0]}'); rr = []
            i += 1
        if used[1]: a(f'v_or_b32 v{x0}, v{x0}, v{x1}')
        a(f'v_and_b32 v{x0}, {TM}, v{x0}')
        a(f'v_cmp_ne_u32 vcc, 0, v{x0}')
    def stamp_out():
        if not stamps: return
        a('s_cmp_eq_u32 s3, 8')
        a('s_cbranch_scc1 L_nosl')
        a('s_sleep 127')
        a('s_sleep 127')
        a('L_nosl:')
        a(f'v_writelane_b32 v{VST}, s92, 63')
        a('s_mul_i32 s82, s2, 9')
        a('s_add_u32 s82, s82, s3')
        a('s_lshl_b32 s82, s82, 8')
        a(f's_add_u32 s82, s82, {STAMP_OFF}')
        a('v_lshlrev_b32 v5, 2, v1')
        a(f'buffer_store_dword v{VST}, v5, s[68:71], s82 offen')

    a(f'{KNAME}_kernel:')
    a('s_cmp_ge_u32 s2, 256')
    a('s_cbranch_scc1 L_end')
    a('s_load_dwordx16 s[4:19], s[0:1], 0')
    a('s_load_dwordx8 s[20:27], s[0:1], 64')
    a('s_load_dwordx2 s[28:29], s[0:1], 96')
    if stamps:
        a(f'v_mov_b32 v{VST}, 0')
        stamp()
    a('v_lshrrev_b32 v5, 6, v0')
    a('v_and_b32 v1, 63, v0')
    a('v_readfirstlane_b32 s3, v5')
    a('s_and_b32 s82, s2, 7')
    a('s_lshr_b32 s83, s2, 6')
    a('s_lshl_b32 s30, s82, 2')
    a('s_add_u32 s30, s30, s83')
    a(f's_bfe_u32 s31, s2, {3 | (3 << 16)}')
    a('s_lshr_b32 s80, s31, 2')
    a('v_lshrrev_b32 v6, 3, v1')
    a('v_and_b32 v7, 7, v1')
    a('v_lshlrev_b32 v5, 4, v7')
    a('s_cmp_eq_u32 s3, 8')
    a('s_cbranch_scc1 L_helper')
    a('v_mul_u32_u24 v2, 384, v6')
    a('v_add_u32 v2, v2, v5')
    a('s_lshl_b32 s82, s80, 5')
    a('s_add_u32 s82, s82, s30')
    a('s_and_b32 s81, s31, 3')
    if G == 256:
        a('s_lshl_b32 s82, s82, 2')
        a('s_add_u32 s84, s82, s81')
        a('s_lshl_b32 s82, s84, 7')
        a('s_add_u32 s82, s82, s3')
        a('s_mul_i32 s83, s3, 3072')
        a('s_sub_u32 s34, 393216, s83')
        BSTR = 24576
    else:
        a('s_mov_b32 s84, s82')
        a('s_lshl_b32 s83, s81, 3')
        a('s_add_u32 s83, s83, s3')
        a('s_lshl_b32 s82, s82, 9')
        a('s_add_u32 s82, s82, s83')
        a('s_mul_i32 s83, s83, 3072')
        a('s_sub_u32 s34, 1572864, s83')
        BSTR = 98304
    a('s_mul_i32 s82, s82, 3072')
    a('s_mov_b32 s35, 0x20000')
    if gm is not None:
        a(f's_mul_i32 s88, s84, {gm}')
        if gs: a(f's_lshr_b32 s88, s88, {gs}')
        a('s_and_b32 s88, s88, 15')
        rot = None
    if isinstance(rot, tuple):
        ra, rb, rc = rot
        a('s_lshr_b32 s88, s2, 3')
        a(f's_mul_i32 s88, s88, {ra}')
        a(f's_mul_i32 s85, s3, {rb}')
        a('s_add_u32 s88, s88, s85')
        a('s_and_b32 s85, s2, 7')
        a(f's_mul_i32 s85, s85, {rc}')
        a('s_add_u32 s88, s88, s85')
        a('s_and_b32 s88, s88, 15')
    elif rot == 'wg':
        a('s_mul_i32 s88, s2, 0x9E3779B1')
        a('s_lshr_b32 s88, s88, 28')
    elif rot == 'half':
        a('s_lshl_b32 s88, s2, 1')
        a('s_lshr_b32 s85, s3, 2')
        a('s_add_u32 s88, s88, s85')
        a('s_mul_i32 s88, s88, 0x9E3779B1')
        a('s_lshr_b32 s88, s88, 28')
    elif rot:
        a('s_lshl_b32 s88, s2, 3')
        a('s_add_u32 s88, s88, s3')
        a('s_mul_i32 s88, s88, 0x9E3779B1')
        a('s_lshr_b32 s88, s88, 28')
    elif rot is not None:
        a('s_mov_b32 s88, 0')
    a(f's_mul_i32 s86, s88, {BSTR}')
    a('s_waitcnt lgkmcnt(0)')
    srd(32, 6, 's82')
    S0 = 8; Q0 = 24; ACC = 24
    M0 = 36; A0 = 40
    vOW, vRA, vRG, vP1, vP2, vYW, vYR, vYG, vMW, vF, vOUT, vAC = range(48, 60)
    vM, vL = 60, 61
    SEL = [vP2, vF, vOUT, vL]
    T = list(range(62, 76))
    konly = list(range(36, 76, 4))
    top = NV - 4
    VZ = NV - 2
    free = konly + list(range(76, top, 4))
    slot = {}
    def alloc(tag):
        r = free.pop(0); slot[tag] = r; return r
    def release(tag):
        if slot[tag] not in konly: free.append(slot[tag])
    cur = {'kv': 0}
    def issue(tag):
        kind = tag[0]
        r = alloc(tag)
        if kind in ('k', 'v'):
            if cur['kv'] != tag[1]:
                a(f's_add_u32 s85, s88, {tag[1]}')
                a('s_and_b32 s85, s85, 15')
                a(f's_mul_i32 s86, s85, {BSTR}')
                cur['kv'] = tag[1]
            s0 = 32 if kind == 'k' else 36
            a.vmem(f'buffer_load_dwordx4 v[{r}:{r+3}], v2, s[{s0}:{s0+3}], s86 offen offset:{tag[2]*128} {k_cache if kind == "k" else v_cache}', tag)
            count()
        elif kind == 'wo':
            rg = tag[1]
            if rg: a(f's_mov_b32 s87, {rg*5120}')
            a.vmem(f'buffer_load_dwordx4 v[{r}:{r+3}], v3, s[48:51], {"s87" if rg else "0"} offen {wo_cache}', tag)
        elif kind == 'w2':
            a.vmem(f'buffer_load_dwordx4 v[{r}:{r+3}], v4, s[52:55], 0 offen offset:{tag[1]*1280} {wo_cache}', tag)
    kl = [('k', k, s) for k in range(16) for s in range(3)]
    vl = [('v', k, s) for k in range(16) for s in range(3)]
    wcnt = [0]
    nis = [0]
    def window(win):
        n = nis[0]
        wcnt[0] += 1
        if ctl and n >= cstart and win in (D, Dv):
            a.wait_out(Dmax - 1)
            a('s_waitcnt lgkmcnt(0)')
            a('v_readfirstlane_b32 s90, v0')
            for (delta, d) in levels:
                if Dpat and d == D: d = Dpat[n % len(Dpat)]
                a(f's_cmp_lt_i32 s90, {8*n - delta}')
                a(f's_cbranch_scc0 L_go{wcnt[0]}')
                a(f's_waitcnt vmcnt({d-1})')
            a(f'L_go{wcnt[0]}:')
            return
        if Dpat and win in (D, Dv):
            win = Dpat[n % len(Dpat)]
        if D0 and n < cstart: win = D0
        a.wait_out(win - 1)
    def count():
        nis[0] += 1
        if ctl and nis[0] > D:
            a('s_mov_b64 exec, 1')
            a(f'ds_add_rtn_u32 v0, v{VZ}, v{VZ} offset:{CNT - 1}')
            a('s_mov_b64 exec, -1')
    for tag in kl[:D]: issue(tag)
    srd(36, 8, 's82'); a('s_mov_b32 s38, s34'); a('s_mov_b32 s39, 0x20000')
    ws_srd_and_recs()
    a(f's_mov_b32 s91, {f2u(LOG2E / math.sqrt(192.0))}')
    a('s_mul_i32 s82, s30, 192')
    a('s_mul_i32 s83, s3, 24')
    a('s_add_u32 s82, s82, s83')
    a('s_mul_i32 s82, s82, 1280')
    a('s_mul_i32 s83, s31, 160')
    a('s_add_u32 s82, s82, s83')
    srd(48, 12, 's82')
    a('s_sub_u32 s50, 7864320, s82')
    a('s_mov_b32 s51, 0x20000')
    a('s_lshl_b32 s82, s30, 3')
    a('s_add_u32 s82, s82, s3')
    a('s_mul_i32 s82, s82, 7680')
    a('s_add_u32 s82, s82, s83')
    srd(52, 20, 's82')
    a('s_sub_u32 s54, 1966080, s82')
    a('s_mov_b32 s55, 0x20000')
    a('s_lshl_b32 s93, s30, 13')
    a(f's_add_u32 s93, s93, {OOFF}')
    a('v_lshrrev_b32 v8, 4, v1')
    a('v_and_b32 v9, 15, v1')
    a(f'v_mov_b32 v10, {OOB}')
    a('v_mul_u32_u24 v3, 1280, v8')
    a('v_lshl_add_u32 v3, v9, 4, v3')
    a('v_mul_u32_u24 v4, 2560, v8')
    a('v_lshl_add_u32 v4, v9, 4, v4')
    a('v_cmp_gt_u32 vcc, 3, v8')
    a('v_cndmask_b32 v4, v10, v4, vcc')
    a('v_cmp_gt_u32 vcc, 10, v9')
    a('v_cndmask_b32 v3, v10, v3, vcc')
    a('v_cndmask_b32 v4, v10, v4, vcc')
    if prio:
        a('s_cmp_lt_u32 s3, 4')
        a('s_cbranch_scc1 L_noprio')
        a(f's_setprio {prio}')
        a('L_noprio:')
    a('v_mov_b32 v9, 0')
    a(f'v_mov_b32 v{VZ}, 1')
    a('s_barrier')
    for tag in kl[D:nb]:
        window(D); issue(tag)
    a('s_waitcnt lgkmcnt(0)')
    tag_finish()
    a(f's_add_u32 s94, s100, {FAST}')
    a(f's_add_u32 s95, s93, {FAST}')
    stamp(1)
    a('L_qw:')
    a(f'ds_read_b32 v8, v9 offset:{FLAG}')
    for s in range(3):
        a(f'ds_read_b128 v[{Q0+4*s}:{Q0+3+4*s}], v5 offset:{QBF + s*128}')
    a('s_waitcnt lgkmcnt(0)')
    a('v_readfirstlane_b32 s89, v8')
    a('s_cmp_lg_u32 s89, 0')
    a('s_cbranch_scc1 L_qwd')
    a('s_sleep 2')
    a('s_sub_u32 s92, s92, 1')
    a('s_cbranch_scc0 L_qw')
    a('s_endpgm')
    a('L_qwd:')
    stamp(2)
    abi = [0]
    def nextA():
        A = A0 + 4 * (abi[0] & 1); abi[0] += 1; return A
    def build_A(src):
        A = nextA()
        for r in range(4):
            a(f'v_and_b32 v{A+r}, {src}, v{M0+r}')
        return A
    def task_k(k):
        S = S0 + k
        first = True
        for s in range(3):
            r = slot[('k', k, s)]
            for i in range(4):
                c = '0' if first else f'v{S}'
                a(f'v_dot2_f32_bf16 v{S}, v{r+i}, v{Q0 + s*4 + i}, {c}')
                first = False
            release(('k', k, s))
    def task_v(k):
        A = build_A(f'v{S0+k}')
        for s in range(3):
            r = slot[('v', k, s)]; acc = ACC + 4 * s
            c = '0' if k == 0 else f'v[{acc}:{acc+3}]'
            a(f'v_mfma_f32_16x16x32_bf16 v[{acc}:{acc+3}], v[{A}:{A+3}], v[{r}:{r+3}], {c}')
            release(('v', k, s))
    def task_red(ks):
        for pat in RED8:
            for k in ks:
                a(f'v_add_f32_dpp v{S0+k}, v{S0+k}, v{S0+k} {pat} {DPP}')
    def task_sm_b():
        t = T[0]
        a(f'v_max3_f32 v{t}, v{S0}, v{S0+1}, v{S0+2}')
        for k in range(3, 15, 2):
            a(f'v_max3_f32 v{t}, v{t}, v{S0+k}, v{S0+k+1}')
        a(f'v_max_f32 v{t}, v{t}, v{S0+15}')
        xlane('v_max_f32', t, T[1])
        a(f'v_mul_f32 v{vM}, s91, v{t}')
        for k in range(16):
            a(f'v_fma_f32 v{S0+k}, v{S0+k}, s91, -v{vM}')
    def task_sm_c():
        for k in range(16):
            a(f'v_exp_f32 v{S0+k}, v{S0+k}')
        masks(M0, T[0], T[1])
    def task_sm_d():
        a(f'v_add_f32 v{vL}, v{S0}, v{S0+1}')
        for k in range(2, 16):
            a(f'v_add_f32 v{vL}, v{vL}, v{S0+k}')
        for k in range(16):
            a(f'v_cvt_pk_bf16_f32 v{S0+k}, v{S0+k}, v{S0+k}')
    def run(issue_list, tasks, win, per_issue):
        for tag in issue_list:
            while not free:
                fn, needs = tasks.pop(0)
                for n in needs: a.wait_tag(n)
                fn()
            if win: window(win)
            issue(tag)
            n = 0
            while tasks and n < per_issue and all(a.issued(x) and a.is_done(x) for x in tasks[0][1]):
                fn, needs = tasks.pop(0); fn(); n += 1
    def drain(tasks):
        while tasks:
            fn, needs = tasks.pop(0)
            for n in needs: a.wait_tag(n)
            fn()
    t0, t1, t2, t3, t4 = T[0], T[1], T[2], T[3], T[4]
    def task_addr0():
        xlane('v_add_f32', vL, t0)
        a(f'v_lshrrev_b32 v{t0}, 5, v1')
        a('s_lshl_b32 s82, s3, 1')
        a(f'v_add_u32 v{t0}, s82, v{t0}')
        a(f'v_lshlrev_b32 v{t1}, 5, v7')
        a(f'v_bfe_u32 v{t2}, v1, 4, 1')
        a(f'v_lshl_add_u32 v{t1}, v{t2}, 4, v{t1}')
        a(f'v_mul_u32_u24 v{vOW}, {OS}, v{t0}')
        a(f'v_add_u32 v{vOW}, v{vOW}, v{t1}')
        a('s_lshl_b32 s82, s3, 2')
        a(f'v_mov_b32 v{t0}, s82')
        a(f'ds_write_b32 v{t0}, v{vM} offset:{MW}')
        u = 64
        a(f'v_mov_b32 v{u}, v{vL}')
        a(f'v_writelane_b32 v{u}, 0, 40')
        a(f'v_mov_b32 v{u+1}, v{u}'); a(f'v_mov_b32 v{u+2}, v{u}'); a(f'v_mov_b32 v{u+3}, v{u}')
        a('s_mov_b32 exec_lo, 1')
        a('s_mov_b32 exec_hi, 0x100')
        a(f'ds_write_b128 v{vOW}, v[{u}:{u+3}] offset:768')
        a('s_mov_b64 exec, -1')
    def task_addr1():
        g, ob, x, y, z = 68, 69, 70, 71, 72
        a(f'v_lshrrev_b32 v{g}, 4, v1')
        a(f'v_mov_b32 v{ob}, {OOB}')
        a('s_mul_i32 s82, s3, 6')
        a(f'v_add_u32 v{x}, s82, v6')
        a('v_cmp_gt_u32 vcc, 6, v6')
        a(f'v_cndmask_b32 v{x}, 48, v{x}, vcc')
        a(f'v_lshlrev_b32 v{x}, 4, v{x}')
        a(f'v_mul_u32_u24 v{vRA}, {2*OS}, v7')
        a(f'v_add_u32 v{vRA}, v{vRA}, v{x}')
        a('s_lshl_b32 s82, s3, 7')
        a(f'v_lshl_add_u32 v{x}, v6, 4, s82')
        a('v_cmp_eq_u32 vcc, 0, v7')
        a(f'v_cndmask_b32 v{vRG}, v{ob}, v{x}, vcc')
        a(f'v_and_b32 v{x}, 1, v6')
        a(f'v_lshlrev_b32 v{vAC}, 8, v{x}')
        a(f'v_lshlrev_b32 v{y}, 12, v{x}')
        a(f'v_lshl_add_u32 v{y}, v{g}, 10, v{y}')
        a(f'v_add3_u32 v{vP1}, v{y}, v5, s82')
        a(f'v_mul_u32_u24 v{y}, 0x0202, v{x}')
        a(f'v_lshl_or_b32 v{y}, v{y}, 16, v{y}')
        a(f'v_add_u32 v{y}, 0x01000100, v{y}')
        a('s_mov_b32 s83, 0x0c0c0c0c')
        for r in range(4):
            a(f'v_bfi_b32 v{SEL[r]}, v{M0+r}, v{y}, s83')
        a('s_mul_i32 s82, s3, 24')
        a(f'v_lshl_add_u32 v{vAC}, v{g}, 3, v{vAC}')
        a(f'v_add_u32 v{vAC}, s82, v{vAC}')
    def task_addr2():
        g, ob, x, y, z = 68, 69, 70, 71, 72
        a(f'v_and_b32 v{x}, 15, v1')
        a(f'v_lshlrev_b32 v{x}, 5, v{x}')
        a(f'v_lshrrev_b32 v{y}, 5, v1')
        a(f'v_mul_u32_u24 v{y}, 320, v{y}')
        a(f'v_and_b32 v{z}, 1, v{g}')
        a(f'v_lshlrev_b32 v{z}, 4, v{z}')
        a(f'v_add3_u32 v{vYW}, v{x}, v{y}, v{z}')
        a('s_mul_i32 s82, s3, 640')
        a(f'v_add_u32 v{vYW}, s82, v{vYW}')
        a('s_lshl_b32 s82, s3, 7')
        a(f'v_lshl_add_u32 v{x}, v6, 4, s82')
        a(f'v_mul_u32_u24 v{vYR}, 640, v7')
        a(f'v_add_u32 v{vYR}, v{vYR}, v{x}')
        a(f'v_lshlrev_b32 v{vMW}, 2, v7')
    kt = [((lambda k=k: task_k(k)), [('k', k, s) for s in range(3)]) for k in range(16)]
    tasks = kt[:12] + [(lambda: task_red(range(0, 6)), []), (lambda: task_red(range(6, 12)), [])] + kt[12:]
    tasks += [(lambda: task_red(range(12, 16)), []), (task_sm_b, []), (task_sm_c, []), (task_sm_d, [])]
    if stamps: tasks += [(lambda: stamp(3), [])]
    vt = [((lambda k=k: task_v(k)), [('v', k, s) for s in range(3)]) for k in range(16)]
    tasks += vt[:5] + [(task_addr0, [])] + vt[5:7] + [(task_addr1, [])] + vt[7:9] + [(task_addr2, [])] + vt[9:]
    wl = [('wo', rg) for rg in range(6)] + [('w2', i) for i in range(2)]
    run(kl[nb:], tasks, D, catchup)
    early = wl[nlate:][::-1]; latel = wl[:nlate]
    vseq = []
    for i, tag in enumerate(vl):
        vseq.append(tag)
        if i >= 9 and i % 4 == 1 and early: vseq.append(early.pop())
    run(vseq, tasks, Dv, catchup)
    if wv is not None:
        a.wait_out(wv)
    run(latel, tasks, 0, 0)
    drain(tasks)
    stamp(4)
    a('s_mov_b32 exec_lo, 0x00ff00ff')
    a('s_mov_b32 exec_hi, 0xff00ff00')
    for s in range(3):
        a(f'ds_write_b128 v{vOW}, v[{ACC+4*s}:{ACC+3+4*s}] offset:{s*256}')
    a('s_mov_b64 exec, -1')
    a('s_waitcnt lgkmcnt(0)')
    a('s_barrier')
    R = 8
    a(f'ds_read_b32 v{t0}, v{vMW} offset:{MW}')
    a(f'ds_read_b128 v[{R}:{R+3}], v{vRA}')
    a(f'ds_read_b128 v[{R+4}:{R+7}], v{vRA} offset:{OS}')
    a(f'ds_read_b64 v[72:73], v{vAC} offset:{ACT}')
    a(f'v_lshrrev_b32 v{t2}, 8, v{vAC}')
    a(f'v_lshlrev_b32 v{t2}, 6, v{t2}')
    a(f'ds_read_b32 v74, v{t2} offset:{GV}')
    a('v_mov_b32 v75, s78')
    a('s_waitcnt lgkmcnt(4)')
    a(f'v_max_f32_dpp v{t1}, v{t0}, v{t0} {RED8[0]} {DPP}')
    a(f'v_max_f32_dpp v{t1}, v{t1}, v{t1} {RED8[1]} {DPP}')
    a(f'v_max_f32_dpp v{t1}, v{t1}, v{t1} {RED8[2]} {DPP}')
    a(f'v_and_b32 v{t1}, s77, v{t1}')
    a(f'v_sub_f32 v{t0}, v{t0}, v{t1}')
    a(f'v_exp_f32 v{t0}, v{t0}')
    a('s_waitcnt lgkmcnt(2)')
    for i in range(4): a(f'v_add_f32 v{R+i}, v{R+i}, v{R+4+i}')
    for i in range(4): a(f'v_mul_f32 v{R+i}, v{R+i}, v{t0}')
    for pat in RED8:
        for i in range(4):
            a(f'v_add_f32_dpp v{R+i}, v{R+i}, v{R+i} {pat} {DPP}')
    a('v_cmp_eq_u32 vcc, 7, v6')
    a(f'v_cndmask_b32 v{R}, v{R}, v{t1}, vcc')
    tag_apply(range(R, R + 4), 75)
    O = 16; X = 20; X2 = 21; Y = 24
    slow_o = f'buffer_store_dwordx4 v[{R}:{R+3}], v{vRG}, s[68:71], s100 offen sc1'
    def poll1(base):
        a(f'buffer_load_dwordx4 v[{O}:{O+3}], v{vP1}, s[68:71], {base} offen sc1')
    def poll1c():
        a('s_waitcnt vmcnt(0)')
        tag_check(range(O, O + 4), X, X2)
    def w2part():
        a('s_waitcnt vmcnt(2) lgkmcnt(0)')
        for i in range(2):
            A = build_A(f'v{72+i}')
            r = slot[('w2', i)]
            a(f'v_mfma_f32_16x16x32_bf16 v[{Y}:{Y+3}], v[{A}:{A+3}], v[{r}:{r+3}], {"0" if i == 0 else f"v[{Y}:{Y+3}]"}')
    if xchk:
        a('s_cmp_eq_u32 s89, 1')
        a('s_cbranch_scc1 L_ofast')
        a(slow_o)
        a('s_branch L_odone')
        a('L_ofast:')
        a(f'buffer_store_dwordx4 v[{R}:{R+3}], v{vRG}, s[68:71], s100 offen')
        a('L_odone:')
        poll1('s93')
        stamp(5)
        w2part()
    elif fasto:
        a(f'buffer_store_dwordx4 v[{R}:{R+3}], v{vRG}, s[68:71], s94 offen')
        poll1('s95')
        stamp(5)
        w2part()
        a(f's_mov_b32 s76, {nfast*3}')
        a('L_poll1f:')
        poll1c()
        a('s_cbranch_vccz L_poll1s')
        if psleep: a(f's_sleep {psleep}')
        poll1('s95')
        a('s_sub_u32 s76, s76, 1')
        a('s_cbranch_scc0 L_poll1f')
        a(slow_o)
    else:
        a(slow_o)
        poll1('s93')
        stamp(5)
        w2part()
    a('L_poll1:')
    poll1c()
    a('s_cbranch_vccz L_poll1d')
    if psleep: a(f's_sleep {psleep}')
    poll1('s93')
    a('s_sub_u32 s92, s92, 1')
    a('s_cbranch_scc0 L_poll1')
    a('s_endpgm')
    if fasto and not xchk:
        a('L_poll1s:')
        a(slow_o)
    a('L_poll1d:')
    a.vm_done = len(a.vm)
    stamp(6)
    MQ = 20; MX = 21; TT = 22; PK = 23
    a(f'v_mov_b32_dpp v{MQ}, v{O} row_newbcast:7 row_mask:0xf bank_mask:0x3')
    a(f'v_mov_b32_dpp v{MQ}, v{O} row_newbcast:15 row_mask:0xf bank_mask:0xc')
    a(f'v_mov_b32 v{MX}, v{MQ}')
    a(f'v_mov_b32 v{TT}, v{MQ}')
    a(f'v_permlane16_swap_b32 v{MX}, v{TT}')
    a(f'v_max_f32 v{MX}, v{MX}, v{TT}')
    a(f'v_mov_b32 v{TT}, v{MX}')
    a(f'v_permlane32_swap_b32 v{MX}, v{TT}')
    a(f'v_max_f32 v{MX}, v{MX}, v{TT}')
    a(f'v_sub_f32 v{MQ}, v{MQ}, v{MX}')
    a(f'v_exp_f32 v{MQ}, v{MQ}')
    for i in range(4): a(f'v_mul_f32 v{O+i}, v{O+i}, v{MQ}')
    a(f'v_permlane16_swap_b32 v{O}, v{O+1}')
    a(f'v_permlane16_swap_b32 v{O+2}, v{O+3}')
    a(f'v_add_f32 v{O}, v{O}, v{O+1}')
    a(f'v_add_f32 v{O+2}, v{O+2}, v{O+3}')
    a(f'v_permlane32_swap_b32 v{O}, v{O+2}')
    a(f'v_add_f32 v{O}, v{O}, v{O+2}')
    a(f'v_rcp_f32 v{MX}, v{O}')
    a(f'v_mul_f32 v{O}, v{O}, v74')
    a(f'v_mul_f32_dpp v{O+1}, v{MX}, v{O} row_newbcast:6 row_mask:0xf bank_mask:0x3')
    a(f'v_mul_f32_dpp v{O+1}, v{MX}, v{O} row_newbcast:14 row_mask:0xf bank_mask:0xc')
    a(f'v_mov_b32_dpp v{TT}, v{O+1} row_ror:8 {DPP}')
    a(f'v_cvt_pk_bf16_f32 v{PK}, v{O+1}, v{TT}')
    BB = [62, 63, 64, 65, 66, 67]
    for p in range(6): a(f'v_mov_b32_dpp v{BB[p]}, v{PK} row_newbcast:{p} {DPP}')
    AB = [40, 44, 68, 12]
    for p in range(6):
        A = AB[p % 4]
        for r in range(4): a(f'v_perm_b32 v{A+r}, v{BB[p]}, v{BB[p]}, v{SEL[r]}')
        if p > 0:
            r0 = slot[('wo', p - 1)]; A0_ = AB[(p - 1) % 4]
            a(f'v_mfma_f32_16x16x32_bf16 v[{Y}:{Y+3}], v[{A0_}:{A0_+3}], v[{r0}:{r0+3}], v[{Y}:{Y+3}]')
    r0 = slot[('wo', 5)]; A0_ = AB[5 % 4]
    a(f'v_mfma_f32_16x16x32_bf16 v[{Y}:{Y+3}], v[{A0_}:{A0_+3}], v[{r0}:{r0+3}], v[{Y}:{Y+3}]')
    a('s_mov_b32 exec_lo, 0x03ff03ff')
    a('s_mov_b32 exec_hi, 0x03ff03ff')
    a(f'ds_write_b128 v{vYW}, v[{Y}:{Y+3}] offset:{YP}')
    a('s_mov_b64 exec, -1')
    a('s_cmp_ge_u32 s3, 5')
    a('s_waitcnt lgkmcnt(0)')
    a('s_barrier')
    a('s_cbranch_scc1 L_fin')
    R2 = 28
    a(f'ds_read_b128 v[{R2}:{R2+3}], v{vYR} offset:{YP}')
    a('s_waitcnt lgkmcnt(0)')
    for pat in RED8:
        for i in range(4):
            a(f'v_add_f32_dpp v{R2+i}, v{R2+i}, v{R2+i} {pat} {DPP}')
    tag_apply(range(R2, R2 + 4), 75)
    a(f'buffer_store_dwordx4 v[{R2}:{R2+3}], v{vRG}, s[68:71], s101 offen sc1')
    a('L_fin:')
    if stamps:
        stamp(7)
        a(f'v_writelane_b32 v{VST}, s96, 8')
        a('L_probe:')
        if probe is not None:
            i, K, base = probe
            a(f'v_readlane_b32 s82, v{VST}, 0')
            a(f'v_readlane_b32 s83, v{VST}, {i}')
            a('s_sub_u32 s83, s83, s82')
            a(f's_mul_i32 s83, s83, {K}')
            a(f's_add_u32 s83, s83, {base}')
            a('L_spin:')
            a('s_sleep 2')
            a('s_memrealtime s[96:97]')
            a('s_waitcnt lgkmcnt(0)')
            a('s_sub_u32 s84, s96, s82')
            a('s_cmp_lt_u32 s84, s83')
            a('s_cbranch_scc1 L_spin')
        else:
            stamp_out()
    a('L_end:')
    a('s_endpgm')

    a.vm = []; a.vm_done = 0
    a('L_helper:')
    if hprio: a(f's_setprio {hprio}')
    a('v_mul_u32_u24 v3, 122880, v6')
    a('v_add_u32 v3, v3, v5')
    a('v_mul_u32_u24 v4, 30720, v6')
    a('v_add_u32 v4, v4, v5')
    a(f'v_mov_b32 v2, {OOB}')
    a('v_cmp_gt_u32 vcc, 6, v7')
    a('v_cndmask_b32 v4, v2, v4, vcc')
    a('v_mul_u32_u24 v8, 20, v6')
    a('v_lshlrev_b32 v9, 4, v1')
    a('v_mov_b32 v73, 0')
    a(f'ds_write_b32 v73, v73 offset:{FLAG}')
    a(f'v_mov_b32 v10, {8*D}')
    a(f'ds_write_b32 v73, v10 offset:{CNT}')
    HM = 12; HA = 16; HACC = 24
    HX = 56
    a('s_mul_i32 s83, s31, 983040')
    a('s_mul_i32 s84, s30, 384')
    a('s_add_u32 s83, s83, s84')
    a('s_mul_i32 s85, s31, 245760')
    a('s_mul_i32 s84, s30, 96')
    a('s_add_u32 s85, s85, s84')
    a('s_mul_i32 s98, s31, 160')
    for r in (43, 47, 59, 63, 67):
        a(f's_mov_b32 s{r}, 0x20000')
    a('s_sub_u32 s42, 7864320, s83')
    a('s_sub_u32 s46, 1966080, s85')
    a('s_sub_u32 s58, 2560, s98')
    a('s_sub_u32 s62, 1280, s98')
    a('s_mov_b32 s66, 96')
    a('s_waitcnt lgkmcnt(0)')
    srd(56, 4, 's98'); srd(40, 10, 's83'); srd(44, 16, 's85'); srd(60, 22, 's98'); srd(64, 18, 's84')
    a.vmem(f'buffer_load_dwordx4 v[{HX}:{HX+3}], v8, s[56:59], 0 offen')
    a.vmem(f'buffer_load_dword v{HX+4}, v8, s[56:59], 0 offen offset:16')
    a.vmem(f'buffer_load_dwordx4 v[{HX+6}:{HX+9}], v8, s[56:59], 0 offen offset:1280')
    a.vmem(f'buffer_load_dword v{HX+10}, v8, s[56:59], 0 offen offset:1296', 'x')
    hfree = list(range(76, top, 4))
    hslot = {}
    def hissue(tag):
        r = hfree.pop(0); hslot[tag] = r
        t = tag[0]
        if tag[1] == 0 and t:
            a(f's_mov_b32 s87, {t*12288}'); a(f's_mov_b32 s86, {t*3072}')
        if tag[1] < 3:
            a.vmem(f'buffer_load_dwordx4 v[{r}:{r+3}], v3, s[40:43], {"s87" if t else "0"} offen offset:{tag[1]*128} {w_cache}', tag)
        else:
            a.vmem(f'buffer_load_dwordx4 v[{r}:{r+3}], v4, s[44:47], {"s86" if t else "0"} offen {w_cache}', tag)
    hl = [(t, s) for t in range(10) for s in range(4)]
    nfirst = min(hwin, len(hfree)) // 4 * 4
    for tag in hl[:nfirst]: hissue(tag)
    hl = hl[nfirst:]
    a.vmem(f'buffer_load_dwordx4 v[{HX+12}:{HX+15}], v8, s[60:63], 0 offen')
    a.vmem(f'buffer_load_dword v{HX+16}, v8, s[60:63], 0 offen offset:16', 'g')
    a('v_and_b32 v10, 15, v1')
    a('v_lshlrev_b32 v10, 3, v10')
    a.vmem(f'buffer_load_dwordx2 v[74:75], v10, s[64:67], 0 offen', 'b1')
    a('s_mov_b32 s89, 0x01000100')
    a('s_mov_b32 s90, 0x03020302')
    masks(HM, 10, 11)
    a('s_barrier')
    ws_srd_and_recs()
    stamp(1)
    hai = 0
    for t in range(10):
        a.wait_tag((t, 3))
        for bb in range(2):
            xr = HX + 6 * bb + t // 2
            a(f'v_perm_b32 v11, v{xr}, v{xr}, s{89 + (t & 1)}')
            A = HA + 4 * (hai & 1); hai += 1
            for r in range(4): a(f'v_and_b32 v{A+r}, v11, v{HM+r}')
            for s in range(4):
                r = hslot[(t, s)]; acc = HACC + 16 * bb + 4 * s
                c = '0' if t == 0 else f'v[{acc}:{acc+3}]'
                a(f'v_mfma_f32_16x16x32_bf16 v[{acc}:{acc+3}], v[{A}:{A+3}], v[{r}:{r+3}], {c}')
        for s in range(4): hfree.append(hslot[(t, s)])
        for tag in hl[:4]: hissue(tag)
        hl = hl[4:]
        if t == 6:
            a.wait_tag('b1')
            G0, G1 = 61, 67
            for bb, G in ((0, G0), (1, G1)):
                for i in range(5):
                    a(f'v_dot2_f32_bf16 v{G}, v{HX+6*bb+i}, v{HX+12+i}, {"0" if i == 0 else f"v{G}"}')
            xlane('v_add_f32', G0, 10)
            xlane('v_add_f32', G1, 10)
    stamp(2)
    a('v_lshrrev_b32 v10, 5, v1')
    a('v_lshlrev_b32 v10, 10, v10')
    a('v_and_b32 v11, 1, v6')
    a('v_lshl_add_u32 v10, v11, 8, v10')
    a('v_lshl_add_u32 v10, v7, 5, v10')
    a('v_bfe_u32 v11, v1, 4, 1')
    a('v_lshl_add_u32 v10, v11, 4, v10')
    for s in range(4):
        for r in range(4):
            a(f'v_permlane32_swap_b32 v{HACC+4*s+r}, v{HACC+16+4*s+r}')
    P = 76
    for u in range(2):
        for r in range(4):
            Ae, Be = HACC + 8 * u + r, HACC + 16 + 8 * u + r
            a(f'v_add_f32_dpp v{P+4*u+r}, v{Be}, v{Ae} row_ror:8 {DPP}')
        for r in range(4):
            Ao, Bo = HACC + 8 * u + 4 + r, HACC + 16 + 8 * u + 4 + r
            a(f'v_add_f32_dpp v{P+4*u+r}, v{Ao}, v{Bo} row_ror:8 row_mask:0xf bank_mask:0xc')
    a(f's_mov_b64 exec, {1 << 14}')
    a(f'v_mov_b32 v{P+4}, v61')
    a('s_mov_b32 exec_lo, 0')
    a(f's_mov_b32 exec_hi, {1 << 14}')
    a(f'v_mov_b32 v{P+4}, v67')
    a('s_mov_b64 exec, -1')
    if xchk:
        a('s_getreg_b32 s88, hwreg(HW_REG_XCC_ID)')
        a('s_and_b32 s88, s88, 15')
        a('s_lshl_b32 s88, s88, 23')
        a(f'v_writelane_b32 v{P+5}, s88, 14')
        a(f'v_writelane_b32 v{P+5}, s88, 46')
    a('s_waitcnt lgkmcnt(0)')
    tag_finish()
    a('v_mov_b32 v11, s78')
    tag_apply(range(P, P + 8), 11)
    slow_q = [f'buffer_store_dwordx4 v[{P}:{P+3}], v16, s[68:71], s99 offen sc1',
              f'buffer_store_dwordx4 v[{P+4}:{P+7}], v16, s[68:71], s99 offen offset:512 sc1']
    a('v_mov_b32 v16, v10')
    if fastq:
        a(f's_add_u32 s82, s99, {FAST}')
        a(f'buffer_store_dwordx4 v[{P}:{P+3}], v10, s[68:71], s82 offen')
        a(f'buffer_store_dwordx4 v[{P+4}:{P+7}], v10, s[68:71], s82 offen offset:512')
    else:
        for t in slow_q: a(t)
    stamp(3)
    a('v_cmp_gt_u32 vcc, 48, v1')
    a('v_cndmask_b32 v8, 0, v9, vcc')
    a('v_add_u32 v12, 4096, v8')
    a('v_and_b32 v11, 15, v1')
    a('v_lshlrev_b32 v11, 4, v11')
    a('v_lshrrev_b32 v10, 4, v1')
    a('v_lshl_add_u32 v11, v10, 10, v11')
    a('v_add_u32 v13, 4096, v11')
    stamp(4)
    QD = 24
    HD = 84
    regs = list(range(QD, QD + 32)) + list(range(HD, HD + 16))
    def qbase(off):
        a('s_lshl_b32 s93, s30, 14')
        if off: a(f's_add_u32 s93, s93, {off}')
        a('s_lshl_b32 s82, s80, 10')
        a('s_add_u32 s94, s93, s82')
        a('s_add_u32 s95, s94, 8192')
        a('s_add_u32 s81, s93, 8192')
    qbase(FAST if fastq else 0)
    a(f's_mov_b32 s76, {nfast if fastq else -1}')
    if qind:
        a('v_lshlrev_b32 v17, 11, v6')
        a('v_and_b32 v18, 3, v1')
        a('v_lshl_add_u32 v17, v18, 4, v17')
        a('v_bfe_u32 v18, v1, 2, 1')
        a('v_lshl_add_u32 v17, v18, 9, v17')
    a('L_qpoll:')
    if qind:
        a(f'buffer_load_dwordx4 v[{QD}:{QD+3}], v17, s[68:71], s94 offen sc1')
        a('s_waitcnt vmcnt(0)')
        tag_check(range(QD, QD + 4), 14, 15)
        a('s_cbranch_vccnz L_qfail')
    for p in range(8):
        vo = 'v8' if (p & 3) < 2 else 'v12'
        so = 's94' if p < 4 else 's95'
        a(f'buffer_load_dwordx4 v[{QD+4*p}:{QD+4*p+3}], {vo}, s[68:71], {so} offen offset:{(p & 1)*2048} sc1')
    for u in range(4):
        vo = 'v11' if (u & 1) == 0 else 'v13'
        so = 's93' if u < 2 else 's81'
        a(f'buffer_load_dwordx4 v[{HD+4*u}:{HD+4*u+3}], {vo}, s[68:71], {so} offen offset:768 sc1')
    a('s_waitcnt vmcnt(0)')
    tag_check(regs, 14, 15)
    a('s_cbranch_vccz L_qok0')
    a('L_qfail:')
    if qsleep: a(f's_sleep {qsleep}')
    if fastq:
        a('s_sub_u32 s76, s76, 1')
        a('s_cbranch_scc0 L_qnosw')
        for t in slow_q: a(t)
        a('L_qnosw:')
        a('s_cmp_lt_i32 s76, 0')
        a(f's_cselect_b32 s82, {FAST}, 0')
        for r in (93, 94, 95, 81): a(f's_xor_b32 s{r}, s{r}, s82')
    a('s_sub_u32 s92, s92, 1')
    a('s_cbranch_scc0 L_qpoll')
    a('s_endpgm')
    a('L_qok0:')
    if xchk:
        a(f'v_xor_b32 v14, s88, v{HD+1}')
        a(f'v_xor_b32 v15, s88, v{HD+5}')
        a(f'v_xor_b32 v17, s88, v{HD+9}')
        a(f'v_xor_b32 v18, s88, v{HD+13}')
        a('v_or3_b32 v14, v14, v15, v17')
        a('v_or_b32 v14, v14, v18')
        a('v_cmp_ne_u32 vcc, 0, v14')
        a('s_and_b32 s86, vcc_lo, 0x10001000')
        a('s_and_b32 s87, vcc_hi, 0x10001000')
        a('s_or_b32 s86, s86, s87')
        a('s_cselect_b32 s86, 2, 1')
        a('s_cbranch_scc0 L_qok')
    if fastq:
        a('s_cmp_lt_i32 s76, 0')
        a('s_cbranch_scc1 L_qok')
        for t in slow_q: a(t)
    a('L_qok:')
    for st in (4, 8, 16):
        for b0 in range(QD, QD + 32, 2 * st):
            for r in range(4): a(f'v_add_f32 v{b0+r}, v{b0+r}, v{b0+st+r}')
    a(f'v_cvt_pk_bf16_f32 v{QD}, v{QD}, v{QD+1}')
    a(f'v_cvt_pk_bf16_f32 v{QD+1}, v{QD+2}, v{QD+3}')
    a('v_lshlrev_b32 v10, 3, v1')
    a(f'ds_write_b64 v10, v[{QD}:{QD+1}] offset:{QBF}')
    a('v_mov_b32 v10, ' + ('s86' if xchk else '1'))
    a(f'ds_write_b32 v73, v10 offset:{FLAG}')
    stamp(5)
    for st in (4, 8):
        for b0 in range(HD, HD + 16, 2 * st):
            for r in range(4): a(f'v_add_f32 v{b0+r}, v{b0+r}, v{b0+st+r}')
    for r in range(4): a(f'v_mov_b32 v{HD+4+r}, v{HD+r}')
    for r in range(4): a(f'v_permlane32_swap_b32 v{HD+r}, v{HD+4+r}')
    for r in range(4): a(f'v_add_f32 v{HD+r}, v{HD+r}, v{HD+4+r}')
    G = 24; OMG = 25
    a(f'v_mov_b32_dpp v{G}, v{HD} row_newbcast:12 {DPP}')
    a(f'v_cvt_pk_bf16_f32 v{G}, v{G}, v{G}')
    a(f'v_and_b32 v{G}, 0xffff0000, v{G}')
    a(f'v_mul_f32 v{G}, {f2u(-LOG2E)}, v{G}')
    a(f'v_exp_f32 v{G}, v{G}')
    a(f'v_add_f32 v{G}, 1.0, v{G}')
    a(f'v_rcp_f32 v{G}, v{G}')
    a(f'v_cvt_pk_bf16_f32 v{G}, v{G}, v{G}')
    a(f'v_and_b32 v{G}, 0xffff0000, v{G}')
    a(f'v_sub_f32 v{OMG}, 1.0, v{G}')
    a(f'v_cvt_pk_bf16_f32 v{OMG}, v{OMG}, v{OMG}')
    a(f'v_and_b32 v{OMG}, 0xffff0000, v{OMG}')
    a('v_and_b32 v10, 31, v1')
    a('v_lshlrev_b32 v11, 2, v10')
    a(f'ds_write_b32 v11, v{G} offset:{GV}')
    a(f's_mov_b32 s83, {f2u(-LOG2E)}')
    for pr in range(2):
        h0, h1 = HD + 2 * pr, HD + 2 * pr + 1
        a(f'v_cvt_pk_bf16_f32 v{h0}, v{h0}, v{h1}')
        a(f'v_and_b32 v{h1}, 0xffff0000, v{h0}')
        a(f'v_lshlrev_b32 v{h0}, 16, v{h0}')
        a(f'v_and_b32 v27, 0xffff0000, v{74+pr}')
        a(f'v_lshlrev_b32 v26, 16, v{74+pr}')
        a(f'v_add_f32 v{h0}, v{h0}, v26')
        a(f'v_add_f32 v{h1}, v{h1}, v27')
        a(f'v_cvt_pk_bf16_f32 v{h0}, v{h0}, v{h1}')
        a(f'v_and_b32 v{h1}, 0xffff0000, v{h0}')
        a(f'v_lshlrev_b32 v{h0}, 16, v{h0}')
    for i in range(4):
        h = HD + i; t = 28; t2 = 29; nu = 30; de = 31
        a(f'v_mul_f32 v{t}, s83, abs(v{h})')
        a(f'v_exp_f32 v{t}, v{t}')
        a(f'v_cmp_lt_f32 vcc, 0, v{h}')
        a(f'v_mul_f32 v{t2}, v{t}, v{t}')
        a(f'v_cndmask_b32 v{nu}, v{t2}, 1.0, vcc')
        a(f'v_cndmask_b32 v{de}, 1.0, v{t2}, vcc')
        a(f'v_fma_f32 v{nu}, v{t}, 2.0, v{nu}')
        a(f'v_fma_f32 v{de}, v{de}, 2.0, v{nu}')
        a(f'v_rcp_f32 v{de}, v{de}')
        a(f'v_mul_f32 v{nu}, v{nu}, v{h}')
        a(f'v_mul_f32 v{nu}, v{nu}, v{de}')
        a(f'v_cvt_pk_bf16_f32 v{nu}, v{nu}, v{nu}')
        a(f'v_and_b32 v{nu}, 0xffff0000, v{nu}')
        a(f'v_mul_f32 v{nu}, v{nu}, v{OMG}')
        a(f'v_cvt_pk_bf16_f32 v{32+i}, v{nu}, v{nu}')
    a('v_lshlrev_b32 v11, 4, v10')
    a(f'ds_write_b128 v11, v[32:35] offset:{ACT}')
    a('s_waitcnt lgkmcnt(0)')
    stamp(6)
    if ypre == 1:
        a('s_mov_b32 exec_hi, 0xff')
        a('v_lshlrev_b32 v9, 4, v1')
        a('buffer_load_dwordx4 v[40:43], v9, s[68:71], s101 offen')
        a('s_mov_b32 exec_hi, -1')
    if ypre == 2:
        a('s_mov_b32 exec_hi, 0xff')
        a('v_lshlrev_b32 v9, 4, v1')
        a('s_add_u32 s82, s78, 1')
        for i in range(4): a(f'v_mov_b32 v{40+i}, s82')
        a('buffer_store_dwordx4 v[40:43], v9, s[68:71], s101 offen sc1')
        a('s_mov_b32 exec_hi, -1')
    if ctl and xbox:
        a('s_and_b32 s82, s2, 7')
        a('s_mul_i32 s82, s82, 4352')
        a(f's_add_u32 s82, s82, {MBOX}')
        a('s_lshr_b32 s83, s2, 3')
        a('s_lshl_b32 s83, s83, 2')
        a('s_add_u32 s83, s83, s82')
        a('s_and_b32 s84, s79, 0x3fffff')
        a('s_mov_b32 s85, 0')
        a('v_lshlrev_b32 v11, 2, v1')
        a('s_mov_b32 exec_hi, 0')
        a('L_c:')
        a(f'ds_read_b32 v10, v73 offset:{CNT}')
        a('s_waitcnt lgkmcnt(0)')
        a('v_subrev_u32 v10, s85, v10')
        a('v_lshl_or_b32 v12, v10, 22, s84')
        a('s_mov_b32 exec_lo, 1')
        a('buffer_store_dword v12, off, s[68:71], s83')
        a('s_mov_b32 exec_lo, -1')
        a('buffer_load_dword v9, v11, s[68:71], s82 offen sc1')
        a('v_readfirstlane_b32 s86, v10')
        a('s_waitcnt vmcnt(0)')
        a('v_and_b32 v12, 0x3fffff, v9')
        a('v_lshrrev_b32 v9, 22, v9')
        a(f'v_add_u32 v9, {comp}, v9')
        a('v_cmp_eq_u32 vcc, s84, v12')
        a('v_cndmask_b32 v9, v10, v9, vcc')
        for pat in RED8 + ('row_mirror',):
            a(f'v_add_u32_dpp v9, v9, v9 {pat} {DPP}')
        a('v_readlane_b32 s87, v9, 0')
        a('v_readlane_b32 s88, v9, 16')
        a('s_add_u32 s87, s87, s88')
        a('s_lshr_b32 s87, s87, 5')
        a('s_sub_i32 s87, s87, s86')
        if gsh: a(f's_ashr_i32 s87, s87, {gsh}')
        a('s_sub_i32 s88, s87, s85')
        a('s_mov_b32 s85, s87')
        a('v_mov_b32 v9, s88')
        a('s_mov_b32 exec_lo, 1')
        a(f'ds_add_u32 v73, v9 offset:{CNT}')
        a('s_mov_b32 exec_lo, -1')
        if csleep: a(f's_sleep {csleep}')
        a(f's_cmp_ge_u32 s86, {cend}')
        a('s_cbranch_scc1 L_cd')
        a('s_sub_u32 s92, s92, 1')
        a('s_cbranch_scc0 L_c')
        a('s_endpgm')
        a('L_cd:')
        a('s_mov_b64 exec, -1')
    a('s_cmp_ge_u32 s2, 160')
    a('s_cbranch_scc1 ' + ('L_end' if probe is not None else 'L_hend'))
    if ymap:
        a('s_lshr_b32 s82, s2, 5')
        a('s_lshl_b32 s82, s82, 3')
        a('s_and_b32 s83, s2, 7')
        a('s_add_u32 s82, s82, s83')
        a('s_lshl_b32 s82, s82, 2')
        a(f's_bfe_u32 s83, s2, {3 | (2 << 16)}')
        a('s_add_u32 s85, s82, s83')
    else:
        a('s_mov_b32 s85, s2')
    a('s_mul_i32 s82, s85, 205')
    a('s_lshr_b32 s82, s82, 12')
    a('s_mul_i32 s83, s82, 20')
    a('s_sub_u32 s83, s85, s83')
    a('s_mul_i32 s84, s82, 20480')
    a('s_lshl_b32 s81, s83, 5')
    a('s_add_u32 s84, s84, s81')
    a(f's_add_u32 s98, s84, {YOFF}')
    a('s_cmp_ge_u32 s83, 10')
    a('s_cselect_b32 s84, 1120, 0')
    a('s_lshl_b32 s81, s83, 4')
    a('s_add_u32 s84, s84, s81')
    a('s_mul_i32 s81, s82, 160')
    a('s_add_u32 s99, s84, s81')
    srd(72, 24, None); a('s_mov_b32 s74, 2560'); a('s_mov_b32 s75, 0x20000')
    vF, vOUT, F = 8, 9, 28
    a(f'v_lshrrev_b32 v{vF}, 1, v1')
    a(f'v_mul_u32_u24 v{vF}, 640, v{vF}')
    a('v_and_b32 v10, 1, v1')
    a(f'v_lshl_add_u32 v{vF}, v10, 4, v{vF}')
    a(f'v_lshlrev_b32 v{vOUT}, 3, v10')
    a('v_lshrrev_b32 v10, 4, v1')
    a(f'v_lshl_add_u32 v{vOUT}, v10, 1, v{vOUT}')
    a('v_mov_b32 v11, s79')
    a(f's_mov_b32 s82, {EOFF}')
    a('s_barrier')
    if not early2: a('s_barrier')
    stamp(7)
    if np2 == 1:
        a('L_poll2:')
        a(f'buffer_load_dwordx4 v[{F}:{F+3}], v{vF}, s[68:71], s98 offen sc1')
        a('s_waitcnt vmcnt(0)')
        tag_check(range(F, F + 4), 14, 15)
        a('s_cbranch_vccz L_poll2d')
        if psleep2: a(f's_sleep {psleep2}')
        a('s_sub_u32 s92, s92, 1')
        a('s_cbranch_scc0 L_poll2')
        a('s_endpgm')
    else:
        FS = [F + 4 + 4 * i for i in range(np2)]
        for i in range(np2):
            a(f'buffer_load_dwordx4 v[{FS[i]}:{FS[i]+3}], v{vF}, s[68:71], s98 offen sc1')
            if p2gap and i < np2 - 1: a(f's_sleep {p2gap}')
        a('L_poll2:')
        for i in range(np2):
            a(f's_waitcnt vmcnt({np2-1})')
            for r in range(4): a(f'v_xor_b32 v{F+r}, s78, v{FS[i]+r}')
            a(f'buffer_load_dwordx4 v[{FS[i]}:{FS[i]+3}], v{vF}, s[68:71], s98 offen sc1')
            a(f'v_or3_b32 v14, v{F}, v{F+1}, v{F+2}')
            a(f'v_or_b32 v14, v14, v{F+3}')
            a(f'v_and_b32 v14, {TM}, v14')
            a('v_cmp_ne_u32 vcc, 0, v14')
            a('s_cbranch_vccz L_poll2d')
            if p2gap: a(f's_sleep {p2gap}')
        a('s_sub_u32 s92, s92, 1')
        a('s_cbranch_scc0 L_poll2')
        a('s_endpgm')
    a('L_poll2d:')
    a(f'v_permlane16_swap_b32 v{F}, v{F+1}')
    a(f'v_permlane16_swap_b32 v{F+2}, v{F+3}')
    a(f'v_add_f32 v{F}, v{F}, v{F+1}')
    a(f'v_add_f32 v{F+2}, v{F+2}, v{F+3}')
    a(f'v_permlane32_swap_b32 v{F}, v{F+2}')
    a(f'v_add_f32 v{F}, v{F}, v{F+2}')
    a(f'v_add_f32_dpp v{F}, v{F}, v{F} quad_perm:[2,3,0,1] {DPP}')
    a(f'v_add_f32_dpp v{F}, v{F}, v{F} row_ror:4 {DPP}')
    a(f'v_add_f32_dpp v{F}, v{F}, v{F} row_ror:8 {DPP}')
    a(f'v_cvt_pk_bf16_f32 v{F}, v{F}, v{F}')
    a('s_mov_b32 exec_lo, 0x00030003')
    a('s_mov_b32 exec_hi, 0x00030003')
    a(f'buffer_store_short v{F}, v{vOUT}, s[72:75], s99 offen')
    a('s_cmp_lg_u32 s2, 0')
    a('s_cbranch_scc1 L_hend')
    a('s_mov_b64 exec, 1')
    a('buffer_store_dword v11, off, s[68:71], s82')
    a('L_hend:')
    if stamps:
        a('s_mov_b64 exec, -1')
        stamp(8)
        a('s_branch L_probe')
    a('s_endpgm')

    body = a.finalize()
    out = HEADER
    out += f'; @launch grid=(256,1,1) block=(576,1,1) lds={LDS_BYTES}\n'
    out += '.amdgcn_target "amdgcn-amd-amdhsa--gfx950"\n.text\n'
    out += f'.globl {KNAME}_kernel\n.p2align 8\n.type {KNAME}_kernel,@function\n'
    for l in body:
        out += (l if l.endswith(':') else '    ' + l) + '\n'
    out += f'''.section .rodata,"a"
.p2align 6
.amdhsa_kernel {KNAME}_kernel
  .amdhsa_next_free_vgpr {NV}
  .amdhsa_next_free_sgpr 102
  .amdhsa_accum_offset {NV}
  .amdhsa_group_segment_fixed_size 0
  .amdhsa_kernarg_size 104
  .amdhsa_user_sgpr_count 2
  .amdhsa_user_sgpr_kernarg_segment_ptr 1
  .amdhsa_system_sgpr_workgroup_id_x 1
  .amdhsa_float_denorm_mode_32 3
.end_amdhsa_kernel
'''
    return out

if __name__ == '__main__':
    kw = eval('dict(' + (sys.argv[2] if len(sys.argv) > 2 else '') + ')')
    open(sys.argv[1], 'w').write(gen(**kw))
```

```python
import sys, math, struct
from asmlib import Asm
KNAME = 'gated_mix__gqa_block_cached__dense_activation_mish__decode'
HEADER = open('cdna_kernels/' + KNAME + '.s.ref').read().split('; Override launch')[0]

def f2u(x): return struct.unpack('<I', struct.pack('<f', x))[0]
LOG2E = 1.4426950408889634
OOB = 0x80000000
QOFF = 0
OOFF = 512 * 1024
YOFF = 768 * 1024
EOFF = 960 * 1024
MBOX = 964 * 1024
GBOX = 3 << 20
STAMP_OFF = 1 << 20
FAST = 2 << 20
WS_REC = 4 << 20
TM = 0x3ff
OS = 848
QBF = 16 * OS
ACT = QBF + 512
GV = ACT + 512
FLAG = GV + 128
CNT = FLAG + 4
MW = FLAG + 16
YP = MW + 64
LDS_BYTES = YP + 8 * 640 + 256
DPP = 'row_mask:0xf bank_mask:0xf'
RED8 = ('quad_perm:[1,0,3,2]', 'quad_perm:[2,3,0,1]', 'row_half_mirror')
NV = 168

def gen(D=3, Dv=None, nb=30, catchup=2, stamps=False, k_cache='nt', v_cache='nt', w_cache='nt',
        late=0, poll_cap=1 << 18, probe=None, rot=True, hwin=24, hprio=0, fastq=True, fasto=True, nfast=48, psleep=0, qsleep=4, prio=0, Dend=None, nend=0, qind=True, Dpat=None, wo_cache=None, ymap=True, xchk=True, Dx=None, ctl=True, levels=((-4, 3), (13, 2)), Dmax=4, comp=14, gsh=0, xbox=True, cstart=6, csleep=0, cend=712, nlate=8, wv=None, np2=1, p2gap=0, early2=False, ypre=0, D0=None, n0=0, psleep2=0, G=256, gm=None, gs=0, glob=False, comp2=16, gsh2=0, gclamp=32, gm16=0, latebar=False, satom=False, gend=620, compx=None):
    Dv = Dv or D
    if wo_cache is None: wo_cache = w_cache
    a = Asm()
    nst = [0]
    VST = 167
    def stamp(i=None):
        if stamps:
            if i is None: i = nst[0]
            nst[0] = i + 1
            a('s_memrealtime s[96:97]')
            a('s_waitcnt lgkmcnt(0)')
            a(f'v_writelane_b32 v{VST}, s96, {i}')
    def srd(r, p, off):
        if off is None:
            a(f's_mov_b32 s{r}, s{p}'); a(f's_mov_b32 s{r+1}, s{p+1}')
        else:
            a(f's_add_u32 s{r}, s{p}, {off}'); a(f's_addc_u32 s{r+1}, s{p+1}, 0')
    def xlane(op, v, tmp):
        a(f'{op}_dpp v{v}, v{v}, v{v} row_ror:8 {DPP}')
        a(f'v_mov_b32 v{tmp}, v{v}')
        a(f'v_permlane16_swap_b32 v{v}, v{tmp}')
        a(f'{op} v{v}, v{v}, v{tmp}')
        a(f'v_mov_b32 v{tmp}, v{v}')
        a(f'v_permlane32_swap_b32 v{v}, v{tmp}')
        a(f'{op} v{v}, v{v}, v{tmp}')
    def masks(M, t0, t1):
        a(f'v_and_b32 v{t0}, 1, v1')
        a(f'v_lshlrev_b32 v{t0}, 4, v{t0}')
        a(f'v_mov_b32 v{t1}, 0xffff')
        a(f'v_lshlrev_b32 v{t0}, v{t0}, v{t1}')
        a(f'v_bfe_u32 v{t1}, v1, 1, 2')
        for r in range(4):
            a(f'v_cmp_eq_u32 vcc, {r}, v{t1}')
            a(f'v_cndmask_b32 v{M+r}, 0, v{t0}, vcc')
    def ws_srd_and_recs():
        srd(68, 28, None)
        a(f's_mov_b32 s70, {WS_REC}')
        a('s_mov_b32 s71, 0x20000')
        a('s_lshl_b32 s99, s30, 3')
        a('s_add_u32 s99, s99, s31')
        a('s_lshl_b32 s100, s99, 10')
        a(f's_add_u32 s100, s100, {OOFF}')
        a('s_lshl_b32 s99, s99, 11')
        a('s_lshl_b32 s101, s31, 5')
        a('s_add_u32 s101, s101, s30')
        a('s_mul_i32 s101, s101, 640')
        a(f's_add_u32 s101, s101, {YOFF}')
        a(f's_mov_b32 s92, {poll_cap}')
        a(f's_load_dword s79, s[28:29], {EOFF}')
        a(f's_mov_b32 s77, {0xffffffff ^ TM}')
    def tag_finish():
        a('s_add_u32 s79, s79, 1')
        a(f's_and_b32 s78, s79, {TM}')
    def tag_apply(regs, vt):
        for r in regs: a(f'v_and_or_b32 v{r}, v{r}, s77, v{vt}')
    def tag_check(regs, x0, x1):
        for r in regs: a(f'v_xor_b32 v{r}, s78, v{r}')
        rr = list(regs)
        acc = [x0, x1]; used = [False, False]; i = 0
        while rr:
            d = acc[i & 1]
            if not used[i & 1]:
                if len(rr) >= 3:
                    a(f'v_or3_b32 v{d}, v{rr[0]}, v{rr[1]}, v{rr[2]}'); rr = rr[3:]; used[i & 1] = True
                else:
                    d = acc[0]
                    if len(rr) == 2: a(f'v_or3_b32 v{d}, v{d}, v{rr[0]}, v{rr[1]}')
                    else: a(f'v_or_b32 v{d}, v{d}, v{rr[0]}')
                    rr = []
            elif len(rr) >= 2:
                a(f'v_or3_b32 v{d}, v{d}, v{rr[0]}, v{rr[1]}'); rr = rr[2:]
            else:
                a(f'v_or_b32 v{d}, v{d}, v{rr[0]}'); rr = []
            i += 1
        if used[1]: a(f'v_or_b32 v{x0}, v{x0}, v{x1}')
        a(f'v_and_b32 v{x0}, {TM}, v{x0}')
        a(f'v_cmp_ne_u32 vcc, 0, v{x0}')
    def stamp_out():
        if not stamps: return
        a('s_cmp_eq_u32 s3, 8')
        a('s_cbranch_scc1 L_nosl')
        a('s_sleep 127')
        a('s_sleep 127')
        a('L_nosl:')
        a(f'v_writelane_b32 v{VST}, s92, 63')
        a('s_mul_i32 s82, s2, 9')
        a('s_add_u32 s82, s82, s3')
        a('s_lshl_b32 s82, s82, 8')
        a(f's_add_u32 s82, s82, {STAMP_OFF}')
        a('v_lshlrev_b32 v5, 2, v1')
        a(f'buffer_store_dword v{VST}, v5, s[68:71], s82 offen')

    a(f'{KNAME}_kernel:')
    a('s_cmp_ge_u32 s2, 256')
    a('s_cbranch_scc1 L_end')
    a('s_load_dwordx16 s[4:19], s[0:1], 0')
    a('s_load_dwordx8 s[20:27], s[0:1], 64')
    a('s_load_dwordx2 s[28:29], s[0:1], 96')
    if stamps:
        a(f'v_mov_b32 v{VST}, 0')
        stamp()
    a('v_lshrrev_b32 v5, 6, v0')
    a('v_and_b32 v1, 63, v0')
    a('v_readfirstlane_b32 s3, v5')
    a('s_and_b32 s82, s2, 7')
    a('s_lshr_b32 s83, s2, 6')
    a('s_lshl_b32 s30, s82, 2')
    a('s_add_u32 s30, s30, s83')
    a(f's_bfe_u32 s31, s2, {3 | (3 << 16)}')
    a('s_lshr_b32 s80, s31, 2')
    a('v_lshrrev_b32 v6, 3, v1')
    a('v_and_b32 v7, 7, v1')
    a('v_lshlrev_b32 v5, 4, v7')
    a('s_cmp_eq_u32 s3, 8')
    a('s_cbranch_scc1 L_helper')
    a('v_mul_u32_u24 v2, 384, v6')
    a('v_add_u32 v2, v2, v5')
    a('s_lshl_b32 s82, s80, 5')
    a('s_add_u32 s82, s82, s30')
    a('s_and_b32 s81, s31, 3')
    if G == 256:
        a('s_lshl_b32 s82, s82, 2')
        a('s_add_u32 s84, s82, s81')
        a('s_lshl_b32 s82, s84, 7')
        a('s_add_u32 s82, s82, s3')
        a('s_mul_i32 s83, s3, 3072')
        a('s_sub_u32 s34, 393216, s83')
        BSTR = 24576
    else:
        a('s_mov_b32 s84, s82')
        a('s_lshl_b32 s83, s81, 3')
        a('s_add_u32 s83, s83, s3')
        a('s_lshl_b32 s82, s82, 9')
        a('s_add_u32 s82, s82, s83')
        a('s_mul_i32 s83, s83, 3072')
        a('s_sub_u32 s34, 1572864, s83')
        BSTR = 98304
    a('s_mul_i32 s82, s82, 3072')
    a('s_mov_b32 s35, 0x20000')
    if gm is not None:
        a(f's_mul_i32 s88, s84, {gm}')
        if gs: a(f's_lshr_b32 s88, s88, {gs}')
        if gm16:
            a('s_lshr_b32 s85, s84, 4')
            a(f's_mul_i32 s85, s85, {gm16}')
            a('s_add_u32 s88, s88, s85')
        a('s_and_b32 s88, s88, 15')
        rot = None
    if isinstance(rot, tuple):
        ra, rb, rc = rot
        a('s_lshr_b32 s88, s2, 3')
        a(f's_mul_i32 s88, s88, {ra}')
        a(f's_mul_i32 s85, s3, {rb}')
        a('s_add_u32 s88, s88, s85')
        a('s_and_b32 s85, s2, 7')
        a(f's_mul_i32 s85, s85, {rc}')
        a('s_add_u32 s88, s88, s85')
        a('s_and_b32 s88, s88, 15')
    elif rot == 'wg':
        a('s_mul_i32 s88, s2, 0x9E3779B1')
        a('s_lshr_b32 s88, s88, 28')
    elif rot == 'half':
        a('s_lshl_b32 s88, s2, 1')
        a('s_lshr_b32 s85, s3, 2')
        a('s_add_u32 s88, s88, s85')
        a('s_mul_i32 s88, s88, 0x9E3779B1')
        a('s_lshr_b32 s88, s88, 28')
    elif rot:
        a('s_lshl_b32 s88, s2, 3')
        a('s_add_u32 s88, s88, s3')
        a('s_mul_i32 s88, s88, 0x9E3779B1')
        a('s_lshr_b32 s88, s88, 28')
    elif rot is not None:
        a('s_mov_b32 s88, 0')
    a(f's_mul_i32 s86, s88, {BSTR}')
    a('s_waitcnt lgkmcnt(0)')
    srd(32, 6, 's82')
    S0 = 8; Q0 = 24; ACC = 24
    M0 = 36; A0 = 40
    vOW, vRA, vRG, vP1, vP2, vYW, vYR, vYG, vMW, vF, vOUT, vAC = range(48, 60)
    vM, vL = 60, 61
    SEL = [vP2, vF, vOUT, vL]
    T = list(range(62, 76))
    konly = list(range(36, 76, 4))
    top = NV - 4
    VZ = NV - 2
    free = konly + list(range(76, top, 4))
    slot = {}
    def alloc(tag):
        r = free.pop(0); slot[tag] = r; return r
    def release(tag):
        if slot[tag] not in konly: free.append(slot[tag])
    cur = {'kv': 0}
    def issue(tag):
        kind = tag[0]
        r = alloc(tag)
        if kind in ('k', 'v'):
            if cur['kv'] != tag[1]:
                a(f's_add_u32 s85, s88, {tag[1]}')
                a('s_and_b32 s85, s85, 15')
                a(f's_mul_i32 s86, s85, {BSTR}')
                cur['kv'] = tag[1]
            s0 = 32 if kind == 'k' else 36
            a.vmem(f'buffer_load_dwordx4 v[{r}:{r+3}], v2, s[{s0}:{s0+3}], s86 offen offset:{tag[2]*128} {k_cache if kind == "k" else v_cache}', tag)
            count()
        elif kind == 'wo':
            rg = tag[1]
            if rg: a(f's_mov_b32 s87, {rg*5120}')
            a.vmem(f'buffer_load_dwordx4 v[{r}:{r+3}], v3, s[48:51], {"s87" if rg else "0"} offen {wo_cache}', tag)
        elif kind == 'w2':
            a.vmem(f'buffer_load_dwordx4 v[{r}:{r+3}], v4, s[52:55], 0 offen offset:{tag[1]*1280} {wo_cache}', tag)
    kl = [('k', k, s) for k in range(16) for s in range(3)]
    vl = [('v', k, s) for k in range(16) for s in range(3)]
    wcnt = [0]
    nis = [0]
    def window(win):
        n = nis[0]
        wcnt[0] += 1
        if ctl and n >= cstart and win in (D, Dv):
            a.wait_out(Dmax - 1)
            a('s_waitcnt lgkmcnt(0)')
            a('v_readfirstlane_b32 s90, v0')
            for (delta, d) in levels:
                if Dpat and d == D: d = Dpat[n % len(Dpat)]
                a(f's_cmp_lt_i32 s90, {8*n - delta}')
                a(f's_cbranch_scc0 L_go{wcnt[0]}')
                a(f's_waitcnt vmcnt({d-1})')
            a(f'L_go{wcnt[0]}:')
            return
        if Dpat and win in (D, Dv):
            win = Dpat[n % len(Dpat)]
        if D0 and n < cstart: win = D0
        a.wait_out(win - 1)
    def count():
        nis[0] += 1
        if ctl and nis[0] > D:
            a('s_mov_b64 exec, 1')
            a(f'ds_add_rtn_u32 v0, v{VZ}, v{VZ} offset:{CNT - 1}')
            a('s_mov_b64 exec, -1')
    for tag in kl[:D]: issue(tag)
    srd(36, 8, 's82'); a('s_mov_b32 s38, s34'); a('s_mov_b32 s39, 0x20000')
    ws_srd_and_recs()
    a(f's_mov_b32 s91, {f2u(LOG2E / math.sqrt(192.0))}')
    a('s_mul_i32 s82, s30, 192')
    a('s_mul_i32 s83, s3, 24')
    a('s_add_u32 s82, s82, s83')
    a('s_mul_i32 s82, s82, 1280')
    a('s_mul_i32 s83, s31, 160')
    a('s_add_u32 s82, s82, s83')
    srd(48, 12, 's82')
    a('s_sub_u32 s50, 7864320, s82')
    a('s_mov_b32 s51, 0x20000')
    a('s_lshl_b32 s82, s30, 3')
    a('s_add_u32 s82, s82, s3')
    a('s_mul_i32 s82, s82, 7680')
    a('s_add_u32 s82, s82, s83')
    srd(52, 20, 's82')
    a('s_sub_u32 s54, 1966080, s82')
    a('s_mov_b32 s55, 0x20000')
    a('s_lshl_b32 s93, s30, 13')
    a(f's_add_u32 s93, s93, {OOFF}')
    a('v_lshrrev_b32 v8, 4, v1')
    a('v_and_b32 v9, 15, v1')
    a(f'v_mov_b32 v10, {OOB}')
    a('v_mul_u32_u24 v3, 1280, v8')
    a('v_lshl_add_u32 v3, v9, 4, v3')
    a('v_mul_u32_u24 v4, 2560, v8')
    a('v_lshl_add_u32 v4, v9, 4, v4')
    a('v_cmp_gt_u32 vcc, 3, v8')
    a('v_cndmask_b32 v4, v10, v4, vcc')
    a('v_cmp_gt_u32 vcc, 10, v9')
    a('v_cndmask_b32 v3, v10, v3, vcc')
    a('v_cndmask_b32 v4, v10, v4, vcc')
    if prio:
        a('s_cmp_lt_u32 s3, 4')
        a('s_cbranch_scc1 L_noprio')
        a(f's_setprio {prio}')
        a('L_noprio:')
    a('v_mov_b32 v9, 0')
    a(f'v_mov_b32 v{VZ}, 1')
    a('s_barrier')
    for tag in kl[D:nb]:
        window(D); issue(tag)
    a('s_waitcnt lgkmcnt(0)')
    tag_finish()
    a(f's_add_u32 s94, s100, {FAST}')
    a(f's_add_u32 s95, s93, {FAST}')
    stamp(1)
    a('L_qw:')
    a(f'ds_read_b32 v8, v9 offset:{FLAG}')
    for s in range(3):
        a(f'ds_read_b128 v[{Q0+4*s}:{Q0+3+4*s}], v5 offset:{QBF + s*128}')
    a('s_waitcnt lgkmcnt(0)')
    a('v_readfirstlane_b32 s89, v8')
    a('s_cmp_lg_u32 s89, 0')
    a('s_cbranch_scc1 L_qwd')
    a('s_sleep 2')
    a('s_sub_u32 s92, s92, 1')
    a('s_cbranch_scc0 L_qw')
    a('s_endpgm')
    a('L_qwd:')
    stamp(2)
    abi = [0]
    def nextA():
        A = A0 + 4 * (abi[0] & 1); abi[0] += 1; return A
    def build_A(src):
        A = nextA()
        for r in range(4):
            a(f'v_and_b32 v{A+r}, {src}, v{M0+r}')
        return A
    def task_k(k):
        S = S0 + k
        first = True
        for s in range(3):
            r = slot[('k', k, s)]
            for i in range(4):
                c = '0' if first else f'v{S}'
                a(f'v_dot2_f32_bf16 v{S}, v{r+i}, v{Q0 + s*4 + i}, {c}')
                first = False
            release(('k', k, s))
    def task_v(k):
        A = build_A(f'v{S0+k}')
        for s in range(3):
            r = slot[('v', k, s)]; acc = ACC + 4 * s
            c = '0' if k == 0 else f'v[{acc}:{acc+3}]'
            a(f'v_mfma_f32_16x16x32_bf16 v[{acc}:{acc+3}], v[{A}:{A+3}], v[{r}:{r+3}], {c}')
            release(('v', k, s))
    def task_red(ks):
        for pat in RED8:
            for k in ks:
                a(f'v_add_f32_dpp v{S0+k}, v{S0+k}, v{S0+k} {pat} {DPP}')
    def task_sm_b():
        t = T[0]
        a(f'v_max3_f32 v{t}, v{S0}, v{S0+1}, v{S0+2}')
        for k in range(3, 15, 2):
            a(f'v_max3_f32 v{t}, v{t}, v{S0+k}, v{S0+k+1}')
        a(f'v_max_f32 v{t}, v{t}, v{S0+15}')
        xlane('v_max_f32', t, T[1])
        a(f'v_mul_f32 v{vM}, s91, v{t}')
        for k in range(16):
            a(f'v_fma_f32 v{S0+k}, v{S0+k}, s91, -v{vM}')
    def task_sm_c():
        for k in range(16):
            a(f'v_exp_f32 v{S0+k}, v{S0+k}')
        masks(M0, T[0], T[1])
    def task_sm_d():
        a(f'v_add_f32 v{vL}, v{S0}, v{S0+1}')
        for k in range(2, 16):
            a(f'v_add_f32 v{vL}, v{vL}, v{S0+k}')
        for k in range(16):
            a(f'v_cvt_pk_bf16_f32 v{S0+k}, v{S0+k}, v{S0+k}')
    def run(issue_list, tasks, win, per_issue):
        for tag in issue_list:
            while not free:
                fn, needs = tasks.pop(0)
                for n in needs: a.wait_tag(n)
                fn()
            if win: window(win)
            issue(tag)
            n = 0
            while tasks and n < per_issue and all(a.issued(x) and a.is_done(x) for x in tasks[0][1]):
                fn, needs = tasks.pop(0); fn(); n += 1
    def drain(tasks):
        while tasks:
            fn, needs = tasks.pop(0)
            for n in needs: a.wait_tag(n)
            fn()
    t0, t1, t2, t3, t4 = T[0], T[1], T[2], T[3], T[4]
    def task_addr0():
        xlane('v_add_f32', vL, t0)
        a(f'v_lshrrev_b32 v{t0}, 5, v1')
        a('s_lshl_b32 s82, s3, 1')
        a(f'v_add_u32 v{t0}, s82, v{t0}')
        a(f'v_lshlrev_b32 v{t1}, 5, v7')
        a(f'v_bfe_u32 v{t2}, v1, 4, 1')
        a(f'v_lshl_add_u32 v{t1}, v{t2}, 4, v{t1}')
        a(f'v_mul_u32_u24 v{vOW}, {OS}, v{t0}')
        a(f'v_add_u32 v{vOW}, v{vOW}, v{t1}')
        a('s_lshl_b32 s82, s3, 2')
        a(f'v_mov_b32 v{t0}, s82')
        a(f'ds_write_b32 v{t0}, v{vM} offset:{MW}')
        u = 64
        a(f'v_mov_b32 v{u}, v{vL}')
        a(f'v_writelane_b32 v{u}, 0, 40')
        a(f'v_mov_b32 v{u+1}, v{u}'); a(f'v_mov_b32 v{u+2}, v{u}'); a(f'v_mov_b32 v{u+3}, v{u}')
        a('s_mov_b32 exec_lo, 1')
        a('s_mov_b32 exec_hi, 0x100')
        a(f'ds_write_b128 v{vOW}, v[{u}:{u+3}] offset:768')
        a('s_mov_b64 exec, -1')
    def task_addr1():
        g, ob, x, y, z = 68, 69, 70, 71, 72
        a(f'v_lshrrev_b32 v{g}, 4, v1')
        a(f'v_mov_b32 v{ob}, {OOB}')
        a('s_mul_i32 s82, s3, 6')
        a(f'v_add_u32 v{x}, s82, v6')
        a('v_cmp_gt_u32 vcc, 6, v6')
        a(f'v_cndmask_b32 v{x}, 48, v{x}, vcc')
        a(f'v_lshlrev_b32 v{x}, 4, v{x}')
        a(f'v_mul_u32_u24 v{vRA}, {2*OS}, v7')
        a(f'v_add_u32 v{vRA}, v{vRA}, v{x}')
        a('s_lshl_b32 s82, s3, 7')
        a(f'v_lshl_add_u32 v{x}, v6, 4, s82')
        a('v_cmp_eq_u32 vcc, 0, v7')
        a(f'v_cndmask_b32 v{vRG}, v{ob}, v{x}, vcc')
        a(f'v_and_b32 v{x}, 1, v6')
        a(f'v_lshlrev_b32 v{vAC}, 8, v{x}')
        a(f'v_lshlrev_b32 v{y}, 12, v{x}')
        a(f'v_lshl_add_u32 v{y}, v{g}, 10, v{y}')
        a(f'v_add3_u32 v{vP1}, v{y}, v5, s82')
        a(f'v_mul_u32_u24 v{y}, 0x0202, v{x}')
        a(f'v_lshl_or_b32 v{y}, v{y}, 16, v{y}')
        a(f'v_add_u32 v{y}, 0x01000100, v{y}')
        a('s_mov_b32 s83, 0x0c0c0c0c')
        for r in range(4):
            a(f'v_bfi_b32 v{SEL[r]}, v{M0+r}, v{y}, s83')
        a('s_mul_i32 s82, s3, 24')
        a(f'v_lshl_add_u32 v{vAC}, v{g}, 3, v{vAC}')
        a(f'v_add_u32 v{vAC}, s82, v{vAC}')
    def task_addr2():
        g, ob, x, y, z = 68, 69, 70, 71, 72
        a(f'v_and_b32 v{x}, 15, v1')
        a(f'v_lshlrev_b32 v{x}, 5, v{x}')
        a(f'v_lshrrev_b32 v{y}, 5, v1')
        a(f'v_mul_u32_u24 v{y}, 320, v{y}')
        a(f'v_and_b32 v{z}, 1, v{g}')
        a(f'v_lshlrev_b32 v{z}, 4, v{z}')
        a(f'v_add3_u32 v{vYW}, v{x}, v{y}, v{z}')
        a('s_mul_i32 s82, s3, 640')
        a(f'v_add_u32 v{vYW}, s82, v{vYW}')
        a('s_lshl_b32 s82, s3, 7')
        a(f'v_lshl_add_u32 v{x}, v6, 4, s82')
        a(f'v_mul_u32_u24 v{vYR}, 640, v7')
        a(f'v_add_u32 v{vYR}, v{vYR}, v{x}')
        a(f'v_lshlrev_b32 v{vMW}, 2, v7')
    kt = [((lambda k=k: task_k(k)), [('k', k, s) for s in range(3)]) for k in range(16)]
    tasks = kt[:12] + [(lambda: task_red(range(0, 6)), []), (lambda: task_red(range(6, 12)), [])] + kt[12:]
    tasks += [(lambda: task_red(range(12, 16)), []), (task_sm_b, []), (task_sm_c, []), (task_sm_d, [])]
    if stamps: tasks += [(lambda: stamp(3), [])]
    vt = [((lambda k=k: task_v(k)), [('v', k, s) for s in range(3)]) for k in range(16)]
    tasks += vt[:5] + [(task_addr0, [])] + vt[5:7] + [(task_addr1, [])] + vt[7:9] + [(task_addr2, [])] + vt[9:]
    wl = [('wo', rg) for rg in range(6)] + [('w2', i) for i in range(2)]
    run(kl[nb:], tasks, D, catchup)
    early = wl[nlate:][::-1]; latel = wl[:nlate]
    vseq = []
    for i, tag in enumerate(vl):
        vseq.append(tag)
        if i >= 9 and i % 4 == 1 and early: vseq.append(early.pop())
    run(vseq, tasks, Dv, catchup)
    if latebar: a('s_barrier')
    if wv is not None:
        a.wait_out(wv)
    run(latel, tasks, 0, 0)
    drain(tasks)
    stamp(4)
    a('s_mov_b32 exec_lo, 0x00ff00ff')
    a('s_mov_b32 exec_hi, 0xff00ff00')
    for s in range(3):
        a(f'ds_write_b128 v{vOW}, v[{ACC+4*s}:{ACC+3+4*s}] offset:{s*256}')
    a('s_mov_b64 exec, -1')
    a('s_waitcnt lgkmcnt(0)')
    a('s_barrier')
    R = 8
    a(f'ds_read_b32 v{t0}, v{vMW} offset:{MW}')
    a(f'ds_read_b128 v[{R}:{R+3}], v{vRA}')
    a(f'ds_read_b128 v[{R+4}:{R+7}], v{vRA} offset:{OS}')
    a(f'ds_read_b64 v[72:73], v{vAC} offset:{ACT}')
    a(f'v_lshrrev_b32 v{t2}, 8, v{vAC}')
    a(f'v_lshlrev_b32 v{t2}, 6, v{t2}')
    a(f'ds_read_b32 v74, v{t2} offset:{GV}')
    a('v_mov_b32 v75, s78')
    a('s_waitcnt lgkmcnt(4)')
    a(f'v_max_f32_dpp v{t1}, v{t0}, v{t0} {RED8[0]} {DPP}')
    a(f'v_max_f32_dpp v{t1}, v{t1}, v{t1} {RED8[1]} {DPP}')
    a(f'v_max_f32_dpp v{t1}, v{t1}, v{t1} {RED8[2]} {DPP}')
    a(f'v_and_b32 v{t1}, s77, v{t1}')
    a(f'v_sub_f32 v{t0}, v{t0}, v{t1}')
    a(f'v_exp_f32 v{t0}, v{t0}')
    a('s_waitcnt lgkmcnt(2)')
    for i in range(4): a(f'v_add_f32 v{R+i}, v{R+i}, v{R+4+i}')
    for i in range(4): a(f'v_mul_f32 v{R+i}, v{R+i}, v{t0}')
    for pat in RED8:
        for i in range(4):
            a(f'v_add_f32_dpp v{R+i}, v{R+i}, v{R+i} {pat} {DPP}')
    a('v_cmp_eq_u32 vcc, 7, v6')
    a(f'v_cndmask_b32 v{R}, v{R}, v{t1}, vcc')
    tag_apply(range(R, R + 4), 75)
    O = 16; X = 20; X2 = 21; Y = 24
    slow_o = f'buffer_store_dwordx4 v[{R}:{R+3}], v{vRG}, s[68:71], s100 offen sc1'
    def poll1(base):
        a(f'buffer_load_dwordx4 v[{O}:{O+3}], v{vP1}, s[68:71], {base} offen sc1')
    def poll1c():
        a('s_waitcnt vmcnt(0)')
        tag_check(range(O, O + 4), X, X2)
    def w2part():
        a('s_waitcnt vmcnt(2) lgkmcnt(0)')
        for i in range(2):
            A = build_A(f'v{72+i}')
            r = slot[('w2', i)]
            a(f'v_mfma_f32_16x16x32_bf16 v[{Y}:{Y+3}], v[{A}:{A+3}], v[{r}:{r+3}], {"0" if i == 0 else f"v[{Y}:{Y+3}]"}')
    if xchk:
        a('s_cmp_eq_u32 s89, 1')
        a('s_cbranch_scc1 L_ofast')
        a(slow_o)
        a('s_branch L_odone')
        a('L_ofast:')
        a(f'buffer_store_dwordx4 v[{R}:{R+3}], v{vRG}, s[68:71], s100 offen')
        a('L_odone:')
        poll1('s93')
        stamp(5)
        w2part()
    elif fasto:
        a(f'buffer_store_dwordx4 v[{R}:{R+3}], v{vRG}, s[68:71], s94 offen')
        poll1('s95')
        stamp(5)
        w2part()
        a(f's_mov_b32 s76, {nfast*3}')
        a('L_poll1f:')
        poll1c()
        a('s_cbranch_vccz L_poll1s')
        if psleep: a(f's_sleep {psleep}')
        poll1('s95')
        a('s_sub_u32 s76, s76, 1')
        a('s_cbranch_scc0 L_poll1f')
        a(slow_o)
    else:
        a(slow_o)
        poll1('s93')
        stamp(5)
        w2part()
    a('L_poll1:')
    poll1c()
    a('s_cbranch_vccz L_poll1d')
    if psleep: a(f's_sleep {psleep}')
    poll1('s93')
    a('s_sub_u32 s92, s92, 1')
    a('s_cbranch_scc0 L_poll1')
    a('s_endpgm')
    if fasto and not xchk:
        a('L_poll1s:')
        a(slow_o)
    a('L_poll1d:')
    a.vm_done = len(a.vm)
    stamp(6)
    MQ = 20; MX = 21; TT = 22; PK = 23
    a(f'v_mov_b32_dpp v{MQ}, v{O} row_newbcast:7 row_mask:0xf bank_mask:0x3')
    a(f'v_mov_b32_dpp v{MQ}, v{O} row_newbcast:15 row_mask:0xf bank_mask:0xc')
    a(f'v_mov_b32 v{MX}, v{MQ}')
    a(f'v_mov_b32 v{TT}, v{MQ}')
    a(f'v_permlane16_swap_b32 v{MX}, v{TT}')
    a(f'v_max_f32 v{MX}, v{MX}, v{TT}')
    a(f'v_mov_b32 v{TT}, v{MX}')
    a(f'v_permlane32_swap_b32 v{MX}, v{TT}')
    a(f'v_max_f32 v{MX}, v{MX}, v{TT}')
    a(f'v_sub_f32 v{MQ}, v{MQ}, v{MX}')
    a(f'v_exp_f32 v{MQ}, v{MQ}')
    for i in range(4): a(f'v_mul_f32 v{O+i}, v{O+i}, v{MQ}')
    a(f'v_permlane16_swap_b32 v{O}, v{O+1}')
    a(f'v_permlane16_swap_b32 v{O+2}, v{O+3}')
    a(f'v_add_f32 v{O}, v{O}, v{O+1}')
    a(f'v_add_f32 v{O+2}, v{O+2}, v{O+3}')
    a(f'v_permlane32_swap_b32 v{O}, v{O+2}')
    a(f'v_add_f32 v{O}, v{O}, v{O+2}')
    a(f'v_rcp_f32 v{MX}, v{O}')
    a(f'v_mul_f32 v{O}, v{O}, v74')
    a(f'v_mul_f32_dpp v{O+1}, v{MX}, v{O} row_newbcast:6 row_mask:0xf bank_mask:0x3')
    a(f'v_mul_f32_dpp v{O+1}, v{MX}, v{O} row_newbcast:14 row_mask:0xf bank_mask:0xc')
    a(f'v_mov_b32_dpp v{TT}, v{O+1} row_ror:8 {DPP}')
    a(f'v_cvt_pk_bf16_f32 v{PK}, v{O+1}, v{TT}')
    BB = [62, 63, 64, 65, 66, 67]
    for p in range(6): a(f'v_mov_b32_dpp v{BB[p]}, v{PK} row_newbcast:{p} {DPP}')
    AB = [40, 44, 68, 12]
    for p in range(6):
        A = AB[p % 4]
        for r in range(4): a(f'v_perm_b32 v{A+r}, v{BB[p]}, v{BB[p]}, v{SEL[r]}')
        if p > 0:
            r0 = slot[('wo', p - 1)]; A0_ = AB[(p - 1) % 4]
            a(f'v_mfma_f32_16x16x32_bf16 v[{Y}:{Y+3}], v[{A0_}:{A0_+3}], v[{r0}:{r0+3}], v[{Y}:{Y+3}]')
    r0 = slot[('wo', 5)]; A0_ = AB[5 % 4]
    a(f'v_mfma_f32_16x16x32_bf16 v[{Y}:{Y+3}], v[{A0_}:{A0_+3}], v[{r0}:{r0+3}], v[{Y}:{Y+3}]')
    a('s_mov_b32 exec_lo, 0x03ff03ff')
    a('s_mov_b32 exec_hi, 0x03ff03ff')
    a(f'ds_write_b128 v{vYW}, v[{Y}:{Y+3}] offset:{YP}')
    a('s_mov_b64 exec, -1')
    a('s_cmp_ge_u32 s3, 5')
    a('s_waitcnt lgkmcnt(0)')
    a('s_barrier')
    a('s_cbranch_scc1 L_fin')
    R2 = 28
    a(f'ds_read_b128 v[{R2}:{R2+3}], v{vYR} offset:{YP}')
    a('s_waitcnt lgkmcnt(0)')
    for pat in RED8:
        for i in range(4):
            a(f'v_add_f32_dpp v{R2+i}, v{R2+i}, v{R2+i} {pat} {DPP}')
    tag_apply(range(R2, R2 + 4), 75)
    a(f'buffer_store_dwordx4 v[{R2}:{R2+3}], v{vRG}, s[68:71], s101 offen sc1')
    a('L_fin:')
    if stamps:
        stamp(7)
        a(f'v_writelane_b32 v{VST}, s96, 8')
        a('L_probe:')
        if probe is not None:
            i, K, base = probe
            a(f'v_readlane_b32 s82, v{VST}, 0')
            a(f'v_readlane_b32 s83, v{VST}, {i}')
            a('s_sub_u32 s83, s83, s82')
            a(f's_mul_i32 s83, s83, {K}')
            a(f's_add_u32 s83, s83, {base}')
            a('L_spin:')
            a('s_sleep 2')
            a('s_memrealtime s[96:97]')
            a('s_waitcnt lgkmcnt(0)')
            a('s_sub_u32 s84, s96, s82')
            a('s_cmp_lt_u32 s84, s83')
            a('s_cbranch_scc1 L_spin')
        else:
            stamp_out()
    a('L_end:')
    a('s_endpgm')

    a.vm = []; a.vm_done = 0
    a('L_helper:')
    if hprio: a(f's_setprio {hprio}')
    a('v_mul_u32_u24 v3, 122880, v6')
    a('v_add_u32 v3, v3, v5')
    a('v_mul_u32_u24 v4, 30720, v6')
    a('v_add_u32 v4, v4, v5')
    a(f'v_mov_b32 v2, {OOB}')
    a('v_cmp_gt_u32 vcc, 6, v7')
    a('v_cndmask_b32 v4, v2, v4, vcc')
    a('v_mul_u32_u24 v8, 20, v6')
    a('v_lshlrev_b32 v9, 4, v1')
    a('v_mov_b32 v73, 0')
    a(f'ds_write_b32 v73, v73 offset:{FLAG}')
    a(f'v_mov_b32 v10, {8*D}')
    a(f'ds_write_b32 v73, v10 offset:{CNT}')
    HM = 12; HA = 16; HACC = 24
    HX = 56
    a('s_mul_i32 s83, s31, 983040')
    a('s_mul_i32 s84, s30, 384')
    a('s_add_u32 s83, s83, s84')
    a('s_mul_i32 s85, s31, 245760')
    a('s_mul_i32 s84, s30, 96')
    a('s_add_u32 s85, s85, s84')
    a('s_mul_i32 s98, s31, 160')
    for r in (43, 47, 59, 63, 67):
        a(f's_mov_b32 s{r}, 0x20000')
    a('s_sub_u32 s42, 7864320, s83')
    a('s_sub_u32 s46, 1966080, s85')
    a('s_sub_u32 s58, 2560, s98')
    a('s_sub_u32 s62, 1280, s98')
    a('s_mov_b32 s66, 96')
    a('s_waitcnt lgkmcnt(0)')
    srd(56, 4, 's98'); srd(40, 10, 's83'); srd(44, 16, 's85'); srd(60, 22, 's98'); srd(64, 18, 's84')
    a.vmem(f'buffer_load_dwordx4 v[{HX}:{HX+3}], v8, s[56:59], 0 offen')
    a.vmem(f'buffer_load_dword v{HX+4}, v8, s[56:59], 0 offen offset:16')
    a.vmem(f'buffer_load_dwordx4 v[{HX+6}:{HX+9}], v8, s[56:59], 0 offen offset:1280')
    a.vmem(f'buffer_load_dword v{HX+10}, v8, s[56:59], 0 offen offset:1296', 'x')
    hfree = list(range(76, top, 4))
    hslot = {}
    def hissue(tag):
        r = hfree.pop(0); hslot[tag] = r
        t = tag[0]
        if tag[1] == 0 and t:
            a(f's_mov_b32 s87, {t*12288}'); a(f's_mov_b32 s86, {t*3072}')
        if tag[1] < 3:
            a.vmem(f'buffer_load_dwordx4 v[{r}:{r+3}], v3, s[40:43], {"s87" if t else "0"} offen offset:{tag[1]*128} {w_cache}', tag)
        else:
            a.vmem(f'buffer_load_dwordx4 v[{r}:{r+3}], v4, s[44:47], {"s86" if t else "0"} offen {w_cache}', tag)
    hl = [(t, s) for t in range(10) for s in range(4)]
    nfirst = min(hwin, len(hfree)) // 4 * 4
    for tag in hl[:nfirst]: hissue(tag)
    hl = hl[nfirst:]
    a.vmem(f'buffer_load_dwordx4 v[{HX+12}:{HX+15}], v8, s[60:63], 0 offen')
    a.vmem(f'buffer_load_dword v{HX+16}, v8, s[60:63], 0 offen offset:16', 'g')
    a('v_and_b32 v10, 15, v1')
    a('v_lshlrev_b32 v10, 3, v10')
    a.vmem(f'buffer_load_dwordx2 v[74:75], v10, s[64:67], 0 offen', 'b1')
    a('s_mov_b32 s89, 0x01000100')
    a('s_mov_b32 s90, 0x03020302')
    masks(HM, 10, 11)
    a('s_barrier')
    ws_srd_and_recs()
    stamp(1)
    hai = 0
    for t in range(10):
        a.wait_tag((t, 3))
        for bb in range(2):
            xr = HX + 6 * bb + t // 2
            a(f'v_perm_b32 v11, v{xr}, v{xr}, s{89 + (t & 1)}')
            A = HA + 4 * (hai & 1); hai += 1
            for r in range(4): a(f'v_and_b32 v{A+r}, v11, v{HM+r}')
            for s in range(4):
                r = hslot[(t, s)]; acc = HACC + 16 * bb + 4 * s
                c = '0' if t == 0 else f'v[{acc}:{acc+3}]'
                a(f'v_mfma_f32_16x16x32_bf16 v[{acc}:{acc+3}], v[{A}:{A+3}], v[{r}:{r+3}], {c}')
        for s in range(4): hfree.append(hslot[(t, s)])
        for tag in hl[:4]: hissue(tag)
        hl = hl[4:]
        if t == 6:
            a.wait_tag('b1')
            G0, G1 = 61, 67
            for bb, G in ((0, G0), (1, G1)):
                for i in range(5):
                    a(f'v_dot2_f32_bf16 v{G}, v{HX+6*bb+i}, v{HX+12+i}, {"0" if i == 0 else f"v{G}"}')
            xlane('v_add_f32', G0, 10)
            xlane('v_add_f32', G1, 10)
    stamp(2)
    a('v_lshrrev_b32 v10, 5, v1')
    a('v_lshlrev_b32 v10, 10, v10')
    a('v_and_b32 v11, 1, v6')
    a('v_lshl_add_u32 v10, v11, 8, v10')
    a('v_lshl_add_u32 v10, v7, 5, v10')
    a('v_bfe_u32 v11, v1, 4, 1')
    a('v_lshl_add_u32 v10, v11, 4, v10')
    for s in range(4):
        for r in range(4):
            a(f'v_permlane32_swap_b32 v{HACC+4*s+r}, v{HACC+16+4*s+r}')
    P = 76
    for u in range(2):
        for r in range(4):
            Ae, Be = HACC + 8 * u + r, HACC + 16 + 8 * u + r
            a(f'v_add_f32_dpp v{P+4*u+r}, v{Be}, v{Ae} row_ror:8 {DPP}')
        for r in range(4):
            Ao, Bo = HACC + 8 * u + 4 + r, HACC + 16 + 8 * u + 4 + r
            a(f'v_add_f32_dpp v{P+4*u+r}, v{Ao}, v{Bo} row_ror:8 row_mask:0xf bank_mask:0xc')
    a(f's_mov_b64 exec, {1 << 14}')
    a(f'v_mov_b32 v{P+4}, v61')
    a('s_mov_b32 exec_lo, 0')
    a(f's_mov_b32 exec_hi, {1 << 14}')
    a(f'v_mov_b32 v{P+4}, v67')
    a('s_mov_b64 exec, -1')
    if xchk:
        a('s_getreg_b32 s88, hwreg(HW_REG_XCC_ID)')
        a('s_and_b32 s88, s88, 15')
        a('s_lshl_b32 s88, s88, 23')
        a(f'v_writelane_b32 v{P+5}, s88, 14')
        a(f'v_writelane_b32 v{P+5}, s88, 46')
    a('s_waitcnt lgkmcnt(0)')
    tag_finish()
    a('v_mov_b32 v11, s78')
    tag_apply(range(P, P + 8), 11)
    slow_q = [f'buffer_store_dwordx4 v[{P}:{P+3}], v16, s[68:71], s99 offen sc1',
              f'buffer_store_dwordx4 v[{P+4}:{P+7}], v16, s[68:71], s99 offen offset:512 sc1']
    a('v_mov_b32 v16, v10')
    if fastq:
        a(f's_add_u32 s82, s99, {FAST}')
        a(f'buffer_store_dwordx4 v[{P}:{P+3}], v10, s[68:71], s82 offen')
        a(f'buffer_store_dwordx4 v[{P+4}:{P+7}], v10, s[68:71], s82 offen offset:512')
    else:
        for t in slow_q: a(t)
    stamp(3)
    a('v_cmp_gt_u32 vcc, 48, v1')
    a('v_cndmask_b32 v8, 0, v9, vcc')
    a('v_add_u32 v12, 4096, v8')
    a('v_and_b32 v11, 15, v1')
    a('v_lshlrev_b32 v11, 4, v11')
    a('v_lshrrev_b32 v10, 4, v1')
    a('v_lshl_add_u32 v11, v10, 10, v11')
    a('v_add_u32 v13, 4096, v11')
    stamp(4)
    QD = 24
    HD = 84
    regs = list(range(QD, QD + 32)) + list(range(HD, HD + 16))
    def qbase(off):
        a('s_lshl_b32 s93, s30, 14')
        if off: a(f's_add_u32 s93, s93, {off}')
        a('s_lshl_b32 s82, s80, 10')
        a('s_add_u32 s94, s93, s82')
        a('s_add_u32 s95, s94, 8192')
        a('s_add_u32 s81, s93, 8192')
    qbase(FAST if fastq else 0)
    a(f's_mov_b32 s76, {nfast if fastq else -1}')
    if qind:
        a('v_lshlrev_b32 v17, 11, v6')
        a('v_and_b32 v18, 3, v1')
        a('v_lshl_add_u32 v17, v18, 4, v17')
        a('v_bfe_u32 v18, v1, 2, 1')
        a('v_lshl_add_u32 v17, v18, 9, v17')
    a('L_qpoll:')
    if qind:
        a(f'buffer_load_dwordx4 v[{QD}:{QD+3}], v17, s[68:71], s94 offen sc1')
        a('s_waitcnt vmcnt(0)')
        tag_check(range(QD, QD + 4), 14, 15)
        a('s_cbranch_vccnz L_qfail')
    for p in range(8):
        vo = 'v8' if (p & 3) < 2 else 'v12'
        so = 's94' if p < 4 else 's95'
        a(f'buffer_load_dwordx4 v[{QD+4*p}:{QD+4*p+3}], {vo}, s[68:71], {so} offen offset:{(p & 1)*2048} sc1')
    for u in range(4):
        vo = 'v11' if (u & 1) == 0 else 'v13'
        so = 's93' if u < 2 else 's81'
        a(f'buffer_load_dwordx4 v[{HD+4*u}:{HD+4*u+3}], {vo}, s[68:71], {so} offen offset:768 sc1')
    a('s_waitcnt vmcnt(0)')
    tag_check(regs, 14, 15)
    a('s_cbranch_vccz L_qok0')
    a('L_qfail:')
    if qsleep: a(f's_sleep {qsleep}')
    if fastq:
        a('s_sub_u32 s76, s76, 1')
        a('s_cbranch_scc0 L_qnosw')
        for t in slow_q: a(t)
        a('L_qnosw:')
        a('s_cmp_lt_i32 s76, 0')
        a(f's_cselect_b32 s82, {FAST}, 0')
        for r in (93, 94, 95, 81): a(f's_xor_b32 s{r}, s{r}, s82')
    a('s_sub_u32 s92, s92, 1')
    a('s_cbranch_scc0 L_qpoll')
    a('s_endpgm')
    a('L_qok0:')
    if xchk:
        a(f'v_xor_b32 v14, s88, v{HD+1}')
        a(f'v_xor_b32 v15, s88, v{HD+5}')
        a(f'v_xor_b32 v17, s88, v{HD+9}')
        a(f'v_xor_b32 v18, s88, v{HD+13}')
        a('v_or3_b32 v14, v14, v15, v17')
        a('v_or_b32 v14, v14, v18')
        a('v_cmp_ne_u32 vcc, 0, v14')
        a('s_and_b32 s86, vcc_lo, 0x10001000')
        a('s_and_b32 s87, vcc_hi, 0x10001000')
        a('s_or_b32 s86, s86, s87')
        a('s_cselect_b32 s86, 2, 1')
        a('s_cbranch_scc0 L_qok')
    if fastq:
        a('s_cmp_lt_i32 s76, 0')
        a('s_cbranch_scc1 L_qok')
        for t in slow_q: a(t)
    a('L_qok:')
    for st in (4, 8, 16):
        for b0 in range(QD, QD + 32, 2 * st):
            for r in range(4): a(f'v_add_f32 v{b0+r}, v{b0+r}, v{b0+st+r}')
    a(f'v_cvt_pk_bf16_f32 v{QD}, v{QD}, v{QD+1}')
    a(f'v_cvt_pk_bf16_f32 v{QD+1}, v{QD+2}, v{QD+3}')
    a('v_lshlrev_b32 v10, 3, v1')
    a(f'ds_write_b64 v10, v[{QD}:{QD+1}] offset:{QBF}')
    a('v_mov_b32 v10, ' + ('s86' if xchk else '1'))
    a(f'ds_write_b32 v73, v10 offset:{FLAG}')
    stamp(5)
    for st in (4, 8):
        for b0 in range(HD, HD + 16, 2 * st):
            for r in range(4): a(f'v_add_f32 v{b0+r}, v{b0+r}, v{b0+st+r}')
    for r in range(4): a(f'v_mov_b32 v{HD+4+r}, v{HD+r}')
    for r in range(4): a(f'v_permlane32_swap_b32 v{HD+r}, v{HD+4+r}')
    for r in range(4): a(f'v_add_f32 v{HD+r}, v{HD+r}, v{HD+4+r}')
    G = 24; OMG = 25
    a(f'v_mov_b32_dpp v{G}, v{HD} row_newbcast:12 {DPP}')
    a(f'v_cvt_pk_bf16_f32 v{G}, v{G}, v{G}')
    a(f'v_and_b32 v{G}, 0xffff0000, v{G}')
    a(f'v_mul_f32 v{G}, {f2u(-LOG2E)}, v{G}')
    a(f'v_exp_f32 v{G}, v{G}')
    a(f'v_add_f32 v{G}, 1.0, v{G}')
    a(f'v_rcp_f32 v{G}, v{G}')
    a(f'v_cvt_pk_bf16_f32 v{G}, v{G}, v{G}')
    a(f'v_and_b32 v{G}, 0xffff0000, v{G}')
    a(f'v_sub_f32 v{OMG}, 1.0, v{G}')
    a(f'v_cvt_pk_bf16_f32 v{OMG}, v{OMG}, v{OMG}')
    a(f'v_and_b32 v{OMG}, 0xffff0000, v{OMG}')
    a('v_and_b32 v10, 31, v1')
    a('v_lshlrev_b32 v11, 2, v10')
    a(f'ds_write_b32 v11, v{G} offset:{GV}')
    a(f's_mov_b32 s83, {f2u(-LOG2E)}')
    for pr in range(2):
        h0, h1 = HD + 2 * pr, HD + 2 * pr + 1
        a(f'v_cvt_pk_bf16_f32 v{h0}, v{h0}, v{h1}')
        a(f'v_and_b32 v{h1}, 0xffff0000, v{h0}')
        a(f'v_lshlrev_b32 v{h0}, 16, v{h0}')
        a(f'v_and_b32 v27, 0xffff0000, v{74+pr}')
        a(f'v_lshlrev_b32 v26, 16, v{74+pr}')
        a(f'v_add_f32 v{h0}, v{h0}, v26')
        a(f'v_add_f32 v{h1}, v{h1}, v27')
        a(f'v_cvt_pk_bf16_f32 v{h0}, v{h0}, v{h1}')
        a(f'v_and_b32 v{h1}, 0xffff0000, v{h0}')
        a(f'v_lshlrev_b32 v{h0}, 16, v{h0}')
    for i in range(4):
        h = HD + i; t = 28; t2 = 29; nu = 30; de = 31
        a(f'v_mul_f32 v{t}, s83, abs(v{h})')
        a(f'v_exp_f32 v{t}, v{t}')
        a(f'v_cmp_lt_f32 vcc, 0, v{h}')
        a(f'v_mul_f32 v{t2}, v{t}, v{t}')
        a(f'v_cndmask_b32 v{nu}, v{t2}, 1.0, vcc')
        a(f'v_cndmask_b32 v{de}, 1.0, v{t2}, vcc')
        a(f'v_fma_f32 v{nu}, v{t}, 2.0, v{nu}')
        a(f'v_fma_f32 v{de}, v{de}, 2.0, v{nu}')
        a(f'v_rcp_f32 v{de}, v{de}')
        a(f'v_mul_f32 v{nu}, v{nu}, v{h}')
        a(f'v_mul_f32 v{nu}, v{nu}, v{de}')
        a(f'v_cvt_pk_bf16_f32 v{nu}, v{nu}, v{nu}')
        a(f'v_and_b32 v{nu}, 0xffff0000, v{nu}')
        a(f'v_mul_f32 v{nu}, v{nu}, v{OMG}')
        a(f'v_cvt_pk_bf16_f32 v{32+i}, v{nu}, v{nu}')
    a('v_lshlrev_b32 v11, 4, v10')
    a(f'ds_write_b128 v11, v[32:35] offset:{ACT}')
    a('s_waitcnt lgkmcnt(0)')
    stamp(6)
    if ypre == 1:
        a('s_mov_b32 exec_hi, 0xff')
        a('v_lshlrev_b32 v9, 4, v1')
        a('buffer_load_dwordx4 v[40:43], v9, s[68:71], s101 offen')
        a('s_mov_b32 exec_hi, -1')
    if ypre == 2:
        a('s_mov_b32 exec_hi, 0xff')
        a('v_lshlrev_b32 v9, 4, v1')
        a('s_add_u32 s82, s78, 1')
        for i in range(4): a(f'v_mov_b32 v{40+i}, s82')
        a('buffer_store_dwordx4 v[40:43], v9, s[68:71], s101 offen sc1')
        a('s_mov_b32 exec_hi, -1')
    if ctl and xbox:
        a('s_and_b32 s82, s2, 7')
        a('s_mul_i32 s82, s82, 4352')
        a(f's_add_u32 s82, s82, {MBOX}')
        a('s_lshr_b32 s83, s2, 3')
        a('s_lshl_b32 s83, s83, 2')
        a('s_add_u32 s83, s83, s82')
        a('s_and_b32 s84, s79, 0x3fffff')
        a('s_mov_b32 s85, 0')
        if compx:
            packed = sum((c & 15) << (4 * i) for i, c in enumerate(compx))
            a('s_and_b32 s60, s2, 7')
            a('s_lshl_b32 s60, s60, 2')
            a(f's_lshr_b32 s60, {packed}, s60')
            a('s_and_b32 s60, s60, 15')
        a('v_lshlrev_b32 v11, 2, v1')
        a('s_mov_b32 exec_hi, 0')
        if glob:
            a(f's_add_u32 s40, s28, {GBOX}')
            a('s_addc_u32 s41, s29, 0')
            a('s_and_b32 s42, s2, 7')
            a('s_mul_i32 s42, s42, 4352')
            a(f's_add_u32 s42, s42, {GBOX}')
            a('s_add_u32 s43, s82, 128')
        a('L_c:')
        a(f'ds_read_b32 v10, v73 offset:{CNT}')
        a('s_waitcnt lgkmcnt(0)')
        a('v_subrev_u32 v10, s85, v10')
        a('v_lshl_or_b32 v12, v10, 22, s84')
        a('s_mov_b32 exec_lo, 1')
        a('buffer_store_dword v12, off, s[68:71], s83')
        a('s_mov_b32 exec_lo, -1')
        if glob: a('s_mov_b32 exec_hi, 1')
        a('buffer_load_dword v9, v11, s[68:71], s82 offen sc1')
        if glob: a('s_mov_b32 exec_hi, 0')
        a('v_readfirstlane_b32 s86, v10')
        a('s_waitcnt vmcnt(0)')
        if glob:
            a('v_readlane_b32 s44, v9, 32')
            a('s_and_b32 s45, s44, 0x3fffff')
            a('s_ashr_i32 s44, s44, 22')
            a('s_cmp_eq_u32 s45, s84')
            a('s_cselect_b32 s44, s44, 0')
        a('v_and_b32 v12, 0x3fffff, v9')
        a('v_lshrrev_b32 v9, 22, v9')
        a(f'v_add_u32 v9, {"s60" if compx else comp}, v9')
        a('v_cmp_eq_u32 vcc, s84, v12')
        a('v_cndmask_b32 v9, v10, v9, vcc')
        for pat in RED8 + ('row_mirror',):
            a(f'v_add_u32_dpp v9, v9, v9 {pat} {DPP}')
        a('v_readlane_b32 s87, v9, 0')
        a('v_readlane_b32 s88, v9, 16')
        a('s_add_u32 s87, s87, s88')
        a('s_lshr_b32 s87, s87, 5')
        if glob:
            a('s_cmp_lt_u32 s2, 248')
            a('s_cbranch_scc1 L_nolead')
            a(f's_cmp_ge_u32 s86, {gend}')
            a('s_cbranch_scc1 L_nolead')
            a('s_lshl_b32 s45, s87, 22')
            a('s_or_b32 s45, s45, s84')
            a('v_mov_b32 v12, s45')
            a('s_mov_b32 exec_lo, 1')
            if satom:
                a('s_atomic_swap s45, s[28:29], s42')
            else:
                a('buffer_store_dword v12, off, s[68:71], s42 sc1')
            for i in range(8): a(f's_load_dword s{48+i}, s[40:41], {i*4352} glc')
            a('s_mov_b32 s46, 0')
            a('s_waitcnt lgkmcnt(0)')
            for i in range(8):
                a(f's_and_b32 s45, s{48+i}, 0x3fffff')
                a(f's_lshr_b32 s47, s{48+i}, 22')
                a(f's_add_u32 s47, s47, {comp2}')
                a('s_cmp_eq_u32 s45, s84')
                a('s_cselect_b32 s47, s47, s87')
                a('s_add_u32 s46, s46, s47')
            a('s_lshr_b32 s46, s46, 3')
            a('s_sub_i32 s46, s46, s87')
            if gsh2: a(f's_ashr_i32 s46, s46, {gsh2}')
            a(f's_min_i32 s46, s46, {gclamp}')
            a(f's_max_i32 s46, s46, {-gclamp}')
            a('s_lshl_b32 s46, s46, 22')
            a('s_or_b32 s46, s46, s84')
            a('v_mov_b32 v12, s46')
            a('buffer_store_dword v12, off, s[68:71], s43')
            a('s_mov_b32 exec_lo, -1')
            a('L_nolead:')
        a('s_sub_i32 s87, s87, s86')
        if gsh: a(f's_ashr_i32 s87, s87, {gsh}')
        if glob: a('s_add_i32 s87, s87, s44')
        a('s_sub_i32 s88, s87, s85')
        a('s_mov_b32 s85, s87')
        a('v_mov_b32 v9, s88')
        a('s_mov_b32 exec_lo, 1')
        a(f'ds_add_u32 v73, v9 offset:{CNT}')
        a('s_mov_b32 exec_lo, -1')
        if csleep: a(f's_sleep {csleep}')
        a(f's_cmp_ge_u32 s86, {cend}')
        a('s_cbranch_scc1 L_cd')
        a('s_sub_u32 s92, s92, 1')
        a('s_cbranch_scc0 L_c')
        a('s_endpgm')
        a('L_cd:')
        a('s_mov_b64 exec, -1')
    a('s_cmp_ge_u32 s2, 160')
    a('s_cbranch_scc1 ' + ('L_end' if probe is not None else 'L_hend'))
    if ymap:
        a('s_lshr_b32 s82, s2, 5')
        a('s_lshl_b32 s82, s82, 3')
        a('s_and_b32 s83, s2, 7')
        a('s_add_u32 s82, s82, s83')
        a('s_lshl_b32 s82, s82, 2')
        a(f's_bfe_u32 s83, s2, {3 | (2 << 16)}')
        a('s_add_u32 s85, s82, s83')
    else:
        a('s_mov_b32 s85, s2')
    a('s_mul_i32 s82, s85, 205')
    a('s_lshr_b32 s82, s82, 12')
    a('s_mul_i32 s83, s82, 20')
    a('s_sub_u32 s83, s85, s83')
    a('s_mul_i32 s84, s82, 20480')
    a('s_lshl_b32 s81, s83, 5')
    a('s_add_u32 s84, s84, s81')
    a(f's_add_u32 s98, s84, {YOFF}')
    a('s_cmp_ge_u32 s83, 10')
    a('s_cselect_b32 s84, 1120, 0')
    a('s_lshl_b32 s81, s83, 4')
    a('s_add_u32 s84, s84, s81')
    a('s_mul_i32 s81, s82, 160')
    a('s_add_u32 s99, s84, s81')
    srd(72, 24, None); a('s_mov_b32 s74, 2560'); a('s_mov_b32 s75, 0x20000')
    vF, vOUT, F = 8, 9, 28
    a(f'v_lshrrev_b32 v{vF}, 1, v1')
    a(f'v_mul_u32_u24 v{vF}, 640, v{vF}')
    a('v_and_b32 v10, 1, v1')
    a(f'v_lshl_add_u32 v{vF}, v10, 4, v{vF}')
    a(f'v_lshlrev_b32 v{vOUT}, 3, v10')
    a('v_lshrrev_b32 v10, 4, v1')
    a(f'v_lshl_add_u32 v{vOUT}, v10, 1, v{vOUT}')
    a('v_mov_b32 v11, s79')
    a(f's_mov_b32 s82, {EOFF}')
    a('s_barrier')
    if latebar: a('s_barrier')
    if not early2: a('s_barrier')
    stamp(7)
    if np2 == 1:
        a('L_poll2:')
        a(f'buffer_load_dwordx4 v[{F}:{F+3}], v{vF}, s[68:71], s98 offen sc1')
        a('s_waitcnt vmcnt(0)')
        tag_check(range(F, F + 4), 14, 15)
        a('s_cbranch_vccz L_poll2d')
        if psleep2: a(f's_sleep {psleep2}')
        a('s_sub_u32 s92, s92, 1')
        a('s_cbranch_scc0 L_poll2')
        a('s_endpgm')
    else:
        FS = [F + 4 + 4 * i for i in range(np2)]
        for i in range(np2):
            a(f'buffer_load_dwordx4 v[{FS[i]}:{FS[i]+3}], v{vF}, s[68:71], s98 offen sc1')
            if p2gap and i < np2 - 1: a(f's_sleep {p2gap}')
        a('L_poll2:')
        for i in range(np2):
            a(f's_waitcnt vmcnt({np2-1})')
            for r in range(4): a(f'v_xor_b32 v{F+r}, s78, v{FS[i]+r}')
            a(f'buffer_load_dwordx4 v[{FS[i]}:{FS[i]+3}], v{vF}, s[68:71], s98 offen sc1')
            a(f'v_or3_b32 v14, v{F}, v{F+1}, v{F+2}')
            a(f'v_or_b32 v14, v14, v{F+3}')
            a(f'v_and_b32 v14, {TM}, v14')
            a('v_cmp_ne_u32 vcc, 0, v14')
            a('s_cbranch_vccz L_poll2d')
            if p2gap: a(f's_sleep {p2gap}')
        a('s_sub_u32 s92, s92, 1')
        a('s_cbranch_scc0 L_poll2')
        a('s_endpgm')
    a('L_poll2d:')
    a(f'v_permlane16_swap_b32 v{F}, v{F+1}')
    a(f'v_permlane16_swap_b32 v{F+2}, v{F+3}')
    a(f'v_add_f32 v{F}, v{F}, v{F+1}')
    a(f'v_add_f32 v{F+2}, v{F+2}, v{F+3}')
    a(f'v_permlane32_swap_b32 v{F}, v{F+2}')
    a(f'v_add_f32 v{F}, v{F}, v{F+2}')
    a(f'v_add_f32_dpp v{F}, v{F}, v{F} quad_perm:[2,3,0,1] {DPP}')
    a(f'v_add_f32_dpp v{F}, v{F}, v{F} row_ror:4 {DPP}')
    a(f'v_add_f32_dpp v{F}, v{F}, v{F} row_ror:8 {DPP}')
    a(f'v_cvt_pk_bf16_f32 v{F}, v{F}, v{F}')
    a('s_mov_b32 exec_lo, 0x00030003')
    a('s_mov_b32 exec_hi, 0x00030003')
    a(f'buffer_store_short v{F}, v{vOUT}, s[72:75], s99 offen')
    a('s_cmp_lg_u32 s2, 0')
    a('s_cbranch_scc1 L_hend')
    a('s_mov_b64 exec, 1')
    a('buffer_store_dword v11, off, s[68:71], s82')
    a('L_hend:')
    if stamps:
        a('s_mov_b64 exec, -1')
        stamp(8)
        a('s_branch L_probe')
    a('s_endpgm')

    body = a.finalize()
    out = HEADER
    out += f'; @launch grid=(256,1,1) block=(576,1,1) lds={LDS_BYTES}\n'
    out += '.amdgcn_target "amdgcn-amd-amdhsa--gfx950"\n.text\n'
    out += f'.globl {KNAME}_kernel\n.p2align 8\n.type {KNAME}_kernel,@function\n'
    for l in body:
        out += (l if l.endswith(':') else '    ' + l) + '\n'
    out += f'''.section .rodata,"a"
.p2align 6
.amdhsa_kernel {KNAME}_kernel
  .amdhsa_next_free_vgpr {NV}
  .amdhsa_next_free_sgpr 102
  .amdhsa_accum_offset {NV}
  .amdhsa_group_segment_fixed_size 0
  .amdhsa_kernarg_size 104
  .amdhsa_user_sgpr_count 2
  .amdhsa_user_sgpr_kernarg_segment_ptr 1
  .amdhsa_system_sgpr_workgroup_id_x 1
  .amdhsa_float_denorm_mode_32 3
.end_amdhsa_kernel
'''
    return out

if __name__ == '__main__':
    kw = eval('dict(' + (sys.argv[2] if len(sys.argv) > 2 else '') + ')')
    open(sys.argv[1], 'w').write(gen(**kw))
```

```python
import sys, math, struct
from asmlib import Asm
KNAME = 'gated_mix__gqa_block_cached__dense_activation_mish__decode'
HEADER = open('cdna_kernels/' + KNAME + '.s.ref').read().split('; Override launch')[0]

def f2u(x): return struct.unpack('<I', struct.pack('<f', x))[0]
LOG2E = 1.4426950408889634
OOB = 0x80000000
OOFF = 512 * 1024
FAST = 1 << 20
YOFF = 1536 * 1024
EOFF = 1792 * 1024
MBOX = 1796 * 1024
STAMP_OFF = 2 << 20
WS_REC = 4 << 20
TM = 0x3ff
OS = 848
OP1 = 16 * OS
QBF = 32 * OS
ACT = QBF + 1024
GV = ACT + 512
FLAG = GV + 128
CNT = FLAG + 4
MW = FLAG + 16
YP = MW + 64
LDS_BYTES = YP + 8 * 640 + 256
DPP = 'row_mask:0xf bank_mask:0xf'
RED8 = ('quad_perm:[1,0,3,2]', 'quad_perm:[2,3,0,1]', 'row_half_mirror')
NV = 168

def gen(D=3, nb=30, catchup=2, stamps=False, kv_cache='nt', w_cache='nt', wo_cache='', poll_cap=1 << 18, probe=None,
        hwin=16, nfast=48, psleep=0, psleep2=1, qsleep=4, levels=((-4, 3), (13, 2)), Dmax=4, comp=6, cstart=6, cend=712,
        nlate=8, ypre=True, gm=(2, 0), ctl=True):
    a = Asm()
    VST = NV - 1
    VZ = NV - 2
    top = NV - 4
    def stamp(i):
        if stamps:
            a('s_memrealtime s[96:97]')
            a('s_waitcnt lgkmcnt(0)')
            a(f'v_writelane_b32 v{VST}, s96, {i}')
    def srd(r, p, off):
        if off is None:
            a(f's_mov_b32 s{r}, s{p}'); a(f's_mov_b32 s{r+1}, s{p+1}')
        else:
            a(f's_add_u32 s{r}, s{p}, {off}'); a(f's_addc_u32 s{r+1}, s{p+1}, 0')
    def xlane(op, v, tmp):
        a(f'{op}_dpp v{v}, v{v}, v{v} row_ror:8 {DPP}')
        a(f'v_mov_b32 v{tmp}, v{v}')
        a(f'v_permlane16_swap_b32 v{v}, v{tmp}')
        a(f'{op} v{v}, v{v}, v{tmp}')
        a(f'v_mov_b32 v{tmp}, v{v}')
        a(f'v_permlane32_swap_b32 v{v}, v{tmp}')
        a(f'{op} v{v}, v{v}, v{tmp}')
    def masks(M, t0, t1):
        a(f'v_and_b32 v{t0}, 1, v1')
        a(f'v_lshlrev_b32 v{t0}, 4, v{t0}')
        a(f'v_mov_b32 v{t1}, 0xffff')
        a(f'v_lshlrev_b32 v{t0}, v{t0}, v{t1}')
        a(f'v_bfe_u32 v{t1}, v1, 1, 2')
        for r in range(4):
            a(f'v_cmp_eq_u32 vcc, {r}, v{t1}')
            a(f'v_cndmask_b32 v{M+r}, 0, v{t0}, vcc')
    def ws_setup():
        srd(68, 28, None)
        a(f's_mov_b32 s70, {WS_REC}')
        a('s_mov_b32 s71, 0x20000')
        a('s_lshl_b32 s99, s30, 3')
        a('s_add_u32 s99, s99, s31')
        a('s_lshl_b32 s99, s99, 11')
        a(f's_add_u32 s100, s99, {OOFF}')
        a('s_lshl_b32 s101, s31, 5')
        a('s_add_u32 s101, s101, s30')
        a('s_mul_i32 s101, s101, 640')
        a(f's_add_u32 s101, s101, {YOFF}')
        a(f's_mov_b32 s92, {poll_cap}')
        a(f's_mov_b32 s76, {EOFF}')
        a('s_load_dword s79, s[28:29], s76')
        a(f's_mov_b32 s77, {0xffffffff ^ TM}')
    def tag_finish():
        a('s_add_u32 s79, s79, 1')
        a(f's_and_b32 s78, s79, {TM}')
    def tag_apply(regs, vt):
        for r in regs: a(f'v_and_or_b32 v{r}, v{r}, s77, v{vt}')
    def tag_check(regs, x0, x1):
        regs = list(regs)
        for r in regs: a(f'v_xor_b32 v{r}, s78, v{r}')
        if len(regs) == 4:
            a(f'v_or3_b32 v{x0}, v{regs[0]}, v{regs[1]}, v{regs[2]}')
            a(f'v_or_b32 v{x0}, v{x0}, v{regs[3]}')
        else:
            a(f'v_or3_b32 v{x0}, v{regs[0]}, v{regs[1]}, v{regs[2]}')
            a(f'v_or3_b32 v{x1}, v{regs[3]}, v{regs[4]}, v{regs[5]}')
            rr = regs[6:]; i = 0
            while len(rr) >= 2:
                d = (x0, x1)[i & 1]; i += 1
                a(f'v_or3_b32 v{d}, v{d}, v{rr[0]}, v{rr[1]}'); rr = rr[2:]
            assert not rr
            a(f'v_or_b32 v{x0}, v{x0}, v{x1}')
        a(f'v_and_b32 v{x0}, {TM}, v{x0}')
        a(f'v_cmp_ne_u32 vcc, 0, v{x0}')

    a(f'{KNAME}_kernel:')
    a('s_cmp_ge_u32 s2, 256')
    a('s_cbranch_scc1 L_end')
    a('s_load_dwordx16 s[4:19], s[0:1], 0')
    a('s_load_dwordx8 s[20:27], s[0:1], 64')
    a('s_load_dwordx2 s[28:29], s[0:1], 96')
    if stamps:
        a(f'v_mov_b32 v{VST}, 0')
        stamp(0)
    a('v_lshrrev_b32 v5, 6, v0')
    a('v_and_b32 v1, 63, v0')
    a('v_readfirstlane_b32 s3, v5')
    a('s_and_b32 s82, s2, 7')
    a('s_lshr_b32 s83, s2, 6')
    a('s_lshl_b32 s30, s82, 2')
    a('s_add_u32 s30, s30, s83')
    a(f's_bfe_u32 s31, s2, {3 | (3 << 16)}')
    a('v_lshrrev_b32 v6, 3, v1')
    a('v_and_b32 v7, 7, v1')
    a('v_lshlrev_b32 v5, 4, v7')
    a('s_cmp_eq_u32 s3, 8')
    a('s_cbranch_scc1 L_helper')
    a('v_mul_u32_u24 v2, 384, v6')
    a('v_add_u32 v2, v2, v5')
    a(f's_mul_i32 s88, s30, {gm[0]}')
    if gm[1]:
        a(f's_mul_i32 s83, s82, {gm[1]}')
        a('s_add_u32 s88, s88, s83')
    a('s_and_b32 s88, s88, 7')
    a('s_lshl_b32 s82, s30, 6')
    a('s_add_u32 s82, s82, s31')
    a('s_lshl_b32 s82, s82, 3')
    a('s_add_u32 s82, s82, s3')
    a('s_mul_i32 s82, s82, 3072')
    a('s_sub_u32 s34, 100663296, s82')
    a('s_mov_b32 s35, 0x20000')
    a('s_mul_i32 s86, s88, 196608')
    a('s_waitcnt lgkmcnt(0)')
    srd(32, 6, 's82')
    S0 = 8; Q0 = 24; ACC = 24
    M0 = 36; A0 = 40
    vOW, vRA, vRG, vP1, vYW, vYR, vMW, vAC = range(48, 56)
    SEL = [56, 57, 58, 59]
    vM, vL = 60, 61
    T = list(range(62, 76))
    konly = list(range(36, 76, 4))
    free = konly + list(range(76, top, 4))
    slot = {}
    def alloc(tag):
        r = free.pop(0); slot[tag] = r; return r
    def release(tag):
        if slot[tag] not in konly: free.append(slot[tag])
    cur = {'kv': 0}
    nis = [0]; wcnt = [0]
    def window():
        n = nis[0]; wcnt[0] += 1
        if ctl and n >= cstart:
            a.wait_out(Dmax - 1)
            a('s_waitcnt lgkmcnt(0)')
            a('v_readfirstlane_b32 s90, v0')
            for (delta, d) in levels:
                a(f's_cmp_lt_i32 s90, {8*n - delta}')
                a(f's_cbranch_scc0 L_go{wcnt[0]}')
                a(f's_waitcnt vmcnt({d-1})')
            a(f'L_go{wcnt[0]}:')
        else:
            a.wait_out(D - 1)
    def issue(tag):
        kind = tag[0]
        r = alloc(tag)
        if kind in ('k', 'v'):
            if cur['kv'] != tag[1]:
                k = tag[1]
                a(f's_add_u32 s85, s88, {k & 7}')
                a('s_and_b32 s85, s85, 7')
                a('s_mul_i32 s86, s85, 196608')
                if k >= 8: a('s_add_u32 s86, s86, 50331648')
                cur['kv'] = k
            s0 = 32 if kind == 'k' else 36
            a.vmem(f'buffer_load_dwordx4 v[{r}:{r+3}], v2, s[{s0}:{s0+3}], s86 offen offset:{tag[2]*128} {kv_cache}', tag)
            nis[0] += 1
            if ctl and nis[0] > D:
                a('s_mov_b64 exec, 1')
                a(f'ds_add_rtn_u32 v0, v{VZ}, v{VZ} offset:{CNT - 1}')
                a('s_mov_b64 exec, -1')
        elif kind == 'wo':
            rg = tag[1]
            if rg: a(f's_mov_b32 s87, {rg*5120}')
            a.vmem(f'buffer_load_dwordx4 v[{r}:{r+3}], v3, s[48:51], {"s87" if rg else "0"} offen {wo_cache}', tag)
        elif kind == 'w2':
            a.vmem(f'buffer_load_dwordx4 v[{r}:{r+3}], v4, s[52:55], 0 offen offset:{tag[1]*1280} {wo_cache}', tag)
    kl = [('k', k, s) for k in range(16) for s in range(3)]
    vl = [('v', k, s) for k in range(16) for s in range(3)]
    for tag in kl[:D]: issue(tag)
    srd(36, 8, 's82'); a('s_mov_b32 s38, s34'); a('s_mov_b32 s39, 0x20000')
    ws_setup()
    a(f's_mov_b32 s91, {f2u(LOG2E / math.sqrt(192.0))}')
    a('s_mul_i32 s82, s30, 192')
    a('s_mul_i32 s83, s3, 24')
    a('s_add_u32 s82, s82, s83')
    a('s_mul_i32 s82, s82, 1280')
    a('s_mul_i32 s83, s31, 160')
    a('s_add_u32 s82, s82, s83')
    srd(48, 12, 's82')
    a('s_sub_u32 s50, 7864320, s82')
    a('s_mov_b32 s51, 0x20000')
    a('s_lshl_b32 s82, s30, 3')
    a('s_add_u32 s82, s82, s3')
    a('s_mul_i32 s82, s82, 7680')
    a('s_add_u32 s82, s82, s83')
    srd(52, 20, 's82')
    a('s_sub_u32 s54, 1966080, s82')
    a('s_mov_b32 s55, 0x20000')
    a('s_lshl_b32 s93, s30, 14')
    a(f's_add_u32 s93, s93, {OOFF}')
    a('s_add_u32 s95, s93, 8192')
    a('v_lshrrev_b32 v8, 4, v1')
    a('v_and_b32 v9, 15, v1')
    a(f'v_mov_b32 v10, {OOB}')
    a('v_mul_u32_u24 v3, 1280, v8')
    a('v_lshl_add_u32 v3, v9, 4, v3')
    a('v_mul_u32_u24 v4, 2560, v8')
    a('v_lshl_add_u32 v4, v9, 4, v4')
    a('v_cmp_gt_u32 vcc, 3, v8')
    a('v_cndmask_b32 v4, v10, v4, vcc')
    a('v_cmp_gt_u32 vcc, 10, v9')
    a('v_cndmask_b32 v3, v10, v3, vcc')
    a('v_cndmask_b32 v4, v10, v4, vcc')
    a('v_mov_b32 v9, 0')
    a(f'v_mov_b32 v{VZ}, 1')
    a('s_barrier')
    for tag in kl[D:nb]:
        window(); issue(tag)
    a('s_waitcnt lgkmcnt(0)')
    tag_finish()
    stamp(1)
    a('L_qw:')
    a(f'ds_read_b32 v8, v9 offset:{FLAG}')
    for s in range(3):
        a(f'ds_read_b128 v[{Q0+4*s}:{Q0+3+4*s}], v5 offset:{QBF + s*128}')
    a('s_waitcnt lgkmcnt(0)')
    a('v_readfirstlane_b32 s89, v8')
    a('s_cmp_lg_u32 s89, 0')
    a('s_cbranch_scc1 L_qwd')
    a('s_sleep 2')
    a('s_sub_u32 s92, s92, 1')
    a('s_cbranch_scc0 L_qw')
    a('s_endpgm')
    a('L_qwd:')
    stamp(2)
    abi = [0]
    def build_A(src):
        A = A0 + 4 * (abi[0] & 1); abi[0] += 1
        for r in range(4):
            a(f'v_and_b32 v{A+r}, {src}, v{M0+r}')
        return A
    def task_k(k):
        S = S0 + k
        if k == 8: a('s_waitcnt lgkmcnt(0)')
        first = True
        for s in range(3):
            r = slot[('k', k, s)]
            for i in range(4):
                c = '0' if first else f'v{S}'
                a(f'v_dot2_f32_bf16 v{S}, v{r+i}, v{Q0 + s*4 + i}, {c}')
                first = False
            release(('k', k, s))
        if k == 7:
            for s in range(3):
                a(f'ds_read_b128 v[{Q0+4*s}:{Q0+3+4*s}], v5 offset:{QBF + 512 + s*128}')
    def flush_acc(b):
        a('s_mov_b32 exec_lo, 0x00ff00ff')
        a('s_mov_b32 exec_hi, 0xff00ff00')
        for s in range(3):
            a(f'ds_write_b128 v{vOW}, v[{ACC+4*s}:{ACC+3+4*s}] offset:{b*OP1 + s*256}')
        a('s_mov_b64 exec, -1')
    def task_v(k, fine=False):
        A = build_A(f'v{S0+k}')
        if k == 8: a('s_waitcnt lgkmcnt(0)')
        for s in range(3):
            if fine: a.wait_tag(('v', k, s))
            r = slot[('v', k, s)]; acc = ACC + 4 * s
            c = '0' if k % 8 == 0 else f'v[{acc}:{acc+3}]'
            a(f'v_mfma_f32_16x16x32_bf16 v[{acc}:{acc+3}], v[{A}:{A+3}], v[{r}:{r+3}], {c}')
            release(('v', k, s))
    def task_red(b):
        for pat in RED8:
            for k in range(8 * b, 8 * b + 8):
                a(f'v_add_f32_dpp v{S0+k}, v{S0+k}, v{S0+k} {pat} {DPP}')
    t0, t1, t2 = T[0], T[1], T[2]
    def task_sm1(b):
        B = S0 + 8 * b
        a(f'v_max3_f32 v{t0}, v{B}, v{B+1}, v{B+2}')
        a(f'v_max3_f32 v{t0}, v{t0}, v{B+3}, v{B+4}')
        a(f'v_max3_f32 v{t0}, v{t0}, v{B+5}, v{B+6}')
        a(f'v_max_f32 v{t0}, v{t0}, v{B+7}')
        xlane('v_max_f32', t0, t1)
        a(f'v_mul_f32 v{vM}, s91, v{t0}')
        for k in range(8): a(f'v_fma_f32 v{B+k}, v{B+k}, s91, -v{vM}')
        for k in range(8): a(f'v_exp_f32 v{B+k}, v{B+k}')
        a('s_lshl_b32 s82, s3, 2')
        a(f'v_mov_b32 v{t0}, s82')
        a(f'ds_write_b32 v{t0}, v{vM} offset:{MW + 32*b}')
    def task_sm2(b):
        B = S0 + 8 * b
        u = 64
        a(f'v_add_f32 v{u}, v{B}, v{B+1}')
        for k in range(2, 8): a(f'v_add_f32 v{u}, v{u}, v{B+k}')
        for k in range(8): a(f'v_cvt_pk_bf16_f32 v{B+k}, v{B+k}, v{B+k}')
        xlane('v_add_f32', u, t1)
        a(f'v_writelane_b32 v{u}, 0, 40')
        a(f'v_mov_b32 v{u+1}, v{u}'); a(f'v_mov_b32 v{u+2}, v{u}'); a(f'v_mov_b32 v{u+3}, v{u}')
        a('s_mov_b32 exec_lo, 1')
        a('s_mov_b32 exec_hi, 0x100')
        a(f'ds_write_b128 v{vOW}, v[{u}:{u+3}] offset:{b*OP1 + 768}')
        a('s_mov_b64 exec, -1')
    def task_addr0():
        a(f'v_lshrrev_b32 v{t0}, 5, v1')
        a('s_lshl_b32 s82, s3, 1')
        a(f'v_add_u32 v{t0}, s82, v{t0}')
        a(f'v_lshlrev_b32 v{t1}, 5, v7')
        a(f'v_bfe_u32 v{t2}, v1, 4, 1')
        a(f'v_lshl_add_u32 v{t1}, v{t2}, 4, v{t1}')
        a(f'v_mul_u32_u24 v{vOW}, {OS}, v{t0}')
        a(f'v_add_u32 v{vOW}, v{vOW}, v{t1}')
        masks(M0, t0, t1)
    g, ob, x, y, z = 68, 69, 70, 71, 72
    def task_addr1():
        a(f'v_lshrrev_b32 v{g}, 4, v1')
        a(f'v_mov_b32 v{ob}, {OOB}')
        a('s_mul_i32 s82, s3, 6')
        a(f'v_add_u32 v{x}, s82, v6')
        a('v_cmp_gt_u32 vcc, 6, v6')
        a(f'v_cndmask_b32 v{x}, 48, v{x}, vcc')
        a(f'v_lshlrev_b32 v{x}, 4, v{x}')
        a(f'v_mul_u32_u24 v{vRA}, {2*OS}, v7')
        a(f'v_add_u32 v{vRA}, v{vRA}, v{x}')
        a('s_lshl_b32 s82, s3, 7')
        a(f'v_lshl_add_u32 v{x}, v6, 4, s82')
        a(f'v_mul_u32_u24 v{vYR}, 640, v7')
        a(f'v_add_u32 v{vYR}, v{vYR}, v{x}')
        a('v_cmp_eq_u32 vcc, 0, v7')
        a(f'v_cndmask_b32 v{vRG}, v{ob}, v{x}, vcc')
        a(f'v_and_b32 v{x}, 1, v6')
        a(f'v_lshlrev_b32 v{vAC}, 8, v{x}')
        a(f'v_lshlrev_b32 v{y}, 10, v{x}')
        a(f'v_lshl_add_u32 v{y}, v{g}, 11, v{y}')
        a(f'v_add3_u32 v{vP1}, v{y}, v5, s82')
        a(f'v_mul_u32_u24 v{y}, 0x0202, v{x}')
        a(f'v_lshl_or_b32 v{y}, v{y}, 16, v{y}')
        a(f'v_add_u32 v{y}, 0x01000100, v{y}')
        a('s_mov_b32 s83, 0x0c0c0c0c')
        for r in range(4):
            a(f'v_bfi_b32 v{SEL[r]}, v{M0+r}, v{y}, s83')
    def task_addr2():
        a('s_mul_i32 s82, s3, 24')
        a(f'v_lshl_add_u32 v{vAC}, v{g}, 3, v{vAC}')
        a(f'v_add_u32 v{vAC}, s82, v{vAC}')
        a(f'v_and_b32 v{x}, 15, v1')
        a(f'v_lshlrev_b32 v{x}, 5, v{x}')
        a(f'v_lshrrev_b32 v{y}, 5, v1')
        a(f'v_mul_u32_u24 v{y}, 320, v{y}')
        a(f'v_and_b32 v{z}, 1, v{g}')
        a(f'v_lshlrev_b32 v{z}, 4, v{z}')
        a(f'v_add3_u32 v{vYW}, v{x}, v{y}, v{z}')
        a('s_mul_i32 s82, s3, 640')
        a(f'v_add_u32 v{vYW}, s82, v{vYW}')
        a(f'v_lshlrev_b32 v{vMW}, 2, v7')
        a('v_mov_b32 v75, s78')
    def run(issue_list, tasks, win, per_issue):
        for tag in issue_list:
            while not free:
                fn, needs = tasks.pop(0)
                for n in needs: a.wait_tag(n)
                fn()
            if win: window()
            issue(tag)
            n = 0
            while tasks and n < per_issue and all(a.issued(q) and a.is_done(q) for q in tasks[0][1]):
                fn, needs = tasks.pop(0); fn(); n += 1
    kt = [((lambda k=k: task_k(k)), [('k', k, s) for s in range(3)]) for k in range(16)]
    vt = [((lambda k=k: task_v(k)), [('v', k, s) for s in range(3)]) for k in range(16)]
    N = lambda f: (f, [])
    tasks = kt[:11] + [N(task_addr0), N(lambda: task_red(0))] + kt[11:12] + [N(lambda: task_sm1(0))] + kt[12:13] + [N(lambda: task_sm2(0))] + kt[13:]
    tasks += [N(lambda: stamp(3))] if stamps else []
    tasks += vt[:1] + [N(lambda: task_red(1))] + vt[1:2] + [N(lambda: task_sm1(1))] + vt[2:3] + [N(lambda: task_sm2(1))] + vt[3:5]
    tasks += [N(task_addr1)] + vt[5:6] + [N(task_addr2)] + vt[6:8] + [N(lambda: flush_acc(0))] + vt[8:14]
    wl = [('wo', rg) for rg in range(6)] + [('w2', i) for i in range(2)]
    run(kl[nb:], tasks, True, catchup)
    early = wl[nlate:][::-1]; latel = wl[:nlate]
    vseq = []
    for i, tag in enumerate(vl):
        vseq.append(tag)
        if i >= 9 and i % 4 == 1 and early: vseq.append(early.pop())
    run(vseq, tasks, True, catchup)
    assert not tasks, len(tasks)
    a('s_waitcnt lgkmcnt(0)')
    a('s_barrier')
    R = 8
    WG = [62, 63]; MXR = [64, 65]
    a(f'ds_read_b32 v{WG[0]}, v{vMW} offset:{MW}')
    a(f'ds_read_b32 v{WG[1]}, v{vMW} offset:{MW+32}')
    a(f'ds_read_b128 v[{R}:{R+3}], v{vRA}')
    a(f'ds_read_b128 v[{R+4}:{R+7}], v{vRA} offset:{OS}')
    a(f'ds_read_b64 v[72:73], v{vAC} offset:{ACT}')
    a(f'v_lshrrev_b32 v66, 8, v{vAC}')
    a('v_lshlrev_b32 v66, 6, v66')
    a(f'ds_read_b32 v74, v66 offset:{GV}')
    run(latel, [], False, 0)
    a('s_waitcnt lgkmcnt(0)')
    for i, pat in enumerate(RED8):
        for b in range(2):
            src = WG[b] if i == 0 else MXR[b]
            a(f'v_max_f32_dpp v{MXR[b]}, v{src}, v{src} {pat} {DPP}')
    for b in range(2): a(f'v_and_b32 v{MXR[b]}, s77, v{MXR[b]}')
    for b in range(2): a(f'v_sub_f32 v{WG[b]}, v{WG[b]}, v{MXR[b]}')
    for b in range(2): a(f'v_exp_f32 v{WG[b]}, v{WG[b]}')
    a('v_cmp_eq_u32 s[80:81], 7, v6')
    def oreduce(b):
        for i in range(4): a(f'v_add_f32 v{R+i}, v{R+i}, v{R+4+i}')
        for i in range(4): a(f'v_mul_f32 v{R+i}, v{R+i}, v{WG[b]}')
        for pat in RED8:
            for i in range(4):
                a(f'v_add_f32_dpp v{R+i}, v{R+i}, v{R+i} {pat} {DPP}')
        a(f'v_cndmask_b32 v{R}, v{R}, v{MXR[b]}, s[80:81]')
        tag_apply(range(R, R + 4), 75)
        a('s_cmp_eq_u32 s89, 1')
        a(f's_cbranch_scc1 L_ofast{b}')
        a(f'buffer_store_dwordx4 v[{R}:{R+3}], v{vRG}, s[68:71], s100 offen offset:{b*1024} sc1')
        a(f's_branch L_odone{b}')
        a(f'L_ofast{b}:')
        a.vmem(f'buffer_store_dwordx4 v[{R}:{R+3}], v{vRG}, s[68:71], s100 offen offset:{b*1024}')
        a(f'L_odone{b}:')
    oreduce(0)
    task_v(14, True)
    task_v(15, True)
    stamp(4)
    flush_acc(1)
    a('s_waitcnt lgkmcnt(0)')
    a('s_barrier')
    a(f'ds_read_b128 v[{R}:{R+3}], v{vRA} offset:{OP1}')
    a(f'ds_read_b128 v[{R+4}:{R+7}], v{vRA} offset:{OP1+OS}')
    a('s_waitcnt lgkmcnt(0)')
    oreduce(1)
    O = 16; O2 = 20; X = 66; X2 = 67; Y = 24
    def poll1():
        a(f'buffer_load_dwordx4 v[{O}:{O+3}], v{vP1}, s[68:71], s93 offen sc1')
        a(f'buffer_load_dwordx4 v[{O2}:{O2+3}], v{vP1}, s[68:71], s95 offen sc1')
    poll1()
    stamp(5)
    a('s_waitcnt vmcnt(3)')
    for i in range(2):
        A = build_A(f'v{72+i}')
        r = slot[('w2', i)]
        a(f'v_mfma_f32_16x16x32_bf16 v[{Y}:{Y+3}], v[{A}:{A+3}], v[{r}:{r+3}], {"0" if i == 0 else f"v[{Y}:{Y+3}]"}')
    a('L_poll1:')
    a('s_waitcnt vmcnt(0)')
    tag_check(range(O, O + 8), X, X2)
    a('s_cbranch_vccz L_poll1d')
    if psleep: a(f's_sleep {psleep}')
    poll1()
    a('s_sub_u32 s92, s92, 1')
    a('s_cbranch_scc0 L_poll1')
    a('s_endpgm')
    a('L_poll1d:')
    stamp(6)
    MQ = 28; MQ2 = 29; MX = 30; TT = 31; PK = 32
    a(f'v_mov_b32_dpp v{MQ}, v{O} row_newbcast:7 row_mask:0xf bank_mask:0x3')
    a(f'v_mov_b32_dpp v{MQ2}, v{O2} row_newbcast:7 row_mask:0xf bank_mask:0x3')
    a(f'v_max_f32 v{MX}, v{O}, v{O2}')
    a(f'v_max_f32 v{TT}, v{O}, v{O2}')
    a(f'v_mov_b32_dpp v{MQ}, v{O} row_newbcast:15 row_mask:0xf bank_mask:0xc')
    a(f'v_mov_b32_dpp v{MQ2}, v{O2} row_newbcast:15 row_mask:0xf bank_mask:0xc')
    a(f'v_permlane16_swap_b32 v{MX}, v{TT}')
    a(f'v_max_f32 v{PK}, v{MX}, v{TT}')
    a(f'v_max_f32 v{TT}, v{MX}, v{TT}')
    a(f'v_permlane32_swap_b32 v{PK}, v{TT}')
    a(f'v_max_f32 v{MX}, v{PK}, v{TT}')
    a(f'v_subrev_f32_dpp v{MQ}, v{MX}, v{MQ} row_newbcast:7 row_mask:0xf bank_mask:0x3')
    a(f'v_subrev_f32_dpp v{MQ2}, v{MX}, v{MQ2} row_newbcast:7 row_mask:0xf bank_mask:0x3')
    a(f'v_subrev_f32_dpp v{MQ}, v{MX}, v{MQ} row_newbcast:15 row_mask:0xf bank_mask:0xc')
    a(f'v_subrev_f32_dpp v{MQ2}, v{MX}, v{MQ2} row_newbcast:15 row_mask:0xf bank_mask:0xc')
    a(f'v_exp_f32 v{MQ}, v{MQ}')
    a(f'v_exp_f32 v{MQ2}, v{MQ2}')
    for i in range(4): a(f'v_mul_f32 v{O+i}, v{O+i}, v{MQ}')
    for i in range(4): a(f'v_fmac_f32 v{O+i}, v{O2+i}, v{MQ2}')
    a(f'v_permlane16_swap_b32 v{O}, v{O+1}')
    a(f'v_permlane16_swap_b32 v{O+2}, v{O+3}')
    a(f'v_add_f32 v{O}, v{O}, v{O+1}')
    a(f'v_add_f32 v{O+2}, v{O+2}, v{O+3}')
    a(f'v_permlane32_swap_b32 v{O}, v{O+2}')
    a(f'v_add_f32 v{O}, v{O}, v{O+2}')
    a(f'v_rcp_f32 v{MX}, v{O}')
    a(f'v_mul_f32 v{O}, v{O}, v74')
    a(f'v_mul_f32_dpp v{O+1}, v{MX}, v{O} row_newbcast:6 {DPP}')
    a(f'v_mul_f32_dpp v{O+2}, v{MX}, v{O} row_newbcast:14 {DPP}')
    a(f'v_mov_b32_dpp v{TT}, v{O+2} row_ror:8 {DPP}')
    a(f'v_cvt_pk_bf16_f32 v{PK}, v{O+1}, v{TT}')
    BB = [62, 63, 64, 65, 66, 67]
    for p in range(6): a(f'v_mov_b32_dpp v{BB[p]}, v{PK} row_newbcast:{p} {DPP}')
    AB = [40, 44, 68, 12]
    for p in range(7):
        if p < 6:
            A = AB[p % 4]
            for r in range(4): a(f'v_perm_b32 v{A+r}, v{BB[p]}, v{BB[p]}, v{SEL[r]}')
        if p > 0:
            r0 = slot[('wo', p - 1)]; A = AB[(p - 1) % 4]
            a(f'v_mfma_f32_16x16x32_bf16 v[{Y}:{Y+3}], v[{A}:{A+3}], v[{r0}:{r0+3}], v[{Y}:{Y+3}]')
    a('s_mov_b32 exec_lo, 0x03ff03ff')
    a('s_mov_b32 exec_hi, 0x03ff03ff')
    a('s_cmp_ge_u32 s3, 5')
    a(f'ds_write_b128 v{vYW}, v[{Y}:{Y+3}] offset:{YP}')
    a('s_mov_b64 exec, -1')
    a('s_waitcnt lgkmcnt(0)')
    a('s_barrier')
    a('s_cbranch_scc1 L_fin')
    R2 = 28
    a(f'ds_read_b128 v[{R2}:{R2+3}], v{vYR} offset:{YP}')
    a('s_waitcnt lgkmcnt(0)')
    for pat in RED8:
        for i in range(4):
            a(f'v_add_f32_dpp v{R2+i}, v{R2+i}, v{R2+i} {pat} {DPP}')
    tag_apply(range(R2, R2 + 4), 75)
    a(f'buffer_store_dwordx4 v[{R2}:{R2+3}], v{vRG}, s[68:71], s101 offen sc1')
    a('L_fin:')
    if stamps:
        stamp(7)
        a(f'v_writelane_b32 v{VST}, s96, 8')
        a('L_probe:')
        if probe is not None:
            i, K, base = probe
            a(f'v_readlane_b32 s82, v{VST}, 0')
            a(f'v_readlane_b32 s83, v{VST}, {i}')
            a('s_sub_u32 s83, s83, s82')
            a(f's_mul_i32 s83, s83, {K}')
            a(f's_add_u32 s83, s83, {base}')
            a('L_spin:')
            a('s_sleep 2')
            a('s_memrealtime s[96:97]')
            a('s_waitcnt lgkmcnt(0)')
            a('s_sub_u32 s84, s96, s82')
            a('s_cmp_lt_u32 s84, s83')
            a('s_cbranch_scc1 L_spin')
        else:
            a('s_cmp_eq_u32 s3, 8')
            a('s_cbranch_scc1 L_nosl')
            a('s_sleep 127')
            a('s_sleep 127')
            a('L_nosl:')
            a('s_mul_i32 s82, s2, 9')
            a('s_add_u32 s82, s82, s3')
            a('s_lshl_b32 s82, s82, 8')
            a(f's_add_u32 s82, s82, {STAMP_OFF}')
            a('v_lshlrev_b32 v5, 2, v1')
            a(f'buffer_store_dword v{VST}, v5, s[68:71], s82 offen')
    a('L_end:')
    a('s_endpgm')

    a.vm = []; a.vm_done = 0
    a('L_helper:')
    a('v_mul_u32_u24 v3, 122880, v6')
    a('v_add_u32 v3, v3, v5')
    a('v_mul_u32_u24 v4, 30720, v6')
    a('v_add_u32 v4, v4, v5')
    a(f'v_mov_b32 v2, {OOB}')
    a('v_cmp_gt_u32 vcc, 6, v7')
    a('v_cndmask_b32 v4, v2, v4, vcc')
    a('v_mul_u32_u24 v8, 20, v6')
    a('v_lshlrev_b32 v9, 4, v1')
    a('v_mov_b32 v73, 0')
    a(f'ds_write_b32 v73, v73 offset:{FLAG}')
    a(f'v_mov_b32 v10, {8*D}')
    a(f'ds_write_b32 v73, v10 offset:{CNT}')
    HM = 12; HA = 16; HACC = 24; HX = 56
    a('s_mul_i32 s83, s31, 983040')
    a('s_mul_i32 s84, s30, 384')
    a('s_add_u32 s83, s83, s84')
    a('s_mul_i32 s85, s31, 245760')
    a('s_mul_i32 s84, s30, 96')
    a('s_add_u32 s85, s85, s84')
    a('s_mul_i32 s98, s31, 160')
    for r in (43, 47, 59, 63, 67):
        a(f's_mov_b32 s{r}, 0x20000')
    a('s_sub_u32 s42, 7864320, s83')
    a('s_sub_u32 s46, 1966080, s85')
    a('s_sub_u32 s58, 2560, s98')
    a('s_sub_u32 s62, 1280, s98')
    a('s_mov_b32 s66, 96')
    a('s_waitcnt lgkmcnt(0)')
    srd(56, 4, 's98'); srd(40, 10, 's83'); srd(44, 16, 's85'); srd(60, 22, 's98'); srd(64, 18, 's84')
    a.vmem(f'buffer_load_dwordx4 v[{HX}:{HX+3}], v8, s[56:59], 0 offen')
    a.vmem(f'buffer_load_dword v{HX+4}, v8, s[56:59], 0 offen offset:16')
    a.vmem(f'buffer_load_dwordx4 v[{HX+6}:{HX+9}], v8, s[56:59], 0 offen offset:1280')
    a.vmem(f'buffer_load_dword v{HX+10}, v8, s[56:59], 0 offen offset:1296')
    hfree = list(range(76, top, 4))
    hslot = {}
    def hissue(tag):
        r = hfree.pop(0); hslot[tag] = r
        t = tag[0]
        if tag[1] == 0 and t:
            a(f's_mov_b32 s87, {t*12288}'); a(f's_mov_b32 s86, {t*3072}')
        if tag[1] < 3:
            a.vmem(f'buffer_load_dwordx4 v[{r}:{r+3}], v3, s[40:43], {"s87" if t else "0"} offen offset:{tag[1]*128} {w_cache}', tag)
        else:
            a.vmem(f'buffer_load_dwordx4 v[{r}:{r+3}], v4, s[44:47], {"s86" if t else "0"} offen {w_cache}', tag)
    hl = [(t, s) for t in range(10) for s in range(4)]
    nfirst = min(hwin, len(hfree)) // 4 * 4
    for tag in hl[:nfirst]: hissue(tag)
    hl = hl[nfirst:]
    a.vmem(f'buffer_load_dwordx4 v[{HX+12}:{HX+15}], v8, s[60:63], 0 offen')
    a.vmem(f'buffer_load_dword v{HX+16}, v8, s[60:63], 0 offen offset:16')
    a('v_and_b32 v10, 15, v1')
    a('v_lshlrev_b32 v10, 3, v10')
    a.vmem(f'buffer_load_dwordx2 v[74:75], v10, s[64:67], 0 offen', 'b1')
    a('s_barrier')
    a('s_mov_b32 s89, 0x01000100')
    a('s_mov_b32 s90, 0x03020302')
    masks(HM, 10, 11)
    ws_setup()
    stamp(1)
    hai = 0
    for t in range(10):
        a.wait_tag((t, 3))
        for bb in range(2):
            xr = HX + 6 * bb + t // 2
            a(f'v_perm_b32 v11, v{xr}, v{xr}, s{89 + (t & 1)}')
            A = HA + 4 * (hai & 1); hai += 1
            for r in range(4): a(f'v_and_b32 v{A+r}, v11, v{HM+r}')
            for s in range(4):
                r = hslot[(t, s)]; acc = HACC + 16 * bb + 4 * s
                c = '0' if t == 0 else f'v[{acc}:{acc+3}]'
                a(f'v_mfma_f32_16x16x32_bf16 v[{acc}:{acc+3}], v[{A}:{A+3}], v[{r}:{r+3}], {c}')
        for s in range(4): hfree.append(hslot[(t, s)])
        for tag in hl[:4]: hissue(tag)
        hl = hl[4:]
        if t == 6:
            a.wait_tag('b1')
            for bb, Gr in ((0, 61), (1, 67)):
                for i in range(5):
                    a(f'v_dot2_f32_bf16 v{Gr}, v{HX+6*bb+i}, v{HX+12+i}, {"0" if i == 0 else f"v{Gr}"}')
            xlane('v_add_f32', 61, 10)
            xlane('v_add_f32', 67, 10)
    stamp(2)
    a('v_lshrrev_b32 v16, 5, v1')
    a('v_lshlrev_b32 v16, 10, v16')
    a('v_and_b32 v11, 1, v6')
    a('v_lshl_add_u32 v16, v11, 8, v16')
    a('v_lshl_add_u32 v16, v7, 5, v16')
    a('v_bfe_u32 v11, v1, 4, 1')
    a('v_lshl_add_u32 v16, v11, 4, v16')
    for s in range(4):
        for r in range(4):
            a(f'v_permlane32_swap_b32 v{HACC+4*s+r}, v{HACC+16+4*s+r}')
    P = 76
    for u in range(2):
        for r in range(4):
            Ae, Be = HACC + 8 * u + r, HACC + 16 + 8 * u + r
            a(f'v_add_f32_dpp v{P+4*u+r}, v{Be}, v{Ae} row_ror:8 {DPP}')
        for r in range(4):
            Ao, Bo = HACC + 8 * u + 4 + r, HACC + 16 + 8 * u + 4 + r
            a(f'v_add_f32_dpp v{P+4*u+r}, v{Ao}, v{Bo} row_ror:8 row_mask:0xf bank_mask:0xc')
    a(f's_mov_b64 exec, {1 << 14}')
    a(f'v_mov_b32 v{P+4}, v61')
    a('s_mov_b32 exec_lo, 0')
    a(f's_mov_b32 exec_hi, {1 << 14}')
    a(f'v_mov_b32 v{P+4}, v67')
    a('s_mov_b64 exec, -1')
    a('s_getreg_b32 s88, hwreg(HW_REG_XCC_ID)')
    a('s_and_b32 s88, s88, 15')
    a('s_lshl_b32 s88, s88, 23')
    a(f'v_writelane_b32 v{P+5}, s88, 14')
    a('s_waitcnt lgkmcnt(0)')
    tag_finish()
    a('v_mov_b32 v11, s78')
    tag_apply(range(P, P + 8), 11)
    slow_q = [f'buffer_store_dwordx4 v[{P}:{P+3}], v16, s[68:71], s99 offen sc1',
              f'buffer_store_dwordx4 v[{P+4}:{P+7}], v16, s[68:71], s99 offen offset:512 sc1']
    a(f's_add_u32 s82, s99, {FAST}')
    a(f'buffer_store_dwordx4 v[{P}:{P+3}], v16, s[68:71], s82 offen')
    a(f'buffer_store_dwordx4 v[{P+4}:{P+7}], v16, s[68:71], s82 offen offset:512')
    stamp(3)
    a('v_add_u32 v12, 4096, v9')
    a('s_lshl_b32 s93, s30, 14')
    a(f's_add_u32 s93, s93, {FAST}')
    a('s_add_u32 s94, s93, 8192')
    a(f's_mov_b32 s76, {nfast}')
    a('v_lshlrev_b32 v17, 11, v6')
    a('v_and_b32 v18, 3, v1')
    a('v_lshl_add_u32 v17, v18, 4, v17')
    a('v_bfe_u32 v18, v1, 2, 1')
    a('v_lshl_add_u32 v17, v18, 9, v17')
    stamp(4)
    QD = [24, 84]
    a('L_qpoll:')
    a(f'buffer_load_dwordx4 v[24:27], v17, s[68:71], s93 offen sc1')
    a('s_waitcnt vmcnt(0)')
    tag_check(range(24, 28), 14, 15)
    a('s_cbranch_vccnz L_qfail')
    for b in range(2):
        for p in range(8):
            vo = 'v9' if (p & 3) < 2 else 'v12'
            so = 's93' if p < 4 else 's94'
            a(f'buffer_load_dwordx4 v[{QD[b]+4*p}:{QD[b]+4*p+3}], {vo}, s[68:71], {so} offen offset:{(p & 1)*2048 + b*1024} sc1')
    a('s_waitcnt vmcnt(0)')
    tag_check(list(range(QD[0], QD[0] + 32)) + list(range(QD[1], QD[1] + 32)), 14, 15)
    a('s_cbranch_vccz L_qok0')
    a('L_qfail:')
    if qsleep: a(f's_sleep {qsleep}')
    a('s_sub_u32 s76, s76, 1')
    a('s_cbranch_scc0 L_qnosw')
    for t in slow_q: a(t)
    a('L_qnosw:')
    a('s_cmp_lt_i32 s76, 0')
    a(f's_cselect_b32 s82, {FAST}, 0')
    for r in (93, 94): a(f's_xor_b32 s{r}, s{r}, s82')
    a('s_sub_u32 s92, s92, 1')
    a('s_cbranch_scc0 L_qpoll')
    a('s_endpgm')
    a('L_qok0:')
    for p in range(8): a(f'v_xor_b32 v{56+p}, s88, v{QD[0]+4*p+1}')
    a('v_or3_b32 v14, v56, v57, v58')
    a('v_or3_b32 v15, v59, v60, v61')
    a('v_or3_b32 v14, v14, v62, v63')
    a('v_or_b32 v14, v14, v15')
    a('v_readlane_b32 s86, v14, 60')
    a('s_cmp_lg_u32 s86, 0')
    a('s_cselect_b32 s86, 2, 1')
    a('s_cbranch_scc0 L_qok')
    a('s_cmp_lt_i32 s76, 0')
    a('s_cbranch_scc1 L_qok')
    for t in slow_q: a(t)
    a('L_qok:')
    a('v_lshlrev_b32 v10, 3, v1')
    for b in range(2):
        for st in (4, 8, 16):
            for b0 in range(QD[b], QD[b] + 32, 2 * st):
                for r in range(4): a(f'v_add_f32 v{b0+r}, v{b0+r}, v{b0+st+r}')
        a(f'v_cvt_pk_bf16_f32 v{QD[b]+4}, v{QD[b]}, v{QD[b]+1}')
        a(f'v_cvt_pk_bf16_f32 v{QD[b]+5}, v{QD[b]+2}, v{QD[b]+3}')
        a(f'ds_write_b64 v10, v[{QD[b]+4}:{QD[b]+5}] offset:{QBF + 512*b}')
    a('v_mov_b32 v10, s86')
    a(f'ds_write_b32 v73, v10 offset:{FLAG}')
    stamp(5)
    HD = QD[1]
    for r in range(4): a(f'v_permlane16_swap_b32 v{QD[0]+r}, v{HD+r}')
    Gq = 32; OMG = 33
    a(f'v_mov_b32_dpp v{Gq}, v{HD} row_newbcast:12 {DPP}')
    a(f'v_cvt_pk_bf16_f32 v{Gq}, v{Gq}, v{Gq}')
    a(f'v_and_b32 v{Gq}, 0xffff0000, v{Gq}')
    a(f'v_mul_f32 v{Gq}, {f2u(-LOG2E)}, v{Gq}')
    a(f'v_exp_f32 v{Gq}, v{Gq}')
    a(f'v_add_f32 v{Gq}, 1.0, v{Gq}')
    a(f'v_rcp_f32 v{Gq}, v{Gq}')
    a(f'v_cvt_pk_bf16_f32 v{Gq}, v{Gq}, v{Gq}')
    a(f'v_and_b32 v{Gq}, 0xffff0000, v{Gq}')
    a(f'v_sub_f32 v{OMG}, 1.0, v{Gq}')
    a(f'v_cvt_pk_bf16_f32 v{OMG}, v{OMG}, v{OMG}')
    a(f'v_and_b32 v{OMG}, 0xffff0000, v{OMG}')
    a(f's_mov_b32 s83, {f2u(-LOG2E)}')
    for pr in range(2):
        h0, h1 = HD + 2 * pr, HD + 2 * pr + 1
        a(f'v_cvt_pk_bf16_f32 v{h0}, v{h0}, v{h1}')
        a(f'v_and_b32 v{h1}, 0xffff0000, v{h0}')
        a(f'v_lshlrev_b32 v{h0}, 16, v{h0}')
        a(f'v_and_b32 v35, 0xffff0000, v{74+pr}')
        a(f'v_lshlrev_b32 v34, 16, v{74+pr}')
        a(f'v_add_f32 v{h0}, v{h0}, v34')
        a(f'v_add_f32 v{h1}, v{h1}, v35')
        a(f'v_cvt_pk_bf16_f32 v{h0}, v{h0}, v{h1}')
        a(f'v_and_b32 v{h1}, 0xffff0000, v{h0}')
        a(f'v_lshlrev_b32 v{h0}, 16, v{h0}')
    for i in range(4):
        h = HD + i; t = 36; tq = 37; nu = 38; de = 39
        a(f'v_mul_f32 v{t}, s83, abs(v{h})')
        a(f'v_exp_f32 v{t}, v{t}')
        a(f'v_cmp_lt_f32 vcc, 0, v{h}')
        a(f'v_mul_f32 v{tq}, v{t}, v{t}')
        a(f'v_cndmask_b32 v{nu}, v{tq}, 1.0, vcc')
        a(f'v_cndmask_b32 v{de}, 1.0, v{tq}, vcc')
        a(f'v_fma_f32 v{nu}, v{t}, 2.0, v{nu}')
        a(f'v_fma_f32 v{de}, v{de}, 2.0, v{nu}')
        a(f'v_rcp_f32 v{de}, v{de}')
        a(f'v_mul_f32 v{nu}, v{nu}, v{h}')
        a(f'v_mul_f32 v{nu}, v{nu}, v{de}')
        a(f'v_cvt_pk_bf16_f32 v{nu}, v{nu}, v{nu}')
        a(f'v_and_b32 v{nu}, 0xffff0000, v{nu}')
        a(f'v_mul_f32 v{nu}, v{nu}, v{OMG}')
        a(f'v_cvt_pk_bf16_f32 v{40+i}, v{nu}, v{nu}')
    a('v_and_b32 v10, 31, v1')
    a('v_lshlrev_b32 v11, 2, v10')
    a('v_lshlrev_b32 v10, 4, v10')
    a('s_mov_b32 exec_lo, 0')
    a(f'ds_write_b32 v11, v{Gq} offset:{GV}')
    a(f'ds_write_b128 v10, v[40:43] offset:{ACT}')
    a('s_mov_b32 exec_lo, -1')
    a('s_waitcnt lgkmcnt(0)')
    stamp(6)
    if ypre:
        a('s_mov_b32 exec_hi, 0xff')
        a('buffer_load_dwordx4 v[44:47], v9, s[68:71], s101 offen')
    if ctl:
        a('s_and_b32 s82, s2, 7')
        a('s_mul_i32 s82, s82, 4352')
        a(f's_add_u32 s82, s82, {MBOX}')
        a('s_lshr_b32 s83, s2, 3')
        a('s_lshl_b32 s83, s83, 2')
        a('s_add_u32 s83, s83, s82')
        a('s_and_b32 s84, s79, 0x3fffff')
        a('s_mov_b32 s85, 0')
        a('s_mov_b32 exec_hi, 0')
        a('L_c:')
        a(f'ds_read_b32 v10, v73 offset:{CNT}')
        a('s_waitcnt lgkmcnt(0)')
        a('v_subrev_u32 v10, s85, v10')
        a('v_lshl_or_b32 v12, v10, 22, s84')
        a('s_mov_b32 exec_lo, 1')
        a('buffer_store_dword v12, off, s[68:71], s83')
        a('s_mov_b32 exec_lo, -1')
        a('buffer_load_dword v9, v11, s[68:71], s82 offen sc1')
        a('v_readfirstlane_b32 s86, v10')
        a('s_waitcnt vmcnt(0)')
        a('v_and_b32 v12, 0x3fffff, v9')
        a('v_lshrrev_b32 v9, 22, v9')
        a(f'v_add_u32 v9, {comp}, v9')
        a('v_cmp_eq_u32 vcc, s84, v12')
        a('v_cndmask_b32 v9, v10, v9, vcc')
        for pat in RED8 + ('row_mirror',):
            a(f'v_add_u32_dpp v9, v9, v9 {pat} {DPP}')
        a('v_readlane_b32 s87, v9, 0')
        a('v_readlane_b32 s88, v9, 16')
        a('s_add_u32 s87, s87, s88')
        a('s_lshr_b32 s87, s87, 5')
        a('s_sub_i32 s87, s87, s86')
        a('s_sub_i32 s88, s87, s85')
        a('s_mov_b32 s85, s87')
        a('v_mov_b32 v9, s88')
        a('s_mov_b32 exec_lo, 1')
        a(f'ds_add_u32 v73, v9 offset:{CNT}')
        a('s_mov_b32 exec_lo, -1')
        a(f's_cmp_ge_u32 s86, {cend}')
        a('s_cbranch_scc1 L_cd')
        a('s_sub_u32 s92, s92, 1')
        a('s_cbranch_scc0 L_c')
        a('s_endpgm')
        a('L_cd:')
    a('s_mov_b64 exec, -1')
    a('s_cmp_ge_u32 s2, 160')
    a('s_cbranch_scc1 ' + ('L_end' if (probe is not None or not stamps) else 'L_hend'))
    a('s_lshr_b32 s82, s2, 5')
    a('s_lshl_b32 s82, s82, 3')
    a('s_and_b32 s83, s2, 7')
    a('s_add_u32 s82, s82, s83')
    a('s_lshl_b32 s82, s82, 2')
    a(f's_bfe_u32 s83, s2, {3 | (2 << 16)}')
    a('s_add_u32 s85, s82, s83')
    a('s_mul_i32 s82, s85, 205')
    a('s_lshr_b32 s82, s82, 12')
    a('s_mul_i32 s83, s82, 20')
    a('s_sub_u32 s83, s85, s83')
    a('s_mul_i32 s84, s82, 20480')
    a('s_lshl_b32 s81, s83, 5')
    a('s_add_u32 s84, s84, s81')
    a(f's_add_u32 s98, s84, {YOFF}')
    a('s_cmp_ge_u32 s83, 10')
    a('s_cselect_b32 s84, 1120, 0')
    a('s_lshl_b32 s81, s83, 4')
    a('s_add_u32 s84, s84, s81')
    a('s_mul_i32 s81, s82, 160')
    a('s_add_u32 s99, s84, s81')
    srd(72, 24, None); a('s_mov_b32 s74, 2560'); a('s_mov_b32 s75, 0x20000')
    vF, vOUT, F = 8, 9, 28
    a(f'v_lshrrev_b32 v{vF}, 1, v1')
    a(f'v_mul_u32_u24 v{vF}, 640, v{vF}')
    a('v_and_b32 v10, 1, v1')
    a(f'v_lshl_add_u32 v{vF}, v10, 4, v{vF}')
    a(f'v_lshlrev_b32 v{vOUT}, 3, v10')
    a('v_lshrrev_b32 v10, 4, v1')
    a(f'v_lshl_add_u32 v{vOUT}, v10, 1, v{vOUT}')
    a('v_mov_b32 v11, s79')
    a(f's_mov_b32 s82, {EOFF}')
    a('s_waitcnt lgkmcnt(0)')
    a('s_barrier')
    a('s_barrier')
    a('s_barrier')
    stamp(7)
    a('L_poll2:')
    a(f'buffer_load_dwordx4 v[{F}:{F+3}], v{vF}, s[68:71], s98 offen sc1')
    a('s_waitcnt vmcnt(0)')
    tag_check(range(F, F + 4), 14, 15)
    a('s_cbranch_vccz L_poll2d')
    if psleep2: a(f's_sleep {psleep2}')
    a('s_sub_u32 s92, s92, 1')
    a('s_cbranch_scc0 L_poll2')
    a('s_endpgm')
    a('L_poll2d:')
    a(f'v_permlane16_swap_b32 v{F}, v{F+1}')
    a(f'v_permlane16_swap_b32 v{F+2}, v{F+3}')
    a(f'v_add_f32 v{F}, v{F}, v{F+1}')
    a(f'v_add_f32 v{F+2}, v{F+2}, v{F+3}')
    a(f'v_permlane32_swap_b32 v{F}, v{F+2}')
    a(f'v_add_f32 v{F}, v{F}, v{F+2}')
    a(f'v_add_f32_dpp v{F}, v{F}, v{F} quad_perm:[2,3,0,1] {DPP}')
    a(f'v_add_f32_dpp v{F}, v{F}, v{F} row_ror:4 {DPP}')
    a(f'v_add_f32_dpp v{F}, v{F}, v{F} row_ror:8 {DPP}')
    a('s_mov_b32 exec_lo, 0x00030003')
    a('s_mov_b32 exec_hi, 0x00030003')
    a(f'v_cvt_pk_bf16_f32 v{F}, v{F}, v{F}')
    a(f'buffer_store_short v{F}, v{vOUT}, s[72:75], s99 offen')
    a('s_cmp_lg_u32 s2, 0')
    a('s_cbranch_scc1 L_hend')
    a('s_mov_b64 exec, 1')
    a('buffer_store_dword v11, off, s[68:71], s82')
    a('L_hend:')
    if stamps:
        a('s_mov_b64 exec, -1')
        stamp(8)
        a('s_branch L_probe')
    a('s_endpgm')

    body = a.finalize()
    out = HEADER
    out += f'; @launch grid=(256,1,1) block=(576,1,1) lds={LDS_BYTES}\n'
    out += '.amdgcn_target "amdgcn-amd-amdhsa--gfx950"\n.text\n'
    out += f'.globl {KNAME}_kernel\n.p2align 8\n.type {KNAME}_kernel,@function\n'
    for l in body:
        out += (l if l.endswith(':') else '    ' + l) + '\n'
    out += f'''.section .rodata,"a"
.p2align 6
.amdhsa_kernel {KNAME}_kernel
  .amdhsa_next_free_vgpr {NV}
  .amdhsa_next_free_sgpr 102
  .amdhsa_accum_offset {NV}
  .amdhsa_group_segment_fixed_size 0
  .amdhsa_kernarg_size 104
  .amdhsa_user_sgpr_count 2
  .amdhsa_user_sgpr_kernarg_segment_ptr 1
  .amdhsa_system_sgpr_workgroup_id_x 1
  .amdhsa_float_denorm_mode_32 3
.end_amdhsa_kernel
'''
    return out

if __name__ == '__main__':
    kw = eval('dict(' + (sys.argv[2] if len(sys.argv) > 2 else '') + ')')
    open(sys.argv[1], 'w').write(gen(**kw))
```

```python
import sys, math, struct
from asmlib import Asm
KNAME = 'gated_mix__gqa_block_cached__dense_activation_mish__decode'
HEADER = open('cdna_kernels/' + KNAME + '.s.ref').read().split('; Override launch')[0]

def f2u(x): return struct.unpack('<I', struct.pack('<f', x))[0]
LOG2E = 1.4426950408889634
OOB = 0x80000000
OOFF = 512 * 1024
FAST = 1 << 20
YOFF = 1536 * 1024
EOFF = 1792 * 1024
MBOX = 1796 * 1024
STAMP_OFF = 2 << 20
WS_REC = 4 << 20
TM = 0x3ff
OS = 848
OP1 = 16 * OS
QBF = 32 * OS
ACT = QBF + 1024
GV = ACT + 512
FLAG = GV + 128
CNT = FLAG + 4
MW = FLAG + 16
YP = MW + 64
LDS_BYTES = YP + 8 * 640 + 256
DPP = 'row_mask:0xf bank_mask:0xf'
RED8 = ('quad_perm:[1,0,3,2]', 'quad_perm:[2,3,0,1]', 'row_half_mirror')
NV = 168

def gen(D=3, nb=30, catchup=2, stamps=False, kv_cache='nt', w_cache='nt', wo_cache='', poll_cap=1 << 18, probe=None,
        hwin=16, nfast=48, psleep=0, psleep2=1, qsleep=4, levels=((-4, 3), (13, 2)), Dmax=4, comp=6, cstart=6, cend=712,
        nlate=8, ypre=True, gm=(2, 0), ctl=True):
    a = Asm()
    VST = NV - 1
    VZ = NV - 2
    top = NV - 4
    def stamp(i):
        if stamps:
            a('s_memrealtime s[96:97]')
            a('s_waitcnt lgkmcnt(0)')
            a(f'v_writelane_b32 v{VST}, s96, {i}')
    def srd(r, p, off):
        if off is None:
            a(f's_mov_b32 s{r}, s{p}'); a(f's_mov_b32 s{r+1}, s{p+1}')
        else:
            a(f's_add_u32 s{r}, s{p}, {off}'); a(f's_addc_u32 s{r+1}, s{p+1}, 0')
    def xlane(op, v, tmp):
        a(f'{op}_dpp v{v}, v{v}, v{v} row_ror:8 {DPP}')
        a(f'v_mov_b32 v{tmp}, v{v}')
        a(f'v_permlane16_swap_b32 v{v}, v{tmp}')
        a(f'{op} v{v}, v{v}, v{tmp}')
        a(f'v_mov_b32 v{tmp}, v{v}')
        a(f'v_permlane32_swap_b32 v{v}, v{tmp}')
        a(f'{op} v{v}, v{v}, v{tmp}')
    def masks(M, t0, t1):
        a(f'v_and_b32 v{t0}, 1, v1')
        a(f'v_lshlrev_b32 v{t0}, 4, v{t0}')
        a(f'v_mov_b32 v{t1}, 0xffff')
        a(f'v_lshlrev_b32 v{t0}, v{t0}, v{t1}')
        a(f'v_bfe_u32 v{t1}, v1, 1, 2')
        for r in range(4):
            a(f'v_cmp_eq_u32 vcc, {r}, v{t1}')
            a(f'v_cndmask_b32 v{M+r}, 0, v{t0}, vcc')
    def ws_setup():
        srd(68, 28, None)
        a(f's_mov_b32 s70, {WS_REC}')
        a('s_mov_b32 s71, 0x20000')
        a('s_lshl_b32 s99, s30, 3')
        a('s_add_u32 s99, s99, s31')
        a('s_lshl_b32 s99, s99, 11')
        a(f's_add_u32 s100, s99, {OOFF}')
        a('s_lshl_b32 s101, s31, 5')
        a('s_add_u32 s101, s101, s30')
        a('s_mul_i32 s101, s101, 640')
        a(f's_add_u32 s101, s101, {YOFF}')
        a(f's_mov_b32 s92, {poll_cap}')
        a(f's_mov_b32 s76, {EOFF}')
        a('s_load_dword s79, s[28:29], s76')
        a(f's_mov_b32 s77, {0xffffffff ^ TM}')
    def tag_finish():
        a('s_add_u32 s79, s79, 1')
        a(f's_and_b32 s78, s79, {TM}')
    def tag_apply(regs, vt):
        for r in regs: a(f'v_and_or_b32 v{r}, v{r}, s77, v{vt}')
    def tag_check(regs, x0, x1):
        regs = list(regs)
        for r in regs: a(f'v_xor_b32 v{r}, s78, v{r}')
        if len(regs) == 4:
            a(f'v_or3_b32 v{x0}, v{regs[0]}, v{regs[1]}, v{regs[2]}')
            a(f'v_or_b32 v{x0}, v{x0}, v{regs[3]}')
        else:
            a(f'v_or3_b32 v{x0}, v{regs[0]}, v{regs[1]}, v{regs[2]}')
            a(f'v_or3_b32 v{x1}, v{regs[3]}, v{regs[4]}, v{regs[5]}')
            rr = regs[6:]; i = 0
            while len(rr) >= 2:
                d = (x0, x1)[i & 1]; i += 1
                a(f'v_or3_b32 v{d}, v{d}, v{rr[0]}, v{rr[1]}'); rr = rr[2:]
            assert not rr
            a(f'v_or_b32 v{x0}, v{x0}, v{x1}')
        a(f'v_and_b32 v{x0}, {TM}, v{x0}')
        a(f'v_cmp_ne_u32 vcc, 0, v{x0}')

    a(f'{KNAME}_kernel:')
    a('s_cmp_ge_u32 s2, 256')
    a('s_cbranch_scc1 L_end')
    a('s_load_dwordx16 s[4:19], s[0:1], 0')
    a('s_load_dwordx8 s[20:27], s[0:1], 64')
    a('s_load_dwordx2 s[28:29], s[0:1], 96')
    if stamps:
        a(f'v_mov_b32 v{VST}, 0')
        stamp(0)
    a('v_lshrrev_b32 v5, 6, v0')
    a('v_and_b32 v1, 63, v0')
    a('v_readfirstlane_b32 s3, v5')
    a('s_and_b32 s82, s2, 7')
    a('s_lshr_b32 s83, s2, 6')
    a('s_lshl_b32 s30, s82, 2')
    a('s_add_u32 s30, s30, s83')
    a(f's_bfe_u32 s31, s2, {3 | (3 << 16)}')
    a('v_lshrrev_b32 v6, 3, v1')
    a('v_and_b32 v7, 7, v1')
    a('v_lshlrev_b32 v5, 4, v7')
    a('s_cmp_eq_u32 s3, 8')
    a('s_cbranch_scc1 L_helper')
    a('v_mul_u32_u24 v2, 384, v6')
    a('v_add_u32 v2, v2, v5')
    a(f's_mul_i32 s88, s30, {gm[0]}')
    if gm[1]:
        a(f's_mul_i32 s83, s82, {gm[1]}')
        a('s_add_u32 s88, s88, s83')
    a('s_and_b32 s88, s88, 7')
    a('s_lshl_b32 s82, s30, 6')
    a('s_add_u32 s82, s82, s31')
    a('s_lshl_b32 s82, s82, 3')
    a('s_add_u32 s82, s82, s3')
    a('s_mul_i32 s82, s82, 3072')
    a('s_sub_u32 s34, 100663296, s82')
    a('s_mov_b32 s35, 0x20000')
    a('s_mul_i32 s86, s88, 196608')
    a('s_waitcnt lgkmcnt(0)')
    srd(32, 6, 's82')
    S0 = 8; Q0 = 24; ACC = 24
    M0 = 36; A0 = 40
    vOW, vRA, vRG, vP1, vYW, vYR, vMW, vAC = range(48, 56)
    SEL = [56, 57, 58, 59]
    vM, vL = 60, 61
    T = list(range(62, 76))
    konly = list(range(36, 76, 4))
    free = konly + list(range(76, top, 4))
    slot = {}
    def alloc(tag):
        r = free.pop(0); slot[tag] = r; return r
    def release(tag):
        if slot[tag] not in konly: free.append(slot[tag])
    cur = {'kv': 0}
    nis = [0]; wcnt = [0]
    def window():
        n = nis[0]; wcnt[0] += 1
        if ctl and n >= cstart:
            a.wait_out(Dmax - 1)
            a('s_waitcnt lgkmcnt(0)')
            a('v_readfirstlane_b32 s90, v0')
            for (delta, d) in levels:
                a(f's_cmp_lt_i32 s90, {8*n - delta}')
                a(f's_cbranch_scc0 L_go{wcnt[0]}')
                a(f's_waitcnt vmcnt({d-1})')
            a(f'L_go{wcnt[0]}:')
        else:
            a.wait_out(D - 1)
    def issue(tag):
        kind = tag[0]
        r = alloc(tag)
        if kind in ('k', 'v'):
            if cur['kv'] != tag[1]:
                k = tag[1]
                a(f's_add_u32 s85, s88, {k & 7}')
                a('s_and_b32 s85, s85, 7')
                a('s_mul_i32 s86, s85, 196608')
                if k >= 8: a('s_add_u32 s86, s86, 50331648')
                cur['kv'] = k
            s0 = 32 if kind == 'k' else 36
            a.vmem(f'buffer_load_dwordx4 v[{r}:{r+3}], v2, s[{s0}:{s0+3}], s86 offen offset:{tag[2]*128} {kv_cache}', tag)
            nis[0] += 1
            if ctl and nis[0] > D:
                a('s_mov_b64 exec, 1')
                a(f'ds_add_rtn_u32 v0, v{VZ}, v{VZ} offset:{CNT - 1}')
                a('s_mov_b64 exec, -1')
        elif kind == 'wo':
            rg = tag[1]
            if rg: a(f's_mov_b32 s87, {rg*5120}')
            a.vmem(f'buffer_load_dwordx4 v[{r}:{r+3}], v3, s[48:51], {"s87" if rg else "0"} offen {wo_cache}', tag)
        elif kind == 'w2':
            a.vmem(f'buffer_load_dwordx4 v[{r}:{r+3}], v4, s[52:55], 0 offen offset:{tag[1]*1280} {wo_cache}', tag)
    kl = [('k', k, s) for k in range(16) for s in range(3)]
    vl = [('v', k, s) for k in range(16) for s in range(3)]
    for tag in kl[:D]: issue(tag)
    srd(36, 8, 's82'); a('s_mov_b32 s38, s34'); a('s_mov_b32 s39, 0x20000')
    ws_setup()
    a(f's_mov_b32 s91, {f2u(LOG2E / math.sqrt(192.0))}')
    a('s_mul_i32 s82, s30, 192')
    a('s_mul_i32 s83, s3, 24')
    a('s_add_u32 s82, s82, s83')
    a('s_mul_i32 s82, s82, 1280')
    a('s_mul_i32 s83, s31, 160')
    a('s_add_u32 s82, s82, s83')
    srd(48, 12, 's82')
    a('s_sub_u32 s50, 7864320, s82')
    a('s_mov_b32 s51, 0x20000')
    a('s_lshl_b32 s82, s30, 3')
    a('s_add_u32 s82, s82, s3')
    a('s_mul_i32 s82, s82, 7680')
    a('s_add_u32 s82, s82, s83')
    srd(52, 20, 's82')
    a('s_sub_u32 s54, 1966080, s82')
    a('s_mov_b32 s55, 0x20000')
    a('s_lshl_b32 s93, s30, 14')
    a(f's_add_u32 s93, s93, {OOFF}')
    a('s_add_u32 s95, s93, 8192')
    a('v_lshrrev_b32 v8, 4, v1')
    a('v_and_b32 v9, 15, v1')
    a(f'v_mov_b32 v10, {OOB}')
    a('v_mul_u32_u24 v3, 1280, v8')
    a('v_lshl_add_u32 v3, v9, 4, v3')
    a('v_mul_u32_u24 v4, 2560, v8')
    a('v_lshl_add_u32 v4, v9, 4, v4')
    a('v_cmp_gt_u32 vcc, 3, v8')
    a('v_cndmask_b32 v4, v10, v4, vcc')
    a('v_cmp_gt_u32 vcc, 10, v9')
    a('v_cndmask_b32 v3, v10, v3, vcc')
    a('v_cndmask_b32 v4, v10, v4, vcc')
    a('v_mov_b32 v9, 0')
    a(f'v_mov_b32 v{VZ}, 1')
    a('s_barrier')
    for tag in kl[D:nb]:
        window(); issue(tag)
    a('s_waitcnt lgkmcnt(0)')
    tag_finish()
    stamp(1)
    a('L_qw:')
    a(f'ds_read_b32 v8, v9 offset:{FLAG}')
    for s in range(3):
        a(f'ds_read_b128 v[{Q0+4*s}:{Q0+3+4*s}], v5 offset:{QBF + s*128}')
    a('s_waitcnt lgkmcnt(0)')
    a('v_readfirstlane_b32 s89, v8')
    a('s_cmp_lg_u32 s89, 0')
    a('s_cbranch_scc1 L_qwd')
    a('s_sleep 2')
    a('s_sub_u32 s92, s92, 1')
    a('s_cbranch_scc0 L_qw')
    a('s_endpgm')
    a('L_qwd:')
    stamp(2)
    abi = [0]
    def build_A(src):
        A = A0 + 4 * (abi[0] & 1); abi[0] += 1
        for r in range(4):
            a(f'v_and_b32 v{A+r}, {src}, v{M0+r}')
        return A
    def task_k(k):
        S = S0 + k
        if k == 8: a('s_waitcnt lgkmcnt(0)')
        first = True
        for s in range(3):
            r = slot[('k', k, s)]
            for i in range(4):
                c = '0' if first else f'v{S}'
                a(f'v_dot2_f32_bf16 v{S}, v{r+i}, v{Q0 + s*4 + i}, {c}')
                first = False
            release(('k', k, s))
        if k == 7:
            for s in range(3):
                a(f'ds_read_b128 v[{Q0+4*s}:{Q0+3+4*s}], v5 offset:{QBF + 512 + s*128}')
    def flush_acc(b):
        a('s_mov_b32 exec_lo, 0x00ff00ff')
        a('s_mov_b32 exec_hi, 0xff00ff00')
        for s in range(3):
            a(f'ds_write_b128 v{vOW}, v[{ACC+4*s}:{ACC+3+4*s}] offset:{b*OP1 + s*256}')
        a('s_mov_b64 exec, -1')
    def task_v(k, fine=False):
        A = build_A(f'v{S0+k}')
        if k == 8: a('s_waitcnt lgkmcnt(0)')
        for s in range(3):
            if fine: a.wait_tag(('v', k, s))
            r = slot[('v', k, s)]; acc = ACC + 4 * s
            c = '0' if k % 8 == 0 else f'v[{acc}:{acc+3}]'
            a(f'v_mfma_f32_16x16x32_bf16 v[{acc}:{acc+3}], v[{A}:{A+3}], v[{r}:{r+3}], {c}')
            release(('v', k, s))
    def task_red(b):
        for pat in RED8:
            for k in range(8 * b, 8 * b + 8):
                a(f'v_add_f32_dpp v{S0+k}, v{S0+k}, v{S0+k} {pat} {DPP}')
    t0, t1, t2 = T[0], T[1], T[2]
    def task_sm1(b):
        B = S0 + 8 * b
        a(f'v_max3_f32 v{t0}, v{B}, v{B+1}, v{B+2}')
        a(f'v_max3_f32 v{t0}, v{t0}, v{B+3}, v{B+4}')
        a(f'v_max3_f32 v{t0}, v{t0}, v{B+5}, v{B+6}')
        a(f'v_max_f32 v{t0}, v{t0}, v{B+7}')
        xlane('v_max_f32', t0, t1)
        a(f'v_mul_f32 v{vM}, s91, v{t0}')
        for k in range(8): a(f'v_fma_f32 v{B+k}, v{B+k}, s91, -v{vM}')
        for k in range(8): a(f'v_exp_f32 v{B+k}, v{B+k}')
        a('s_lshl_b32 s82, s3, 2')
        a(f'v_mov_b32 v{t0}, s82')
        a(f'ds_write_b32 v{t0}, v{vM} offset:{MW + 32*b}')
    def task_sm2(b):
        B = S0 + 8 * b
        u = 64
        a(f'v_add_f32 v{u}, v{B}, v{B+1}')
        for k in range(2, 8): a(f'v_add_f32 v{u}, v{u}, v{B+k}')
        for k in range(8): a(f'v_cvt_pk_bf16_f32 v{B+k}, v{B+k}, v{B+k}')
        xlane('v_add_f32', u, t1)
        a(f'v_writelane_b32 v{u}, 0, 40')
        a(f'v_mov_b32 v{u+1}, v{u}'); a(f'v_mov_b32 v{u+2}, v{u}'); a(f'v_mov_b32 v{u+3}, v{u}')
        a('s_mov_b32 exec_lo, 1')
        a('s_mov_b32 exec_hi, 0x100')
        a(f'ds_write_b128 v{vOW}, v[{u}:{u+3}] offset:{b*OP1 + 768}')
        a('s_mov_b64 exec, -1')
    def task_addr0():
        a(f'v_lshrrev_b32 v{t0}, 5, v1')
        a('s_lshl_b32 s82, s3, 1')
        a(f'v_add_u32 v{t0}, s82, v{t0}')
        a(f'v_lshlrev_b32 v{t1}, 5, v7')
        a(f'v_bfe_u32 v{t2}, v1, 4, 1')
        a(f'v_lshl_add_u32 v{t1}, v{t2}, 4, v{t1}')
        a(f'v_mul_u32_u24 v{vOW}, {OS}, v{t0}')
        a(f'v_add_u32 v{vOW}, v{vOW}, v{t1}')
        masks(M0, t0, t1)
    g, ob, x, y, z = 68, 69, 70, 71, 72
    def task_addr1():
        a(f'v_lshrrev_b32 v{g}, 4, v1')
        a(f'v_mov_b32 v{ob}, {OOB}')
        a('s_mul_i32 s82, s3, 6')
        a(f'v_add_u32 v{x}, s82, v6')
        a('v_cmp_gt_u32 vcc, 6, v6')
        a(f'v_cndmask_b32 v{x}, 48, v{x}, vcc')
        a(f'v_lshlrev_b32 v{x}, 4, v{x}')
        a(f'v_mul_u32_u24 v{vRA}, {2*OS}, v7')
        a(f'v_add_u32 v{vRA}, v{vRA}, v{x}')
        a('s_lshl_b32 s82, s3, 7')
        a(f'v_lshl_add_u32 v{x}, v6, 4, s82')
        a(f'v_mul_u32_u24 v{vYR}, 640, v7')
        a(f'v_add_u32 v{vYR}, v{vYR}, v{x}')
        a('v_cmp_eq_u32 vcc, 0, v7')
        a(f'v_cndmask_b32 v{vRG}, v{ob}, v{x}, vcc')
        a(f'v_and_b32 v{x}, 1, v6')
        a(f'v_lshlrev_b32 v{vAC}, 8, v{x}')
        a(f'v_lshlrev_b32 v{y}, 10, v{x}')
        a(f'v_lshl_add_u32 v{y}, v{g}, 11, v{y}')
        a(f'v_add3_u32 v{vP1}, v{y}, v5, s82')
        a(f'v_mul_u32_u24 v{y}, 0x0202, v{x}')
        a(f'v_lshl_or_b32 v{y}, v{y}, 16, v{y}')
        a(f'v_add_u32 v{y}, 0x01000100, v{y}')
        a('s_mov_b32 s83, 0x0c0c0c0c')
        for r in range(4):
            a(f'v_bfi_b32 v{SEL[r]}, v{M0+r}, v{y}, s83')
    def task_addr2():
        a('s_mul_i32 s82, s3, 24')
        a(f'v_lshl_add_u32 v{vAC}, v{g}, 3, v{vAC}')
        a(f'v_add_u32 v{vAC}, s82, v{vAC}')
        a(f'v_and_b32 v{x}, 15, v1')
        a(f'v_lshlrev_b32 v{x}, 5, v{x}')
        a(f'v_lshrrev_b32 v{y}, 5, v1')
        a(f'v_mul_u32_u24 v{y}, 320, v{y}')
        a(f'v_and_b32 v{z}, 1, v{g}')
        a(f'v_lshlrev_b32 v{z}, 4, v{z}')
        a(f'v_add3_u32 v{vYW}, v{x}, v{y}, v{z}')
        a('s_mul_i32 s82, s3, 640')
        a(f'v_add_u32 v{vYW}, s82, v{vYW}')
        a(f'v_lshlrev_b32 v{vMW}, 2, v7')
        a('v_mov_b32 v75, s78')
    def run(issue_list, tasks, win, per_issue):
        for tag in issue_list:
            while not free:
                fn, needs = tasks.pop(0)
                for n in needs: a.wait_tag(n)
                fn()
            if win: window()
            issue(tag)
            n = 0
            while tasks and n < per_issue and all(a.issued(q) and a.is_done(q) for q in tasks[0][1]):
                fn, needs = tasks.pop(0); fn(); n += 1
    kt = [((lambda k=k: task_k(k)), [('k', k, s) for s in range(3)]) for k in range(16)]
    vt = [((lambda k=k: task_v(k)), [('v', k, s) for s in range(3)]) for k in range(16)]
    N = lambda f: (f, [])
    tasks = kt[:11] + [N(task_addr0), N(lambda: task_red(0))] + kt[11:12] + [N(lambda: task_sm1(0))] + kt[12:13] + [N(lambda: task_sm2(0))] + kt[13:]
    tasks += [N(lambda: stamp(3))] if stamps else []
    tasks += vt[:1] + [N(lambda: task_red(1))] + vt[1:2] + [N(lambda: task_sm1(1))] + vt[2:3] + [N(lambda: task_sm2(1))] + vt[3:5]
    tasks += [N(task_addr1)] + vt[5:6] + [N(task_addr2)] + vt[6:8] + [N(lambda: flush_acc(0))] + vt[8:14]
    wl = [('wo', rg) for rg in range(6)] + [('w2', i) for i in range(2)]
    run(kl[nb:], tasks, True, catchup)
    early = wl[nlate:][::-1]; latel = wl[:nlate]
    vseq = []
    for i, tag in enumerate(vl):
        vseq.append(tag)
        if i >= 9 and i % 4 == 1 and early: vseq.append(early.pop())
    run(vseq, tasks, True, catchup)
    assert not tasks, len(tasks)
    a('s_waitcnt lgkmcnt(0)')
    a('s_barrier')
    R = 8
    WG = [62, 63]; MXR = [64, 65]
    a(f'ds_read_b32 v{WG[0]}, v{vMW} offset:{MW}')
    a(f'ds_read_b32 v{WG[1]}, v{vMW} offset:{MW+32}')
    a(f'ds_read_b128 v[{R}:{R+3}], v{vRA}')
    a(f'ds_read_b128 v[{R+4}:{R+7}], v{vRA} offset:{OS}')
    a(f'ds_read_b64 v[72:73], v{vAC} offset:{ACT}')
    a(f'v_lshrrev_b32 v66, 8, v{vAC}')
    a('v_lshlrev_b32 v66, 6, v66')
    a(f'ds_read_b32 v74, v66 offset:{GV}')
    run(latel, [], False, 0)
    a('s_waitcnt lgkmcnt(0)')
    for i, pat in enumerate(RED8):
        for b in range(2):
            src = WG[b] if i == 0 else MXR[b]
            a(f'v_max_f32_dpp v{MXR[b]}, v{src}, v{src} {pat} {DPP}')
    for b in range(2): a(f'v_and_b32 v{MXR[b]}, s77, v{MXR[b]}')
    for b in range(2): a(f'v_sub_f32 v{WG[b]}, v{WG[b]}, v{MXR[b]}')
    for b in range(2): a(f'v_exp_f32 v{WG[b]}, v{WG[b]}')
    a('v_cmp_eq_u32 s[80:81], 7, v6')
    def oreduce(b):
        for i in range(4): a(f'v_add_f32 v{R+i}, v{R+i}, v{R+4+i}')
        for i in range(4): a(f'v_mul_f32 v{R+i}, v{R+i}, v{WG[b]}')
        for pat in RED8:
            for i in range(4):
                a(f'v_add_f32_dpp v{R+i}, v{R+i}, v{R+i} {pat} {DPP}')
        a(f'v_cndmask_b32 v{R}, v{R}, v{MXR[b]}, s[80:81]')
        tag_apply(range(R, R + 4), 75)
        a('s_cmp_eq_u32 s89, 1')
        a(f's_cbranch_scc1 L_ofast{b}')
        a(f'buffer_store_dwordx4 v[{R}:{R+3}], v{vRG}, s[68:71], s100 offen offset:{b*1024} sc1')
        a(f's_branch L_odone{b}')
        a(f'L_ofast{b}:')
        a.vmem(f'buffer_store_dwordx4 v[{R}:{R+3}], v{vRG}, s[68:71], s100 offen offset:{b*1024}')
        a(f'L_odone{b}:')
    oreduce(0)
    task_v(14, True)
    task_v(15, True)
    stamp(4)
    flush_acc(1)
    a('s_waitcnt lgkmcnt(0)')
    a('s_barrier')
    a(f'ds_read_b128 v[{R}:{R+3}], v{vRA} offset:{OP1}')
    a(f'ds_read_b128 v[{R+4}:{R+7}], v{vRA} offset:{OP1+OS}')
    a('s_waitcnt lgkmcnt(0)')
    oreduce(1)
    O = 16; O2 = 20; X = 66; X2 = 67; Y = 24
    def poll1():
        a(f'buffer_load_dwordx4 v[{O}:{O+3}], v{vP1}, s[68:71], s93 offen sc1')
        a(f'buffer_load_dwordx4 v[{O2}:{O2+3}], v{vP1}, s[68:71], s95 offen sc1')
    poll1()
    stamp(5)
    a('s_waitcnt vmcnt(3)')
    for i in range(2):
        A = build_A(f'v{72+i}')
        r = slot[('w2', i)]
        a(f'v_mfma_f32_16x16x32_bf16 v[{Y}:{Y+3}], v[{A}:{A+3}], v[{r}:{r+3}], {"0" if i == 0 else f"v[{Y}:{Y+3}]"}')
    a('L_poll1:')
    a('s_waitcnt vmcnt(0)')
    tag_check(range(O, O + 8), X, X2)
    a('s_cbranch_vccz L_poll1d')
    if psleep: a(f's_sleep {psleep}')
    poll1()
    a('s_sub_u32 s92, s92, 1')
    a('s_cbranch_scc0 L_poll1')
    a('s_endpgm')
    a('L_poll1d:')
    stamp(6)
    MQ = 28; MQ2 = 29; MX = 30; TT = 31; PK = 32
    a(f'v_mov_b32_dpp v{MQ}, v{O} row_newbcast:7 row_mask:0xf bank_mask:0x3')
    a(f'v_mov_b32_dpp v{MQ2}, v{O2} row_newbcast:7 row_mask:0xf bank_mask:0x3')
    a(f'v_max_f32 v{MX}, v{O}, v{O2}')
    a(f'v_max_f32 v{TT}, v{O}, v{O2}')
    a(f'v_mov_b32_dpp v{MQ}, v{O} row_newbcast:15 row_mask:0xf bank_mask:0xc')
    a(f'v_mov_b32_dpp v{MQ2}, v{O2} row_newbcast:15 row_mask:0xf bank_mask:0xc')
    a(f'v_permlane16_swap_b32 v{MX}, v{TT}')
    a(f'v_max_f32 v{PK}, v{MX}, v{TT}')
    a(f'v_max_f32 v{TT}, v{MX}, v{TT}')
    a(f'v_permlane32_swap_b32 v{PK}, v{TT}')
    a(f'v_max_f32 v{MX}, v{PK}, v{TT}')
    a(f'v_subrev_f32_dpp v{MQ}, v{MX}, v{MQ} row_newbcast:7 row_mask:0xf bank_mask:0x3')
    a(f'v_subrev_f32_dpp v{MQ2}, v{MX}, v{MQ2} row_newbcast:7 row_mask:0xf bank_mask:0x3')
    a(f'v_subrev_f32_dpp v{MQ}, v{MX}, v{MQ} row_newbcast:15 row_mask:0xf bank_mask:0xc')
    a(f'v_subrev_f32_dpp v{MQ2}, v{MX}, v{MQ2} row_newbcast:15 row_mask:0xf bank_mask:0xc')
    a(f'v_exp_f32 v{MQ}, v{MQ}')
    a(f'v_exp_f32 v{MQ2}, v{MQ2}')
    for i in range(4): a(f'v_mul_f32 v{O+i}, v{O+i}, v{MQ}')
    for i in range(4): a(f'v_fmac_f32 v{O+i}, v{O2+i}, v{MQ2}')
    a(f'v_permlane16_swap_b32 v{O}, v{O+1}')
    a(f'v_permlane16_swap_b32 v{O+2}, v{O+3}')
    a(f'v_add_f32 v{O}, v{O}, v{O+1}')
    a(f'v_add_f32 v{O+2}, v{O+2}, v{O+3}')
    a(f'v_permlane32_swap_b32 v{O}, v{O+2}')
    a(f'v_add_f32 v{O}, v{O}, v{O+2}')
    a(f'v_rcp_f32 v{MX}, v{O}')
    a(f'v_mul_f32 v{O}, v{O}, v74')
    a(f'v_mul_f32_dpp v{O+1}, v{MX}, v{O} row_newbcast:6 {DPP}')
    a(f'v_mul_f32_dpp v{O+2}, v{MX}, v{O} row_newbcast:14 {DPP}')
    a(f'v_mov_b32_dpp v{TT}, v{O+2} row_ror:8 {DPP}')
    a(f'v_cvt_pk_bf16_f32 v{PK}, v{O+1}, v{TT}')
    BB = [62, 63, 64, 65, 66, 67]
    for p in range(6): a(f'v_mov_b32_dpp v{BB[p]}, v{PK} row_newbcast:{p} {DPP}')
    AB = [40, 44, 68, 12]
    for p in range(7):
        if p < 6:
            A = AB[p % 4]
            for r in range(4): a(f'v_perm_b32 v{A+r}, v{BB[p]}, v{BB[p]}, v{SEL[r]}')
        if p > 0:
            r0 = slot[('wo', p - 1)]; A = AB[(p - 1) % 4]
            a(f'v_mfma_f32_16x16x32_bf16 v[{Y}:{Y+3}], v[{A}:{A+3}], v[{r0}:{r0+3}], v[{Y}:{Y+3}]')
    a('s_mov_b32 exec_lo, 0x03ff03ff')
    a('s_mov_b32 exec_hi, 0x03ff03ff')
    a('s_cmp_ge_u32 s3, 5')
    a(f'ds_write_b128 v{vYW}, v[{Y}:{Y+3}] offset:{YP}')
    a('s_mov_b64 exec, -1')
    a('s_waitcnt lgkmcnt(0)')
    a('s_barrier')
    a('s_cbranch_scc1 L_fin')
    R2 = 28
    a(f'ds_read_b128 v[{R2}:{R2+3}], v{vYR} offset:{YP}')
    a('s_waitcnt lgkmcnt(0)')
    for pat in RED8:
        for i in range(4):
            a(f'v_add_f32_dpp v{R2+i}, v{R2+i}, v{R2+i} {pat} {DPP}')
    tag_apply(range(R2, R2 + 4), 75)
    a(f'buffer_store_dwordx4 v[{R2}:{R2+3}], v{vRG}, s[68:71], s101 offen sc1')
    a('L_fin:')
    if stamps:
        stamp(7)
        a(f'v_writelane_b32 v{VST}, s96, 8')
        a('L_probe:')
        if probe is not None:
            i, K, base, j0, who = probe
            a('s_cmp_eq_u32 s3, 8')
            if who == 's': a('s_cbranch_scc1 L_end')
            if who == 'h': a('s_cbranch_scc0 L_end')
            a(f'v_readlane_b32 s82, v{VST}, 0')
            a(f'v_readlane_b32 s83, v{VST}, {i}')
            a(f'v_readlane_b32 s84, v{VST}, {j0}')
            a('s_sub_u32 s83, s83, s84')
            a(f's_mul_i32 s83, s83, {K}')
            a(f's_add_u32 s83, s83, {base}')
            a('L_spin:')
            a('s_sleep 2')
            a('s_memrealtime s[96:97]')
            a('s_waitcnt lgkmcnt(0)')
            a('s_sub_u32 s84, s96, s82')
            a('s_cmp_lt_u32 s84, s83')
            a('s_cbranch_scc1 L_spin')
        else:
            a('s_cmp_eq_u32 s3, 8')
            a('s_cbranch_scc1 L_nosl')
            a('s_sleep 127')
            a('s_sleep 127')
            a('L_nosl:')
            a('s_mul_i32 s82, s2, 9')
            a('s_add_u32 s82, s82, s3')
            a('s_lshl_b32 s82, s82, 8')
            a(f's_add_u32 s82, s82, {STAMP_OFF}')
            a('v_lshlrev_b32 v5, 2, v1')
            a(f'buffer_store_dword v{VST}, v5, s[68:71], s82 offen')
    a('L_end:')
    a('s_endpgm')

    a.vm = []; a.vm_done = 0
    a('L_helper:')
    a('v_mul_u32_u24 v3, 122880, v6')
    a('v_add_u32 v3, v3, v5')
    a('v_mul_u32_u24 v4, 30720, v6')
    a('v_add_u32 v4, v4, v5')
    a(f'v_mov_b32 v2, {OOB}')
    a('v_cmp_gt_u32 vcc, 6, v7')
    a('v_cndmask_b32 v4, v2, v4, vcc')
    a('v_mul_u32_u24 v8, 20, v6')
    a('v_lshlrev_b32 v9, 4, v1')
    a('v_mov_b32 v73, 0')
    a(f'ds_write_b32 v73, v73 offset:{FLAG}')
    a(f'v_mov_b32 v10, {8*D}')
    a(f'ds_write_b32 v73, v10 offset:{CNT}')
    HM = 12; HA = 16; HACC = 24; HX = 56
    a('s_mul_i32 s83, s31, 983040')
    a('s_mul_i32 s84, s30, 384')
    a('s_add_u32 s83, s83, s84')
    a('s_mul_i32 s85, s31, 245760')
    a('s_mul_i32 s84, s30, 96')
    a('s_add_u32 s85, s85, s84')
    a('s_mul_i32 s98, s31, 160')
    for r in (43, 47, 59, 63, 67):
        a(f's_mov_b32 s{r}, 0x20000')
    a('s_sub_u32 s42, 7864320, s83')
    a('s_sub_u32 s46, 1966080, s85')
    a('s_sub_u32 s58, 2560, s98')
    a('s_sub_u32 s62, 1280, s98')
    a('s_mov_b32 s66, 96')
    a('s_waitcnt lgkmcnt(0)')
    srd(56, 4, 's98'); srd(40, 10, 's83'); srd(44, 16, 's85'); srd(60, 22, 's98'); srd(64, 18, 's84')
    a.vmem(f'buffer_load_dwordx4 v[{HX}:{HX+3}], v8, s[56:59], 0 offen')
    a.vmem(f'buffer_load_dword v{HX+4}, v8, s[56:59], 0 offen offset:16')
    a.vmem(f'buffer_load_dwordx4 v[{HX+6}:{HX+9}], v8, s[56:59], 0 offen offset:1280')
    a.vmem(f'buffer_load_dword v{HX+10}, v8, s[56:59], 0 offen offset:1296')
    hfree = list(range(76, top, 4))
    hslot = {}
    def hissue(tag):
        r = hfree.pop(0); hslot[tag] = r
        t = tag[0]
        if tag[1] == 0 and t:
            a(f's_mov_b32 s87, {t*12288}'); a(f's_mov_b32 s86, {t*3072}')
        if tag[1] < 3:
            a.vmem(f'buffer_load_dwordx4 v[{r}:{r+3}], v3, s[40:43], {"s87" if t else "0"} offen offset:{tag[1]*128} {w_cache}', tag)
        else:
            a.vmem(f'buffer_load_dwordx4 v[{r}:{r+3}], v4, s[44:47], {"s86" if t else "0"} offen {w_cache}', tag)
    hl = [(t, s) for t in range(10) for s in range(4)]
    nfirst = min(hwin, len(hfree)) // 4 * 4
    for tag in hl[:nfirst]: hissue(tag)
    hl = hl[nfirst:]
    a.vmem(f'buffer_load_dwordx4 v[{HX+12}:{HX+15}], v8, s[60:63], 0 offen')
    a.vmem(f'buffer_load_dword v{HX+16}, v8, s[60:63], 0 offen offset:16')
    a('v_and_b32 v10, 15, v1')
    a('v_lshlrev_b32 v10, 3, v10')
    a.vmem(f'buffer_load_dwordx2 v[74:75], v10, s[64:67], 0 offen', 'b1')
    a('s_barrier')
    a('s_mov_b32 s89, 0x01000100')
    a('s_mov_b32 s90, 0x03020302')
    masks(HM, 10, 11)
    ws_setup()
    stamp(1)
    hai = 0
    for t in range(10):
        a.wait_tag((t, 3))
        for bb in range(2):
            xr = HX + 6 * bb + t // 2
            a(f'v_perm_b32 v11, v{xr}, v{xr}, s{89 + (t & 1)}')
            A = HA + 4 * (hai & 1); hai += 1
            for r in range(4): a(f'v_and_b32 v{A+r}, v11, v{HM+r}')
            for s in range(4):
                r = hslot[(t, s)]; acc = HACC + 16 * bb + 4 * s
                c = '0' if t == 0 else f'v[{acc}:{acc+3}]'
                a(f'v_mfma_f32_16x16x32_bf16 v[{acc}:{acc+3}], v[{A}:{A+3}], v[{r}:{r+3}], {c}')
        for s in range(4): hfree.append(hslot[(t, s)])
        for tag in hl[:4]: hissue(tag)
        hl = hl[4:]
        if t == 6:
            a.wait_tag('b1')
            for bb, Gr in ((0, 61), (1, 67)):
                for i in range(5):
                    a(f'v_dot2_f32_bf16 v{Gr}, v{HX+6*bb+i}, v{HX+12+i}, {"0" if i == 0 else f"v{Gr}"}')
            xlane('v_add_f32', 61, 10)
            xlane('v_add_f32', 67, 10)
    stamp(2)
    a('v_lshrrev_b32 v16, 5, v1')
    a('v_lshlrev_b32 v16, 10, v16')
    a('v_and_b32 v11, 1, v6')
    a('v_lshl_add_u32 v16, v11, 8, v16')
    a('v_lshl_add_u32 v16, v7, 5, v16')
    a('v_bfe_u32 v11, v1, 4, 1')
    a('v_lshl_add_u32 v16, v11, 4, v16')
    for s in range(4):
        for r in range(4):
            a(f'v_permlane32_swap_b32 v{HACC+4*s+r}, v{HACC+16+4*s+r}')
    P = 76
    for u in range(2):
        for r in range(4):
            Ae, Be = HACC + 8 * u + r, HACC + 16 + 8 * u + r
            a(f'v_add_f32_dpp v{P+4*u+r}, v{Be}, v{Ae} row_ror:8 {DPP}')
        for r in range(4):
            Ao, Bo = HACC + 8 * u + 4 + r, HACC + 16 + 8 * u + 4 + r
            a(f'v_add_f32_dpp v{P+4*u+r}, v{Ao}, v{Bo} row_ror:8 row_mask:0xf bank_mask:0xc')
    a(f's_mov_b64 exec, {1 << 14}')
    a(f'v_mov_b32 v{P+4}, v61')
    a('s_mov_b32 exec_lo, 0')
    a(f's_mov_b32 exec_hi, {1 << 14}')
    a(f'v_mov_b32 v{P+4}, v67')
    a('s_mov_b64 exec, -1')
    a('s_getreg_b32 s88, hwreg(HW_REG_XCC_ID)')
    a('s_and_b32 s88, s88, 15')
    a('s_lshl_b32 s88, s88, 23')
    a(f'v_writelane_b32 v{P+5}, s88, 14')
    a('s_waitcnt lgkmcnt(0)')
    tag_finish()
    a('v_mov_b32 v11, s78')
    tag_apply(range(P, P + 8), 11)
    slow_q = [f'buffer_store_dwordx4 v[{P}:{P+3}], v16, s[68:71], s99 offen sc1',
              f'buffer_store_dwordx4 v[{P+4}:{P+7}], v16, s[68:71], s99 offen offset:512 sc1']
    a(f's_add_u32 s82, s99, {FAST}')
    a(f'buffer_store_dwordx4 v[{P}:{P+3}], v16, s[68:71], s82 offen')
    a(f'buffer_store_dwordx4 v[{P+4}:{P+7}], v16, s[68:71], s82 offen offset:512')
    stamp(3)
    a('v_add_u32 v12, 4096, v9')
    a('s_lshl_b32 s93, s30, 14')
    a(f's_add_u32 s93, s93, {FAST}')
    a('s_add_u32 s94, s93, 8192')
    a(f's_mov_b32 s76, {nfast}')
    a('v_lshlrev_b32 v17, 11, v6')
    a('v_and_b32 v18, 3, v1')
    a('v_lshl_add_u32 v17, v18, 4, v17')
    a('v_bfe_u32 v18, v1, 2, 1')
    a('v_lshl_add_u32 v17, v18, 9, v17')
    stamp(4)
    QD = [24, 84]
    a('L_qpoll:')
    a(f'buffer_load_dwordx4 v[24:27], v17, s[68:71], s93 offen sc1')
    a('s_waitcnt vmcnt(0)')
    tag_check(range(24, 28), 14, 15)
    a('s_cbranch_vccnz L_qfail')
    for b in range(2):
        for p in range(8):
            vo = 'v9' if (p & 3) < 2 else 'v12'
            so = 's93' if p < 4 else 's94'
            a(f'buffer_load_dwordx4 v[{QD[b]+4*p}:{QD[b]+4*p+3}], {vo}, s[68:71], {so} offen offset:{(p & 1)*2048 + b*1024} sc1')
    a('s_waitcnt vmcnt(0)')
    tag_check(list(range(QD[0], QD[0] + 32)) + list(range(QD[1], QD[1] + 32)), 14, 15)
    a('s_cbranch_vccz L_qok0')
    a('L_qfail:')
    if qsleep: a(f's_sleep {qsleep}')
    a('s_sub_u32 s76, s76, 1')
    a('s_cbranch_scc0 L_qnosw')
    for t in slow_q: a(t)
    a('L_qnosw:')
    a('s_cmp_lt_i32 s76, 0')
    a(f's_cselect_b32 s82, {FAST}, 0')
    for r in (93, 94): a(f's_xor_b32 s{r}, s{r}, s82')
    a('s_sub_u32 s92, s92, 1')
    a('s_cbranch_scc0 L_qpoll')
    a('s_endpgm')
    a('L_qok0:')
    for p in range(8): a(f'v_xor_b32 v{56+p}, s88, v{QD[0]+4*p+1}')
    a('v_or3_b32 v14, v56, v57, v58')
    a('v_or3_b32 v15, v59, v60, v61')
    a('v_or3_b32 v14, v14, v62, v63')
    a('v_or_b32 v14, v14, v15')
    a('v_readlane_b32 s86, v14, 60')
    a('s_cmp_lg_u32 s86, 0')
    a('s_cselect_b32 s86, 2, 1')
    a('s_cbranch_scc0 L_qok')
    a('s_cmp_lt_i32 s76, 0')
    a('s_cbranch_scc1 L_qok')
    for t in slow_q: a(t)
    a('L_qok:')
    a('v_lshlrev_b32 v10, 3, v1')
    for b in range(2):
        for st in (4, 8, 16):
            for b0 in range(QD[b], QD[b] + 32, 2 * st):
                for r in range(4): a(f'v_add_f32 v{b0+r}, v{b0+r}, v{b0+st+r}')
        a(f'v_cvt_pk_bf16_f32 v{QD[b]+4}, v{QD[b]}, v{QD[b]+1}')
        a(f'v_cvt_pk_bf16_f32 v{QD[b]+5}, v{QD[b]+2}, v{QD[b]+3}')
        a(f'ds_write_b64 v10, v[{QD[b]+4}:{QD[b]+5}] offset:{QBF + 512*b}')
    a('v_mov_b32 v10, s86')
    a(f'ds_write_b32 v73, v10 offset:{FLAG}')
    stamp(5)
    HD = QD[1]
    for r in range(4): a(f'v_permlane16_swap_b32 v{QD[0]+r}, v{HD+r}')
    Gq = 32; OMG = 33
    a(f'v_mov_b32_dpp v{Gq}, v{HD} row_newbcast:12 {DPP}')
    a(f'v_cvt_pk_bf16_f32 v{Gq}, v{Gq}, v{Gq}')
    a(f'v_and_b32 v{Gq}, 0xffff0000, v{Gq}')
    a(f'v_mul_f32 v{Gq}, {f2u(-LOG2E)}, v{Gq}')
    a(f'v_exp_f32 v{Gq}, v{Gq}')
    a(f'v_add_f32 v{Gq}, 1.0, v{Gq}')
    a(f'v_rcp_f32 v{Gq}, v{Gq}')
    a(f'v_cvt_pk_bf16_f32 v{Gq}, v{Gq}, v{Gq}')
    a(f'v_and_b32 v{Gq}, 0xffff0000, v{Gq}')
    a(f'v_sub_f32 v{OMG}, 1.0, v{Gq}')
    a(f'v_cvt_pk_bf16_f32 v{OMG}, v{OMG}, v{OMG}')
    a(f'v_and_b32 v{OMG}, 0xffff0000, v{OMG}')
    a(f's_mov_b32 s83, {f2u(-LOG2E)}')
    for pr in range(2):
        h0, h1 = HD + 2 * pr, HD + 2 * pr + 1
        a(f'v_cvt_pk_bf16_f32 v{h0}, v{h0}, v{h1}')
        a(f'v_and_b32 v{h1}, 0xffff0000, v{h0}')
        a(f'v_lshlrev_b32 v{h0}, 16, v{h0}')
        a(f'v_and_b32 v35, 0xffff0000, v{74+pr}')
        a(f'v_lshlrev_b32 v34, 16, v{74+pr}')
        a(f'v_add_f32 v{h0}, v{h0}, v34')
        a(f'v_add_f32 v{h1}, v{h1}, v35')
        a(f'v_cvt_pk_bf16_f32 v{h0}, v{h0}, v{h1}')
        a(f'v_and_b32 v{h1}, 0xffff0000, v{h0}')
        a(f'v_lshlrev_b32 v{h0}, 16, v{h0}')
    for i in range(4):
        h = HD + i; t = 36; tq = 37; nu = 38; de = 39
        a(f'v_mul_f32 v{t}, s83, abs(v{h})')
        a(f'v_exp_f32 v{t}, v{t}')
        a(f'v_cmp_lt_f32 vcc, 0, v{h}')
        a(f'v_mul_f32 v{tq}, v{t}, v{t}')
        a(f'v_cndmask_b32 v{nu}, v{tq}, 1.0, vcc')
        a(f'v_cndmask_b32 v{de}, 1.0, v{tq}, vcc')
        a(f'v_fma_f32 v{nu}, v{t}, 2.0, v{nu}')
        a(f'v_fma_f32 v{de}, v{de}, 2.0, v{nu}')
        a(f'v_rcp_f32 v{de}, v{de}')
        a(f'v_mul_f32 v{nu}, v{nu}, v{h}')
        a(f'v_mul_f32 v{nu}, v{nu}, v{de}')
        a(f'v_cvt_pk_bf16_f32 v{nu}, v{nu}, v{nu}')
        a(f'v_and_b32 v{nu}, 0xffff0000, v{nu}')
        a(f'v_mul_f32 v{nu}, v{nu}, v{OMG}')
        a(f'v_cvt_pk_bf16_f32 v{40+i}, v{nu}, v{nu}')
    a('v_and_b32 v10, 31, v1')
    a('v_lshlrev_b32 v11, 2, v10')
    a('v_lshlrev_b32 v10, 4, v10')
    a('s_mov_b32 exec_lo, 0')
    a(f'ds_write_b32 v11, v{Gq} offset:{GV}')
    a(f'ds_write_b128 v10, v[40:43] offset:{ACT}')
    a('s_mov_b32 exec_lo, -1')
    a('s_waitcnt lgkmcnt(0)')
    stamp(6)
    if ypre:
        a('s_mov_b32 exec_hi, 0xff')
        a('buffer_load_dwordx4 v[44:47], v9, s[68:71], s101 offen')
    if ctl:
        a('s_and_b32 s82, s2, 7')
        a('s_mul_i32 s82, s82, 4352')
        a(f's_add_u32 s82, s82, {MBOX}')
        a('s_lshr_b32 s83, s2, 3')
        a('s_lshl_b32 s83, s83, 2')
        a('s_add_u32 s83, s83, s82')
        a('s_and_b32 s84, s79, 0x3fffff')
        a('s_mov_b32 s85, 0')
        a('s_mov_b32 exec_hi, 0')
        a('L_c:')
        a(f'ds_read_b32 v10, v73 offset:{CNT}')
        a('s_waitcnt lgkmcnt(0)')
        a('v_subrev_u32 v10, s85, v10')
        a('v_lshl_or_b32 v12, v10, 22, s84')
        a('s_mov_b32 exec_lo, 1')
        a('buffer_store_dword v12, off, s[68:71], s83')
        a('s_mov_b32 exec_lo, -1')
        a('buffer_load_dword v9, v11, s[68:71], s82 offen sc1')
        a('v_readfirstlane_b32 s86, v10')
        a('s_waitcnt vmcnt(0)')
        a('v_and_b32 v12, 0x3fffff, v9')
        a('v_lshrrev_b32 v9, 22, v9')
        a(f'v_add_u32 v9, {comp}, v9')
        a('v_cmp_eq_u32 vcc, s84, v12')
        a('v_cndmask_b32 v9, v10, v9, vcc')
        for pat in RED8 + ('row_mirror',):
            a(f'v_add_u32_dpp v9, v9, v9 {pat} {DPP}')
        a('v_readlane_b32 s87, v9, 0')
        a('v_readlane_b32 s88, v9, 16')
        a('s_add_u32 s87, s87, s88')
        a('s_lshr_b32 s87, s87, 5')
        a('s_sub_i32 s87, s87, s86')
        a('s_sub_i32 s88, s87, s85')
        a('s_mov_b32 s85, s87')
        a('v_mov_b32 v9, s88')
        a('s_mov_b32 exec_lo, 1')
        a(f'ds_add_u32 v73, v9 offset:{CNT}')
        a('s_mov_b32 exec_lo, -1')
        a(f's_cmp_ge_u32 s86, {cend}')
        a('s_cbranch_scc1 L_cd')
        a('s_sub_u32 s92, s92, 1')
        a('s_cbranch_scc0 L_c')
        a('s_endpgm')
        a('L_cd:')
    a('s_mov_b64 exec, -1')
    a('s_cmp_ge_u32 s2, 160')
    a('s_cbranch_scc1 ' + ('L_end' if (probe is not None or not stamps) else 'L_hend'))
    a('s_lshr_b32 s82, s2, 5')
    a('s_lshl_b32 s82, s82, 3')
    a('s_and_b32 s83, s2, 7')
    a('s_add_u32 s82, s82, s83')
    a('s_lshl_b32 s82, s82, 2')
    a(f's_bfe_u32 s83, s2, {3 | (2 << 16)}')
    a('s_add_u32 s85, s82, s83')
    a('s_mul_i32 s82, s85, 205')
    a('s_lshr_b32 s82, s82, 12')
    a('s_mul_i32 s83, s82, 20')
    a('s_sub_u32 s83, s85, s83')
    a('s_mul_i32 s84, s82, 20480')
    a('s_lshl_b32 s81, s83, 5')
    a('s_add_u32 s84, s84, s81')
    a(f's_add_u32 s98, s84, {YOFF}')
    a('s_cmp_ge_u32 s83, 10')
    a('s_cselect_b32 s84, 1120, 0')
    a('s_lshl_b32 s81, s83, 4')
    a('s_add_u32 s84, s84, s81')
    a('s_mul_i32 s81, s82, 160')
    a('s_add_u32 s99, s84, s81')
    srd(72, 24, None); a('s_mov_b32 s74, 2560'); a('s_mov_b32 s75, 0x20000')
    vF, vOUT, F = 8, 9, 28
    a(f'v_lshrrev_b32 v{vF}, 1, v1')
    a(f'v_mul_u32_u24 v{vF}, 640, v{vF}')
    a('v_and_b32 v10, 1, v1')
    a(f'v_lshl_add_u32 v{vF}, v10, 4, v{vF}')
    a(f'v_lshlrev_b32 v{vOUT}, 3, v10')
    a('v_lshrrev_b32 v10, 4, v1')
    a(f'v_lshl_add_u32 v{vOUT}, v10, 1, v{vOUT}')
    a('v_mov_b32 v11, s79')
    a(f's_mov_b32 s82, {EOFF}')
    a('s_waitcnt lgkmcnt(0)')
    a('s_barrier')
    a('s_barrier')
    a('s_barrier')
    stamp(7)
    a('L_poll2:')
    a(f'buffer_load_dwordx4 v[{F}:{F+3}], v{vF}, s[68:71], s98 offen sc1')
    a('s_waitcnt vmcnt(0)')
    tag_check(range(F, F + 4), 14, 15)
    a('s_cbranch_vccz L_poll2d')
    if psleep2: a(f's_sleep {psleep2}')
    a('s_sub_u32 s92, s92, 1')
    a('s_cbranch_scc0 L_poll2')
    a('s_endpgm')
    a('L_poll2d:')
    a(f'v_permlane16_swap_b32 v{F}, v{F+1}')
    a(f'v_permlane16_swap_b32 v{F+2}, v{F+3}')
    a(f'v_add_f32 v{F}, v{F}, v{F+1}')
    a(f'v_add_f32 v{F+2}, v{F+2}, v{F+3}')
    a(f'v_permlane32_swap_b32 v{F}, v{F+2}')
    a(f'v_add_f32 v{F}, v{F}, v{F+2}')
    a(f'v_add_f32_dpp v{F}, v{F}, v{F} quad_perm:[2,3,0,1] {DPP}')
    a(f'v_add_f32_dpp v{F}, v{F}, v{F} row_ror:4 {DPP}')
    a(f'v_add_f32_dpp v{F}, v{F}, v{F} row_ror:8 {DPP}')
    a('s_mov_b32 exec_lo, 0x00030003')
    a('s_mov_b32 exec_hi, 0x00030003')
    a(f'v_cvt_pk_bf16_f32 v{F}, v{F}, v{F}')
    a(f'buffer_store_short v{F}, v{vOUT}, s[72:75], s99 offen')
    a('s_cmp_lg_u32 s2, 0')
    a('s_cbranch_scc1 L_hend')
    a('s_mov_b64 exec, 1')
    a('buffer_store_dword v11, off, s[68:71], s82')
    a('L_hend:')
    if stamps:
        a('s_mov_b64 exec, -1')
        stamp(8)
        a('s_branch L_probe')
    a('s_endpgm')

    body = a.finalize()
    out = HEADER
    out += f'; @launch grid=(256,1,1) block=(576,1,1) lds={LDS_BYTES}\n'
    out += '.amdgcn_target "amdgcn-amd-amdhsa--gfx950"\n.text\n'
    out += f'.globl {KNAME}_kernel\n.p2align 8\n.type {KNAME}_kernel,@function\n'
    for l in body:
        out += (l if l.endswith(':') else '    ' + l) + '\n'
    out += f'''.section .rodata,"a"
.p2align 6
.amdhsa_kernel {KNAME}_kernel
  .amdhsa_next_free_vgpr {NV}
  .amdhsa_next_free_sgpr 102
  .amdhsa_accum_offset {NV}
  .amdhsa_group_segment_fixed_size 0
  .amdhsa_kernarg_size 104
  .amdhsa_user_sgpr_count 2
  .amdhsa_user_sgpr_kernarg_segment_ptr 1
  .amdhsa_system_sgpr_workgroup_id_x 1
  .amdhsa_float_denorm_mode_32 3
.end_amdhsa_kernel
'''
    return out

if __name__ == '__main__':
    kw = eval('dict(' + (sys.argv[2] if len(sys.argv) > 2 else '') + ')')
    open(sys.argv[1], 'w').write(gen(**kw))
```

```python
import sys, math, struct
from asmlib import Asm
KNAME = 'gated_mix__gqa_block_cached__dense_activation_mish__decode'
HEADER = open('cdna_kernels/' + KNAME + '.s.ref').read().split('; Override launch')[0]

def f2u(x): return struct.unpack('<I', struct.pack('<f', x))[0]
LOG2E = 1.4426950408889634
OOB = 0x80000000
OOFF = 512 * 1024
FAST = 1 << 20
YOFF = 1536 * 1024
EOFF = 1792 * 1024
MBOX = 1796 * 1024
STAMP_OFF = 2 << 20
WS_REC = 4 << 20
TM = 0x3ff
OS = 848
OP1 = 16 * OS
QBF = 32 * OS
ACT = QBF + 1024
GV = ACT + 512
FLAG = GV + 128
CNT = FLAG + 4
FL = FLAG + 8
MW = FLAG + 16
YP = MW + 64
LDS_BYTES = YP + 8 * 640 + 256
DPP = 'row_mask:0xf bank_mask:0xf'
RED8 = ('quad_perm:[1,0,3,2]', 'quad_perm:[2,3,0,1]', 'row_half_mirror')
NV = 168

def gen(D=3, nb=30, catchup=2, stamps=False, kv_cache='nt', w_cache='nt', wo_cache='', poll_cap=1 << 18, probe=None,
        hwin=16, nfast=48, psleep=0, psleep2=1, qsleep=4, levels=((-4, 3), (13, 2)), Dmax=4, comp=6, cstart=6, cend=712,
        nlate=8, ypre=True, gm=(2, 0), ctl=True, sind=False, qpre=False, opre=0, nl1=8, l2pos=0, xfree=False, estart=9, estep=4, m1pos=9, m2a=12, m2b=13, nsp=200, Dsp=5, spadd=0, D0pat=None, eb=False, cpre=0, hnear=False):
    a = Asm()
    VST = NV - 1
    VZ = NV - 2
    top = NV - 4
    def stamp(i):
        if stamps:
            a('s_memrealtime s[96:97]')
            a('s_waitcnt lgkmcnt(0)')
            a(f'v_writelane_b32 v{VST}, s96, {i}')
    def srd(r, p, off):
        if off is None:
            a(f's_mov_b32 s{r}, s{p}'); a(f's_mov_b32 s{r+1}, s{p+1}')
        else:
            a(f's_add_u32 s{r}, s{p}, {off}'); a(f's_addc_u32 s{r+1}, s{p+1}, 0')
    def xlane(op, v, tmp):
        a(f'{op}_dpp v{v}, v{v}, v{v} row_ror:8 {DPP}')
        a(f'v_mov_b32 v{tmp}, v{v}')
        a(f'v_permlane16_swap_b32 v{v}, v{tmp}')
        a(f'{op} v{v}, v{v}, v{tmp}')
        a(f'v_mov_b32 v{tmp}, v{v}')
        a(f'v_permlane32_swap_b32 v{v}, v{tmp}')
        a(f'{op} v{v}, v{v}, v{tmp}')
    def masks(M, t0, t1):
        a(f'v_and_b32 v{t0}, 1, v1')
        a(f'v_lshlrev_b32 v{t0}, 4, v{t0}')
        a(f'v_mov_b32 v{t1}, 0xffff')
        a(f'v_lshlrev_b32 v{t0}, v{t0}, v{t1}')
        a(f'v_bfe_u32 v{t1}, v1, 1, 2')
        for r in range(4):
            a(f'v_cmp_eq_u32 vcc, {r}, v{t1}')
            a(f'v_cndmask_b32 v{M+r}, 0, v{t0}, vcc')
    def ws_setup():
        srd(68, 28, None)
        a(f's_mov_b32 s70, {WS_REC}')
        a('s_mov_b32 s71, 0x20000')
        a('s_lshl_b32 s99, s30, 3')
        a('s_add_u32 s99, s99, s31')
        a('s_lshl_b32 s99, s99, 11')
        a(f's_add_u32 s100, s99, {OOFF}')
        a('s_lshl_b32 s101, s31, 5')
        a('s_add_u32 s101, s101, s30')
        a('s_mul_i32 s101, s101, 640')
        a(f's_add_u32 s101, s101, {YOFF}')
        a(f's_mov_b32 s92, {poll_cap}')
        a(f's_mov_b32 s76, {EOFF}')
        a('s_load_dword s79, s[28:29], s76')
        a(f's_mov_b32 s77, {0xffffffff ^ TM}')
    def tag_finish():
        a('s_add_u32 s79, s79, 1')
        a(f's_and_b32 s78, s79, {TM}')
    def tag_apply(regs, vt):
        for r in regs: a(f'v_and_or_b32 v{r}, v{r}, s77, v{vt}')
    def tag_check(regs, x0, x1):
        regs = list(regs)
        for r in regs: a(f'v_xor_b32 v{r}, s78, v{r}')
        if len(regs) == 4:
            a(f'v_or3_b32 v{x0}, v{regs[0]}, v{regs[1]}, v{regs[2]}')
            a(f'v_or_b32 v{x0}, v{x0}, v{regs[3]}')
        else:
            a(f'v_or3_b32 v{x0}, v{regs[0]}, v{regs[1]}, v{regs[2]}')
            a(f'v_or3_b32 v{x1}, v{regs[3]}, v{regs[4]}, v{regs[5]}')
            rr = regs[6:]; i = 0
            while len(rr) >= 2:
                d = (x0, x1)[i & 1]; i += 1
                a(f'v_or3_b32 v{d}, v{d}, v{rr[0]}, v{rr[1]}'); rr = rr[2:]
            assert not rr
            a(f'v_or_b32 v{x0}, v{x0}, v{x1}')
        a(f'v_and_b32 v{x0}, {TM}, v{x0}')
        a(f'v_cmp_ne_u32 vcc, 0, v{x0}')

    a(f'{KNAME}_kernel:')
    a('s_cmp_ge_u32 s2, 256')
    a('s_cbranch_scc1 L_end')
    a('s_load_dwordx16 s[4:19], s[0:1], 0')
    a('s_load_dwordx8 s[20:27], s[0:1], 64')
    a('s_load_dwordx2 s[28:29], s[0:1], 96')
    if stamps:
        a(f'v_mov_b32 v{VST}, 0')
        stamp(0)
    a('v_lshrrev_b32 v5, 6, v0')
    a('v_and_b32 v1, 63, v0')
    a('v_readfirstlane_b32 s3, v5')
    a('s_and_b32 s82, s2, 7')
    a('s_lshr_b32 s83, s2, 6')
    a('s_lshl_b32 s30, s82, 2')
    a('s_add_u32 s30, s30, s83')
    a(f's_bfe_u32 s31, s2, {3 | (3 << 16)}')
    a('v_lshrrev_b32 v6, 3, v1')
    a('v_and_b32 v7, 7, v1')
    a('v_lshlrev_b32 v5, 4, v7')
    if eb:
        a('v_mov_b32 v8, 0')
        a(f'v_mov_b32 v9, {8*D}')
        a('v_mov_b32 v10, 0')
        a(f'ds_write_b96 v8, v[8:10] offset:{FLAG}')
    a('s_cmp_eq_u32 s3, 8')
    if eb:
        a('s_cbranch_scc0 L_streamer')
        a('s_waitcnt lgkmcnt(0)')
        a('s_barrier')
        a('s_branch L_helper')
        a('L_streamer:')
    else:
        a('s_cbranch_scc1 L_helper')
    a('v_mul_u32_u24 v2, 384, v6')
    a('v_add_u32 v2, v2, v5')
    a(f's_mul_i32 s88, s30, {gm[0]}')
    if gm[1]:
        a(f's_mul_i32 s83, s82, {gm[1]}')
        a('s_add_u32 s88, s88, s83')
    a('s_and_b32 s88, s88, 7')
    a('s_lshl_b32 s82, s30, 6')
    a('s_add_u32 s82, s82, s31')
    a('s_lshl_b32 s82, s82, 3')
    a('s_add_u32 s82, s82, s3')
    a('s_mul_i32 s82, s82, 3072')
    a('s_sub_u32 s34, 100663296, s82')
    a('s_mov_b32 s35, 0x20000')
    a('s_mul_i32 s86, s88, 196608')
    a('s_waitcnt lgkmcnt(0)')
    srd(32, 6, 's82')
    S0 = 8; Q0 = 24; ACC = 24
    M0 = 36; A0 = 40
    vOW, vRA, vRG, vP1, vYW, vYR, vMW, vAC = range(48, 56)
    vRG1, vP2, G0, G1 = 56, 57, 58, 59
    kF = m2b + 1
    vM, vL = 60, 61
    T = list(range(62, 76))
    konly = list(range(36, 76, 4))
    free = konly + list(range(76, top, 4))
    slot = {}
    def alloc(tag):
        r = free.pop(0); slot[tag] = r; return r
    def release(tag):
        if slot[tag] not in konly: free.append(slot[tag])
    cur = {'kv': 0}
    nis = [0]; wcnt = [0]
    def window():
        n = nis[0]; wcnt[0] += 1
        def adj(d):
            if not xfree: return d - 1
            cnt = 0; k = 0
            for t in reversed(a.vm):
                if isinstance(t, tuple) and t[0] in ('k', 'v'):
                    if cnt == d - 1: break
                    cnt += 1
                k += 1
            return k
        if n >= nsp and not spadd:
            a.wait_out(adj(Dsp))
            return
        ex = spadd if n >= nsp else 0
        if ctl and n >= cstart:
            a.wait_out(adj(Dmax + ex))
            a('s_waitcnt lgkmcnt(0)')
            a('v_readfirstlane_b32 s90, v0')
            for (delta, d) in levels:
                a(f's_cmp_lt_i32 s90, {8*n - delta}')
                a(f's_cbranch_scc0 L_go{wcnt[0]}')
                a(f's_waitcnt vmcnt({adj(d + ex)})')
            a(f'L_go{wcnt[0]}:')
        else:
            a.wait_out((D0pat[n % len(D0pat)] if D0pat else D) - 1)
    def issue(tag):
        kind = tag[0]
        r = alloc(tag)
        if kind in ('k', 'v'):
            if cur['kv'] != tag[1]:
                k = tag[1]
                a(f's_add_u32 s85, s88, {k & 7}')
                a('s_and_b32 s85, s85, 7')
                a('s_mul_i32 s86, s85, 196608')
                if k >= 8: a('s_add_u32 s86, s86, 50331648')
                cur['kv'] = k
            s0 = 32 if kind == 'k' else 36
            a.vmem(f'buffer_load_dwordx4 v[{r}:{r+3}], v2, s[{s0}:{s0+3}], s86 offen offset:{tag[2]*128} {kv_cache}', tag)
            nis[0] += 1
            if ctl and nis[0] > D:
                a('s_mov_b64 exec, 1')
                a(f'ds_add_rtn_u32 v0, v{VZ}, v{VZ} offset:{CNT - 1}')
                a('s_mov_b64 exec, -1')
        elif kind == 'wo':
            rg = tag[1]
            if rg: a(f's_mov_b32 s87, {rg*5120}')
            a.vmem(f'buffer_load_dwordx4 v[{r}:{r+3}], v3, s[48:51], {"s87" if rg else "0"} offen {wo_cache}', tag)
        elif kind == 'w2':
            a.vmem(f'buffer_load_dwordx4 v[{r}:{r+3}], v4, s[52:55], 0 offen offset:{tag[1]*1280} {wo_cache}', tag)
    kl = [('k', k, s) for k in range(16) for s in range(3)]
    vl = [('v', k, s) for k in range(16) for s in range(3)]
    for tag in kl[:D]: issue(tag)
    if eb: a('s_barrier')
    if hnear:
        a('s_branch L_stream2')
        a('@HELPER_HEAD@')
        a('L_stream2:')
    srd(36, 8, 's82'); a('s_mov_b32 s38, s34'); a('s_mov_b32 s39, 0x20000')
    ws_setup()
    a(f's_mov_b32 s91, {f2u(LOG2E / math.sqrt(192.0))}')
    a('s_mul_i32 s82, s30, 192')
    a('s_mul_i32 s83, s3, 24')
    a('s_add_u32 s82, s82, s83')
    a('s_mul_i32 s82, s82, 1280')
    a('s_mul_i32 s83, s31, 160')
    a('s_add_u32 s82, s82, s83')
    srd(48, 12, 's82')
    a('s_sub_u32 s50, 7864320, s82')
    a('s_mov_b32 s51, 0x20000')
    a('s_lshl_b32 s82, s30, 3')
    a('s_add_u32 s82, s82, s3')
    a('s_mul_i32 s82, s82, 7680')
    a('s_add_u32 s82, s82, s83')
    srd(52, 20, 's82')
    a('s_sub_u32 s54, 1966080, s82')
    a('s_mov_b32 s55, 0x20000')
    a('s_lshl_b32 s93, s30, 14')
    a(f's_add_u32 s93, s93, {OOFF}')
    a('s_add_u32 s94, s93, 4096')
    a('s_add_u32 s95, s93, 8192')
    a('s_add_u32 s98, s93, 12288')
    a('v_lshrrev_b32 v8, 4, v1')
    a('v_and_b32 v9, 15, v1')
    a(f'v_mov_b32 v10, {OOB}')
    a('v_mul_u32_u24 v3, 1280, v8')
    a('v_lshl_add_u32 v3, v9, 4, v3')
    a('v_mul_u32_u24 v4, 2560, v8')
    a('v_lshl_add_u32 v4, v9, 4, v4')
    a('v_cmp_gt_u32 vcc, 3, v8')
    a('v_cndmask_b32 v4, v10, v4, vcc')
    a('v_cmp_gt_u32 vcc, 10, v9')
    a('v_cndmask_b32 v3, v10, v3, vcc')
    a('v_cndmask_b32 v4, v10, v4, vcc')
    a('v_mov_b32 v9, 0')
    a(f'v_mov_b32 v{VZ}, 1')
    if cpre == 1:
        a('s_cmp_lg_u32 s3, 7')
        a('s_cbranch_scc1 L_nocp')
        a('s_getpc_b64 s[40:41]')
        a('L_pc:')
        a(f's_sub_u32 s40, s40, L_pc-{KNAME}_kernel')
        a('s_subb_u32 s41, s41, 0')
        a('s_lshr_b32 s82, s2, 3')
        a('s_mul_i32 s82, s82, 640')
        a('v_lshl_add_u32 v10, v1, 7, s82')
        a(f'v_min_u32 v10, L_codeend-{KNAME}_kernel-4, v10')
        a('s_mov_b64 exec, 31')
        a(f'global_load_dword v{NV-3}, v10, s[40:41]')
        a('s_mov_b64 exec, -1')
        a('L_nocp:')
    if not eb: a('s_barrier')
    for tag in kl[D:nb]:
        window(); issue(tag)
    a('s_waitcnt lgkmcnt(0)')
    tag_finish()
    stamp(1)
    a('L_qw:')
    a(f'ds_read_b32 v8, v9 offset:{FLAG}')
    for s in range(3):
        a(f'ds_read_b128 v[{Q0+4*s}:{Q0+3+4*s}], v5 offset:{QBF + s*128}')
    a('s_waitcnt lgkmcnt(0)')
    a('v_readfirstlane_b32 s89, v8')
    a('s_cmp_lg_u32 s89, 0')
    a('s_cbranch_scc1 L_qwd')
    a('s_sleep 2')
    a('s_sub_u32 s92, s92, 1')
    a('s_cbranch_scc0 L_qw')
    a('s_endpgm')
    a('L_qwd:')
    stamp(2)
    abi = [0]
    def build_A(src):
        A = A0 + 4 * (abi[0] & 1); abi[0] += 1
        for r in range(4):
            a(f'v_and_b32 v{A+r}, {src}, v{M0+r}')
        return A
    def task_k(k):
        S = S0 + k
        if k == 8: a('s_waitcnt lgkmcnt(0)')
        first = True
        for s in range(3):
            r = slot[('k', k, s)]
            for i in range(4):
                c = '0' if first else f'v{S}'
                a(f'v_dot2_f32_bf16 v{S}, v{r+i}, v{Q0 + s*4 + i}, {c}')
                first = False
            release(('k', k, s))
        if k == 7:
            for s in range(3):
                a(f'ds_read_b128 v[{Q0+4*s}:{Q0+3+4*s}], v5 offset:{QBF + 512 + s*128}')
    def flush_acc(b):
        a('s_mov_b32 exec_lo, 0x00ff00ff')
        a('s_mov_b32 exec_hi, 0xff00ff00')
        for s in range(3):
            a(f'ds_write_b128 v{vOW}, v[{ACC+4*s}:{ACC+3+4*s}] offset:{b*OP1 + s*256}')
        if b == 0:
            a('s_mov_b64 exec, 1')
            a(f'ds_add_u32 v{VZ}, v{VZ} offset:{FL - 1}')
        a('s_mov_b64 exec, -1')
    def task_v(k, fine=False):
        A = build_A(f'v{S0+k}')
        if k == 8: a('s_waitcnt lgkmcnt(0)')
        for s in range(3):
            if fine: a.wait_tag(('v', k, s))
            r = slot[('v', k, s)]; acc = ACC + 4 * s
            c = '0' if k % 8 == 0 else f'v[{acc}:{acc+3}]'
            a(f'v_mfma_f32_16x16x32_bf16 v[{acc}:{acc+3}], v[{A}:{A+3}], v[{r}:{r+3}], {c}')
            release(('v', k, s))
    def task_red(b):
        for pat in RED8:
            for k in range(8 * b, 8 * b + 8):
                a(f'v_add_f32_dpp v{S0+k}, v{S0+k}, v{S0+k} {pat} {DPP}')
    t0, t1, t2 = T[0], T[1], T[2]
    def task_sm1(b):
        B = S0 + 8 * b
        a(f'v_max3_f32 v{t0}, v{B}, v{B+1}, v{B+2}')
        a(f'v_max3_f32 v{t0}, v{t0}, v{B+3}, v{B+4}')
        a(f'v_max3_f32 v{t0}, v{t0}, v{B+5}, v{B+6}')
        a(f'v_max_f32 v{t0}, v{t0}, v{B+7}')
        xlane('v_max_f32', t0, t1)
        a(f'v_mul_f32 v{vM}, s91, v{t0}')
        for k in range(8): a(f'v_fma_f32 v{B+k}, v{B+k}, s91, -v{vM}')
        for k in range(8): a(f'v_exp_f32 v{B+k}, v{B+k}')
        a('s_lshl_b32 s82, s3, 2')
        a(f'v_mov_b32 v{t0}, s82')
        a(f'ds_write_b32 v{t0}, v{vM} offset:{MW + 32*b}')
    def task_sm2(b):
        B = S0 + 8 * b
        u = 64
        a(f'v_add_f32 v{u}, v{B}, v{B+1}')
        for k in range(2, 8): a(f'v_add_f32 v{u}, v{u}, v{B+k}')
        for k in range(8):
            if 8 * b + k < kF: a(f'v_cvt_pk_bf16_f32 v{B+k}, v{B+k}, v{B+k}')
        xlane('v_add_f32', u, t1)
        a(f'v_writelane_b32 v{u}, 0, 40')
        a(f'v_mov_b32 v{u+1}, v{u}'); a(f'v_mov_b32 v{u+2}, v{u}'); a(f'v_mov_b32 v{u+3}, v{u}')
        a('s_mov_b32 exec_lo, 1')
        a('s_mov_b32 exec_hi, 0x100')
        a(f'ds_write_b128 v{vOW}, v[{u}:{u+3}] offset:{b*OP1 + 768}')
        a('s_mov_b64 exec, -1')
    def task_addr0():
        a(f'v_lshrrev_b32 v{t0}, 5, v1')
        a('s_lshl_b32 s82, s3, 1')
        a(f'v_add_u32 v{t0}, s82, v{t0}')
        a(f'v_lshlrev_b32 v{t1}, 5, v7')
        a(f'v_bfe_u32 v{t2}, v1, 4, 1')
        a(f'v_lshl_add_u32 v{t1}, v{t2}, 4, v{t1}')
        a(f'v_mul_u32_u24 v{vOW}, {OS}, v{t0}')
        a(f'v_add_u32 v{vOW}, v{vOW}, v{t1}')
        masks(M0, t0, t1)
    g, ob, x, y, z = 68, 69, 70, 71, 72
    vRA0 = 61
    def task_addr1():
        a(f'v_lshrrev_b32 v{g}, 4, v1')
        a(f'v_mov_b32 v{ob}, {OOB}')
        a('s_mul_i32 s82, s3, 6')
        a(f'v_add_u32 v{x}, s82, v6')
        a('v_cmp_gt_u32 vcc, 6, v6')
        a(f'v_cndmask_b32 v{x}, 48, v{x}, vcc')
        a(f'v_lshlrev_b32 v{x}, 4, v{x}')
        a(f'v_mul_u32_u24 v{vRA0}, {2*OS}, v7')
        a(f'v_add_u32 v{vRA0}, v{vRA0}, v{x}')
        a(f'v_add_u32 v{x}, {OP1}, v{vRA0}')
        a('v_cmp_eq_u32 s[80:81], 7, v6')
        a(f'v_cndmask_b32 v{vRA0}, v{vRA0}, v{x}, s[80:81]')
        a(f'v_add_u32 v{x}, s82, v7')
        a('v_cmp_gt_u32 vcc, 6, v7')
        a(f'v_cndmask_b32 v{x}, 48, v{x}, vcc')
        a(f'v_lshlrev_b32 v{x}, 4, v{x}')
        a(f'v_mul_u32_u24 v{vRA}, {2*OS}, v6')
        a(f'v_add_u32 v{vRA}, v{vRA}, v{x}')
        a('s_lshl_b32 s82, s3, 7')
        a(f'v_lshl_add_u32 v{x}, v6, 4, s82')
        a(f'v_mul_u32_u24 v{vYR}, 640, v7')
        a(f'v_add_u32 v{vYR}, v{vYR}, v{x}')
        a('v_cmp_eq_u32 vcc, 0, v7')
        a(f'v_cndmask_b32 v{vRG}, v{ob}, v{x}, vcc')
        a(f'v_lshlrev_b32 v{y}, 11, v6')
        a(f'v_add3_u32 v{vP1}, v{y}, v5, s82')
        a(f'v_lshl_add_u32 v{y}, v{g}, 5, s82')
        a(f'v_lshl_add_u32 v{y}, v7, 2, v{y}')
        a(f'v_and_b32 v{x}, 1, v6')
        a(f'v_lshlrev_b32 v{vAC}, 8, v{x}')
        a(f'v_lshl_add_u32 v{vP2}, v{x}, 11, v{y}')
        a(f'v_cmp_eq_u32 vcc, 0, v{x}')
        a(f'v_cndmask_b32 v{vRG1}, v{ob}, v{y}, vcc')
    def task_addr2():
        a('s_mul_i32 s82, s3, 24')
        a(f'v_lshl_add_u32 v{vAC}, v{g}, 3, v{vAC}')
        a(f'v_add_u32 v{vAC}, s82, v{vAC}')
        a(f'v_and_b32 v{x}, 15, v1')
        a(f'v_lshlrev_b32 v{x}, 5, v{x}')
        a(f'v_lshrrev_b32 v{y}, 5, v1')
        a(f'v_mul_u32_u24 v{y}, 320, v{y}')
        a(f'v_and_b32 v{z}, 1, v{g}')
        a(f'v_lshlrev_b32 v{z}, 4, v{z}')
        a(f'v_add3_u32 v{vYW}, v{x}, v{y}, v{z}')
        a('s_mul_i32 s82, s3, 640')
        a(f'v_add_u32 v{vYW}, s82, v{vYW}')
        a(f'v_lshlrev_b32 v{vMW}, 2, v7')
        a('v_mov_b32 v75, s78')
    R = 8
    def ostore(text, b):
        a('s_cmp_eq_u32 s89, 1')
        a(f's_cbranch_scc1 L_ofast{b}')
        a(text + ' sc1')
        a(f's_branch L_odone{b}')
        a(f'L_ofast{b}:')
        a.vmem(text)
        a(f'L_odone{b}:')
    def task_m1():
        WG = [62, 63]; MXR = [64, 65]
        a('L_m1:')
        a(f'ds_read_b32 v66, v{VZ} offset:{FL - 1}')
        a(f'ds_read_b32 v{WG[0]}, v{vMW} offset:{MW}')
        a(f'ds_read_b32 v{WG[1]}, v{vMW} offset:{MW+32}')
        a(f'ds_read_b128 v[{R}:{R+3}], v{vRA0}')
        a(f'ds_read_b128 v[{R+4}:{R+7}], v{vRA0} offset:{OS}')
        a(f'ds_read_b64 v[72:73], v{vAC} offset:{ACT}')
        a(f'ds_read_b32 v{G0}, v{VZ} offset:{GV - 1}')
        a(f'ds_read_b32 v{G1}, v{VZ} offset:{GV + 63}')
        a('s_waitcnt lgkmcnt(0)')
        a('v_readfirstlane_b32 s82, v66')
        a('s_cmp_eq_u32 s82, 9')
        a('s_cbranch_scc1 L_m1d')
        a('s_sleep 1')
        a('s_sub_u32 s92, s92, 1')
        a('s_cbranch_scc0 L_m1')
        a('s_endpgm')
        a('L_m1d:')
        for i, pat in enumerate(RED8):
            for b in range(2):
                src = WG[b] if i == 0 else MXR[b]
                a(f'v_max_f32_dpp v{MXR[b]}, v{src}, v{src} {pat} {DPP}')
            a(f'v_add_f32 v{R+i}, v{R+i}, v{R+4+i}')
        a(f'v_add_f32 v{R+3}, v{R+3}, v{R+7}')
        for b in range(2): a(f'v_and_b32 v{MXR[b]}, s77, v{MXR[b]}')
        for b in range(2): a(f'v_sub_f32 v{WG[b]}, v{WG[b]}, v{MXR[b]}')
        a(f'v_cndmask_b32 v{WG[0]}, v{WG[0]}, v{WG[1]}, s[80:81]')
        a(f'v_exp_f32 v{WG[0]}, v{WG[0]}')
        for i in range(4): a(f'v_mul_f32 v{R+i}, v{R+i}, v{WG[0]}')
        for pat in RED8:
            for i in range(4):
                a(f'v_add_f32_dpp v{R+i}, v{R+i}, v{R+i} {pat} {DPP}')
        a(f'v_cndmask_b32 v{R}, v{R}, v{MXR[0]}, s[80:81]')
        a(f'v_cndmask_b32 v{R+1}, v{R+1}, v{MXR[1]}, s[80:81]')
        tag_apply(range(R, R + 4), 75)
        ostore(f'buffer_store_dwordx4 v[{R}:{R+3}], v{vRG}, s[68:71], s100 offen', 0)
    PG = 12
    gat = f'buffer_load_dwordx4 v[{PG}:{PG+3}], v{vP1}, s[68:71], s93 offen sc1'
    def task_m2a():
        a.vmem(gat, 'gat')
    AP = []
    def task_m2b():
        a.wait_tag('gat')
        a('L_m2:')
        tag_check(range(PG, PG + 4), 62, 63)
        a('s_cbranch_vccz L_m2d')
        a(gat)
        a('s_waitcnt vmcnt(0)')
        a('s_sub_u32 s92, s92, 1')
        a('s_cbranch_scc0 L_m2')
        a('s_endpgm')
        a('L_m2d:')
        MQ, MX, M1, L1, TT = 62, 63, 64, 65, 66
        a(f'v_mov_b32_dpp v{MQ}, v{PG} row_newbcast:7 row_mask:0xf bank_mask:0x3')
        a(f'v_mov_b32 v{M1}, v{PG+1}')
        a(f'v_mov_b32_dpp v{MQ}, v{PG} row_newbcast:15 row_mask:0xf bank_mask:0xc')
        xlane('v_max_f32', M1, TT)
        a(f'v_mov_b32 v{MX}, v{MQ}')
        xlane('v_max_f32', MX, TT)
        a(f'v_sub_f32 v{L1}, v{PG+1}, v{M1}')
        a(f'v_sub_f32 v{MQ}, v{MQ}, v{MX}')
        a(f'v_exp_f32 v{L1}, v{L1}')
        a(f'v_exp_f32 v{MQ}, v{MQ}')
        a(f'v_mul_f32 v{L1}, v{L1}, v{PG+2}')
        for i in range(4): a(f'v_mul_f32 v{PG+i}, v{PG+i}, v{MQ}')
        xlane('v_add_f32', L1, TT)
        a(f'v_readlane_b32 s82, v{M1}, 7')
        a(f'v_rcp_f32 v{L1}, v{L1}')
        a(f'v_permlane16_swap_b32 v{PG}, v{PG+1}')
        a(f'v_permlane16_swap_b32 v{PG+2}, v{PG+3}')
        a(f'v_readlane_b32 s83, v{L1}, 7')
        a(f'v_add_f32 v{PG}, v{PG}, v{PG+1}')
        a(f'v_add_f32 v{PG+2}, v{PG+2}, v{PG+3}')
        a(f'v_subrev_f32 v{M1}, s82, v{vM}')
        a(f'v_permlane32_swap_b32 v{PG}, v{PG+2}')
        a(f'v_exp_f32 v{M1}, v{M1}')
        a(f'v_add_f32 v{PG}, v{PG}, v{PG+2}')
        a(f'v_mul_f32 v{G1}, s83, v{G1}')
        a(f'v_mul_f32 v{G1}, v{G1}, v{M1}')
        a(f'v_add_f32_dpp v{PG}, v{PG}, v{PG} row_ror:8 {DPP}')
        a(f'v_rcp_f32 v{MX}, v{PG}')
        a(f'v_mul_f32 v{PG}, v{PG}, v{G0}')
        for k in range(kF, 16): a(f'v_mul_f32 v{S0+k}, v{S0+k}, v{G1}')
        a(f'v_mul_f32_dpp v{PG}, v{MX}, v{PG} row_newbcast:6 {DPP}')
        for k in range(kF, 16): a(f'v_cvt_pk_bf16_f32 v{S0+k}, v{S0+k}, v{S0+k}')
        a(f'v_cvt_pk_bf16_f32 v{PG}, v{PG}, v{PG}')
        for i in range(12): a(f'v_mul_f32 v{ACC+i}, v{ACC+i}, v{G1}')
    def task_m2c():
        for p in range(6):
            AP.append(alloc(('ap', p)))
            for r in range(4):
                a(f'v_and_b32_dpp v{AP[p]+r}, v{PG}, v{M0+r} row_newbcast:{p} {DPP}')
    def run(issue_list, tasks, win, per_issue):
        for tag in issue_list:
            while not free:
                fn, needs = tasks.pop(0)
                for n in needs: a.wait_tag(n)
                fn()
            if win and not (xfree and tag[0] in ('wo', 'w2')): window()
            issue(tag)
            n = 0
            while tasks and n < per_issue and all(a.issued(q) and a.is_done(q) for q in tasks[0][1]):
                fn, needs = tasks.pop(0); fn(); n += 1
    kt = [((lambda k=k: task_k(k)), [('k', k, s) for s in range(3)]) for k in range(16)]
    vt = [((lambda k=k: task_v(k)), [('v', k, s) for s in range(3)]) for k in range(16)]
    N = lambda f: (f, [])
    tasks = kt[:11] + [N(task_addr0), N(lambda: task_red(0))] + kt[11:12] + [N(lambda: task_sm1(0))] + kt[12:13] + [N(lambda: task_sm2(0))] + kt[13:]
    tasks += [N(lambda: stamp(3))] if stamps else []
    tasks += vt[:1] + [N(lambda: task_red(1))] + vt[1:2] + [N(lambda: task_sm1(1))] + vt[2:3] + [N(lambda: task_sm2(1))] + vt[3:5]
    tasks += [N(task_addr1)] + vt[5:6] + [N(task_addr2)] + vt[6:8] + [N(lambda: flush_acc(0))]
    for k in range(8, 14):
        tasks.append(vt[k])
        if k == m1pos: tasks.append(N(task_m1))
        if k == m2a: tasks.append(N(task_m2a))
        if k == m2b: tasks += [(task_m2b, ['gat']), N(task_m2c)]
    wl = [('wo', rg) for rg in range(6)] + [('w2', i) for i in range(2)]
    run(kl[nb:], tasks, True, catchup)
    early = wl[nlate:][::-1]; latel = wl[:nlate]
    vseq = []
    for i, tag in enumerate(vl):
        vseq.append(tag)
        if i >= estart and (i - estart) % estep == 0 and early: vseq.append(early.pop())
    run(vseq, tasks, True, catchup)
    a('s_barrier')
    run(latel[:nl1], [], False, 0)
    while tasks:
        fn, needs = tasks.pop(0)
        for n in needs: a.wait_tag(n)
        fn()
    task_v(14, True)
    task_v(15, True)
    stamp(4)
    flush_acc(1)
    run(latel[nl1:], [], False, 0)
    a('s_waitcnt lgkmcnt(0)')
    a('s_barrier')
    a(f'ds_read_b128 v[{R}:{R+3}], v{vRA} offset:{OP1}')
    a(f'ds_read_b128 v[{R+4}:{R+7}], v{vRA} offset:{OP1+OS}')
    AW = [build_A('v72'), build_A('v73')]
    a('s_waitcnt lgkmcnt(0)')
    for i in range(4): a(f'v_add_f32 v{R+i}, v{R+i}, v{R+4+i}')
    a(f'v_permlane16_swap_b32 v{R}, v{R+1}')
    a(f'v_permlane16_swap_b32 v{R+2}, v{R+3}')
    a(f'v_add_f32 v{R}, v{R}, v{R+1}')
    a(f'v_add_f32 v{R+2}, v{R+2}, v{R+3}')
    a(f'v_permlane32_swap_b32 v{R}, v{R+2}')
    a(f'v_add_f32 v{R}, v{R}, v{R+2}')
    a(f'v_add_f32_dpp v{R}, v{R}, v{R} row_ror:8 {DPP}')
    tag_apply([R], 75)
    ostore(f'buffer_store_dword v{R}, v{vRG1}, s[68:71], s100 offen offset:1024', 1)
    O = 16; X = 66; X2 = 67; Y = 24
    def poll1():
        for u, so in enumerate(('s93', 's94', 's95', 's98')):
            a(f'buffer_load_dword v{O+u}, v{vP2}, s[68:71], {so} offen offset:1024 sc1')
    poll1()
    stamp(5)
    a('s_waitcnt vmcnt(5)')
    for i in range(2):
        r = slot[('w2', i)]
        a(f'v_mfma_f32_16x16x32_bf16 v[{Y}:{Y+3}], v[{AW[i]}:{AW[i]+3}], v[{r}:{r+3}], {"0" if i == 0 else f"v[{Y}:{Y+3}]"}')
    a('L_poll1:')
    a('s_waitcnt vmcnt(0)')
    tag_check(range(O, O + 4), X, X2)
    a(f'v_add_f32 v{O+4}, v{O}, v{O+1}')
    a(f'v_add_f32 v{O+5}, v{O+2}, v{O+3}')
    a('s_cbranch_vccz L_poll1d')
    if psleep: a(f's_sleep {psleep}')
    poll1()
    a('s_sub_u32 s92, s92, 1')
    a('s_cbranch_scc0 L_poll1')
    a('s_endpgm')
    a('L_poll1d:')
    stamp(6)
    a(f'v_add_f32 v{O}, v{O+4}, v{O+5}')
    a(f'v_add_f32_dpp v{O}, v{O}, v{O} row_ror:8 {DPP}')
    a(f'v_cvt_pk_bf16_f32 v{O}, v{O}, v{O}')
    for p in range(7):
        if p < 6:
            for r in range(4):
                a(f'v_and_b32_dpp v{AP[p]+r}, v{O}, v{M0+r} row_newbcast:{p} row_mask:0xf bank_mask:0xc')
        if p > 0:
            r0 = slot[('wo', p - 1)]; A = AP[p - 1]
            a(f'v_mfma_f32_16x16x32_bf16 v[{Y}:{Y+3}], v[{A}:{A+3}], v[{r0}:{r0+3}], v[{Y}:{Y+3}]')
    a('s_mov_b32 exec_lo, 0x03ff03ff')
    a('s_mov_b32 exec_hi, 0x03ff03ff')
    a('s_cmp_ge_u32 s3, 5')
    a(f'ds_write_b128 v{vYW}, v[{Y}:{Y+3}] offset:{YP}')
    a('s_mov_b64 exec, -1')
    a('s_waitcnt lgkmcnt(0)')
    a('s_barrier')
    a('s_cbranch_scc1 L_fin')
    R2 = 28
    a(f'ds_read_b128 v[{R2}:{R2+3}], v{vYR} offset:{YP}')
    a('s_waitcnt lgkmcnt(0)')
    for pat in RED8:
        for i in range(4):
            a(f'v_add_f32_dpp v{R2+i}, v{R2+i}, v{R2+i} {pat} {DPP}')
    tag_apply(range(R2, R2 + 4), 75)
    a(f'buffer_store_dwordx4 v[{R2}:{R2+3}], v{vRG}, s[68:71], s101 offen sc1')
    a('L_fin:')
    if stamps:
        stamp(7)
        a(f'v_writelane_b32 v{VST}, s96, 8')
        a('L_probe:')
        if probe is not None:
            i, K, base, j0, who = probe
            a('s_cmp_eq_u32 s3, 8')
            if who == 's': a('s_cbranch_scc1 L_end')
            if who == 'h': a('s_cbranch_scc0 L_end')
            a(f'v_readlane_b32 s82, v{VST}, 0')
            a(f'v_readlane_b32 s83, v{VST}, {i}')
            a(f'v_readlane_b32 s84, v{VST}, {j0}')
            a('s_sub_u32 s83, s83, s84')
            a(f's_mul_i32 s83, s83, {K}')
            a(f's_add_u32 s83, s83, {base}')
            a('L_spin:')
            a('s_sleep 2')
            a('s_memrealtime s[96:97]')
            a('s_waitcnt lgkmcnt(0)')
            a('s_sub_u32 s84, s96, s82')
            a('s_cmp_lt_u32 s84, s83')
            a('s_cbranch_scc1 L_spin')
        else:
            a('s_cmp_eq_u32 s3, 8')
            a('s_cbranch_scc1 L_nosl')
            a('s_sleep 127')
            a('s_sleep 127')
            a('L_nosl:')
            a('s_mul_i32 s82, s2, 9')
            a('s_add_u32 s82, s82, s3')
            a('s_lshl_b32 s82, s82, 8')
            a(f's_add_u32 s82, s82, {STAMP_OFF}')
            a('v_lshlrev_b32 v5, 2, v1')
            a(f'buffer_store_dword v{VST}, v5, s[68:71], s82 offen')
    a('L_end:')
    a('s_endpgm')

    a.vm = []; a.vm_done = 0
    a('L_helper:')
    a('v_mul_u32_u24 v3, 122880, v6')
    a('v_add_u32 v3, v3, v5')
    a('v_mul_u32_u24 v4, 30720, v6')
    a('v_add_u32 v4, v4, v5')
    a(f'v_mov_b32 v2, {OOB}')
    a('v_cmp_gt_u32 vcc, 6, v7')
    a('v_cndmask_b32 v4, v2, v4, vcc')
    a('v_mul_u32_u24 v8, 20, v6')
    a('v_lshlrev_b32 v9, 4, v1')
    a('v_mov_b32 v73, 0')
    if not eb:
        a(f'ds_write_b32 v73, v73 offset:{FLAG}')
        a(f'ds_write_b32 v73, v73 offset:{FL}')
        a(f'v_mov_b32 v10, {8*D}')
        a(f'ds_write_b32 v73, v10 offset:{CNT}')
    HM = 12; HA = 16; HACC = 24; HX = 56
    a('s_mul_i32 s83, s31, 983040')
    a('s_mul_i32 s84, s30, 384')
    a('s_add_u32 s83, s83, s84')
    a('s_mul_i32 s85, s31, 245760')
    a('s_mul_i32 s84, s30, 96')
    a('s_add_u32 s85, s85, s84')
    a('s_mul_i32 s98, s31, 160')
    for r in (43, 47, 59, 63, 67):
        a(f's_mov_b32 s{r}, 0x20000')
    a('s_sub_u32 s42, 7864320, s83')
    a('s_sub_u32 s46, 1966080, s85')
    a('s_sub_u32 s58, 2560, s98')
    a('s_sub_u32 s62, 1280, s98')
    a('s_mov_b32 s66, 96')
    a('s_waitcnt lgkmcnt(0)')
    srd(56, 4, 's98'); srd(40, 10, 's83'); srd(44, 16, 's85'); srd(60, 22, 's98'); srd(64, 18, 's84')
    a.vmem(f'buffer_load_dwordx4 v[{HX}:{HX+3}], v8, s[56:59], 0 offen')
    a.vmem(f'buffer_load_dword v{HX+4}, v8, s[56:59], 0 offen offset:16')
    a.vmem(f'buffer_load_dwordx4 v[{HX+6}:{HX+9}], v8, s[56:59], 0 offen offset:1280')
    a.vmem(f'buffer_load_dword v{HX+10}, v8, s[56:59], 0 offen offset:1296')
    hfree = list(range(76, top, 4))
    hslot = {}
    def hissue(tag):
        r = hfree.pop(0); hslot[tag] = r
        t = tag[0]
        if tag[1] == 0 and t:
            a(f's_mov_b32 s87, {t*12288}'); a(f's_mov_b32 s86, {t*3072}')
        if tag[1] < 3:
            a.vmem(f'buffer_load_dwordx4 v[{r}:{r+3}], v3, s[40:43], {"s87" if t else "0"} offen offset:{tag[1]*128} {w_cache}', tag)
        else:
            a.vmem(f'buffer_load_dwordx4 v[{r}:{r+3}], v4, s[44:47], {"s86" if t else "0"} offen {w_cache}', tag)
    hl = [(t, s) for t in range(10) for s in range(4)]
    nfirst = min(hwin, len(hfree)) // 4 * 4
    for tag in hl[:nfirst]: hissue(tag)
    hl = hl[nfirst:]
    a.vmem(f'buffer_load_dwordx4 v[{HX+12}:{HX+15}], v8, s[60:63], 0 offen')
    a.vmem(f'buffer_load_dword v{HX+16}, v8, s[60:63], 0 offen offset:16')
    a('v_and_b32 v10, 15, v1')
    a('v_lshlrev_b32 v10, 3, v10')
    a.vmem(f'buffer_load_dwordx2 v[74:75], v10, s[64:67], 0 offen', 'b1')
    if not eb: a('s_barrier')
    if hnear:
        a('s_branch L_helper2')
        a('@HEAD_END@')
        a('L_helper2:')
    a('s_mov_b32 s89, 0x01000100')
    a('s_mov_b32 s90, 0x03020302')
    masks(HM, 10, 11)
    ws_setup()
    if qpre:
        a(f's_add_u32 s82, s99, {FAST}')
        a.vmem(f'buffer_load_dword v{top}, v9, s[68:71], s82 offen')
        a.vmem(f'buffer_load_dword v{top}, v9, s[68:71], s82 offen offset:1024')
    stamp(1)
    hai = 0
    for t in range(10):
        a.wait_tag((t, 3))
        for bb in range(2):
            xr = HX + 6 * bb + t // 2
            a(f'v_perm_b32 v11, v{xr}, v{xr}, s{89 + (t & 1)}')
            A = HA + 4 * (hai & 1); hai += 1
            for r in range(4): a(f'v_and_b32 v{A+r}, v11, v{HM+r}')
            for s in range(4):
                r = hslot[(t, s)]; acc = HACC + 16 * bb + 4 * s
                c = '0' if t == 0 else f'v[{acc}:{acc+3}]'
                a(f'v_mfma_f32_16x16x32_bf16 v[{acc}:{acc+3}], v[{A}:{A+3}], v[{r}:{r+3}], {c}')
        for s in range(4): hfree.append(hslot[(t, s)])
        for tag in hl[:4]: hissue(tag)
        hl = hl[4:]
        if t == 6:
            a.wait_tag('b1')
            for bb, Gr in ((0, 61), (1, 67)):
                for i in range(5):
                    a(f'v_dot2_f32_bf16 v{Gr}, v{HX+6*bb+i}, v{HX+12+i}, {"0" if i == 0 else f"v{Gr}"}')
            xlane('v_add_f32', 61, 10)
            xlane('v_add_f32', 67, 10)
    stamp(2)
    a('v_lshrrev_b32 v16, 5, v1')
    a('v_lshlrev_b32 v16, 10, v16')
    a('v_and_b32 v11, 1, v6')
    a('v_lshl_add_u32 v16, v11, 8, v16')
    a('v_lshl_add_u32 v16, v7, 5, v16')
    a('v_bfe_u32 v11, v1, 4, 1')
    a('v_lshl_add_u32 v16, v11, 4, v16')
    for s in range(4):
        for r in range(4):
            a(f'v_permlane32_swap_b32 v{HACC+4*s+r}, v{HACC+16+4*s+r}')
    P = 76
    for u in range(2):
        for r in range(4):
            Ae, Be = HACC + 8 * u + r, HACC + 16 + 8 * u + r
            a(f'v_add_f32_dpp v{P+4*u+r}, v{Be}, v{Ae} row_ror:8 {DPP}')
        for r in range(4):
            Ao, Bo = HACC + 8 * u + 4 + r, HACC + 16 + 8 * u + 4 + r
            a(f'v_add_f32_dpp v{P+4*u+r}, v{Ao}, v{Bo} row_ror:8 row_mask:0xf bank_mask:0xc')
    a(f's_mov_b64 exec, {1 << 14}')
    a(f'v_mov_b32 v{P+4}, v61')
    a('s_mov_b32 exec_lo, 0')
    a(f's_mov_b32 exec_hi, {1 << 14}')
    a(f'v_mov_b32 v{P+4}, v67')
    a('s_mov_b64 exec, -1')
    a('s_getreg_b32 s88, hwreg(HW_REG_XCC_ID)')
    a('s_and_b32 s88, s88, 15')
    a('s_lshl_b32 s88, s88, 23')
    a(f'v_writelane_b32 v{P+5}, s88, 14')
    a('s_waitcnt lgkmcnt(0)')
    tag_finish()
    a('v_mov_b32 v11, s78')
    tag_apply(range(P, P + 8), 11)
    slow_q = [f'buffer_store_dwordx4 v[{P}:{P+3}], v16, s[68:71], s99 offen sc1',
              f'buffer_store_dwordx4 v[{P+4}:{P+7}], v16, s[68:71], s99 offen offset:512 sc1']
    a(f's_add_u32 s82, s99, {FAST}')
    a(f'buffer_store_dwordx4 v[{P}:{P+3}], v16, s[68:71], s82 offen')
    a(f'buffer_store_dwordx4 v[{P+4}:{P+7}], v16, s[68:71], s82 offen offset:512')
    stamp(3)
    a('v_add_u32 v12, 4096, v9')
    a('s_lshl_b32 s93, s30, 14')
    a(f's_add_u32 s93, s93, {FAST}')
    a('s_add_u32 s94, s93, 8192')
    a(f's_mov_b32 s76, {nfast}')
    a('v_lshlrev_b32 v17, 11, v6')
    a('v_and_b32 v18, 3, v1')
    a('v_lshl_add_u32 v17, v18, 4, v17')
    a('v_bfe_u32 v18, v1, 2, 1')
    a('v_lshl_add_u32 v17, v18, 9, v17')
    stamp(4)
    QD = [24, 84]
    a('L_qpoll:')
    if sind:
        a('s_add_u32 s40, s28, s93')
        a('s_addc_u32 s41, s29, 0')
        for p in range(8): a(f's_load_dword s{44+p}, s[40:41], {p*2048 + 1536} glc')
        a('s_waitcnt lgkmcnt(0)')
        for p in range(8): a(f's_xor_b32 s{44+p}, s{44+p}, s78')
        for p in range(1, 8): a(f's_or_b32 s44, s44, s{44+p}')
        a(f's_and_b32 s44, s44, {TM}')
        a('s_cbranch_scc1 L_qfail')
    else:
        a(f'buffer_load_dwordx4 v[24:27], v17, s[68:71], s93 offen sc1')
        a('s_waitcnt vmcnt(0)')
        tag_check(range(24, 28), 14, 15)
        a('s_cbranch_vccnz L_qfail')
    for b in range(2):
        for p in range(8):
            vo = 'v9' if (p & 3) < 2 else 'v12'
            so = 's93' if p < 4 else 's94'
            a(f'buffer_load_dwordx4 v[{QD[b]+4*p}:{QD[b]+4*p+3}], {vo}, s[68:71], {so} offen offset:{(p & 1)*2048 + b*1024} sc1')
    a('s_waitcnt vmcnt(0)')
    tag_check(list(range(QD[0], QD[0] + 32)) + list(range(QD[1], QD[1] + 32)), 14, 15)
    a('s_cbranch_vccz L_qok0')
    a('L_qfail:')
    if qsleep: a(f's_sleep {qsleep}')
    a('s_sub_u32 s76, s76, 1')
    a('s_cbranch_scc0 L_qnosw')
    for t in slow_q: a(t)
    a('L_qnosw:')
    a('s_cmp_lt_i32 s76, 0')
    a(f's_cselect_b32 s82, {FAST}, 0')
    for r in (93, 94): a(f's_xor_b32 s{r}, s{r}, s82')
    a('s_sub_u32 s92, s92, 1')
    a('s_cbranch_scc0 L_qpoll')
    a('s_endpgm')
    a('L_qok0:')
    for p in range(8): a(f'v_xor_b32 v{56+p}, s88, v{QD[0]+4*p+1}')
    a('v_or3_b32 v14, v56, v57, v58')
    a('v_or3_b32 v15, v59, v60, v61')
    a('v_or3_b32 v14, v14, v62, v63')
    a('v_or_b32 v14, v14, v15')
    a('v_readlane_b32 s86, v14, 60')
    a('s_cmp_lg_u32 s86, 0')
    a('s_cselect_b32 s86, 2, 1')
    a('s_cbranch_scc0 L_qok')
    a('s_cmp_lt_i32 s76, 0')
    a('s_cbranch_scc1 L_qok')
    for t in slow_q: a(t)
    a('L_qok:')
    a('v_lshlrev_b32 v10, 3, v1')
    for b in range(2):
        for st in (4, 8, 16):
            for b0 in range(QD[b], QD[b] + 32, 2 * st):
                for r in range(4): a(f'v_add_f32 v{b0+r}, v{b0+r}, v{b0+st+r}')
        a(f'v_cvt_pk_bf16_f32 v{QD[b]+4}, v{QD[b]}, v{QD[b]+1}')
        a(f'v_cvt_pk_bf16_f32 v{QD[b]+5}, v{QD[b]+2}, v{QD[b]+3}')
        a(f'ds_write_b64 v10, v[{QD[b]+4}:{QD[b]+5}] offset:{QBF + 512*b}')
    a('v_mov_b32 v10, s86')
    a(f'ds_write_b32 v73, v10 offset:{FLAG}')
    stamp(5)
    HD = QD[1]
    for r in range(4): a(f'v_permlane16_swap_b32 v{QD[0]+r}, v{HD+r}')
    Gq = 32; OMG = 33
    a(f'v_mov_b32_dpp v{Gq}, v{HD} row_newbcast:12 {DPP}')
    a(f'v_cvt_pk_bf16_f32 v{Gq}, v{Gq}, v{Gq}')
    a(f'v_and_b32 v{Gq}, 0xffff0000, v{Gq}')
    a(f'v_mul_f32 v{Gq}, {f2u(-LOG2E)}, v{Gq}')
    a(f'v_exp_f32 v{Gq}, v{Gq}')
    a(f'v_add_f32 v{Gq}, 1.0, v{Gq}')
    a(f'v_rcp_f32 v{Gq}, v{Gq}')
    a(f'v_cvt_pk_bf16_f32 v{Gq}, v{Gq}, v{Gq}')
    a(f'v_and_b32 v{Gq}, 0xffff0000, v{Gq}')
    a(f'v_sub_f32 v{OMG}, 1.0, v{Gq}')
    a(f'v_cvt_pk_bf16_f32 v{OMG}, v{OMG}, v{OMG}')
    a(f'v_and_b32 v{OMG}, 0xffff0000, v{OMG}')
    a(f's_mov_b32 s83, {f2u(-LOG2E)}')
    for pr in range(2):
        h0, h1 = HD + 2 * pr, HD + 2 * pr + 1
        a(f'v_cvt_pk_bf16_f32 v{h0}, v{h0}, v{h1}')
        a(f'v_and_b32 v{h1}, 0xffff0000, v{h0}')
        a(f'v_lshlrev_b32 v{h0}, 16, v{h0}')
        a(f'v_and_b32 v35, 0xffff0000, v{74+pr}')
        a(f'v_lshlrev_b32 v34, 16, v{74+pr}')
        a(f'v_add_f32 v{h0}, v{h0}, v34')
        a(f'v_add_f32 v{h1}, v{h1}, v35')
        a(f'v_cvt_pk_bf16_f32 v{h0}, v{h0}, v{h1}')
        a(f'v_and_b32 v{h1}, 0xffff0000, v{h0}')
        a(f'v_lshlrev_b32 v{h0}, 16, v{h0}')
    for i in range(4):
        h = HD + i; t = 36; tq = 37; nu = 38; de = 39
        a(f'v_mul_f32 v{t}, s83, abs(v{h})')
        a(f'v_exp_f32 v{t}, v{t}')
        a(f'v_cmp_lt_f32 vcc, 0, v{h}')
        a(f'v_mul_f32 v{tq}, v{t}, v{t}')
        a(f'v_cndmask_b32 v{nu}, v{tq}, 1.0, vcc')
        a(f'v_cndmask_b32 v{de}, 1.0, v{tq}, vcc')
        a(f'v_fma_f32 v{nu}, v{t}, 2.0, v{nu}')
        a(f'v_fma_f32 v{de}, v{de}, 2.0, v{nu}')
        a(f'v_rcp_f32 v{de}, v{de}')
        a(f'v_mul_f32 v{nu}, v{nu}, v{h}')
        a(f'v_mul_f32 v{nu}, v{nu}, v{de}')
        a(f'v_cvt_pk_bf16_f32 v{nu}, v{nu}, v{nu}')
        a(f'v_and_b32 v{nu}, 0xffff0000, v{nu}')
        a(f'v_mul_f32 v{nu}, v{nu}, v{OMG}')
        a(f'v_cvt_pk_bf16_f32 v{40+i}, v{nu}, v{nu}')
    a('v_and_b32 v10, 31, v1')
    a('v_lshlrev_b32 v11, 2, v10')
    a('v_lshlrev_b32 v10, 4, v10')
    a('s_mov_b32 exec_lo, 0')
    a(f'ds_write_b32 v11, v{Gq} offset:{GV}')
    a(f'ds_write_b128 v10, v[40:43] offset:{ACT}')
    a('s_mov_b64 exec, 1')
    a('v_mov_b32 v10, 1')
    a(f'ds_add_u32 v73, v10 offset:{FL}')
    a('s_mov_b64 exec, -1')
    a('s_waitcnt lgkmcnt(0)')
    stamp(6)
    if opre == 1:
        a(f'buffer_load_dword v{top}, v9, s[68:71], s100 offen')
        a(f'buffer_load_dword v{top}, v9, s[68:71], s100 offen offset:1024')
    if opre == 2: a('v_mov_b32 v20, v9')
    if ypre:
        a('s_mov_b32 exec_hi, 0xff')
        a('buffer_load_dwordx4 v[44:47], v9, s[68:71], s101 offen')
    if ctl:
        a('s_and_b32 s82, s2, 7')
        a('s_mul_i32 s82, s82, 4352')
        a(f's_add_u32 s82, s82, {MBOX}')
        a('s_lshr_b32 s83, s2, 3')
        a('s_lshl_b32 s83, s83, 2')
        a('s_add_u32 s83, s83, s82')
        a('s_and_b32 s84, s79, 0x3fffff')
        a('s_mov_b32 s85, 0')
        a('s_mov_b32 exec_hi, 0')
        a('L_c:')
        a(f'ds_read_b32 v10, v73 offset:{CNT}')
        a('s_waitcnt lgkmcnt(0)')
        a('v_subrev_u32 v10, s85, v10')
        a('v_lshl_or_b32 v12, v10, 22, s84')
        a('s_mov_b32 exec_lo, 1')
        a('buffer_store_dword v12, off, s[68:71], s83')
        a('s_mov_b32 exec_lo, -1')
        a('buffer_load_dword v9, v11, s[68:71], s82 offen sc1')
        a('v_readfirstlane_b32 s86, v10')
        a('s_waitcnt vmcnt(0)')
        a('v_and_b32 v12, 0x3fffff, v9')
        a('v_lshrrev_b32 v9, 22, v9')
        a(f'v_add_u32 v9, {comp}, v9')
        a('v_cmp_eq_u32 vcc, s84, v12')
        a('v_cndmask_b32 v9, v10, v9, vcc')
        for pat in RED8 + ('row_mirror',):
            a(f'v_add_u32_dpp v9, v9, v9 {pat} {DPP}')
        a('v_readlane_b32 s87, v9, 0')
        a('v_readlane_b32 s88, v9, 16')
        a('s_add_u32 s87, s87, s88')
        a('s_lshr_b32 s87, s87, 5')
        a('s_sub_i32 s87, s87, s86')
        a('s_sub_i32 s88, s87, s85')
        a('s_mov_b32 s85, s87')
        a('v_mov_b32 v9, s88')
        a('s_mov_b32 exec_lo, 1')
        a(f'ds_add_u32 v73, v9 offset:{CNT}')
        a('s_mov_b32 exec_lo, -1')
        a(f's_cmp_ge_u32 s86, {cend}')
        a('s_cbranch_scc1 L_cd')
        a('s_sub_u32 s92, s92, 1')
        a('s_cbranch_scc0 L_c')
        a('s_endpgm')
        a('L_cd:')
    a('s_mov_b64 exec, -1')
    if opre == 2:
        a(f'buffer_load_dword v{top}, v20, s[68:71], s100 offen')
        a(f'buffer_load_dword v{top}, v20, s[68:71], s100 offen offset:1024')
    a('s_cmp_ge_u32 s2, 160')
    a('s_cbranch_scc1 ' + ('L_end' if (probe is not None or not stamps) else 'L_hend'))
    a('s_lshr_b32 s82, s2, 5')
    a('s_lshl_b32 s82, s82, 3')
    a('s_and_b32 s83, s2, 7')
    a('s_add_u32 s82, s82, s83')
    a('s_lshl_b32 s82, s82, 2')
    a(f's_bfe_u32 s83, s2, {3 | (2 << 16)}')
    a('s_add_u32 s85, s82, s83')
    a('s_mul_i32 s82, s85, 205')
    a('s_lshr_b32 s82, s82, 12')
    a('s_mul_i32 s83, s82, 20')
    a('s_sub_u32 s83, s85, s83')
    a('s_mul_i32 s84, s82, 20480')
    a('s_lshl_b32 s81, s83, 5')
    a('s_add_u32 s84, s84, s81')
    a(f's_add_u32 s98, s84, {YOFF}')
    a('s_cmp_ge_u32 s83, 10')
    a('s_cselect_b32 s84, 1120, 0')
    a('s_lshl_b32 s81, s83, 4')
    a('s_add_u32 s84, s84, s81')
    a('s_mul_i32 s81, s82, 160')
    a('s_add_u32 s99, s84, s81')
    srd(72, 24, None); a('s_mov_b32 s74, 2560'); a('s_mov_b32 s75, 0x20000')
    vF, vOUT, F = 8, 9, 28
    a(f'v_lshrrev_b32 v{vF}, 1, v1')
    a(f'v_mul_u32_u24 v{vF}, 640, v{vF}')
    a('v_and_b32 v10, 1, v1')
    a(f'v_lshl_add_u32 v{vF}, v10, 4, v{vF}')
    a(f'v_lshlrev_b32 v{vOUT}, 3, v10')
    a('v_lshrrev_b32 v10, 4, v1')
    a(f'v_lshl_add_u32 v{vOUT}, v10, 1, v{vOUT}')
    a('v_mov_b32 v11, s79')
    a(f's_mov_b32 s82, {EOFF}')
    a('s_waitcnt lgkmcnt(0)')
    a('s_barrier')
    a('s_barrier')
    a('s_barrier')
    stamp(7)
    a('L_poll2:')
    a(f'buffer_load_dwordx4 v[{F}:{F+3}], v{vF}, s[68:71], s98 offen sc1')
    a('s_waitcnt vmcnt(0)')
    tag_check(range(F, F + 4), 14, 15)
    a('s_cbranch_vccz L_poll2d')
    if psleep2: a(f's_sleep {psleep2}')
    a('s_sub_u32 s92, s92, 1')
    a('s_cbranch_scc0 L_poll2')
    a('s_endpgm')
    a('L_poll2d:')
    a(f'v_permlane16_swap_b32 v{F}, v{F+1}')
    a(f'v_permlane16_swap_b32 v{F+2}, v{F+3}')
    a(f'v_add_f32 v{F}, v{F}, v{F+1}')
    a(f'v_add_f32 v{F+2}, v{F+2}, v{F+3}')
    a(f'v_permlane32_swap_b32 v{F}, v{F+2}')
    a(f'v_add_f32 v{F}, v{F}, v{F+2}')
    a(f'v_add_f32_dpp v{F}, v{F}, v{F} quad_perm:[2,3,0,1] {DPP}')
    a(f'v_add_f32_dpp v{F}, v{F}, v{F} row_ror:4 {DPP}')
    a(f'v_add_f32_dpp v{F}, v{F}, v{F} row_ror:8 {DPP}')
    a('s_mov_b32 exec_lo, 0x00030003')
    a('s_mov_b32 exec_hi, 0x00030003')
    a(f'v_cvt_pk_bf16_f32 v{F}, v{F}, v{F}')
    a(f'buffer_store_short v{F}, v{vOUT}, s[72:75], s99 offen')
    a('s_cmp_lg_u32 s2, 0')
    a('s_cbranch_scc1 L_hend')
    a('s_mov_b64 exec, 1')
    a('buffer_store_dword v11, off, s[68:71], s82')
    a('L_hend:')
    if stamps:
        a('s_mov_b64 exec, -1')
        stamp(8)
        a('s_branch L_probe')
    a('s_endpgm')

    a('L_codeend:')
    if hnear:
        L = a.lines
        i0 = L.index('L_helper:'); i1 = L.index('@HEAD_END@'); ih = L.index('@HELPER_HEAD@')
        head = L[i0:i1]
        a.lines = L[:ih] + head + L[ih+1:i0] + L[i1+1:]
    body = a.finalize()
    out = HEADER
    out += f'; @launch grid=(256,1,1) block=(576,1,1) lds={LDS_BYTES}\n'
    out += '.amdgcn_target "amdgcn-amd-amdhsa--gfx950"\n.text\n'
    out += f'.globl {KNAME}_kernel\n.p2align 8\n.type {KNAME}_kernel,@function\n'
    for l in body:
        out += (l if l.endswith(':') else '    ' + l) + '\n'
    out += f'''.section .rodata,"a"
.p2align 6
.amdhsa_kernel {KNAME}_kernel
  .amdhsa_next_free_vgpr {NV}
  .amdhsa_next_free_sgpr 102
  .amdhsa_accum_offset {NV}
  .amdhsa_group_segment_fixed_size 0
  .amdhsa_kernarg_size 104
  .amdhsa_user_sgpr_count 2
  .amdhsa_user_sgpr_kernarg_segment_ptr 1
  .amdhsa_system_sgpr_workgroup_id_x 1
  .amdhsa_float_denorm_mode_32 3
.end_amdhsa_kernel
'''
    return out

if __name__ == '__main__':
    kw = eval('dict(' + (sys.argv[2] if len(sys.argv) > 2 else '') + ')')
    open(sys.argv[1], 'w').write(gen(**kw))
```

```python
import sys, math, struct
from asmlib import Asm
KNAME = 'gated_mix__gqa_block_cached__dense_activation_mish__decode'
HEADER = open('cdna_kernels/' + KNAME + '.s.ref').read().split('; Override launch')[0]

def f2u(x): return struct.unpack('<I', struct.pack('<f', x))[0]
LOG2E = 1.4426950408889634
OOB = 0x80000000
OOFF = 512 * 1024
FAST = 1 << 20
YOFF = 1536 * 1024
EOFF = 1792 * 1024
MBOX = 1796 * 1024
GBOX = 1856 * 1024
STAMP_OFF = 2 << 20
WS_REC = 4 << 20
TM = 0x3ff
OS = 848
OP1 = 16 * OS
QBF = 32 * OS
ACT = QBF + 1024
GV = ACT + 512
FLAG = GV + 128
CNT = FLAG + 4
FL = FLAG + 8
MW = FLAG + 16
YP = MW + 64
LDS_BYTES = YP + 8 * 640 + 256
DPP = 'row_mask:0xf bank_mask:0xf'
RED8 = ('quad_perm:[1,0,3,2]', 'quad_perm:[2,3,0,1]', 'row_half_mirror')
NV = 168

def gen(D=3, nb=30, catchup=2, stamps=False, kv_cache='nt', w_cache='nt', wo_cache='', poll_cap=1 << 18, probe=None,
        hwin=16, nfast=48, psleep=0, psleep2=1, qsleep=4, levels=((-4, 3), (13, 2)), Dmax=4, comp=6, cstart=6, cend=712,
        nlate=8, ypre=True, gm=(2, 0), ctl=True, sind=False, qpre=False, opre=0, nl1=8, l2pos=0, xfree=False, estart=9, estep=4, m1pos=9, m2a=12, m2b=13, nsp=200, Dsp=5, spadd=0, D0pat=None, eb=False, cpre=0, hnear=False, ytr=False, pmask=False, gmimic=True, glob=False, gP0=240, gD=64, gend=660, gnum=1, gsh2=1, gclamp=24, rmul=76, GS=256, gint=False):
    a = Asm()
    VST = NV - 1
    VZ = NV - 2
    top = NV - 4
    def stamp(i):
        if stamps:
            a('s_memrealtime s[96:97]')
            a('s_waitcnt lgkmcnt(0)')
            a(f'v_writelane_b32 v{VST}, s96, {i}')
    def srd(r, p, off):
        if off is None:
            a(f's_mov_b32 s{r}, s{p}'); a(f's_mov_b32 s{r+1}, s{p+1}')
        else:
            a(f's_add_u32 s{r}, s{p}, {off}'); a(f's_addc_u32 s{r+1}, s{p+1}, 0')
    def xlane(op, v, tmp):
        a(f'{op}_dpp v{v}, v{v}, v{v} row_ror:8 {DPP}')
        a(f'v_mov_b32 v{tmp}, v{v}')
        a(f'v_permlane16_swap_b32 v{v}, v{tmp}')
        a(f'{op} v{v}, v{v}, v{tmp}')
        a(f'v_mov_b32 v{tmp}, v{v}')
        a(f'v_permlane32_swap_b32 v{v}, v{tmp}')
        a(f'{op} v{v}, v{v}, v{tmp}')
    def masks(M, t0, t1):
        a(f'v_and_b32 v{t0}, 1, v1')
        a(f'v_lshlrev_b32 v{t0}, 4, v{t0}')
        a(f'v_mov_b32 v{t1}, 0xffff')
        a(f'v_lshlrev_b32 v{t0}, v{t0}, v{t1}')
        a(f'v_bfe_u32 v{t1}, v1, 1, 2')
        for r in range(4):
            a(f'v_cmp_eq_u32 vcc, {r}, v{t1}')
            a(f'v_cndmask_b32 v{M+r}, 0, v{t0}, vcc')
    def ws_setup():
        srd(68, 28, None)
        a(f's_mov_b32 s70, {WS_REC}')
        a('s_mov_b32 s71, 0x20000')
        a('s_lshl_b32 s99, s30, 3')
        a('s_add_u32 s99, s99, s31')
        a('s_lshl_b32 s99, s99, 11')
        a(f's_add_u32 s100, s99, {OOFF}')
        a('s_lshl_b32 s101, s31, 5')
        a('s_add_u32 s101, s101, s30')
        a('s_mul_i32 s101, s101, 640')
        a(f's_add_u32 s101, s101, {YOFF}')
        a(f's_mov_b32 s92, {poll_cap}')
        a(f's_mov_b32 s76, {EOFF}')
        a('s_load_dword s79, s[28:29], s76')
        a(f's_mov_b32 s77, {0xffffffff ^ TM}')
    def tag_finish():
        a('s_add_u32 s79, s79, 1')
        a(f's_and_b32 s78, s79, {TM}')
    def tag_apply(regs, vt):
        for r in regs: a(f'v_and_or_b32 v{r}, v{r}, s77, v{vt}')
    def tag_check(regs, x0, x1):
        regs = list(regs)
        for r in regs: a(f'v_xor_b32 v{r}, s78, v{r}')
        if len(regs) == 4:
            a(f'v_or3_b32 v{x0}, v{regs[0]}, v{regs[1]}, v{regs[2]}')
            a(f'v_or_b32 v{x0}, v{x0}, v{regs[3]}')
        else:
            a(f'v_or3_b32 v{x0}, v{regs[0]}, v{regs[1]}, v{regs[2]}')
            a(f'v_or3_b32 v{x1}, v{regs[3]}, v{regs[4]}, v{regs[5]}')
            rr = regs[6:]; i = 0
            while len(rr) >= 2:
                d = (x0, x1)[i & 1]; i += 1
                a(f'v_or3_b32 v{d}, v{d}, v{rr[0]}, v{rr[1]}'); rr = rr[2:]
            assert not rr
            a(f'v_or_b32 v{x0}, v{x0}, v{x1}')
        a(f'v_and_b32 v{x0}, {TM}, v{x0}')
        a(f'v_cmp_ne_u32 vcc, 0, v{x0}')

    a(f'{KNAME}_kernel:')
    a('s_cmp_ge_u32 s2, 256')
    a('s_cbranch_scc1 L_end')
    a('s_load_dwordx16 s[4:19], s[0:1], 0')
    a('s_load_dwordx8 s[20:27], s[0:1], 64')
    a('s_load_dwordx2 s[28:29], s[0:1], 96')
    if stamps:
        a(f'v_mov_b32 v{VST}, 0')
        stamp(0)
    a('v_lshrrev_b32 v5, 6, v0')
    a('v_and_b32 v1, 63, v0')
    a('v_readfirstlane_b32 s3, v5')
    a('s_and_b32 s82, s2, 7')
    a('s_lshr_b32 s83, s2, 6')
    a('s_lshl_b32 s30, s82, 2')
    a('s_add_u32 s30, s30, s83')
    a(f's_bfe_u32 s31, s2, {3 | (3 << 16)}')
    a('v_lshrrev_b32 v6, 3, v1')
    a('v_and_b32 v7, 7, v1')
    a('v_lshlrev_b32 v5, 4, v7')
    if eb:
        a('v_mov_b32 v8, 0')
        a(f'v_mov_b32 v9, {8*D}')
        a('v_mov_b32 v10, 0')
        a(f'ds_write_b96 v8, v[8:10] offset:{FLAG}')
    a('s_cmp_eq_u32 s3, 8')
    if eb:
        a('s_cbranch_scc0 L_streamer')
        a('s_waitcnt lgkmcnt(0)')
        a('s_barrier')
        a('s_branch L_helper')
        a('L_streamer:')
    else:
        a('s_cbranch_scc1 L_helper')
    a('v_mul_u32_u24 v2, 384, v6')
    a('v_add_u32 v2, v2, v5')
    a(f's_mul_i32 s88, s30, {gm[0]}')
    if gm[1]:
        a(f's_mul_i32 s83, s82, {gm[1]}')
        a('s_add_u32 s88, s88, s83')
    a('s_and_b32 s88, s88, 7')
    a('s_lshl_b32 s82, s30, 6')
    a('s_add_u32 s82, s82, s31')
    a('s_lshl_b32 s82, s82, 3')
    a('s_add_u32 s82, s82, s3')
    a('s_mul_i32 s82, s82, 3072')
    a('s_sub_u32 s34, 100663296, s82')
    a('s_mov_b32 s35, 0x20000')
    a('s_mul_i32 s86, s88, 196608')
    a('s_waitcnt lgkmcnt(0)')
    srd(32, 6, 's82')
    S0 = 8; Q0 = 24; ACC = 24
    M0 = 36; A0 = 40
    vOW, vRA, vRG, vP1, vYW, vYR, vMW, vAC = range(48, 56)
    vRG1, vP2, G0, G1 = 56, 57, 58, 59
    kF = m2b + 1
    vM, vL = 60, 61
    T = list(range(62, 76))
    konly = list(range(36, 76, 4))
    free = konly + list(range(76, top, 4))
    slot = {}
    def alloc(tag):
        r = free.pop(0); slot[tag] = r; return r
    def release(tag):
        if slot[tag] not in konly: free.append(slot[tag])
    cur = {'kv': 0}
    nis = [0]; wcnt = [0]
    def window():
        n = nis[0]; wcnt[0] += 1
        def adj(d):
            if not xfree: return d - 1
            cnt = 0; k = 0
            for t in reversed(a.vm):
                if isinstance(t, tuple) and t[0] in ('k', 'v'):
                    if cnt == d - 1: break
                    cnt += 1
                k += 1
            return k
        if n >= nsp and not spadd:
            a.wait_out(adj(Dsp))
            return
        ex = spadd if n >= nsp else 0
        if ctl and n >= cstart:
            a.wait_out(adj(Dmax + ex))
            a('s_waitcnt lgkmcnt(0)')
            a('v_readfirstlane_b32 s90, v0')
            for (delta, d) in levels:
                a(f's_cmp_lt_i32 s90, {8*n - delta}')
                a(f's_cbranch_scc0 L_go{wcnt[0]}')
                a(f's_waitcnt vmcnt({adj(d + ex)})')
            a(f'L_go{wcnt[0]}:')
        else:
            a.wait_out((D0pat[n % len(D0pat)] if D0pat else D) - 1)
    def issue(tag):
        kind = tag[0]
        r = alloc(tag)
        if kind in ('k', 'v'):
            if cur['kv'] != tag[1]:
                k = tag[1]
                a(f's_add_u32 s85, s88, {k & 7}')
                a('s_and_b32 s85, s85, 7')
                a('s_mul_i32 s86, s85, 196608')
                if k >= 8: a('s_add_u32 s86, s86, 50331648')
                cur['kv'] = k
            s0 = 32 if kind == 'k' else 36
            a.vmem(f'buffer_load_dwordx4 v[{r}:{r+3}], v2, s[{s0}:{s0+3}], s86 offen offset:{tag[2]*128} {kv_cache}', tag)
            nis[0] += 1
            if ctl and nis[0] > D:
                a('s_mov_b64 exec, 1')
                a(f'ds_add_rtn_u32 v0, v{VZ}, v{VZ} offset:{CNT - 1}')
                a('s_mov_b64 exec, -1')
        elif kind == 'wo':
            rg = tag[1]
            if rg: a(f's_mov_b32 s87, {rg*5120}')
            a.vmem(f'buffer_load_dwordx4 v[{r}:{r+3}], v3, s[48:51], {"s87" if rg else "0"} offen {wo_cache}', tag)
        elif kind == 'w2':
            a.vmem(f'buffer_load_dwordx4 v[{r}:{r+3}], v4, s[52:55], 0 offen offset:{tag[1]*1280} {wo_cache}', tag)
    kl = [('k', k, s) for k in range(16) for s in range(3)]
    vl = [('v', k, s) for k in range(16) for s in range(3)]
    for tag in kl[:D]: issue(tag)
    if eb: a('s_barrier')
    if hnear:
        a('s_branch L_stream2')
        a('@HELPER_HEAD@')
        a('L_stream2:')
    srd(36, 8, 's82'); a('s_mov_b32 s38, s34'); a('s_mov_b32 s39, 0x20000')
    ws_setup()
    a(f's_mov_b32 s91, {f2u(LOG2E / math.sqrt(192.0))}')
    a('s_mul_i32 s82, s30, 192')
    a('s_mul_i32 s83, s3, 24')
    a('s_add_u32 s82, s82, s83')
    a('s_mul_i32 s82, s82, 1280')
    a('s_mul_i32 s83, s31, 160')
    a('s_add_u32 s82, s82, s83')
    srd(48, 12, 's82')
    a('s_sub_u32 s50, 7864320, s82')
    a('s_mov_b32 s51, 0x20000')
    a('s_lshl_b32 s82, s30, 3')
    a('s_add_u32 s82, s82, s3')
    a('s_mul_i32 s82, s82, 7680')
    a('s_add_u32 s82, s82, s83')
    srd(52, 20, 's82')
    a('s_sub_u32 s54, 1966080, s82')
    a('s_mov_b32 s55, 0x20000')
    a('s_lshl_b32 s93, s30, 14')
    a(f's_add_u32 s93, s93, {OOFF}')
    a('s_add_u32 s94, s93, 4096')
    a('s_add_u32 s95, s93, 8192')
    a('s_add_u32 s98, s93, 12288')
    a('v_lshrrev_b32 v8, 4, v1')
    a('v_and_b32 v9, 15, v1')
    a(f'v_mov_b32 v10, {OOB}')
    a('v_mul_u32_u24 v3, 1280, v8')
    a('v_lshl_add_u32 v3, v9, 4, v3')
    a('v_mul_u32_u24 v4, 2560, v8')
    a('v_lshl_add_u32 v4, v9, 4, v4')
    a('v_cmp_gt_u32 vcc, 3, v8')
    a('v_cndmask_b32 v4, v10, v4, vcc')
    a('v_cmp_gt_u32 vcc, 10, v9')
    a('v_cndmask_b32 v3, v10, v3, vcc')
    a('v_cndmask_b32 v4, v10, v4, vcc')
    a('v_mov_b32 v9, 0')
    a(f'v_mov_b32 v{VZ}, 1')
    if cpre == 1:
        a('s_cmp_lg_u32 s3, 7')
        a('s_cbranch_scc1 L_nocp')
        a('s_getpc_b64 s[40:41]')
        a('L_pc:')
        a(f's_sub_u32 s40, s40, L_pc-{KNAME}_kernel')
        a('s_subb_u32 s41, s41, 0')
        a('s_lshr_b32 s82, s2, 3')
        a('s_mul_i32 s82, s82, 640')
        a('v_lshl_add_u32 v10, v1, 7, s82')
        a(f'v_min_u32 v10, L_codeend-{KNAME}_kernel-4, v10')
        a('s_mov_b64 exec, 31')
        a(f'global_load_dword v{NV-3}, v10, s[40:41]')
        a('s_mov_b64 exec, -1')
        a('L_nocp:')
    if not eb: a('s_barrier')
    for tag in kl[D:nb]:
        window(); issue(tag)
    a('s_waitcnt lgkmcnt(0)')
    tag_finish()
    stamp(1)
    a('L_qw:')
    a(f'ds_read_b32 v8, v9 offset:{FLAG}')
    for s in range(3):
        a(f'ds_read_b128 v[{Q0+4*s}:{Q0+3+4*s}], v5 offset:{QBF + s*128}')
    a('s_waitcnt lgkmcnt(0)')
    a('v_readfirstlane_b32 s89, v8')
    a('s_cmp_lg_u32 s89, 0')
    a('s_cbranch_scc1 L_qwd')
    a('s_sleep 2')
    a('s_sub_u32 s92, s92, 1')
    a('s_cbranch_scc0 L_qw')
    a('s_endpgm')
    a('L_qwd:')
    stamp(2)
    abi = [0]
    def build_A(src):
        A = A0 + 4 * (abi[0] & 1); abi[0] += 1
        for r in range(4):
            a(f'v_and_b32 v{A+r}, {src}, v{M0+r}')
        return A
    def task_k(k):
        S = S0 + k
        if k == 8: a('s_waitcnt lgkmcnt(0)')
        first = True
        for s in range(3):
            r = slot[('k', k, s)]
            for i in range(4):
                c = '0' if first else f'v{S}'
                a(f'v_dot2_f32_bf16 v{S}, v{r+i}, v{Q0 + s*4 + i}, {c}')
                first = False
            release(('k', k, s))
        if k == 7:
            for s in range(3):
                a(f'ds_read_b128 v[{Q0+4*s}:{Q0+3+4*s}], v5 offset:{QBF + 512 + s*128}')
    def flush_acc(b):
        a('s_mov_b32 exec_lo, 0x00ff00ff')
        a('s_mov_b32 exec_hi, 0xff00ff00')
        for s in range(3):
            a(f'ds_write_b128 v{vOW}, v[{ACC+4*s}:{ACC+3+4*s}] offset:{b*OP1 + s*256}')
        if b == 0:
            a('s_mov_b64 exec, 1')
            a(f'ds_add_u32 v{VZ}, v{VZ} offset:{FL - 1}')
        a('s_mov_b64 exec, -1')
    def task_v(k, fine=False):
        A = build_A(f'v{S0+k}')
        if k == 8: a('s_waitcnt lgkmcnt(0)')
        for s in range(3):
            if fine: a.wait_tag(('v', k, s))
            r = slot[('v', k, s)]; acc = ACC + 4 * s
            c = '0' if k % 8 == 0 else f'v[{acc}:{acc+3}]'
            a(f'v_mfma_f32_16x16x32_bf16 v[{acc}:{acc+3}], v[{A}:{A+3}], v[{r}:{r+3}], {c}')
            release(('v', k, s))
    def task_red(b):
        for pat in RED8:
            for k in range(8 * b, 8 * b + 8):
                a(f'v_add_f32_dpp v{S0+k}, v{S0+k}, v{S0+k} {pat} {DPP}')
    t0, t1, t2 = T[0], T[1], T[2]
    def task_sm1(b):
        B = S0 + 8 * b
        a(f'v_max3_f32 v{t0}, v{B}, v{B+1}, v{B+2}')
        a(f'v_max3_f32 v{t0}, v{t0}, v{B+3}, v{B+4}')
        a(f'v_max3_f32 v{t0}, v{t0}, v{B+5}, v{B+6}')
        a(f'v_max_f32 v{t0}, v{t0}, v{B+7}')
        xlane('v_max_f32', t0, t1)
        a(f'v_mul_f32 v{vM}, s91, v{t0}')
        for k in range(8): a(f'v_fma_f32 v{B+k}, v{B+k}, s91, -v{vM}')
        for k in range(8): a(f'v_exp_f32 v{B+k}, v{B+k}')
        a('s_lshl_b32 s82, s3, 2')
        a(f'v_mov_b32 v{t0}, s82')
        a(f'ds_write_b32 v{t0}, v{vM} offset:{MW + 32*b}')
    def task_sm2(b):
        B = S0 + 8 * b
        u = 64
        a(f'v_add_f32 v{u}, v{B}, v{B+1}')
        for k in range(2, 8): a(f'v_add_f32 v{u}, v{u}, v{B+k}')
        for k in range(8):
            if 8 * b + k < kF: a(f'v_cvt_pk_bf16_f32 v{B+k}, v{B+k}, v{B+k}')
        xlane('v_add_f32', u, t1)
        a(f'v_writelane_b32 v{u}, 0, 40')
        a(f'v_mov_b32 v{u+1}, v{u}'); a(f'v_mov_b32 v{u+2}, v{u}'); a(f'v_mov_b32 v{u+3}, v{u}')
        a('s_mov_b32 exec_lo, 1')
        a('s_mov_b32 exec_hi, 0x100')
        a(f'ds_write_b128 v{vOW}, v[{u}:{u+3}] offset:{b*OP1 + 768}')
        a('s_mov_b64 exec, -1')
    def task_addr0():
        a(f'v_lshrrev_b32 v{t0}, 5, v1')
        a('s_lshl_b32 s82, s3, 1')
        a(f'v_add_u32 v{t0}, s82, v{t0}')
        a(f'v_lshlrev_b32 v{t1}, 5, v7')
        a(f'v_bfe_u32 v{t2}, v1, 4, 1')
        a(f'v_lshl_add_u32 v{t1}, v{t2}, 4, v{t1}')
        a(f'v_mul_u32_u24 v{vOW}, {OS}, v{t0}')
        a(f'v_add_u32 v{vOW}, v{vOW}, v{t1}')
        masks(M0, t0, t1)
    g, ob, x, y, z = 68, 69, 70, 71, 72
    vRA0 = 61
    def task_addr1():
        a(f'v_lshrrev_b32 v{g}, 4, v1')
        a(f'v_mov_b32 v{ob}, {OOB}')
        a('s_mul_i32 s82, s3, 6')
        a(f'v_add_u32 v{x}, s82, v6')
        a('v_cmp_gt_u32 vcc, 6, v6')
        a(f'v_cndmask_b32 v{x}, 48, v{x}, vcc')
        a(f'v_lshlrev_b32 v{x}, 4, v{x}')
        a(f'v_mul_u32_u24 v{vRA0}, {2*OS}, v7')
        a(f'v_add_u32 v{vRA0}, v{vRA0}, v{x}')
        a(f'v_add_u32 v{x}, {OP1}, v{vRA0}')
        a('v_cmp_eq_u32 s[80:81], 7, v6')
        a(f'v_cndmask_b32 v{vRA0}, v{vRA0}, v{x}, s[80:81]')
        a(f'v_add_u32 v{x}, s82, v7')
        a('v_cmp_gt_u32 vcc, 6, v7')
        a(f'v_cndmask_b32 v{x}, 48, v{x}, vcc')
        a(f'v_lshlrev_b32 v{x}, 4, v{x}')
        a(f'v_mul_u32_u24 v{vRA}, {2*OS}, v6')
        a(f'v_add_u32 v{vRA}, v{vRA}, v{x}')
        a('s_lshl_b32 s82, s3, 7')
        a(f'v_lshl_add_u32 v{x}, v6, 4, s82')
        if ytr:
            a(f'v_mul_u32_u24 v{vYR}, 640, v6')
            a(f'v_add3_u32 v{vYR}, v{vYR}, v5, s82')
        else:
            a(f'v_mul_u32_u24 v{vYR}, 640, v7')
            a(f'v_add_u32 v{vYR}, v{vYR}, v{x}')
        a('v_cmp_eq_u32 vcc, 0, v7')
        a(f'v_cndmask_b32 v{vRG}, v{ob}, v{x}, vcc')
        a(f'v_lshlrev_b32 v{y}, 11, v6')
        a(f'v_add3_u32 v{vP1}, v{y}, v5, s82')
        a(f'v_lshl_add_u32 v{y}, v{g}, 5, s82')
        a(f'v_lshl_add_u32 v{y}, v7, 2, v{y}')
        a(f'v_and_b32 v{x}, 1, v6')
        a(f'v_lshlrev_b32 v{vAC}, 8, v{x}')
        a(f'v_lshl_add_u32 v{vP2}, v{x}, 11, v{y}')
        a(f'v_cmp_eq_u32 vcc, 0, v{x}')
        a(f'v_cndmask_b32 v{vRG1}, v{ob}, v{y}, vcc')
    def task_addr2():
        a('s_mul_i32 s82, s3, 24')
        a(f'v_lshl_add_u32 v{vAC}, v{g}, 3, v{vAC}')
        a(f'v_add_u32 v{vAC}, s82, v{vAC}')
        a(f'v_and_b32 v{x}, 15, v1')
        a(f'v_lshlrev_b32 v{x}, 5, v{x}')
        a(f'v_lshrrev_b32 v{y}, 5, v1')
        a(f'v_mul_u32_u24 v{y}, 320, v{y}')
        a(f'v_and_b32 v{z}, 1, v{g}')
        a(f'v_lshlrev_b32 v{z}, 4, v{z}')
        a(f'v_add3_u32 v{vYW}, v{x}, v{y}, v{z}')
        a('s_mul_i32 s82, s3, 640')
        a(f'v_add_u32 v{vYW}, s82, v{vYW}')
        a(f'v_lshlrev_b32 v{vMW}, 2, v7')
        a('v_mov_b32 v75, s78')
    R = 8
    def ostore(text, b):
        a('s_cmp_eq_u32 s89, 1')
        a(f's_cbranch_scc1 L_ofast{b}')
        a(text + ' sc1')
        a(f's_branch L_odone{b}')
        a(f'L_ofast{b}:')
        a.vmem(text)
        a(f'L_odone{b}:')
    def task_m1():
        WG = [62, 63]; MXR = [64, 65]
        a('L_m1:')
        a(f'ds_read_b32 v66, v{VZ} offset:{FL - 1}')
        a(f'ds_read_b32 v{WG[0]}, v{vMW} offset:{MW}')
        a(f'ds_read_b32 v{WG[1]}, v{vMW} offset:{MW+32}')
        a(f'ds_read_b128 v[{R}:{R+3}], v{vRA0}')
        a(f'ds_read_b128 v[{R+4}:{R+7}], v{vRA0} offset:{OS}')
        a(f'ds_read_b64 v[72:73], v{vAC} offset:{ACT}')
        a(f'ds_read_b32 v{G0}, v{VZ} offset:{GV - 1}')
        a(f'ds_read_b32 v{G1}, v{VZ} offset:{GV + 63}')
        a('s_waitcnt lgkmcnt(0)')
        a('v_readfirstlane_b32 s82, v66')
        a('s_cmp_eq_u32 s82, 9')
        a('s_cbranch_scc1 L_m1d')
        a('s_sleep 1')
        a('s_sub_u32 s92, s92, 1')
        a('s_cbranch_scc0 L_m1')
        a('s_endpgm')
        a('L_m1d:')
        for i, pat in enumerate(RED8):
            for b in range(2):
                src = WG[b] if i == 0 else MXR[b]
                a(f'v_max_f32_dpp v{MXR[b]}, v{src}, v{src} {pat} {DPP}')
            a(f'v_add_f32 v{R+i}, v{R+i}, v{R+4+i}')
        a(f'v_add_f32 v{R+3}, v{R+3}, v{R+7}')
        for b in range(2): a(f'v_and_b32 v{MXR[b]}, s77, v{MXR[b]}')
        for b in range(2): a(f'v_sub_f32 v{WG[b]}, v{WG[b]}, v{MXR[b]}')
        a(f'v_cndmask_b32 v{WG[0]}, v{WG[0]}, v{WG[1]}, s[80:81]')
        a(f'v_exp_f32 v{WG[0]}, v{WG[0]}')
        for i in range(4): a(f'v_mul_f32 v{R+i}, v{R+i}, v{WG[0]}')
        for pat in RED8:
            for i in range(4):
                a(f'v_add_f32_dpp v{R+i}, v{R+i}, v{R+i} {pat} {DPP}')
        a(f'v_cndmask_b32 v{R}, v{R}, v{MXR[0]}, s[80:81]')
        a(f'v_cndmask_b32 v{R+1}, v{R+1}, v{MXR[1]}, s[80:81]')
        tag_apply(range(R, R + 4), 75)
        ostore(f'buffer_store_dwordx4 v[{R}:{R+3}], v{vRG}, s[68:71], s100 offen', 0)
    PG = 12
    gat = f'buffer_load_dwordx4 v[{PG}:{PG+3}], v{vP1}, s[68:71], s93 offen sc1'
    def task_m2a():
        a.vmem(gat, 'gat')
    AP = []
    def task_m2b():
        a.wait_tag('gat')
        a('L_m2:')
        tag_check(range(PG, PG + 4), 62, 63)
        a('s_cbranch_vccz L_m2d')
        a(gat)
        a('s_waitcnt vmcnt(0)')
        a('s_sub_u32 s92, s92, 1')
        a('s_cbranch_scc0 L_m2')
        a('s_endpgm')
        a('L_m2d:')
        MQ, MX, M1, L1, TT = 62, 63, 64, 65, 66
        a(f'v_mov_b32_dpp v{MQ}, v{PG} row_newbcast:7 row_mask:0xf bank_mask:0x3')
        a(f'v_mov_b32 v{M1}, v{PG+1}')
        a(f'v_mov_b32_dpp v{MQ}, v{PG} row_newbcast:15 row_mask:0xf bank_mask:0xc')
        xlane('v_max_f32', M1, TT)
        a(f'v_mov_b32 v{MX}, v{MQ}')
        xlane('v_max_f32', MX, TT)
        a(f'v_sub_f32 v{L1}, v{PG+1}, v{M1}')
        a(f'v_sub_f32 v{MQ}, v{MQ}, v{MX}')
        a(f'v_exp_f32 v{L1}, v{L1}')
        a(f'v_exp_f32 v{MQ}, v{MQ}')
        a(f'v_mul_f32 v{L1}, v{L1}, v{PG+2}')
        for i in range(4): a(f'v_mul_f32 v{PG+i}, v{PG+i}, v{MQ}')
        xlane('v_add_f32', L1, TT)
        a(f'v_readlane_b32 s82, v{M1}, 7')
        a(f'v_rcp_f32 v{L1}, v{L1}')
        a(f'v_permlane16_swap_b32 v{PG}, v{PG+1}')
        a(f'v_permlane16_swap_b32 v{PG+2}, v{PG+3}')
        a(f'v_readlane_b32 s83, v{L1}, 7')
        a(f'v_add_f32 v{PG}, v{PG}, v{PG+1}')
        a(f'v_add_f32 v{PG+2}, v{PG+2}, v{PG+3}')
        a(f'v_subrev_f32 v{M1}, s82, v{vM}')
        a(f'v_permlane32_swap_b32 v{PG}, v{PG+2}')
        a(f'v_exp_f32 v{M1}, v{M1}')
        a(f'v_add_f32 v{PG}, v{PG}, v{PG+2}')
        a(f'v_mul_f32 v{G1}, s83, v{G1}')
        a(f'v_mul_f32 v{G1}, v{G1}, v{M1}')
        a(f'v_add_f32_dpp v{PG}, v{PG}, v{PG} row_ror:8 {DPP}')
        a(f'v_rcp_f32 v{MX}, v{PG}')
        a(f'v_mul_f32 v{PG}, v{PG}, v{G0}')
        for k in range(kF, 16): a(f'v_mul_f32 v{S0+k}, v{S0+k}, v{G1}')
        a(f'v_mul_f32_dpp v{PG}, v{MX}, v{PG} row_newbcast:6 {DPP}')
        for k in range(kF, 16): a(f'v_cvt_pk_bf16_f32 v{S0+k}, v{S0+k}, v{S0+k}')
        a(f'v_cvt_pk_bf16_f32 v{PG}, v{PG}, v{PG}')
        for i in range(12): a(f'v_mul_f32 v{ACC+i}, v{ACC+i}, v{G1}')
    def task_m2c():
        for p in range(6):
            AP.append(alloc(('ap', p)))
            for r in range(4):
                a(f'v_and_b32_dpp v{AP[p]+r}, v{PG}, v{M0+r} row_newbcast:{p} {DPP}')
    def run(issue_list, tasks, win, per_issue):
        for tag in issue_list:
            while not free:
                fn, needs = tasks.pop(0)
                for n in needs: a.wait_tag(n)
                fn()
            if win and not (xfree and tag[0] in ('wo', 'w2')): window()
            issue(tag)
            n = 0
            while tasks and n < per_issue and all(a.issued(q) and a.is_done(q) for q in tasks[0][1]):
                fn, needs = tasks.pop(0); fn(); n += 1
    kt = [((lambda k=k: task_k(k)), [('k', k, s) for s in range(3)]) for k in range(16)]
    vt = [((lambda k=k: task_v(k)), [('v', k, s) for s in range(3)]) for k in range(16)]
    N = lambda f: (f, [])
    tasks = kt[:11] + [N(task_addr0), N(lambda: task_red(0))] + kt[11:12] + [N(lambda: task_sm1(0))] + kt[12:13] + [N(lambda: task_sm2(0))] + kt[13:]
    tasks += [N(lambda: stamp(3))] if stamps else []
    tasks += vt[:1] + [N(lambda: task_red(1))] + vt[1:2] + [N(lambda: task_sm1(1))] + vt[2:3] + [N(lambda: task_sm2(1))] + vt[3:5]
    tasks += [N(task_addr1)] + vt[5:6] + [N(task_addr2)] + vt[6:8] + [N(lambda: flush_acc(0))]
    for k in range(8, 14):
        tasks.append(vt[k])
        if k == m1pos: tasks.append(N(task_m1))
        if k == m2a: tasks.append(N(task_m2a))
        if k == m2b: tasks += [(task_m2b, ['gat']), N(task_m2c)]
    wl = [('wo', rg) for rg in range(6)] + [('w2', i) for i in range(2)]
    run(kl[nb:], tasks, True, catchup)
    early = wl[nlate:][::-1]; latel = wl[:nlate]
    vseq = []
    for i, tag in enumerate(vl):
        vseq.append(tag)
        if i >= estart and (i - estart) % estep == 0 and early: vseq.append(early.pop())
    run(vseq, tasks, True, catchup)
    a('s_barrier')
    run(latel[:nl1], [], False, 0)
    while tasks:
        fn, needs = tasks.pop(0)
        for n in needs: a.wait_tag(n)
        fn()
    task_v(14, True)
    task_v(15, True)
    stamp(4)
    flush_acc(1)
    run(latel[nl1:], [], False, 0)
    a('s_waitcnt lgkmcnt(0)')
    a('s_barrier')
    a(f'ds_read_b128 v[{R}:{R+3}], v{vRA} offset:{OP1}')
    a(f'ds_read_b128 v[{R+4}:{R+7}], v{vRA} offset:{OP1+OS}')
    AW = [build_A('v72'), build_A('v73')]
    a('s_waitcnt lgkmcnt(0)')
    for i in range(4): a(f'v_add_f32 v{R+i}, v{R+i}, v{R+4+i}')
    a(f'v_permlane16_swap_b32 v{R}, v{R+1}')
    a(f'v_permlane16_swap_b32 v{R+2}, v{R+3}')
    a(f'v_add_f32 v{R}, v{R}, v{R+1}')
    a(f'v_add_f32 v{R+2}, v{R+2}, v{R+3}')
    a(f'v_permlane32_swap_b32 v{R}, v{R+2}')
    a(f'v_add_f32 v{R}, v{R}, v{R+2}')
    a(f'v_add_f32_dpp v{R}, v{R}, v{R} row_ror:8 {DPP}')
    tag_apply([R], 75)
    ostore(f'buffer_store_dword v{R}, v{vRG1}, s[68:71], s100 offen offset:1024', 1)
    O = 16; X = 66; X2 = 67; Y = 24
    def poll1():
        for u, so in enumerate(('s93', 's94', 's95', 's98')):
            a(f'buffer_load_dword v{O+u}, v{vP2}, s[68:71], {so} offen offset:1024 sc1')
    poll1()
    stamp(5)
    a('s_waitcnt vmcnt(5)')
    for i in range(2):
        r = slot[('w2', i)]
        a(f'v_mfma_f32_16x16x32_bf16 v[{Y}:{Y+3}], v[{AW[i]}:{AW[i]+3}], v[{r}:{r+3}], {"0" if i == 0 else f"v[{Y}:{Y+3}]"}')
    a('L_poll1:')
    a('s_waitcnt vmcnt(0)')
    tag_check(range(O, O + 4), X, X2)
    a(f'v_add_f32 v{O+4}, v{O}, v{O+1}')
    a(f'v_add_f32 v{O+5}, v{O+2}, v{O+3}')
    a('s_cbranch_vccz L_poll1d')
    if psleep: a(f's_sleep {psleep}')
    poll1()
    a('s_sub_u32 s92, s92, 1')
    a('s_cbranch_scc0 L_poll1')
    a('s_endpgm')
    a('L_poll1d:')
    stamp(6)
    a(f'v_add_f32 v{O}, v{O+4}, v{O+5}')
    a(f'v_add_f32_dpp v{O}, v{O}, v{O} row_ror:8 {DPP}')
    a(f'v_cvt_pk_bf16_f32 v{O}, v{O}, v{O}')
    for p in range(7):
        if p < 6:
            for r in range(4):
                a(f'v_and_b32_dpp v{AP[p]+r}, v{O}, v{M0+r} row_newbcast:{p} row_mask:0xf bank_mask:0xc')
        if p > 0:
            r0 = slot[('wo', p - 1)]; A = AP[p - 1]
            a(f'v_mfma_f32_16x16x32_bf16 v[{Y}:{Y+3}], v[{A}:{A+3}], v[{r0}:{r0+3}], v[{Y}:{Y+3}]')
    a('s_mov_b32 exec_lo, 0x03ff03ff')
    a('s_mov_b32 exec_hi, 0x03ff03ff')
    a('s_cmp_ge_u32 s3, 5')
    a(f'ds_write_b128 v{vYW}, v[{Y}:{Y+3}] offset:{YP}')
    a('s_mov_b64 exec, -1')
    a('s_waitcnt lgkmcnt(0)')
    a('s_barrier')
    a('s_cbranch_scc1 L_fin')
    R2 = 28
    a(f'ds_read_b128 v[{R2}:{R2+3}], v{vYR} offset:{YP}')
    a('s_waitcnt lgkmcnt(0)')
    if ytr:
        a(f'v_permlane16_swap_b32 v{R2}, v{R2+1}')
        a(f'v_permlane16_swap_b32 v{R2+2}, v{R2+3}')
        a(f'v_add_f32 v{R2}, v{R2}, v{R2+1}')
        a(f'v_add_f32 v{R2+2}, v{R2+2}, v{R2+3}')
        a(f'v_permlane32_swap_b32 v{R2}, v{R2+2}')
        a(f'v_add_f32 v{R2}, v{R2}, v{R2+2}')
        a(f'v_add_f32_dpp v{R2}, v{R2}, v{R2} row_ror:8 {DPP}')
        tag_apply([R2], 75)
        a(f'buffer_store_dword v{R2}, v{vRG1}, s[68:71], s101 offen sc1')
    else:
        for pat in RED8:
            for i in range(4):
                a(f'v_add_f32_dpp v{R2+i}, v{R2+i}, v{R2+i} {pat} {DPP}')
        tag_apply(range(R2, R2 + 4), 75)
        a(f'buffer_store_dwordx4 v[{R2}:{R2+3}], v{vRG}, s[68:71], s101 offen sc1')
    a('L_fin:')
    if stamps:
        stamp(7)
        a(f'v_writelane_b32 v{VST}, s96, 8')
        a('L_probe:')
        if probe is not None:
            i, K, base, j0, who = probe
            a('s_cmp_eq_u32 s3, 8')
            if who == 's': a('s_cbranch_scc1 L_end')
            if who == 'h': a('s_cbranch_scc0 L_end')
            a(f'v_readlane_b32 s82, v{VST}, 0')
            a(f'v_readlane_b32 s83, v{VST}, {i}')
            a(f'v_readlane_b32 s84, v{VST}, {j0}')
            a('s_sub_u32 s83, s83, s84')
            a(f's_mul_i32 s83, s83, {K}')
            a(f's_add_u32 s83, s83, {base}')
            a('L_spin:')
            a('s_sleep 2')
            a('s_memrealtime s[96:97]')
            a('s_waitcnt lgkmcnt(0)')
            a('s_sub_u32 s84, s96, s82')
            a('s_cmp_lt_u32 s84, s83')
            a('s_cbranch_scc1 L_spin')
        else:
            a('s_cmp_eq_u32 s3, 8')
            a('s_cbranch_scc1 L_nosl')
            a('s_sleep 127')
            a('s_sleep 127')
            a('L_nosl:')
            a('s_mul_i32 s82, s2, 9')
            a('s_add_u32 s82, s82, s3')
            a('s_lshl_b32 s82, s82, 8')
            a(f's_add_u32 s82, s82, {STAMP_OFF}')
            a('v_lshlrev_b32 v5, 2, v1')
            a(f'buffer_store_dword v{VST}, v5, s[68:71], s82 offen')
    a('L_end:')
    a('s_endpgm')

    a.vm = []; a.vm_done = 0
    a('L_helper:')
    a('v_mul_u32_u24 v3, 122880, v6')
    a('v_add_u32 v3, v3, v5')
    a('v_mul_u32_u24 v4, 30720, v6')
    a('v_add_u32 v4, v4, v5')
    a(f'v_mov_b32 v2, {OOB}')
    a('v_cmp_gt_u32 vcc, 6, v7')
    a('v_cndmask_b32 v4, v2, v4, vcc')
    a('v_mul_u32_u24 v8, 20, v6')
    a('v_lshlrev_b32 v9, 4, v1')
    a('v_mov_b32 v73, 0')
    if not eb:
        a(f'ds_write_b32 v73, v73 offset:{FLAG}')
        a(f'ds_write_b32 v73, v73 offset:{FL}')
        a(f'v_mov_b32 v10, {8*D}')
        a(f'ds_write_b32 v73, v10 offset:{CNT}')
    HM = 12; HA = 16; HACC = 24; HX = 56
    a('s_mul_i32 s83, s31, 983040')
    a('s_mul_i32 s84, s30, 384')
    a('s_add_u32 s83, s83, s84')
    a('s_mul_i32 s85, s31, 245760')
    a('s_mul_i32 s84, s30, 96')
    a('s_add_u32 s85, s85, s84')
    a('s_mul_i32 s98, s31, 160')
    for r in (43, 47, 59, 63, 67):
        a(f's_mov_b32 s{r}, 0x20000')
    a('s_sub_u32 s42, 7864320, s83')
    a('s_sub_u32 s46, 1966080, s85')
    a('s_sub_u32 s58, 2560, s98')
    a('s_sub_u32 s62, 1280, s98')
    a('s_mov_b32 s66, 96')
    a('s_waitcnt lgkmcnt(0)')
    srd(56, 4, 's98'); srd(40, 10, 's83'); srd(44, 16, 's85'); srd(60, 22, 's98'); srd(64, 18, 's84')
    a.vmem(f'buffer_load_dwordx4 v[{HX}:{HX+3}], v8, s[56:59], 0 offen')
    a.vmem(f'buffer_load_dword v{HX+4}, v8, s[56:59], 0 offen offset:16')
    a.vmem(f'buffer_load_dwordx4 v[{HX+6}:{HX+9}], v8, s[56:59], 0 offen offset:1280')
    a.vmem(f'buffer_load_dword v{HX+10}, v8, s[56:59], 0 offen offset:1296')
    hfree = list(range(76, top, 4))
    hslot = {}
    def hissue(tag):
        r = hfree.pop(0); hslot[tag] = r
        t = tag[0]
        if tag[1] == 0 and t:
            a(f's_mov_b32 s87, {t*12288}'); a(f's_mov_b32 s86, {t*3072}')
        if tag[1] < 3:
            a.vmem(f'buffer_load_dwordx4 v[{r}:{r+3}], v3, s[40:43], {"s87" if t else "0"} offen offset:{tag[1]*128} {w_cache}', tag)
        else:
            a.vmem(f'buffer_load_dwordx4 v[{r}:{r+3}], v4, s[44:47], {"s86" if t else "0"} offen {w_cache}', tag)
    hl = [(t, s) for t in range(10) for s in range(4)]
    nfirst = min(hwin, len(hfree)) // 4 * 4
    for tag in hl[:nfirst]: hissue(tag)
    hl = hl[nfirst:]
    a.vmem(f'buffer_load_dwordx4 v[{HX+12}:{HX+15}], v8, s[60:63], 0 offen')
    a.vmem(f'buffer_load_dword v{HX+16}, v8, s[60:63], 0 offen offset:16')
    a('v_and_b32 v10, 15, v1')
    a('v_lshlrev_b32 v10, 3, v10')
    a.vmem(f'buffer_load_dwordx2 v[74:75], v10, s[64:67], 0 offen', 'b1')
    if not eb: a('s_barrier')
    if hnear:
        a('s_branch L_helper2')
        a('@HEAD_END@')
        a('L_helper2:')
    a('s_mov_b32 s89, 0x01000100')
    a('s_mov_b32 s90, 0x03020302')
    a('s_mov_b32 s91, 0x3f803f80')
    masks(HM, 10, 11)
    ws_setup()
    if qpre:
        a(f's_add_u32 s82, s99, {FAST}')
        a.vmem(f'buffer_load_dword v{top}, v9, s[68:71], s82 offen')
        a.vmem(f'buffer_load_dword v{top}, v9, s[68:71], s82 offen offset:1024')
    stamp(1)
    hai = 0
    for t in range(10):
        a.wait_tag((t, 3))
        for bb in range(2):
            xr = HX + 6 * bb + t // 2
            a(f'v_perm_b32 v11, v{xr}, v{xr}, s{89 + (t & 1)}')
            A = HA + 4 * (hai & 1); hai += 1
            for r in range(4): a(f'v_and_b32 v{A+r}, v11, v{HM+r}')
            for s in range(4):
                r = hslot[(t, s)]; acc = HACC + 16 * bb + 4 * s
                c = '0' if t == 0 else f'v[{acc}:{acc+3}]'
                a(f'v_mfma_f32_16x16x32_bf16 v[{acc}:{acc+3}], v[{A}:{A+3}], v[{r}:{r+3}], {c}')
        for s in range(4): hfree.append(hslot[(t, s)])
        for tag in hl[:4]: hissue(tag)
        hl = hl[4:]
        if t == 6:
            a.wait_tag('b1')
            for bb, Gr in ((0, 61), (1, 67)):
                for i in range(5):
                    if gmimic:
                        xr, gr = HX + 6 * bb + i, HX + 12 + i
                        a(f'v_lshlrev_b32 v2, 16, v{xr}')
                        a(f'v_lshlrev_b32 v10, 16, v{gr}')
                        a('v_mul_f32 v2, v2, v10')
                        a(f'v_and_b32 v8, 0xffff0000, v{xr}')
                        a(f'v_and_b32 v10, 0xffff0000, v{gr}')
                        a('v_mul_f32 v8, v8, v10')
                        a('v_cvt_pk_bf16_f32 v2, v2, v8')
                        a(f'v_dot2_f32_bf16 v{Gr}, v2, s91, {"0" if i == 0 else f"v{Gr}"}')
                    else:
                        a(f'v_dot2_f32_bf16 v{Gr}, v{HX+6*bb+i}, v{HX+12+i}, {"0" if i == 0 else f"v{Gr}"}')
            xlane('v_add_f32', 61, 10)
            xlane('v_add_f32', 67, 10)
    stamp(2)
    a('v_lshrrev_b32 v16, 5, v1')
    a('v_lshlrev_b32 v16, 10, v16')
    a('v_and_b32 v11, 1, v6')
    a('v_lshl_add_u32 v16, v11, 8, v16')
    a('v_lshl_add_u32 v16, v7, 5, v16')
    a('v_bfe_u32 v11, v1, 4, 1')
    a('v_lshl_add_u32 v16, v11, 4, v16')
    for s in range(4):
        for r in range(4):
            a(f'v_permlane32_swap_b32 v{HACC+4*s+r}, v{HACC+16+4*s+r}')
    P = 76
    for u in range(2):
        for r in range(4):
            Ae, Be = HACC + 8 * u + r, HACC + 16 + 8 * u + r
            a(f'v_add_f32_dpp v{P+4*u+r}, v{Be}, v{Ae} row_ror:8 {DPP}')
        for r in range(4):
            Ao, Bo = HACC + 8 * u + 4 + r, HACC + 16 + 8 * u + 4 + r
            a(f'v_add_f32_dpp v{P+4*u+r}, v{Ao}, v{Bo} row_ror:8 row_mask:0xf bank_mask:0xc')
    a(f's_mov_b64 exec, {1 << 14}')
    a(f'v_mov_b32 v{P+4}, v61')
    a('s_mov_b32 exec_lo, 0')
    a(f's_mov_b32 exec_hi, {1 << 14}')
    a(f'v_mov_b32 v{P+4}, v67')
    a('s_mov_b64 exec, -1')
    a('s_getreg_b32 s88, hwreg(HW_REG_XCC_ID)')
    a('s_and_b32 s88, s88, 15')
    a('s_lshl_b32 s88, s88, 23')
    a(f'v_writelane_b32 v{P+5}, s88, 14')
    a('s_waitcnt lgkmcnt(0)')
    tag_finish()
    a('v_mov_b32 v11, s78')
    tag_apply(range(P, P + 8), 11)
    slow_q = [f'buffer_store_dwordx4 v[{P}:{P+3}], v16, s[68:71], s99 offen sc1',
              f'buffer_store_dwordx4 v[{P+4}:{P+7}], v16, s[68:71], s99 offen offset:512 sc1']
    a(f's_add_u32 s82, s99, {FAST}')
    a(f'buffer_store_dwordx4 v[{P}:{P+3}], v16, s[68:71], s82 offen')
    a(f'buffer_store_dwordx4 v[{P+4}:{P+7}], v16, s[68:71], s82 offen offset:512')
    stamp(3)
    a('v_add_u32 v12, 4096, v9')
    a('s_lshl_b32 s93, s30, 14')
    a(f's_add_u32 s93, s93, {FAST}')
    a('s_add_u32 s94, s93, 8192')
    a(f's_mov_b32 s76, {nfast}')
    a('v_lshlrev_b32 v17, 11, v6')
    a('v_and_b32 v18, 3, v1')
    a('v_lshl_add_u32 v17, v18, 4, v17')
    a('v_bfe_u32 v18, v1, 2, 1')
    a('v_lshl_add_u32 v17, v18, 9, v17')
    stamp(4)
    QD = [24, 84]
    a('L_qpoll:')
    if sind:
        a('s_add_u32 s40, s28, s93')
        a('s_addc_u32 s41, s29, 0')
        for p in range(8): a(f's_load_dword s{44+p}, s[40:41], {p*2048 + 1536} glc')
        a('s_waitcnt lgkmcnt(0)')
        for p in range(8): a(f's_xor_b32 s{44+p}, s{44+p}, s78')
        for p in range(1, 8): a(f's_or_b32 s44, s44, s{44+p}')
        a(f's_and_b32 s44, s44, {TM}')
        a('s_cbranch_scc1 L_qfail')
    else:
        a(f'buffer_load_dwordx4 v[24:27], v17, s[68:71], s93 offen sc1')
        a('s_waitcnt vmcnt(0)')
        tag_check(range(24, 28), 14, 15)
        a('s_cbranch_vccnz L_qfail')
    for b in range(2):
        for p in range(8):
            vo = 'v9' if (p & 3) < 2 else 'v12'
            so = 's93' if p < 4 else 's94'
            a(f'buffer_load_dwordx4 v[{QD[b]+4*p}:{QD[b]+4*p+3}], {vo}, s[68:71], {so} offen offset:{(p & 1)*2048 + b*1024} sc1')
    a('s_waitcnt vmcnt(0)')
    tag_check(list(range(QD[0], QD[0] + 32)) + list(range(QD[1], QD[1] + 32)), 14, 15)
    a('s_cbranch_vccz L_qok0')
    a('L_qfail:')
    if qsleep: a(f's_sleep {qsleep}')
    a('s_sub_u32 s76, s76, 1')
    a('s_cbranch_scc0 L_qnosw')
    for t in slow_q: a(t)
    a('L_qnosw:')
    a('s_cmp_lt_i32 s76, 0')
    a(f's_cselect_b32 s82, {FAST}, 0')
    for r in (93, 94): a(f's_xor_b32 s{r}, s{r}, s82')
    a('s_sub_u32 s92, s92, 1')
    a('s_cbranch_scc0 L_qpoll')
    a('s_endpgm')
    a('L_qok0:')
    for p in range(8): a(f'v_xor_b32 v{56+p}, s88, v{QD[0]+4*p+1}')
    a('v_or3_b32 v14, v56, v57, v58')
    a('v_or3_b32 v15, v59, v60, v61')
    a('v_or3_b32 v14, v14, v62, v63')
    a('v_or_b32 v14, v14, v15')
    a('v_readlane_b32 s86, v14, 60')
    a('s_cmp_lg_u32 s86, 0')
    a('s_cselect_b32 s86, 2, 1')
    a('s_cbranch_scc0 L_qok')
    a('s_cmp_lt_i32 s76, 0')
    a('s_cbranch_scc1 L_qok')
    for t in slow_q: a(t)
    a('L_qok:')
    a('v_lshlrev_b32 v10, 3, v1')
    for b in range(2):
        for st in (4, 8, 16):
            for b0 in range(QD[b], QD[b] + 32, 2 * st):
                for r in range(4): a(f'v_add_f32 v{b0+r}, v{b0+r}, v{b0+st+r}')
        a(f'v_cvt_pk_bf16_f32 v{QD[b]+4}, v{QD[b]}, v{QD[b]+1}')
        a(f'v_cvt_pk_bf16_f32 v{QD[b]+5}, v{QD[b]+2}, v{QD[b]+3}')
        a(f'ds_write_b64 v10, v[{QD[b]+4}:{QD[b]+5}] offset:{QBF + 512*b}')
    a('v_mov_b32 v10, s86')
    a(f'ds_write_b32 v73, v10 offset:{FLAG}')
    stamp(5)
    HD = QD[1]
    for r in range(4): a(f'v_permlane16_swap_b32 v{QD[0]+r}, v{HD+r}')
    Gq = 32; OMG = 33
    a(f'v_mov_b32_dpp v{Gq}, v{HD} row_newbcast:12 {DPP}')
    a(f'v_cvt_pk_bf16_f32 v{Gq}, v{Gq}, v{Gq}')
    a(f'v_and_b32 v{Gq}, 0xffff0000, v{Gq}')
    a(f'v_mul_f32 v{Gq}, {f2u(-LOG2E)}, v{Gq}')
    a(f'v_exp_f32 v{Gq}, v{Gq}')
    a(f'v_add_f32 v{Gq}, 1.0, v{Gq}')
    a(f'v_rcp_f32 v{Gq}, v{Gq}')
    a(f'v_cvt_pk_bf16_f32 v{Gq}, v{Gq}, v{Gq}')
    a(f'v_and_b32 v{Gq}, 0xffff0000, v{Gq}')
    a(f'v_sub_f32 v{OMG}, 1.0, v{Gq}')
    a(f'v_cvt_pk_bf16_f32 v{OMG}, v{OMG}, v{OMG}')
    a(f'v_and_b32 v{OMG}, 0xffff0000, v{OMG}')
    a(f's_mov_b32 s83, {f2u(-LOG2E)}')
    for pr in range(2):
        h0, h1 = HD + 2 * pr, HD + 2 * pr + 1
        a(f'v_cvt_pk_bf16_f32 v{h0}, v{h0}, v{h1}')
        a(f'v_and_b32 v{h1}, 0xffff0000, v{h0}')
        a(f'v_lshlrev_b32 v{h0}, 16, v{h0}')
        a(f'v_and_b32 v35, 0xffff0000, v{74+pr}')
        a(f'v_lshlrev_b32 v34, 16, v{74+pr}')
        a(f'v_add_f32 v{h0}, v{h0}, v34')
        a(f'v_add_f32 v{h1}, v{h1}, v35')
        a(f'v_cvt_pk_bf16_f32 v{h0}, v{h0}, v{h1}')
        a(f'v_and_b32 v{h1}, 0xffff0000, v{h0}')
        a(f'v_lshlrev_b32 v{h0}, 16, v{h0}')
    for i in range(4):
        h = HD + i; t = 36; tq = 37; nu = 38; de = 39
        a(f'v_mul_f32 v{t}, s83, abs(v{h})')
        a(f'v_exp_f32 v{t}, v{t}')
        a(f'v_cmp_lt_f32 vcc, 0, v{h}')
        a(f'v_mul_f32 v{tq}, v{t}, v{t}')
        a(f'v_cndmask_b32 v{nu}, v{tq}, 1.0, vcc')
        a(f'v_cndmask_b32 v{de}, 1.0, v{tq}, vcc')
        a(f'v_fma_f32 v{nu}, v{t}, 2.0, v{nu}')
        a(f'v_fma_f32 v{de}, v{de}, 2.0, v{nu}')
        a(f'v_rcp_f32 v{de}, v{de}')
        a(f'v_mul_f32 v{nu}, v{nu}, v{h}')
        a(f'v_mul_f32 v{nu}, v{nu}, v{de}')
        a(f'v_cvt_pk_bf16_f32 v{nu}, v{nu}, v{nu}')
        a(f'v_and_b32 v{nu}, 0xffff0000, v{nu}')
        a(f'v_mul_f32 v{nu}, v{nu}, v{OMG}')
        a(f'v_cvt_pk_bf16_f32 v{40+i}, v{nu}, v{nu}')
    a('v_and_b32 v10, 31, v1')
    a('v_lshlrev_b32 v11, 2, v10')
    a('v_lshlrev_b32 v10, 4, v10')
    a('s_mov_b32 exec_lo, 0')
    a(f'ds_write_b32 v11, v{Gq} offset:{GV}')
    a(f'ds_write_b128 v10, v[40:43] offset:{ACT}')
    a('s_mov_b64 exec, 1')
    a('v_mov_b32 v10, 1')
    a(f'ds_add_u32 v73, v10 offset:{FL}')
    a('s_mov_b64 exec, -1')
    a('s_waitcnt lgkmcnt(0)')
    stamp(6)
    if opre == 1:
        a(f'buffer_load_dword v{top}, v9, s[68:71], s100 offen')
        a(f'buffer_load_dword v{top}, v9, s[68:71], s100 offen offset:1024')
    if opre == 2: a('v_mov_b32 v20, v9')
    if ypre:
        a('s_mov_b32 exec_hi, 0xff')
        a('buffer_load_dwordx4 v[44:47], v9, s[68:71], s101 offen')
    if ctl:
        a('s_and_b32 s82, s2, 7')
        a('s_mul_i32 s82, s82, 4352')
        a(f's_add_u32 s82, s82, {MBOX}')
        a('s_lshr_b32 s83, s2, 3')
        a('s_lshl_b32 s83, s83, 2')
        a('s_add_u32 s83, s83, s82')
        a('s_and_b32 s84, s79, 0x3fffff')
        a('s_mov_b32 s85, 0')
        if glob:
            a('v_lshlrev_b32 v11, 2, v1')
            a(f'v_mul_u32_u24 v13, {GS}, v1')
            a('s_cmp_ge_u32 s2, 248')
            a(f's_cselect_b32 s60, {gP0}, -1')
            a(f's_mov_b32 s61, {GBOX}')
            a('s_and_b32 s59, s2, 7')
            a(f's_mul_i32 s58, s59, {GS}')
            a('s_add_u32 s43, s82, 128')
            a('s_mov_b32 s57, 0')
        a('s_mov_b32 exec_hi, 0')
        a('L_c:')
        a(f'ds_read_b32 v10, v73 offset:{CNT}')
        a('s_waitcnt lgkmcnt(0)')
        a('v_subrev_u32 v10, s85, v10')
        a('v_lshl_or_b32 v12, v10, 22, s84')
        a('s_mov_b32 exec_lo, 1')
        a('buffer_store_dword v12, off, s[68:71], s83')
        a('s_mov_b32 exec_lo, -1')
        if glob: a('s_mov_b32 exec_hi, 1')
        a('buffer_load_dword v9, v11, s[68:71], s82 offen sc1')
        if glob: a('s_mov_b32 exec_hi, 0')
        a('v_readfirstlane_b32 s86, v10')
        if glob:
            a('s_cmp_lt_u32 s86, s60')
            a('s_cbranch_scc1 L_g1')
            a('s_memrealtime s[62:63]')
            a('s_mov_b32 exec_lo, 0xff')
            a('buffer_load_dword v14, v13, s[68:71], s61 offen sc1')
            a('s_mov_b32 exec_lo, -1')
            a('L_g1:')
        a('s_waitcnt vmcnt(0)')
        if glob:
            a('v_readlane_b32 s44, v9, 32')
            a('s_and_b32 s45, s44, 0x3fffff')
            a('s_ashr_i32 s44, s44, 22')
            a('s_cmp_eq_u32 s45, s84')
            a('s_cselect_b32 s44, s44, 0')
        a('v_and_b32 v12, 0x3fffff, v9')
        a('v_lshrrev_b32 v9, 22, v9')
        a(f'v_add_u32 v9, {comp}, v9')
        a('v_cmp_eq_u32 vcc, s84, v12')
        a('v_cndmask_b32 v9, v10, v9, vcc')
        for pat in RED8 + ('row_mirror',):
            a(f'v_add_u32_dpp v9, v9, v9 {pat} {DPP}')
        a('v_readlane_b32 s87, v9, 0')
        a('v_readlane_b32 s88, v9, 16')
        a('s_add_u32 s87, s87, s88')
        a('s_lshr_b32 s87, s87, 5')
        if glob:
            a('s_cmp_lt_u32 s86, s60')
            a('s_cbranch_scc1 L_g2')
            a('s_waitcnt lgkmcnt(0)')
            a(f's_mul_i32 s64, s62, {rmul}')
            a('s_lshr_b32 s64, s64, 8')
            a('s_sub_u32 s64, s87, s64')
            a('s_lshl_b32 s64, s64, 22')
            a('s_or_b32 s64, s64, s84')
            a(f's_add_u32 s61, s61, {8*GS}')
            a('s_add_u32 s45, s61, s58')
            a('v_mov_b32 v12, s64')
            a('s_mov_b32 exec_lo, 1')
            a('buffer_store_dword v12, off, s[68:71], s45 sc1')
            a('s_mov_b32 exec_lo, 0xff')
            a(f's_add_u32 s60, s60, {gD}')
            a(f's_cmp_gt_u32 s60, {gend}')
            a('s_cselect_b32 s60, -1, s60')
            a('v_subrev_u32 v14, s57, v14')
            a('v_and_b32 v12, 0x3fffff, v14')
            a('v_ashrrev_i32 v14, 22, v14')
            a('v_cmp_eq_u32 vcc, 0, v12')
            a(f'v_cndmask_b32 v14, {-min(gD, 16) if False else 0}, v14, vcc') if False else None
            a(f'v_mov_b32 v15, {-gD}')
            a('v_cndmask_b32 v14, v15, v14, vcc')
            for pat in RED8:
                a(f'v_add_u32_dpp v14, v14, v14 {pat} {DPP}')
            a('v_readfirstlane_b32 s46, v14')
            if gnum != 1: a(f's_mul_i32 s46, s46, {gnum}')
            a(f's_ashr_i32 s46, s46, {3 + gsh2}')
            a(f's_min_i32 s46, s46, {gclamp}')
            a(f's_max_i32 s46, s46, {-gclamp}')
            a('s_cmp_eq_u32 s57, 0')
            a('s_cselect_b32 s46, 0, s46')
            a('s_mov_b32 s57, s64')
            a('s_lshl_b32 s46, s46, 22')
            a('s_or_b32 s46, s46, s84')
            a('v_mov_b32 v12, s46')
            a('s_mov_b32 exec_lo, 1')
            a('buffer_store_dword v12, off, s[68:71], s43')
            a('s_mov_b32 exec_lo, -1')
            a('L_g2:')
        a('s_sub_i32 s87, s87, s86')
        if glob: a('s_add_i32 s87, s87, s44')
        a('s_sub_i32 s88, s87, s85')
        a('s_mov_b32 s85, s87')
        a('v_mov_b32 v9, s88')
        a('s_mov_b32 exec_lo, 1')
        a(f'ds_add_u32 v73, v9 offset:{CNT}')
        a('s_mov_b32 exec_lo, -1')
        a(f's_cmp_ge_u32 s86, {cend}')
        a('s_cbranch_scc1 L_cd')
        a('s_sub_u32 s92, s92, 1')
        a('s_cbranch_scc0 L_c')
        a('s_endpgm')
        a('L_cd:')
    a('s_mov_b64 exec, -1')
    if opre == 2:
        a(f'buffer_load_dword v{top}, v20, s[68:71], s100 offen')
        a(f'buffer_load_dword v{top}, v20, s[68:71], s100 offen offset:1024')
    a('s_cmp_ge_u32 s2, 160')
    a('s_cbranch_scc1 ' + ('L_end' if (probe is not None or not stamps) else 'L_hend'))
    a('s_lshr_b32 s82, s2, 5')
    a('s_lshl_b32 s82, s82, 3')
    a('s_and_b32 s83, s2, 7')
    a('s_add_u32 s82, s82, s83')
    a('s_lshl_b32 s82, s82, 2')
    a(f's_bfe_u32 s83, s2, {3 | (2 << 16)}')
    a('s_add_u32 s85, s82, s83')
    a('s_mul_i32 s82, s85, 205')
    a('s_lshr_b32 s82, s82, 12')
    a('s_mul_i32 s83, s82, 20')
    a('s_sub_u32 s83, s85, s83')
    a('s_mul_i32 s84, s82, 20480')
    a('s_lshl_b32 s81, s83, 5')
    a('s_add_u32 s84, s84, s81')
    a(f's_add_u32 s98, s84, {YOFF}')
    srd(72, 24, None); a('s_mov_b32 s74, 2560'); a('s_mov_b32 s75, 0x20000')
    vF, vOUT, F = 8, 9, 28
    a(f'v_lshrrev_b32 v{vF}, 1, v1')
    a(f'v_mul_u32_u24 v{vF}, 640, v{vF}')
    a('v_and_b32 v10, 1, v1')
    a(f'v_lshl_add_u32 v{vF}, v10, 4, v{vF}')
    if ytr:
        a('s_mul_i32 s99, s82, 160')
        a('s_lshr_b32 s84, s83, 2')
        a('s_lshl_b32 s84, s84, 5')
        a('s_and_b32 s81, s83, 3')
        a('s_add_u32 s84, s84, s81')
        a(f'v_lshl_add_u32 v{vOUT}, v10, 4, s84')
        a('v_lshrrev_b32 v10, 4, v1')
        a(f'v_lshl_add_u32 v{vOUT}, v10, 2, v{vOUT}')
        a(f'v_cmp_lt_u32 vcc, 79, v{vOUT}')
        a(f'v_add_u32 v10, 560, v{vOUT}')
        a(f'v_cndmask_b32 v{vOUT}, v{vOUT}, v10, vcc')
        a(f'v_lshlrev_b32 v{vOUT}, 1, v{vOUT}')
    else:
        a('s_cmp_ge_u32 s83, 10')
        a('s_cselect_b32 s84, 1120, 0')
        a('s_lshl_b32 s81, s83, 4')
        a('s_add_u32 s84, s84, s81')
        a('s_mul_i32 s81, s82, 160')
        a('s_add_u32 s99, s84, s81')
        a(f'v_lshlrev_b32 v{vOUT}, 3, v10')
        a('v_lshrrev_b32 v10, 4, v1')
        a(f'v_lshl_add_u32 v{vOUT}, v10, 1, v{vOUT}')
    a('v_mov_b32 v11, s79')
    a(f's_mov_b32 s82, {EOFF}')
    a('s_waitcnt lgkmcnt(0)')
    a('s_barrier')
    a('s_barrier')
    a('s_barrier')
    stamp(7)
    a('L_poll2:')
    a(f'buffer_load_dwordx4 v[{F}:{F+3}], v{vF}, s[68:71], s98 offen sc1')
    a('s_waitcnt vmcnt(0)')
    tag_check(range(F, F + 4), 14, 15)
    a('s_cbranch_vccz L_poll2d')
    if pmask: a('s_mov_b64 exec, vcc')
    if psleep2: a(f's_sleep {psleep2}')
    a('s_sub_u32 s92, s92, 1')
    a('s_cbranch_scc0 L_poll2')
    a('s_endpgm')
    a('L_poll2d:')
    if pmask: a('s_mov_b64 exec, -1')
    a(f'v_permlane16_swap_b32 v{F}, v{F+1}')
    a(f'v_permlane16_swap_b32 v{F+2}, v{F+3}')
    a(f'v_add_f32 v{F}, v{F}, v{F+1}')
    a(f'v_add_f32 v{F+2}, v{F+2}, v{F+3}')
    a(f'v_permlane32_swap_b32 v{F}, v{F+2}')
    a(f'v_add_f32 v{F}, v{F}, v{F+2}')
    a(f'v_add_f32_dpp v{F}, v{F}, v{F} quad_perm:[2,3,0,1] {DPP}')
    a(f'v_add_f32_dpp v{F}, v{F}, v{F} row_ror:4 {DPP}')
    a(f'v_add_f32_dpp v{F}, v{F}, v{F} row_ror:8 {DPP}')
    a('s_mov_b32 exec_lo, 0x00030003')
    a('s_mov_b32 exec_hi, 0x00030003')
    a(f'v_cvt_pk_bf16_f32 v{F}, v{F}, v{F}')
    a(f'buffer_store_short v{F}, v{vOUT}, s[72:75], s99 offen')
    a('s_cmp_lg_u32 s2, 0')
    a('s_cbranch_scc1 L_hend')
    a('s_mov_b64 exec, 1')
    a('buffer_store_dword v11, off, s[68:71], s82')
    a('L_hend:')
    if stamps:
        a('s_mov_b64 exec, -1')
        stamp(8)
        a('s_branch L_probe')
    a('s_endpgm')

    a('L_codeend:')
    if hnear:
        L = a.lines
        i0 = L.index('L_helper:'); i1 = L.index('@HEAD_END@'); ih = L.index('@HELPER_HEAD@')
        head = L[i0:i1]
        a.lines = L[:ih] + head + L[ih+1:i0] + L[i1+1:]
    body = a.finalize()
    out = HEADER
    out += f'; @launch grid=(256,1,1) block=(576,1,1) lds={LDS_BYTES}\n'
    out += '.amdgcn_target "amdgcn-amd-amdhsa--gfx950"\n.text\n'
    out += f'.globl {KNAME}_kernel\n.p2align 8\n.type {KNAME}_kernel,@function\n'
    for l in body:
        out += (l if l.endswith(':') else '    ' + l) + '\n'
    out += f'''.section .rodata,"a"
.p2align 6
.amdhsa_kernel {KNAME}_kernel
  .amdhsa_next_free_vgpr {NV}
  .amdhsa_next_free_sgpr 102
  .amdhsa_accum_offset {NV}
  .amdhsa_group_segment_fixed_size 0
  .amdhsa_kernarg_size 104
  .amdhsa_user_sgpr_count 2
  .amdhsa_user_sgpr_kernarg_segment_ptr 1
  .amdhsa_system_sgpr_workgroup_id_x 1
  .amdhsa_float_denorm_mode_32 3
.end_amdhsa_kernel
'''
    return out

if __name__ == '__main__':
    kw = eval('dict(' + (sys.argv[2] if len(sys.argv) > 2 else '') + ')')
    open(sys.argv[1], 'w').write(gen(**kw))
```

```python
import sys, math, struct
from asmlib import Asm
KNAME = 'gated_mix__gqa_block_cached__dense_activation_mish__decode'
HEADER = open('cdna_kernels/' + KNAME + '.s.ref').read().split('; Override launch')[0]

def f2u(x): return struct.unpack('<I', struct.pack('<f', x))[0]
LOG2E = 1.4426950408889634
OOB = 0x80000000
OOFF = 512 * 1024
FAST = 1 << 20
YOFF = 1536 * 1024
EOFF = 1792 * 1024
MBOX = 1796 * 1024
GBOX = 1856 * 1024
STAMP_OFF = 2 << 20
WS_REC = 4 << 20
TM = 0x3ff
OS = 848
OP1 = 16 * OS
QBF = 32 * OS
ACT = QBF + 1024
GV = ACT + 512
FLAG = GV + 128
CNT = FLAG + 4
FL = FLAG + 8
MW = FLAG + 16
YP = MW + 64
LDS_BYTES = YP + 8 * 640 + 256
DPP = 'row_mask:0xf bank_mask:0xf'
RED8 = ('quad_perm:[1,0,3,2]', 'quad_perm:[2,3,0,1]', 'row_half_mirror')
NV = 168

def gen(D=3, nb=30, catchup=2, stamps=False, kv_cache='nt', w_cache='nt', wo_cache='', poll_cap=1 << 18, probe=None,
        hwin=16, nfast=48, psleep=0, psleep2=1, qsleep=4, levels=((-4, 3), (13, 2)), Dmax=4, comp=6, cstart=6, cend=712,
        nlate=8, ypre=True, gm=(2, 0), ctl=True, sind=False, qpre=False, opre=0, nl1=8, l2pos=0, xfree=False, estart=9, estep=4, m1pos=9, m2a=12, m2b=13, nsp=200, Dsp=5, spadd=0, D0pat=None, eb=False, cpre=0, hnear=False, ytr=False, pmask=False, gmimic=True, glob=False, gP0=240, gD=64, gend=660, gnum=1, gsh2=1, gclamp=24, rmul=76, GS=256, gint=False, gsw=None, gnum2=1, xphase=False, wpre=0, wpre_cache='', tpre=0, dbg_nowq=0, wqmap=0, est=None, boost=None, l2n=3, l2k=1, m2late=False, remap=0):
    a = Asm()
    inhelper = [False]
    VST = NV - 1
    VZ = NV - 2
    top = NV - 4
    def stamp(i, force=False):
        if est and not force and 0 < i < 8 and not inhelper[0]: return
        if stamps:
            a('s_memrealtime s[96:97]')
            a('s_waitcnt lgkmcnt(0)')
            a(f'v_writelane_b32 v{VST}, s96, {i}')
    def srd(r, p, off):
        if off is None:
            a(f's_mov_b32 s{r}, s{p}'); a(f's_mov_b32 s{r+1}, s{p+1}')
        else:
            a(f's_add_u32 s{r}, s{p}, {off}'); a(f's_addc_u32 s{r+1}, s{p+1}, 0')
    def xlane(op, v, tmp):
        a(f'{op}_dpp v{v}, v{v}, v{v} row_ror:8 {DPP}')
        a(f'v_mov_b32 v{tmp}, v{v}')
        a(f'v_permlane16_swap_b32 v{v}, v{tmp}')
        a(f'{op} v{v}, v{v}, v{tmp}')
        a(f'v_mov_b32 v{tmp}, v{v}')
        a(f'v_permlane32_swap_b32 v{v}, v{tmp}')
        a(f'{op} v{v}, v{v}, v{tmp}')
    def masks(M, t0, t1):
        a(f'v_and_b32 v{t0}, 1, v1')
        a(f'v_lshlrev_b32 v{t0}, 4, v{t0}')
        a(f'v_mov_b32 v{t1}, 0xffff')
        a(f'v_lshlrev_b32 v{t0}, v{t0}, v{t1}')
        a(f'v_bfe_u32 v{t1}, v1, 1, 2')
        for r in range(4):
            a(f'v_cmp_eq_u32 vcc, {r}, v{t1}')
            a(f'v_cndmask_b32 v{M+r}, 0, v{t0}, vcc')
    def ws_setup():
        srd(68, 28, None)
        a(f's_mov_b32 s70, {WS_REC}')
        a('s_mov_b32 s71, 0x20000')
        a('s_lshl_b32 s99, s30, 3')
        a('s_add_u32 s99, s99, s31')
        a('s_lshl_b32 s99, s99, 11')
        a(f's_add_u32 s100, s99, {OOFF}')
        if remap & 4:
            a('s_and_b32 s101, s2, 7')
            a('s_lshl_b32 s101, s101, 5')
            a('s_lshr_b32 s76, s2, 3')
            a('s_add_u32 s101, s101, s76')
        else:
            a('s_lshl_b32 s101, s31, 5')
            a('s_add_u32 s101, s101, s30')
        a('s_mul_i32 s101, s101, 640')
        a(f's_add_u32 s101, s101, {YOFF}')
        a(f's_mov_b32 s92, {poll_cap}')
        a(f's_mov_b32 s76, {EOFF}')
        a('s_load_dword s79, s[28:29], s76')
        a(f's_mov_b32 s77, {0xffffffff ^ TM}')
    def tag_finish():
        a('s_add_u32 s79, s79, 1')
        a(f's_and_b32 s78, s79, {TM}')
    def tag_apply(regs, vt):
        for r in regs: a(f'v_and_or_b32 v{r}, v{r}, s77, v{vt}')
    def tag_check(regs, x0, x1):
        regs = list(regs)
        for r in regs: a(f'v_xor_b32 v{r}, s78, v{r}')
        if len(regs) == 4:
            a(f'v_or3_b32 v{x0}, v{regs[0]}, v{regs[1]}, v{regs[2]}')
            a(f'v_or_b32 v{x0}, v{x0}, v{regs[3]}')
        else:
            a(f'v_or3_b32 v{x0}, v{regs[0]}, v{regs[1]}, v{regs[2]}')
            a(f'v_or3_b32 v{x1}, v{regs[3]}, v{regs[4]}, v{regs[5]}')
            rr = regs[6:]; i = 0
            while len(rr) >= 2:
                d = (x0, x1)[i & 1]; i += 1
                a(f'v_or3_b32 v{d}, v{d}, v{rr[0]}, v{rr[1]}'); rr = rr[2:]
            assert not rr
            a(f'v_or_b32 v{x0}, v{x0}, v{x1}')
        a(f'v_and_b32 v{x0}, {TM}, v{x0}')
        a(f'v_cmp_ne_u32 vcc, 0, v{x0}')

    a(f'{KNAME}_kernel:')
    a('s_cmp_ge_u32 s2, 256')
    a('s_cbranch_scc1 L_end')
    a('s_load_dwordx16 s[4:19], s[0:1], 0')
    a('s_load_dwordx8 s[20:27], s[0:1], 64')
    a('s_load_dwordx2 s[28:29], s[0:1], 96')
    if stamps:
        a(f'v_mov_b32 v{VST}, 0')
        stamp(0)
    a('v_lshrrev_b32 v5, 6, v0')
    a('v_and_b32 v1, 63, v0')
    a('v_readfirstlane_b32 s3, v5')
    a('s_and_b32 s82, s2, 7')
    a('s_lshr_b32 s83, s2, 6')
    a('s_lshl_b32 s30, s82, 2')
    a('s_add_u32 s30, s30, s83')
    a(f's_bfe_u32 s31, s2, {3 | (3 << 16)}')
    a('v_lshrrev_b32 v6, 3, v1')
    a('v_and_b32 v7, 7, v1')
    a('v_lshlrev_b32 v5, 4, v7')
    if eb:
        a('v_mov_b32 v8, 0')
        a(f'v_mov_b32 v9, {8*D}')
        a('v_mov_b32 v10, 0')
        a(f'ds_write_b96 v8, v[8:10] offset:{FLAG}')
    a('s_cmp_eq_u32 s3, 8')
    if eb:
        a('s_cbranch_scc0 L_streamer')
        a('s_waitcnt lgkmcnt(0)')
        a('s_barrier')
        a('s_branch L_helper')
        a('L_streamer:')
    else:
        a('s_cbranch_scc1 L_helper')
    a('v_mul_u32_u24 v2, 384, v6')
    a('v_add_u32 v2, v2, v5')
    a(f's_mul_i32 s88, s30, {gm[0]}')
    if gm[1]:
        a(f's_mul_i32 s83, s82, {gm[1]}')
        a('s_add_u32 s88, s88, s83')
    a('s_and_b32 s88, s88, 7')
    a('s_lshl_b32 s82, s30, 6')
    a('s_add_u32 s82, s82, s31')
    a('s_lshl_b32 s82, s82, 3')
    a('s_add_u32 s82, s82, s3')
    a('s_mul_i32 s82, s82, 3072')
    a('s_sub_u32 s34, 100663296, s82')
    a('s_mov_b32 s35, 0x20000')
    a('s_mul_i32 s86, s88, 196608')
    a('s_waitcnt lgkmcnt(0)')
    srd(32, 6, 's82')
    S0 = 8; Q0 = 24; ACC = 24
    M0 = 36; A0 = 40
    vOW, vRA, vRG, vP1, vYW, vYR, vMW, vAC = range(48, 56)
    vRG1, vP2, G0, G1 = 56, 57, 58, 59
    kF = m2b + 1
    vM, vL = 60, 61
    T = list(range(62, 76))
    konly = list(range(36, 76, 4))
    free = konly + list(range(76, top, 4))
    slot = {}
    def alloc(tag):
        r = free.pop(0); slot[tag] = r; return r
    def release(tag):
        if slot[tag] not in konly: free.append(slot[tag])
    cur = {'kv': 0}
    nis = [0]; wcnt = [0]
    def window():
        n = nis[0]; wcnt[0] += 1
        def adj(d):
            if not xfree: return d - 1
            cnt = 0; k = 0
            for t in reversed(a.vm):
                if isinstance(t, tuple) and t[0] in ('k', 'v'):
                    if cnt == d - 1: break
                    cnt += 1
                k += 1
            return k
        if n >= nsp and not spadd:
            a.wait_out(adj(Dsp))
            return
        ex = spadd if n >= nsp else 0
        if boost and boost[0] <= n < boost[1] and (n - boost[0]) % boost[2] == 0: ex += 1
        if ctl and n >= cstart:
            a.wait_out(adj(Dmax + ex))
            a('s_waitcnt lgkmcnt(0)')
            a('v_readfirstlane_b32 s90, v0')
            for (delta, d) in levels:
                a(f's_cmp_lt_i32 s90, {8*n - delta}')
                a(f's_cbranch_scc0 L_go{wcnt[0]}')
                a(f's_waitcnt vmcnt({adj(d + ex)})')
            a(f'L_go{wcnt[0]}:')
        else:
            a.wait_out((D0pat[n % len(D0pat)] if D0pat else D) - 1)
    def issue(tag):
        kind = tag[0]
        r = alloc(tag)
        if kind in ('k', 'v'):
            if cur['kv'] != tag[1]:
                k = tag[1]
                a(f's_add_u32 s85, s88, {k & 7}')
                a('s_and_b32 s85, s85, 7')
                a('s_mul_i32 s86, s85, 196608')
                if k >= 8: a('s_add_u32 s86, s86, 50331648')
                cur['kv'] = k
            s0 = 32 if kind == 'k' else 36
            a.vmem(f'buffer_load_dwordx4 v[{r}:{r+3}], v2, s[{s0}:{s0+3}], s86 offen offset:{tag[2]*128} {kv_cache}', tag)
            nis[0] += 1
            if est and nis[0] in est: stamp(est.index(nis[0]) + 1, True)
            if ctl and nis[0] > D:
                a('s_mov_b64 exec, 1')
                a(f'ds_add_rtn_u32 v0, v{VZ}, v{VZ} offset:{CNT - 1}')
                a('s_mov_b64 exec, -1')
        elif kind == 'wo':
            rg = tag[1]
            if rg: a(f's_mov_b32 s87, {rg*5120}')
            a.vmem(f'buffer_load_dwordx4 v[{r}:{r+3}], v3, s[48:51], {"s87" if rg else "0"} offen {wo_cache}', tag)
        elif kind == 'w2':
            a.vmem(f'buffer_load_dwordx4 v[{r}:{r+3}], v4, s[52:55], 0 offen offset:{tag[1]*1280} {wo_cache}', tag)
    kl = [('k', k, s) for k in range(16) for s in range(3)]
    vl = [('v', k, s) for k in range(16) for s in range(3)]
    for tag in kl[:D]: issue(tag)
    if eb: a('s_barrier')
    if hnear:
        a('s_branch L_stream2')
        a('@HELPER_HEAD@')
        a('L_stream2:')
    srd(36, 8, 's82'); a('s_mov_b32 s38, s34'); a('s_mov_b32 s39, 0x20000')
    ws_setup()
    a(f's_mov_b32 s91, {f2u(LOG2E / math.sqrt(192.0))}')
    if remap & 1:
        a('s_lshr_b32 s30, s2, 3')
        a('s_and_b32 s31, s2, 7')
    a('s_mul_i32 s82, s30, 192')
    a('s_mul_i32 s83, s3, 24')
    a('s_add_u32 s82, s82, s83')
    a('s_mul_i32 s82, s82, 1280')
    a('s_mul_i32 s83, s31, 160')
    a('s_add_u32 s82, s82, s83')
    srd(48, 12, 's82')
    a('s_sub_u32 s50, 7864320, s82')
    a('s_mov_b32 s51, 0x20000')
    a('s_lshl_b32 s82, s30, 3')
    a('s_add_u32 s82, s82, s3')
    a('s_mul_i32 s82, s82, 7680')
    a('s_add_u32 s82, s82, s83')
    srd(52, 20, 's82')
    a('s_sub_u32 s54, 1966080, s82')
    a('s_mov_b32 s55, 0x20000')
    if remap & 2: a('s_lshr_b32 s30, s2, 3')
    elif remap & 1: a('s_lshr_b32 s30, s99, 14')
    a('s_lshl_b32 s93, s30, 14')
    a(f's_add_u32 s93, s93, {OOFF}')
    a('s_add_u32 s94, s93, 4096')
    a('s_add_u32 s95, s93, 8192')
    a('s_add_u32 s98, s93, 12288')
    a('v_lshrrev_b32 v8, 4, v1')
    a('v_and_b32 v9, 15, v1')
    a(f'v_mov_b32 v10, {OOB}')
    a('v_mul_u32_u24 v3, 1280, v8')
    a('v_lshl_add_u32 v3, v9, 4, v3')
    a('v_mul_u32_u24 v4, 2560, v8')
    a('v_lshl_add_u32 v4, v9, 4, v4')
    a('v_cmp_gt_u32 vcc, 3, v8')
    a('v_cndmask_b32 v4, v10, v4, vcc')
    a('v_cmp_gt_u32 vcc, 10, v9')
    a('v_cndmask_b32 v3, v10, v3, vcc')
    a('v_cndmask_b32 v4, v10, v4, vcc')
    a('v_mov_b32 v9, 0')
    a(f'v_mov_b32 v{VZ}, 1')
    if cpre == 1:
        a('s_cmp_lg_u32 s3, 7')
        a('s_cbranch_scc1 L_nocp')
        a('s_getpc_b64 s[40:41]')
        a('L_pc:')
        a(f's_sub_u32 s40, s40, L_pc-{KNAME}_kernel')
        a('s_subb_u32 s41, s41, 0')
        a('s_lshr_b32 s82, s2, 3')
        a('s_mul_i32 s82, s82, 640')
        a('v_lshl_add_u32 v10, v1, 7, s82')
        a(f'v_min_u32 v10, L_codeend-{KNAME}_kernel-4, v10')
        a('s_mov_b64 exec, 31')
        a(f'global_load_dword v{NV-3}, v10, s[40:41]')
        a('s_mov_b64 exec, -1')
        a('L_nocp:')
    if not eb: a('s_barrier')
    for tag in kl[D:nb]:
        window(); issue(tag)
    a('s_waitcnt lgkmcnt(0)')
    tag_finish()
    stamp(1)
    a('L_qw:')
    a(f'ds_read_b32 v8, v9 offset:{FLAG}')
    for s in range(3):
        a(f'ds_read_b128 v[{Q0+4*s}:{Q0+3+4*s}], v5 offset:{QBF + s*128}')
    a('s_waitcnt lgkmcnt(0)')
    a('v_readfirstlane_b32 s89, v8')
    a('s_cmp_lg_u32 s89, 0')
    a('s_cbranch_scc1 L_qwd')
    a('s_sleep 2')
    a('s_sub_u32 s92, s92, 1')
    a('s_cbranch_scc0 L_qw')
    a('s_endpgm')
    a('L_qwd:')
    stamp(2)
    abi = [0]
    def build_A(src):
        A = A0 + 4 * (abi[0] & 1); abi[0] += 1
        for r in range(4):
            a(f'v_and_b32 v{A+r}, {src}, v{M0+r}')
        return A
    def task_k(k):
        S = S0 + k
        if k == 8: a('s_waitcnt lgkmcnt(0)')
        first = True
        for s in range(3):
            r = slot[('k', k, s)]
            for i in range(4):
                c = '0' if first else f'v{S}'
                a(f'v_dot2_f32_bf16 v{S}, v{r+i}, v{Q0 + s*4 + i}, {c}')
                first = False
            release(('k', k, s))
        if k == 7:
            for s in range(3):
                a(f'ds_read_b128 v[{Q0+4*s}:{Q0+3+4*s}], v5 offset:{QBF + 512 + s*128}')
    def flush_acc(b):
        a('s_mov_b32 exec_lo, 0x00ff00ff')
        a('s_mov_b32 exec_hi, 0xff00ff00')
        for s in range(3):
            a(f'ds_write_b128 v{vOW}, v[{ACC+4*s}:{ACC+3+4*s}] offset:{b*OP1 + s*256}')
        if b == 0:
            a('s_mov_b64 exec, 1')
            a(f'ds_add_u32 v{VZ}, v{VZ} offset:{FL - 1}')
        a('s_mov_b64 exec, -1')
    def task_v(k, fine=False, after=None):
        A = build_A(f'v{S0+k}')
        if k == 8: a('s_waitcnt lgkmcnt(0)')
        for s in range(3):
            if fine: a.wait_tag(('v', k, s))
            r = slot[('v', k, s)]; acc = ACC + 4 * s
            c = '0' if k % 8 == 0 else f'v[{acc}:{acc+3}]'
            a(f'v_mfma_f32_16x16x32_bf16 v[{acc}:{acc+3}], v[{A}:{A+3}], v[{r}:{r+3}], {c}')
            release(('v', k, s))
            if after: after(k, s)
    def task_red(b):
        for pat in RED8:
            for k in range(8 * b, 8 * b + 8):
                a(f'v_add_f32_dpp v{S0+k}, v{S0+k}, v{S0+k} {pat} {DPP}')
    t0, t1, t2 = T[0], T[1], T[2]
    def task_sm1(b):
        B = S0 + 8 * b
        a(f'v_max3_f32 v{t0}, v{B}, v{B+1}, v{B+2}')
        a(f'v_max3_f32 v{t0}, v{t0}, v{B+3}, v{B+4}')
        a(f'v_max3_f32 v{t0}, v{t0}, v{B+5}, v{B+6}')
        a(f'v_max_f32 v{t0}, v{t0}, v{B+7}')
        xlane('v_max_f32', t0, t1)
        a(f'v_mul_f32 v{vM}, s91, v{t0}')
        for k in range(8): a(f'v_fma_f32 v{B+k}, v{B+k}, s91, -v{vM}')
        for k in range(8): a(f'v_exp_f32 v{B+k}, v{B+k}')
        a('s_lshl_b32 s82, s3, 2')
        a(f'v_mov_b32 v{t0}, s82')
        a(f'ds_write_b32 v{t0}, v{vM} offset:{MW + 32*b}')
    def task_sm2(b):
        B = S0 + 8 * b
        u = 64
        a(f'v_add_f32 v{u}, v{B}, v{B+1}')
        for k in range(2, 8): a(f'v_add_f32 v{u}, v{u}, v{B+k}')
        for k in range(8):
            if 8 * b + k < kF: a(f'v_cvt_pk_bf16_f32 v{B+k}, v{B+k}, v{B+k}')
        xlane('v_add_f32', u, t1)
        a(f'v_writelane_b32 v{u}, 0, 40')
        a(f'v_mov_b32 v{u+1}, v{u}'); a(f'v_mov_b32 v{u+2}, v{u}'); a(f'v_mov_b32 v{u+3}, v{u}')
        a('s_mov_b32 exec_lo, 1')
        a('s_mov_b32 exec_hi, 0x100')
        a(f'ds_write_b128 v{vOW}, v[{u}:{u+3}] offset:{b*OP1 + 768}')
        a('s_mov_b64 exec, -1')
    def task_addr0():
        a(f'v_lshrrev_b32 v{t0}, 5, v1')
        a('s_lshl_b32 s82, s3, 1')
        a(f'v_add_u32 v{t0}, s82, v{t0}')
        a(f'v_lshlrev_b32 v{t1}, 5, v7')
        a(f'v_bfe_u32 v{t2}, v1, 4, 1')
        a(f'v_lshl_add_u32 v{t1}, v{t2}, 4, v{t1}')
        a(f'v_mul_u32_u24 v{vOW}, {OS}, v{t0}')
        a(f'v_add_u32 v{vOW}, v{vOW}, v{t1}')
        masks(M0, t0, t1)
    g, ob, x, y, z = 68, 69, 70, 71, 72
    vRA0 = 61
    def task_addr1():
        a(f'v_lshrrev_b32 v{g}, 4, v1')
        a(f'v_mov_b32 v{ob}, {OOB}')
        a('s_mul_i32 s82, s3, 6')
        a(f'v_add_u32 v{x}, s82, v6')
        a('v_cmp_gt_u32 vcc, 6, v6')
        a(f'v_cndmask_b32 v{x}, 48, v{x}, vcc')
        a(f'v_lshlrev_b32 v{x}, 4, v{x}')
        a(f'v_mul_u32_u24 v{vRA0}, {2*OS}, v7')
        a(f'v_add_u32 v{vRA0}, v{vRA0}, v{x}')
        a(f'v_add_u32 v{x}, {OP1}, v{vRA0}')
        a('v_cmp_eq_u32 s[80:81], 7, v6')
        a(f'v_cndmask_b32 v{vRA0}, v{vRA0}, v{x}, s[80:81]')
        a(f'v_add_u32 v{x}, s82, v7')
        a('v_cmp_gt_u32 vcc, 6, v7')
        a(f'v_cndmask_b32 v{x}, 48, v{x}, vcc')
        a(f'v_lshlrev_b32 v{x}, 4, v{x}')
        a(f'v_mul_u32_u24 v{vRA}, {2*OS}, v6')
        a(f'v_add_u32 v{vRA}, v{vRA}, v{x}')
        a('s_lshl_b32 s82, s3, 7')
        a(f'v_lshl_add_u32 v{x}, v6, 4, s82')
        if ytr:
            a(f'v_mul_u32_u24 v{vYR}, 640, v6')
            a(f'v_add3_u32 v{vYR}, v{vYR}, v5, s82')
        else:
            a(f'v_mul_u32_u24 v{vYR}, 640, v7')
            a(f'v_add_u32 v{vYR}, v{vYR}, v{x}')
        a('v_cmp_eq_u32 vcc, 0, v7')
        a(f'v_cndmask_b32 v{vRG}, v{ob}, v{x}, vcc')
        a(f'v_lshlrev_b32 v{y}, 11, v6')
        a(f'v_add3_u32 v{vP1}, v{y}, v5, s82')
        a(f'v_lshl_add_u32 v{y}, v{g}, 5, s82')
        a(f'v_lshl_add_u32 v{y}, v7, 2, v{y}')
        a(f'v_and_b32 v{x}, 1, v6')
        a(f'v_lshlrev_b32 v{vAC}, 8, v{x}')
        a(f'v_lshl_add_u32 v{vP2}, v{x}, 11, v{y}')
        a(f'v_cmp_eq_u32 vcc, 0, v{x}')
        a(f'v_cndmask_b32 v{vRG1}, v{ob}, v{y}, vcc')
    def task_addr2():
        a('s_mul_i32 s82, s3, 24')
        a(f'v_lshl_add_u32 v{vAC}, v{g}, 3, v{vAC}')
        a(f'v_add_u32 v{vAC}, s82, v{vAC}')
        a(f'v_and_b32 v{x}, 15, v1')
        a(f'v_lshlrev_b32 v{x}, 5, v{x}')
        a(f'v_lshrrev_b32 v{y}, 5, v1')
        a(f'v_mul_u32_u24 v{y}, 320, v{y}')
        a(f'v_and_b32 v{z}, 1, v{g}')
        a(f'v_lshlrev_b32 v{z}, 4, v{z}')
        a(f'v_add3_u32 v{vYW}, v{x}, v{y}, v{z}')
        a('s_mul_i32 s82, s3, 640')
        a(f'v_add_u32 v{vYW}, s82, v{vYW}')
        a(f'v_lshlrev_b32 v{vMW}, 2, v7')
        a('v_mov_b32 v75, s78')
    R = 8
    def ostore(text, b):
        a(f's_cmp_eq_u32 s89, {77 if remap & 2 else 1}')
        a(f's_cbranch_scc1 L_ofast{b}')
        a(text + ' sc1')
        a(f's_branch L_odone{b}')
        a(f'L_ofast{b}:')
        a.vmem(text)
        a(f'L_odone{b}:')
    def task_m1():
        WG = [62, 63]; MXR = [64, 65]
        a('L_m1:')
        a(f'ds_read_b32 v66, v{VZ} offset:{FL - 1}')
        a(f'ds_read_b32 v{WG[0]}, v{vMW} offset:{MW}')
        a(f'ds_read_b32 v{WG[1]}, v{vMW} offset:{MW+32}')
        a(f'ds_read_b128 v[{R}:{R+3}], v{vRA0}')
        a(f'ds_read_b128 v[{R+4}:{R+7}], v{vRA0} offset:{OS}')
        a(f'ds_read_b64 v[72:73], v{vAC} offset:{ACT}')
        a(f'ds_read_b32 v{G0}, v{VZ} offset:{GV - 1}')
        a(f'ds_read_b32 v{G1}, v{VZ} offset:{GV + 63}')
        a('s_waitcnt lgkmcnt(0)')
        a('v_readfirstlane_b32 s82, v66')
        a('s_cmp_eq_u32 s82, 9')
        a('s_cbranch_scc1 L_m1d')
        a('s_sleep 1')
        a('s_sub_u32 s92, s92, 1')
        a('s_cbranch_scc0 L_m1')
        a('s_endpgm')
        a('L_m1d:')
        for i, pat in enumerate(RED8):
            for b in range(2):
                src = WG[b] if i == 0 else MXR[b]
                a(f'v_max_f32_dpp v{MXR[b]}, v{src}, v{src} {pat} {DPP}')
            a(f'v_add_f32 v{R+i}, v{R+i}, v{R+4+i}')
        a(f'v_add_f32 v{R+3}, v{R+3}, v{R+7}')
        for b in range(2): a(f'v_and_b32 v{MXR[b]}, s77, v{MXR[b]}')
        for b in range(2): a(f'v_sub_f32 v{WG[b]}, v{WG[b]}, v{MXR[b]}')
        a(f'v_cndmask_b32 v{WG[0]}, v{WG[0]}, v{WG[1]}, s[80:81]')
        a(f'v_exp_f32 v{WG[0]}, v{WG[0]}')
        for i in range(4): a(f'v_mul_f32 v{R+i}, v{R+i}, v{WG[0]}')
        for pat in RED8:
            for i in range(4):
                a(f'v_add_f32_dpp v{R+i}, v{R+i}, v{R+i} {pat} {DPP}')
        a(f'v_cndmask_b32 v{R}, v{R}, v{MXR[0]}, s[80:81]')
        a(f'v_cndmask_b32 v{R+1}, v{R+1}, v{MXR[1]}, s[80:81]')
        tag_apply(range(R, R + 4), 75)
        ostore(f'buffer_store_dwordx4 v[{R}:{R+3}], v{vRG}, s[68:71], s100 offen', 0)
    PG = 12
    gat = f'buffer_load_dwordx4 v[{PG}:{PG+3}], v{vP1}, s[68:71], s93 offen sc1'
    def task_m2a():
        a.vmem(gat, 'gat')
    AP = []
    def task_m2b():
        a.wait_tag('gat')
        a('L_m2:')
        tag_check(range(PG, PG + 4), 62, 63)
        a('s_cbranch_vccz L_m2d')
        a(gat)
        a('s_waitcnt vmcnt(0)')
        a('s_sub_u32 s92, s92, 1')
        a('s_cbranch_scc0 L_m2')
        a('s_endpgm')
        a('L_m2d:')
        MQ, MX, M1, L1, TT = 62, 63, 64, 65, 66
        a(f'v_mov_b32_dpp v{MQ}, v{PG} row_newbcast:7 row_mask:0xf bank_mask:0x3')
        a(f'v_mov_b32 v{M1}, v{PG+1}')
        a(f'v_mov_b32_dpp v{MQ}, v{PG} row_newbcast:15 row_mask:0xf bank_mask:0xc')
        xlane('v_max_f32', M1, TT)
        a(f'v_mov_b32 v{MX}, v{MQ}')
        xlane('v_max_f32', MX, TT)
        a(f'v_sub_f32 v{L1}, v{PG+1}, v{M1}')
        a(f'v_sub_f32 v{MQ}, v{MQ}, v{MX}')
        a(f'v_exp_f32 v{L1}, v{L1}')
        a(f'v_exp_f32 v{MQ}, v{MQ}')
        a(f'v_mul_f32 v{L1}, v{L1}, v{PG+2}')
        for i in range(4): a(f'v_mul_f32 v{PG+i}, v{PG+i}, v{MQ}')
        xlane('v_add_f32', L1, TT)
        a(f'v_readlane_b32 s82, v{M1}, 7')
        a(f'v_rcp_f32 v{L1}, v{L1}')
        a(f'v_permlane16_swap_b32 v{PG}, v{PG+1}')
        a(f'v_permlane16_swap_b32 v{PG+2}, v{PG+3}')
        a(f'v_readlane_b32 s83, v{L1}, 7')
        a(f'v_add_f32 v{PG}, v{PG}, v{PG+1}')
        a(f'v_add_f32 v{PG+2}, v{PG+2}, v{PG+3}')
        a(f'v_subrev_f32 v{M1}, s82, v{vM}')
        a(f'v_permlane32_swap_b32 v{PG}, v{PG+2}')
        a(f'v_exp_f32 v{M1}, v{M1}')
        a(f'v_add_f32 v{PG}, v{PG}, v{PG+2}')
        a(f'v_mul_f32 v{G1}, s83, v{G1}')
        a(f'v_mul_f32 v{G1}, v{G1}, v{M1}')
        a(f'v_add_f32_dpp v{PG}, v{PG}, v{PG} row_ror:8 {DPP}')
        a(f'v_rcp_f32 v{MX}, v{PG}')
        a(f'v_mul_f32 v{PG}, v{PG}, v{G0}')
        for k in range(kF, 16): a(f'v_mul_f32 v{S0+k}, v{S0+k}, v{G1}')
        a(f'v_mul_f32_dpp v{PG}, v{MX}, v{PG} row_newbcast:6 {DPP}')
        for k in range(kF, 16): a(f'v_cvt_pk_bf16_f32 v{S0+k}, v{S0+k}, v{S0+k}')
        a(f'v_cvt_pk_bf16_f32 v{PG}, v{PG}, v{PG}')
        for i in range(12): a(f'v_mul_f32 v{ACC+i}, v{ACC+i}, v{G1}')
    def task_m2c():
        for p in range(6):
            AP.append(alloc(('ap', p)))
            for r in range(4):
                a(f'v_and_b32_dpp v{AP[p]+r}, v{PG}, v{M0+r} row_newbcast:{p} {DPP}')
    def run(issue_list, tasks, win, per_issue):
        for tag in issue_list:
            while not free:
                fn, needs = tasks.pop(0)
                for n in needs: a.wait_tag(n)
                fn()
            if win and not (xfree and tag[0] in ('wo', 'w2')): window()
            issue(tag)
            n = 0
            while tasks and n < per_issue and all(a.issued(q) and a.is_done(q) for q in tasks[0][1]):
                fn, needs = tasks.pop(0); fn(); n += 1
    kt = [((lambda k=k: task_k(k)), [('k', k, s) for s in range(3)]) for k in range(16)]
    vt = [((lambda k=k: task_v(k)), [('v', k, s) for s in range(3)]) for k in range(16)]
    N = lambda f: (f, [])
    tasks = kt[:11] + [N(task_addr0), N(lambda: task_red(0))] + kt[11:12] + [N(lambda: task_sm1(0))] + kt[12:13] + [N(lambda: task_sm2(0))] + kt[13:]
    tasks += [N(lambda: stamp(3))] if stamps else []
    tasks += vt[:1] + [N(lambda: task_red(1))] + vt[1:2] + [N(lambda: task_sm1(1))] + vt[2:3] + [N(lambda: task_sm2(1))] + vt[3:5]
    tasks += [N(task_addr1)] + vt[5:6] + [N(task_addr2)] + vt[6:8] + [N(lambda: flush_acc(0))]
    for k in range(8, 14):
        tasks.append(vt[k])
        if k == m1pos: tasks.append(N(task_m1))
        if k == m2a: tasks.append(N(task_m2a))
        if k == m2b and not m2late: tasks += [(task_m2b, ['gat']), N(task_m2c)]
    wl = [('wo', rg) for rg in range(6)] + [('w2', i) for i in range(2)]
    run(kl[nb:], tasks, True, catchup)
    early = wl[nlate:][::-1]; latel = wl[:nlate]
    vseq = []
    for i, tag in enumerate(vl):
        vseq.append(tag)
        if i >= estart and (i - estart) % estep == 0 and early: vseq.append(early.pop())
    run(vseq, tasks, True, catchup)
    a('s_barrier')
    run(latel[:nl1], [], False, 0)
    if m2late: tasks += [(task_m2b, ['gat']), N(task_m2c)]
    while tasks:
        fn, needs = tasks.pop(0)
        for n in needs: a.wait_tag(n)
        fn()
    rest = latel[nl1:]
    def after(k, s):
        pos = (k - 14) * 3 + s
        if l2pos == 2 and pos >= 5 - l2n and pos < 5:
            for _ in range(l2k):
                if rest: issue(rest.pop(0))
    task_v(14, True, after)
    task_v(15, True, after)
    stamp(4)
    flush_acc(1)
    run(rest, [], False, 0)
    a('s_waitcnt lgkmcnt(0)')
    a('s_barrier')
    a(f'ds_read_b128 v[{R}:{R+3}], v{vRA} offset:{OP1}')
    a(f'ds_read_b128 v[{R+4}:{R+7}], v{vRA} offset:{OP1+OS}')
    AW = [build_A('v72'), build_A('v73')]
    a('s_waitcnt lgkmcnt(0)')
    for i in range(4): a(f'v_add_f32 v{R+i}, v{R+i}, v{R+4+i}')
    a(f'v_permlane16_swap_b32 v{R}, v{R+1}')
    a(f'v_permlane16_swap_b32 v{R+2}, v{R+3}')
    a(f'v_add_f32 v{R}, v{R}, v{R+1}')
    a(f'v_add_f32 v{R+2}, v{R+2}, v{R+3}')
    a(f'v_permlane32_swap_b32 v{R}, v{R+2}')
    a(f'v_add_f32 v{R}, v{R}, v{R+2}')
    a(f'v_add_f32_dpp v{R}, v{R}, v{R} row_ror:8 {DPP}')
    tag_apply([R], 75)
    ostore(f'buffer_store_dword v{R}, v{vRG1}, s[68:71], s100 offen offset:1024', 1)
    O = 16; X = 66; X2 = 67; Y = 24
    def poll1():
        for u, so in enumerate(('s93', 's94', 's95', 's98')):
            a(f'buffer_load_dword v{O+u}, v{vP2}, s[68:71], {so} offen offset:1024 sc1')
    poll1()
    stamp(5)
    a('s_waitcnt vmcnt(5)')
    for i in range(2):
        r = slot[('w2', i)]
        a(f'v_mfma_f32_16x16x32_bf16 v[{Y}:{Y+3}], v[{AW[i]}:{AW[i]+3}], v[{r}:{r+3}], {"0" if i == 0 else f"v[{Y}:{Y+3}]"}')
    a('L_poll1:')
    a('s_waitcnt vmcnt(0)')
    tag_check(range(O, O + 4), X, X2)
    a(f'v_add_f32 v{O+4}, v{O}, v{O+1}')
    a(f'v_add_f32 v{O+5}, v{O+2}, v{O+3}')
    a('s_cbranch_vccz L_poll1d')
    if psleep: a(f's_sleep {psleep}')
    poll1()
    a('s_sub_u32 s92, s92, 1')
    a('s_cbranch_scc0 L_poll1')
    a('s_endpgm')
    a('L_poll1d:')
    stamp(6)
    a(f'v_add_f32 v{O}, v{O+4}, v{O+5}')
    a(f'v_add_f32_dpp v{O}, v{O}, v{O} row_ror:8 {DPP}')
    a(f'v_cvt_pk_bf16_f32 v{O}, v{O}, v{O}')
    for p in range(7):
        if p < 6:
            for r in range(4):
                a(f'v_and_b32_dpp v{AP[p]+r}, v{O}, v{M0+r} row_newbcast:{p} row_mask:0xf bank_mask:0xc')
        if p > 0:
            r0 = slot[('wo', p - 1)]; A = AP[p - 1]
            a(f'v_mfma_f32_16x16x32_bf16 v[{Y}:{Y+3}], v[{A}:{A+3}], v[{r0}:{r0+3}], v[{Y}:{Y+3}]')
    a('s_mov_b32 exec_lo, 0x03ff03ff')
    a('s_mov_b32 exec_hi, 0x03ff03ff')
    a('s_cmp_ge_u32 s3, 5')
    a(f'ds_write_b128 v{vYW}, v[{Y}:{Y+3}] offset:{YP}')
    a('s_mov_b64 exec, -1')
    a('s_waitcnt lgkmcnt(0)')
    a('s_barrier')
    a('s_cbranch_scc1 L_fin')
    R2 = 28
    a(f'ds_read_b128 v[{R2}:{R2+3}], v{vYR} offset:{YP}')
    a('s_waitcnt lgkmcnt(0)')
    if ytr:
        a(f'v_permlane16_swap_b32 v{R2}, v{R2+1}')
        a(f'v_permlane16_swap_b32 v{R2+2}, v{R2+3}')
        a(f'v_add_f32 v{R2}, v{R2}, v{R2+1}')
        a(f'v_add_f32 v{R2+2}, v{R2+2}, v{R2+3}')
        a(f'v_permlane32_swap_b32 v{R2}, v{R2+2}')
        a(f'v_add_f32 v{R2}, v{R2}, v{R2+2}')
        a(f'v_add_f32_dpp v{R2}, v{R2}, v{R2} row_ror:8 {DPP}')
        tag_apply([R2], 75)
        a(f'buffer_store_dword v{R2}, v{vRG1}, s[68:71], s101 offen {"" if remap & 4 else "sc1"}')
    else:
        for pat in RED8:
            for i in range(4):
                a(f'v_add_f32_dpp v{R2+i}, v{R2+i}, v{R2+i} {pat} {DPP}')
        tag_apply(range(R2, R2 + 4), 75)
        a(f'buffer_store_dwordx4 v[{R2}:{R2+3}], v{vRG}, s[68:71], s101 offen sc1')
    a('L_fin:')
    if stamps:
        stamp(8, True)
        if not est: a(f'v_writelane_b32 v{VST}, s96, 7')
        a('L_probe:')
        if probe is not None:
            i, K, base, j0, who = probe
            a('s_cmp_eq_u32 s3, 8')
            if who == 's': a('s_cbranch_scc1 L_end')
            if who == 'h': a('s_cbranch_scc0 L_end')
            a(f'v_readlane_b32 s82, v{VST}, 0')
            a(f'v_readlane_b32 s83, v{VST}, {i}')
            a(f'v_readlane_b32 s84, v{VST}, {j0}')
            a('s_sub_u32 s83, s83, s84')
            a(f's_mul_i32 s83, s83, {K}')
            a(f's_add_u32 s83, s83, {base}')
            a('L_spin:')
            a('s_sleep 2')
            a('s_memrealtime s[96:97]')
            a('s_waitcnt lgkmcnt(0)')
            a('s_sub_u32 s84, s96, s82')
            a('s_cmp_lt_u32 s84, s83')
            a('s_cbranch_scc1 L_spin')
        else:
            a('s_cmp_eq_u32 s3, 8')
            a('s_cbranch_scc1 L_nosl')
            a('s_sleep 127')
            a('s_sleep 127')
            a('L_nosl:')
            a('s_mul_i32 s82, s2, 9')
            a('s_add_u32 s82, s82, s3')
            a('s_lshl_b32 s82, s82, 8')
            a(f's_add_u32 s82, s82, {STAMP_OFF}')
            a('v_lshlrev_b32 v5, 2, v1')
            a(f'buffer_store_dword v{VST}, v5, s[68:71], s82 offen')
    a('L_end:')
    a('s_endpgm')

    a.vm = []; a.vm_done = 0
    a('L_helper:')
    inhelper[0] = True
    a('v_mul_u32_u24 v3, 122880, v6')
    a('v_add_u32 v3, v3, v5')
    a('v_mul_u32_u24 v4, 30720, v6')
    a('v_add_u32 v4, v4, v5')
    a(f'v_mov_b32 v2, {OOB}')
    a('v_cmp_gt_u32 vcc, 6, v7')
    a('v_cndmask_b32 v4, v2, v4, vcc')
    a('v_mul_u32_u24 v8, 20, v6')
    a('v_lshlrev_b32 v9, 4, v1')
    a('v_mov_b32 v73, 0')
    if not eb:
        a(f'ds_write_b32 v73, v73 offset:{FLAG}')
        a(f'ds_write_b32 v73, v73 offset:{FL}')
        a(f'v_mov_b32 v10, {8*D}')
        a(f'ds_write_b32 v73, v10 offset:{CNT}')
    HM = 12; HA = 16; HACC = 24; HX = 56
    a('s_mul_i32 s83, s31, 983040')
    a('s_mul_i32 s84, s30, 384')
    a('s_add_u32 s83, s83, s84')
    a('s_mul_i32 s85, s31, 245760')
    a('s_mul_i32 s84, s30, 96')
    a('s_add_u32 s85, s85, s84')
    a('s_mul_i32 s98, s31, 160')
    for r in (43, 47, 59, 63, 67):
        a(f's_mov_b32 s{r}, 0x20000')
    a('s_sub_u32 s42, 7864320, s83')
    a('s_sub_u32 s46, 1966080, s85')
    if dbg_nowq & 1: a('s_mov_b32 s42, 0')
    if dbg_nowq & 2: a('s_mov_b32 s46, 0')
    a('s_sub_u32 s58, 2560, s98')
    a('s_sub_u32 s62, 1280, s98')
    a('s_mov_b32 s66, 96')
    a('s_waitcnt lgkmcnt(0)')
    srd(56, 4, 's98'); srd(40, 10, 's83'); srd(44, 16, 's85'); srd(60, 22, 's98'); srd(64, 18, 's84')
    a.vmem(f'buffer_load_dwordx4 v[{HX}:{HX+3}], v8, s[56:59], 0 offen')
    a.vmem(f'buffer_load_dword v{HX+4}, v8, s[56:59], 0 offen offset:16')
    a.vmem(f'buffer_load_dwordx4 v[{HX+6}:{HX+9}], v8, s[56:59], 0 offen offset:1280')
    a.vmem(f'buffer_load_dword v{HX+10}, v8, s[56:59], 0 offen offset:1296')
    hfree = list(range(76, top, 4))
    hslot = {}
    def hissue(tag):
        r = hfree.pop(0); hslot[tag] = r
        t = tag[0]
        if tag[1] == 0 and t:
            a(f's_mov_b32 s87, {t*12288}'); a(f's_mov_b32 s86, {t*3072}')
        if tag[1] < 3:
            a.vmem(f'buffer_load_dwordx4 v[{r}:{r+3}], v3, s[40:43], {"s87" if t else "0"} offen offset:{tag[1]*128} {w_cache}', tag)
        else:
            a.vmem(f'buffer_load_dwordx4 v[{r}:{r+3}], v4, s[44:47], {"s86" if t else "0"} offen {w_cache}', tag)
    hl = [(t, s) for t in range(10) for s in range(4)]
    nfirst = min(hwin, len(hfree)) // 4 * 4
    for tag in hl[:nfirst]: hissue(tag)
    hl = hl[nfirst:]
    a.vmem(f'buffer_load_dwordx4 v[{HX+12}:{HX+15}], v8, s[60:63], 0 offen')
    a.vmem(f'buffer_load_dword v{HX+16}, v8, s[60:63], 0 offen offset:16')
    a('v_and_b32 v10, 15, v1')
    a('v_lshlrev_b32 v10, 3, v10')
    a.vmem(f'buffer_load_dwordx2 v[74:75], v10, s[64:67], 0 offen', 'b1')
    if not eb: a('s_barrier')
    if hnear:
        a('s_branch L_helper2')
        a('@HEAD_END@')
        a('L_helper2:')
    a('s_mov_b32 s89, 0x01000100')
    a('s_mov_b32 s90, 0x03020302')
    a('s_mov_b32 s91, 0x3f803f80')
    masks(HM, 10, 11)
    ws_setup()
    if qpre:
        a(f's_add_u32 s82, s99, {FAST}')
        a.vmem(f'buffer_load_dword v{top}, v9, s[68:71], s82 offen')
        a.vmem(f'buffer_load_dword v{top}, v9, s[68:71], s82 offen offset:1024')
    stamp(1)
    hai = 0
    for t in range(10):
        a.wait_tag((t, 3))
        for bb in range(2):
            xr = HX + 6 * bb + t // 2
            a(f'v_perm_b32 v11, v{xr}, v{xr}, s{89 + (t & 1)}')
            A = HA + 4 * (hai & 1); hai += 1
            for r in range(4): a(f'v_and_b32 v{A+r}, v11, v{HM+r}')
            for s in range(4):
                r = hslot[(t, s)]; acc = HACC + 16 * bb + 4 * s
                c = '0' if t == 0 else f'v[{acc}:{acc+3}]'
                a(f'v_mfma_f32_16x16x32_bf16 v[{acc}:{acc+3}], v[{A}:{A+3}], v[{r}:{r+3}], {c}')
        for s in range(4): hfree.append(hslot[(t, s)])
        for tag in hl[:4]: hissue(tag)
        hl = hl[4:]
        if t == 6:
            a.wait_tag('b1')
            for bb, Gr in ((0, 61), (1, 67)):
                for i in range(5):
                    if gmimic:
                        xr, gr = HX + 6 * bb + i, HX + 12 + i
                        a(f'v_lshlrev_b32 v2, 16, v{xr}')
                        a(f'v_lshlrev_b32 v10, 16, v{gr}')
                        a('v_mul_f32 v2, v2, v10')
                        a(f'v_and_b32 v8, 0xffff0000, v{xr}')
                        a(f'v_and_b32 v10, 0xffff0000, v{gr}')
                        a('v_mul_f32 v8, v8, v10')
                        a('v_cvt_pk_bf16_f32 v2, v2, v8')
                        a(f'v_dot2_f32_bf16 v{Gr}, v2, s91, {"0" if i == 0 else f"v{Gr}"}')
                    else:
                        a(f'v_dot2_f32_bf16 v{Gr}, v{HX+6*bb+i}, v{HX+12+i}, {"0" if i == 0 else f"v{Gr}"}')
            xlane('v_add_f32', 61, 10)
            xlane('v_add_f32', 67, 10)
    stamp(2)
    a('v_lshrrev_b32 v16, 5, v1')
    a('v_lshlrev_b32 v16, 10, v16')
    a('v_and_b32 v11, 1, v6')
    a('v_lshl_add_u32 v16, v11, 8, v16')
    a('v_lshl_add_u32 v16, v7, 5, v16')
    a('v_bfe_u32 v11, v1, 4, 1')
    a('v_lshl_add_u32 v16, v11, 4, v16')
    for s in range(4):
        for r in range(4):
            a(f'v_permlane32_swap_b32 v{HACC+4*s+r}, v{HACC+16+4*s+r}')
    P = 76
    for u in range(2):
        for r in range(4):
            Ae, Be = HACC + 8 * u + r, HACC + 16 + 8 * u + r
            a(f'v_add_f32_dpp v{P+4*u+r}, v{Be}, v{Ae} row_ror:8 {DPP}')
        for r in range(4):
            Ao, Bo = HACC + 8 * u + 4 + r, HACC + 16 + 8 * u + 4 + r
            a(f'v_add_f32_dpp v{P+4*u+r}, v{Ao}, v{Bo} row_ror:8 row_mask:0xf bank_mask:0xc')
    a(f's_mov_b64 exec, {1 << 14}')
    a(f'v_mov_b32 v{P+4}, v61')
    a('s_mov_b32 exec_lo, 0')
    a(f's_mov_b32 exec_hi, {1 << 14}')
    a(f'v_mov_b32 v{P+4}, v67')
    a('s_mov_b64 exec, -1')
    a('s_getreg_b32 s88, hwreg(HW_REG_XCC_ID)')
    a('s_and_b32 s88, s88, 15')
    a('s_lshl_b32 s88, s88, 23')
    a(f'v_writelane_b32 v{P+5}, s88, 14')
    a('s_waitcnt lgkmcnt(0)')
    tag_finish()
    a('v_mov_b32 v11, s78')
    tag_apply(range(P, P + 8), 11)
    slow_q = [f'buffer_store_dwordx4 v[{P}:{P+3}], v16, s[68:71], s99 offen sc1',
              f'buffer_store_dwordx4 v[{P+4}:{P+7}], v16, s[68:71], s99 offen offset:512 sc1']
    a(f's_add_u32 s82, s99, {FAST}')
    a(f'buffer_store_dwordx4 v[{P}:{P+3}], v16, s[68:71], s82 offen')
    a(f'buffer_store_dwordx4 v[{P+4}:{P+7}], v16, s[68:71], s82 offen offset:512')
    stamp(3)
    a('@TPRE@')
    a('v_add_u32 v12, 4096, v9')
    a('s_lshl_b32 s93, s30, 14')
    a(f's_add_u32 s93, s93, {FAST}')
    a('s_add_u32 s94, s93, 8192')
    a(f's_mov_b32 s76, {nfast}')
    a('v_lshlrev_b32 v17, 11, v6')
    a('v_and_b32 v18, 3, v1')
    a('v_lshl_add_u32 v17, v18, 4, v17')
    a('v_bfe_u32 v18, v1, 2, 1')
    a('v_lshl_add_u32 v17, v18, 9, v17')
    stamp(4)
    QD = [24, 84]
    a('L_qpoll:')
    if sind:
        a('s_add_u32 s40, s28, s93')
        a('s_addc_u32 s41, s29, 0')
        for p in range(8): a(f's_load_dword s{44+p}, s[40:41], {p*2048 + 1536} glc')
        a('s_waitcnt lgkmcnt(0)')
        for p in range(8): a(f's_xor_b32 s{44+p}, s{44+p}, s78')
        for p in range(1, 8): a(f's_or_b32 s44, s44, s{44+p}')
        a(f's_and_b32 s44, s44, {TM}')
        a('s_cbranch_scc1 L_qfail')
    else:
        a(f'buffer_load_dwordx4 v[24:27], v17, s[68:71], s93 offen sc1')
        a('s_waitcnt vmcnt(0)')
        tag_check(range(24, 28), 14, 15)
        a('s_cbranch_vccnz L_qfail')
    for b in range(2):
        for p in range(8):
            vo = 'v9' if (p & 3) < 2 else 'v12'
            so = 's93' if p < 4 else 's94'
            a(f'buffer_load_dwordx4 v[{QD[b]+4*p}:{QD[b]+4*p+3}], {vo}, s[68:71], {so} offen offset:{(p & 1)*2048 + b*1024} sc1')
    a('s_waitcnt vmcnt(0)')
    tag_check(list(range(QD[0], QD[0] + 32)) + list(range(QD[1], QD[1] + 32)), 14, 15)
    a('s_cbranch_vccz L_qok0')
    a('L_qfail:')
    if qsleep: a(f's_sleep {qsleep}')
    a('s_sub_u32 s76, s76, 1')
    a('s_cbranch_scc0 L_qnosw')
    for t in slow_q: a(t)
    a('L_qnosw:')
    a('s_cmp_lt_i32 s76, 0')
    a(f's_cselect_b32 s82, {FAST}, 0')
    for r in (93, 94): a(f's_xor_b32 s{r}, s{r}, s82')
    a('s_sub_u32 s92, s92, 1')
    a('s_cbranch_scc0 L_qpoll')
    a('s_endpgm')
    a('L_qok0:')
    for p in range(8): a(f'v_xor_b32 v{56+p}, s88, v{QD[0]+4*p+1}')
    a('v_or3_b32 v14, v56, v57, v58')
    a('v_or3_b32 v15, v59, v60, v61')
    a('v_or3_b32 v14, v14, v62, v63')
    a('v_or_b32 v14, v14, v15')
    a('v_readlane_b32 s86, v14, 60')
    a('s_cmp_lg_u32 s86, 0')
    a('s_cselect_b32 s86, 2, 1')
    a('s_cbranch_scc0 L_qok')
    a('s_cmp_lt_i32 s76, 0')
    a('s_cbranch_scc1 L_qok')
    for t in slow_q: a(t)
    a('L_qok:')
    a('v_lshlrev_b32 v10, 3, v1')
    for b in range(2):
        for st in (4, 8, 16):
            for b0 in range(QD[b], QD[b] + 32, 2 * st):
                for r in range(4): a(f'v_add_f32 v{b0+r}, v{b0+r}, v{b0+st+r}')
        a(f'v_cvt_pk_bf16_f32 v{QD[b]+4}, v{QD[b]}, v{QD[b]+1}')
        a(f'v_cvt_pk_bf16_f32 v{QD[b]+5}, v{QD[b]+2}, v{QD[b]+3}')
        a(f'ds_write_b64 v10, v[{QD[b]+4}:{QD[b]+5}] offset:{QBF + 512*b}')
    a('v_mov_b32 v10, s86')
    a(f'ds_write_b32 v73, v10 offset:{FLAG}')
    stamp(5)
    HD = QD[1]
    for r in range(4): a(f'v_permlane16_swap_b32 v{QD[0]+r}, v{HD+r}')
    Gq = 32; OMG = 33
    a(f'v_mov_b32_dpp v{Gq}, v{HD} row_newbcast:12 {DPP}')
    a(f'v_cvt_pk_bf16_f32 v{Gq}, v{Gq}, v{Gq}')
    a(f'v_and_b32 v{Gq}, 0xffff0000, v{Gq}')
    a(f'v_mul_f32 v{Gq}, {f2u(-LOG2E)}, v{Gq}')
    a(f'v_exp_f32 v{Gq}, v{Gq}')
    a(f'v_add_f32 v{Gq}, 1.0, v{Gq}')
    a(f'v_rcp_f32 v{Gq}, v{Gq}')
    a(f'v_cvt_pk_bf16_f32 v{Gq}, v{Gq}, v{Gq}')
    a(f'v_and_b32 v{Gq}, 0xffff0000, v{Gq}')
    a(f'v_sub_f32 v{OMG}, 1.0, v{Gq}')
    a(f'v_cvt_pk_bf16_f32 v{OMG}, v{OMG}, v{OMG}')
    a(f'v_and_b32 v{OMG}, 0xffff0000, v{OMG}')
    a(f's_mov_b32 s83, {f2u(-LOG2E)}')
    for pr in range(2):
        h0, h1 = HD + 2 * pr, HD + 2 * pr + 1
        a(f'v_cvt_pk_bf16_f32 v{h0}, v{h0}, v{h1}')
        a(f'v_and_b32 v{h1}, 0xffff0000, v{h0}')
        a(f'v_lshlrev_b32 v{h0}, 16, v{h0}')
        a(f'v_and_b32 v35, 0xffff0000, v{74+pr}')
        a(f'v_lshlrev_b32 v34, 16, v{74+pr}')
        a(f'v_add_f32 v{h0}, v{h0}, v34')
        a(f'v_add_f32 v{h1}, v{h1}, v35')
        a(f'v_cvt_pk_bf16_f32 v{h0}, v{h0}, v{h1}')
        a(f'v_and_b32 v{h1}, 0xffff0000, v{h0}')
        a(f'v_lshlrev_b32 v{h0}, 16, v{h0}')
    for i in range(4):
        h = HD + i; t = 36; tq = 37; nu = 38; de = 39
        a(f'v_mul_f32 v{t}, s83, abs(v{h})')
        a(f'v_exp_f32 v{t}, v{t}')
        a(f'v_cmp_lt_f32 vcc, 0, v{h}')
        a(f'v_mul_f32 v{tq}, v{t}, v{t}')
        a(f'v_cndmask_b32 v{nu}, v{tq}, 1.0, vcc')
        a(f'v_cndmask_b32 v{de}, 1.0, v{tq}, vcc')
        a(f'v_fma_f32 v{nu}, v{t}, 2.0, v{nu}')
        a(f'v_fma_f32 v{de}, v{de}, 2.0, v{nu}')
        a(f'v_rcp_f32 v{de}, v{de}')
        a(f'v_mul_f32 v{nu}, v{nu}, v{h}')
        a(f'v_mul_f32 v{nu}, v{nu}, v{de}')
        a(f'v_cvt_pk_bf16_f32 v{nu}, v{nu}, v{nu}')
        a(f'v_and_b32 v{nu}, 0xffff0000, v{nu}')
        a(f'v_mul_f32 v{nu}, v{nu}, v{OMG}')
        a(f'v_cvt_pk_bf16_f32 v{40+i}, v{nu}, v{nu}')
    a('v_and_b32 v10, 31, v1')
    a('v_lshlrev_b32 v11, 2, v10')
    a('v_lshlrev_b32 v10, 4, v10')
    a('s_mov_b32 exec_lo, 0')
    a(f'ds_write_b32 v11, v{Gq} offset:{GV}')
    a(f'ds_write_b128 v10, v[40:43] offset:{ACT}')
    a('s_mov_b64 exec, 1')
    a('v_mov_b32 v10, 1')
    a(f'ds_add_u32 v73, v10 offset:{FL}')
    a('s_mov_b64 exec, -1')
    a('s_waitcnt lgkmcnt(0)')
    stamp(6)
    def tlbpre():
        a('s_mul_i32 s82, s30, 1572864')
        a('v_and_b32 v21, 1, v1')
        a('v_mul_u32_u24 v21, 1572736, v21')
        a('v_bfe_u32 v22, v1, 1, 1')
        a('s_mov_b32 s83, 50331648')
        a('v_mul_lo_u32 v22, v22, s83')
        a('v_add3_u32 v21, v21, v22, s82')
        a('s_mul_i32 s82, s30, 245760')
        a('v_mov_b32 v22, s82')
        a('s_mul_i32 s82, s30, 61440')
        a('v_mov_b32 v23, s82')
        a('s_mov_b64 exec, 15')
        a(f'global_load_dword v{top}, v21, s[6:7] nt')
        a(f'global_load_dword v{top}, v21, s[8:9] nt')
        a('s_mov_b64 exec, 1')
        a(f'global_load_dword v{top}, v22, s[12:13] nt')
        a(f'global_load_dword v{top}, v23, s[20:21] nt')
        a(f'global_load_dword v{top}, v73, s[24:25] nt')
        a('s_mov_b64 exec, -1')
    if tpre == 2: tlbpre()
    if opre == 1:
        a(f'buffer_load_dword v{top}, v9, s[68:71], s100 offen')
        a(f'buffer_load_dword v{top}, v9, s[68:71], s100 offen offset:1024')
    if opre == 2: a('v_mov_b32 v20, v9')
    if ypre:
        a('s_mov_b32 exec_hi, 0xff')
        a('buffer_load_dwordx4 v[44:47], v9, s[68:71], s101 offen')
    if ctl:
        a('s_and_b32 s82, s2, 7')
        a('s_mul_i32 s82, s82, 4352')
        a(f's_add_u32 s82, s82, {MBOX}')
        a('s_lshr_b32 s83, s2, 3')
        a('s_lshl_b32 s83, s83, 2')
        a('s_add_u32 s83, s83, s82')
        a('s_and_b32 s84, s79, 0x3fffff')
        a('s_mov_b32 s85, 0')
        if glob:
            a('v_lshlrev_b32 v11, 2, v1')
            a(f'v_mul_u32_u24 v13, {GS}, v1')
            a('s_cmp_ge_u32 s2, 248')
            a(f's_cselect_b32 s60, {gP0}, -1')
            a(f's_mov_b32 s61, {GBOX}')
            a('s_and_b32 s59, s2, 7')
            a(f's_mul_i32 s58, s59, {GS}')
            a('s_add_u32 s43, s82, 128')
            a('s_mov_b32 s57, 0')
        a('s_mov_b32 exec_hi, 0')
        a('L_c:')
        a(f'ds_read_b32 v10, v73 offset:{CNT}')
        if xphase: a('s_memrealtime s[62:63]')
        a('s_waitcnt lgkmcnt(0)')
        a('v_subrev_u32 v10, s85, v10')
        if xphase:
            a(f's_mul_i32 s64, s62, {rmul}')
            a('s_lshr_b32 s64, s64, 8')
            a('v_subrev_u32 v16, s64, v10')
            a('v_lshl_or_b32 v12, v16, 22, s84')
        else:
            a('v_lshl_or_b32 v12, v10, 22, s84')
        a('s_mov_b32 exec_lo, 1')
        a('buffer_store_dword v12, off, s[68:71], s83')
        a('s_mov_b32 exec_lo, -1')
        if glob: a('s_mov_b32 exec_hi, 1')
        a('buffer_load_dword v9, v11, s[68:71], s82 offen sc1')
        if glob: a('s_mov_b32 exec_hi, 0')
        a('v_readfirstlane_b32 s86, v10')
        if glob:
            a('s_cmp_lt_u32 s86, s60')
            a('s_cbranch_scc1 L_g1')
            if not xphase: a('s_memrealtime s[62:63]')
            a('s_mov_b32 exec_lo, 0xff')
            a('buffer_load_dword v14, v13, s[68:71], s61 offen sc1')
            a('s_mov_b32 exec_lo, -1')
            a('L_g1:')
        a('s_waitcnt vmcnt(0)')
        if glob:
            a('v_readlane_b32 s44, v9, 32')
            a('s_and_b32 s45, s44, 0x3fffff')
            a('s_ashr_i32 s44, s44, 22')
            a('s_cmp_eq_u32 s45, s84')
            a('s_cselect_b32 s44, s44, 0')
        if xphase:
            a('v_sub_u32 v9, v9, v12')
            a('v_and_b32 v12, 0x3fffff, v9')
            a('v_ashrrev_i32 v9, 22, v9')
            a('v_cmp_eq_u32 vcc, 0, v12')
            a('v_cndmask_b32 v9, 0, v9, vcc')
            a(f'v_add3_u32 v9, v9, v10, {comp}')
        else:
            a('v_and_b32 v12, 0x3fffff, v9')
            a('v_lshrrev_b32 v9, 22, v9')
            a(f'v_add_u32 v9, {comp}, v9')
            a('v_cmp_eq_u32 vcc, s84, v12')
            a('v_cndmask_b32 v9, v10, v9, vcc')
        for pat in RED8 + ('row_mirror',):
            a(f'v_add_u32_dpp v9, v9, v9 {pat} {DPP}')
        a('v_readlane_b32 s87, v9, 0')
        a('v_readlane_b32 s88, v9, 16')
        a('s_add_u32 s87, s87, s88')
        a('s_lshr_b32 s87, s87, 5')
        if glob:
            a('s_cmp_lt_u32 s86, s60')
            a('s_cbranch_scc1 L_g2')
            a('s_waitcnt lgkmcnt(0)')
            a(f's_mul_i32 s64, s62, {rmul}')
            a('s_lshr_b32 s64, s64, 8')
            a('s_sub_u32 s64, s87, s64')
            a('s_lshl_b32 s64, s64, 22')
            a('s_or_b32 s64, s64, s84')
            a(f's_add_u32 s61, s61, {8*GS}')
            a('s_add_u32 s45, s61, s58')
            a('v_mov_b32 v12, s64')
            a('s_mov_b32 exec_lo, 1')
            a('buffer_store_dword v12, off, s[68:71], s45 sc1')
            a('s_mov_b32 exec_lo, 0xff')
            a(f's_add_u32 s60, s60, {gD}')
            a(f's_cmp_gt_u32 s60, {gend}')
            a('s_cselect_b32 s60, -1, s60')
            a('v_subrev_u32 v14, s57, v14')
            a('v_and_b32 v12, 0x3fffff, v14')
            a('v_ashrrev_i32 v14, 22, v14')
            a('v_cmp_eq_u32 vcc, 0, v12')
            a(f'v_cndmask_b32 v14, {-min(gD, 16) if False else 0}, v14, vcc') if False else None
            a(f'v_mov_b32 v15, {-gD}')
            a('v_cndmask_b32 v14, v15, v14, vcc')
            for pat in RED8:
                a(f'v_add_u32_dpp v14, v14, v14 {pat} {DPP}')
            a('v_readfirstlane_b32 s46, v14')
            if gsw:
                a(f's_cmp_ge_u32 s86, {gsw}')
                a(f's_cselect_b32 s45, {gnum2}, {gnum}')
                a('s_mul_i32 s46, s46, s45')
            elif gnum != 1: a(f's_mul_i32 s46, s46, {gnum}')
            a(f's_ashr_i32 s46, s46, {3 + gsh2}')
            a(f's_min_i32 s46, s46, {gclamp}')
            a(f's_max_i32 s46, s46, {-gclamp}')
            a('s_cmp_eq_u32 s57, 0')
            a('s_cselect_b32 s46, 0, s46')
            a('s_mov_b32 s57, s64')
            a('s_lshl_b32 s46, s46, 22')
            a('s_or_b32 s46, s46, s84')
            a('v_mov_b32 v12, s46')
            a('s_mov_b32 exec_lo, 1')
            a('buffer_store_dword v12, off, s[68:71], s43')
            a('s_mov_b32 exec_lo, -1')
            a('L_g2:')
        a('s_sub_i32 s87, s87, s86')
        if glob: a('s_add_i32 s87, s87, s44')
        a('s_sub_i32 s88, s87, s85')
        a('s_mov_b32 s85, s87')
        a('v_mov_b32 v9, s88')
        a('s_mov_b32 exec_lo, 1')
        a(f'ds_add_u32 v73, v9 offset:{CNT}')
        a('s_mov_b32 exec_lo, -1')
        a(f's_cmp_ge_u32 s86, {cend}')
        a('s_cbranch_scc1 L_cd')
        a('s_sub_u32 s92, s92, 1')
        a('s_cbranch_scc0 L_c')
        a('s_endpgm')
        a('L_cd:')
    a('s_mov_b64 exec, -1')
    def wprefetch():
        a('s_lshl_b32 s82, s30, 3')
        a('s_add_u32 s82, s82, s31')
        a('s_mul_i32 s83, s82, 30720')
        srd(48, 12, 's83'); a('s_mov_b32 s50, 30720'); a('s_mov_b32 s51, 0x20000')
        a('s_mul_i32 s83, s82, 7680')
        srd(52, 20, 's83'); a('s_mov_b32 s54, 7680'); a('s_mov_b32 s55, 0x20000')
        a('v_lshlrev_b32 v21, 7, v1')
        if wpre == 2: a('s_barrier')
        for i in range(4):
            if i: a(f's_mov_b32 s83, {i*8192}')
            a(f'buffer_load_dword v{22+i}, v21, s[48:51], {"s83" if i else "0"} offen {wpre_cache}')
        a(f'buffer_load_dword v26, v21, s[52:55], 0 offen {wpre_cache}')
    if wpre: wprefetch()
    if opre == 2:
        a(f'buffer_load_dword v{top}, v20, s[68:71], s100 offen')
        a(f'buffer_load_dword v{top}, v20, s[68:71], s100 offen offset:1024')
    if not wpre:
        a('s_cmp_ge_u32 s2, 160')
        a('s_cbranch_scc1 ' + ('L_end' if (probe is not None or not stamps) else 'L_hend'))
    a('s_lshr_b32 s82, s2, 5')
    a('s_lshl_b32 s82, s82, 3')
    a('s_and_b32 s83, s2, 7')
    a('s_add_u32 s82, s82, s83')
    a('s_lshl_b32 s82, s82, 2')
    a(f's_bfe_u32 s83, s2, {3 | (2 << 16)}')
    a('s_add_u32 s85, s82, s83')
    a('s_mul_i32 s82, s85, 205')
    a('s_lshr_b32 s82, s82, 12')
    a('s_mul_i32 s83, s82, 20')
    a('s_sub_u32 s83, s85, s83')
    if remap & 4:
        a('s_and_b32 s82, s2, 7')
        a('s_lshr_b32 s83, s2, 3')
    a('s_mul_i32 s84, s82, 20480')
    a('s_lshl_b32 s81, s83, 5')
    a('s_add_u32 s84, s84, s81')
    a(f's_add_u32 s98, s84, {YOFF}')
    srd(72, 24, None); a('s_mov_b32 s74, 2560'); a('s_mov_b32 s75, 0x20000')
    vF, vOUT, F = 8, 9, 28
    a(f'v_lshrrev_b32 v{vF}, 1, v1')
    a(f'v_mul_u32_u24 v{vF}, 640, v{vF}')
    a('v_and_b32 v10, 1, v1')
    a(f'v_lshl_add_u32 v{vF}, v10, 4, v{vF}')
    if ytr:
        a('s_mul_i32 s99, s82, 160')
        a('s_lshr_b32 s84, s83, 2')
        a('s_lshl_b32 s84, s84, 5')
        a('s_and_b32 s81, s83, 3')
        a('s_add_u32 s84, s84, s81')
        a(f'v_lshl_add_u32 v{vOUT}, v10, 4, s84')
        a('v_lshrrev_b32 v10, 4, v1')
        a(f'v_lshl_add_u32 v{vOUT}, v10, 2, v{vOUT}')
        a(f'v_cmp_lt_u32 vcc, 79, v{vOUT}')
        a(f'v_add_u32 v10, 560, v{vOUT}')
        a(f'v_cndmask_b32 v{vOUT}, v{vOUT}, v10, vcc')
        a(f'v_lshlrev_b32 v{vOUT}, 1, v{vOUT}')
    else:
        a('s_cmp_ge_u32 s83, 10')
        a('s_cselect_b32 s84, 1120, 0')
        a('s_lshl_b32 s81, s83, 4')
        a('s_add_u32 s84, s84, s81')
        a('s_mul_i32 s81, s82, 160')
        a('s_add_u32 s99, s84, s81')
        a(f'v_lshlrev_b32 v{vOUT}, 3, v10')
        a('v_lshrrev_b32 v10, 4, v1')
        a(f'v_lshl_add_u32 v{vOUT}, v10, 1, v{vOUT}')
    a('v_mov_b32 v11, s79')
    a(f's_mov_b32 s82, {EOFF}')
    a('s_waitcnt lgkmcnt(0)')
    if wpre != 2: a('s_barrier')
    a('s_barrier')
    a('s_barrier')
    if wpre:
        a('s_cmp_ge_u32 s2, 160')
        a('s_cbranch_scc1 ' + ('L_end' if (probe is not None or not stamps) else 'L_hend'))
    stamp(7)
    a('L_poll2:')
    a(f'buffer_load_dwordx4 v[{F}:{F+3}], v{vF}, s[68:71], s98 offen sc1')
    a('s_waitcnt vmcnt(0)')
    tag_check(range(F, F + 4), 14, 15)
    a('s_cbranch_vccz L_poll2d')
    if pmask: a('s_mov_b64 exec, vcc')
    if psleep2: a(f's_sleep {psleep2}')
    a('s_sub_u32 s92, s92, 1')
    a('s_cbranch_scc0 L_poll2')
    a('s_endpgm')
    a('L_poll2d:')
    if pmask: a('s_mov_b64 exec, -1')
    a(f'v_permlane16_swap_b32 v{F}, v{F+1}')
    a(f'v_permlane16_swap_b32 v{F+2}, v{F+3}')
    a(f'v_add_f32 v{F}, v{F}, v{F+1}')
    a(f'v_add_f32 v{F+2}, v{F+2}, v{F+3}')
    a(f'v_permlane32_swap_b32 v{F}, v{F+2}')
    a(f'v_add_f32 v{F}, v{F}, v{F+2}')
    a(f'v_add_f32_dpp v{F}, v{F}, v{F} quad_perm:[2,3,0,1] {DPP}')
    a(f'v_add_f32_dpp v{F}, v{F}, v{F} row_ror:4 {DPP}')
    a(f'v_add_f32_dpp v{F}, v{F}, v{F} row_ror:8 {DPP}')
    a('s_mov_b32 exec_lo, 0x00030003')
    a('s_mov_b32 exec_hi, 0x00030003')
    a(f'v_cvt_pk_bf16_f32 v{F}, v{F}, v{F}')
    a(f'buffer_store_short v{F}, v{vOUT}, s[72:75], s99 offen')
    a('s_cmp_lg_u32 s2, 0')
    a('s_cbranch_scc1 L_hend')
    a('s_mov_b64 exec, 1')
    a('buffer_store_dword v11, off, s[68:71], s82')
    a('L_hend:')
    if stamps:
        a('s_mov_b64 exec, -1')
        stamp(8)
        a('s_branch L_probe')
    a('s_endpgm')

    a('L_codeend:')
    ip = a.lines.index('@TPRE@')
    rest = a.lines[ip+1:]; a.lines = a.lines[:ip]
    if tpre == 1: tlbpre()
    a.lines += rest
    if hnear:
        L = a.lines
        i0 = L.index('L_helper:'); i1 = L.index('@HEAD_END@'); ih = L.index('@HELPER_HEAD@')
        head = L[i0:i1]
        a.lines = L[:ih] + head + L[ih+1:i0] + L[i1+1:]
    body = a.finalize()
    out = HEADER
    out += f'; @launch grid=(256,1,1) block=(576,1,1) lds={LDS_BYTES}\n'
    out += '.amdgcn_target "amdgcn-amd-amdhsa--gfx950"\n.text\n'
    out += f'.globl {KNAME}_kernel\n.p2align 8\n.type {KNAME}_kernel,@function\n'
    for l in body:
        out += (l if l.endswith(':') else '    ' + l) + '\n'
    out += f'''.section .rodata,"a"
.p2align 6
.amdhsa_kernel {KNAME}_kernel
  .amdhsa_next_free_vgpr {NV}
  .amdhsa_next_free_sgpr 102
  .amdhsa_accum_offset {NV}
  .amdhsa_group_segment_fixed_size 0
  .amdhsa_kernarg_size 104
  .amdhsa_user_sgpr_count 2
  .amdhsa_user_sgpr_kernarg_segment_ptr 1
  .amdhsa_system_sgpr_workgroup_id_x 1
  .amdhsa_float_denorm_mode_32 3
.end_amdhsa_kernel
'''
    return out

if __name__ == '__main__':
    kw = eval('dict(' + (sys.argv[2] if len(sys.argv) > 2 else '') + ')')
    open(sys.argv[1], 'w').write(gen(**kw))
```

```python
import sys, math, struct
from asmlib import Asm
KNAME = 'gated_mix__gqa_block_cached__dense_activation_mish__decode'
HEADER = open('cdna_kernels/' + KNAME + '.s.ref').read().split('; Override launch')[0]

def f2u(x): return struct.unpack('<I', struct.pack('<f', x))[0]
LOG2E = 1.4426950408889634
OOB = 0x80000000
OOFF = 512 * 1024
FAST = 1 << 20
YOFF = 1536 * 1024
EOFF = 1792 * 1024
MBOX = 1796 * 1024
GBOX = 1856 * 1024
STAMP_OFF = 2 << 20
WS_REC = 4 << 20
TM = 0x3ff
OS = 848
OP1 = 16 * OS
QBF = 32 * OS
ACT = QBF + 1024
GV = ACT + 512
FLAG = GV + 128
CNT = FLAG + 4
FL = FLAG + 8
MW = FLAG + 16
YP = MW + 64
LDS_BYTES = YP + 8 * 640 + 256
DPP = 'row_mask:0xf bank_mask:0xf'
RED8 = ('quad_perm:[1,0,3,2]', 'quad_perm:[2,3,0,1]', 'row_half_mirror')
NV = 168

def gen(D=3, nb=30, catchup=2, stamps=False, kv_cache='nt', w_cache='nt', wo_cache='', poll_cap=1 << 18, probe=None,
        hwin=16, nfast=48, psleep=0, psleep2=1, qsleep=4, levels=((-4, 3), (13, 2)), Dmax=4, comp=6, cstart=6, cend=712,
        nlate=8, ypre=True, gm=(2, 0), ctl=True, sind=False, qpre=False, opre=0, nl1=8, l2pos=0, xfree=False, estart=9, estep=4, m1pos=9, m2a=12, m2b=13, nsp=200, Dsp=5, spadd=0, D0pat=None, eb=False, cpre=0, hnear=False, ytr=False, pmask=False, gmimic=True, glob=False, gP0=240, gD=64, gend=660, gnum=1, gsh2=1, gclamp=24, rmul=76, GS=256, gint=False, gsw=None, gnum2=1, xphase=False, wpre=0, wpre_cache='', tpre=0, dbg_nowq=0, wqmap=0, est=None, boost=None, l2n=3, l2k=1, m2late=False, remap=0, np2=1, p2gap=1):
    a = Asm()
    inhelper = [False]
    VST = NV - 1
    VZ = NV - 2
    top = NV - 4
    def stamp(i, force=False):
        if est and not force and 0 < i < 8 and not inhelper[0]: return
        if stamps:
            a('s_memrealtime s[96:97]')
            a('s_waitcnt lgkmcnt(0)')
            a(f'v_writelane_b32 v{VST}, s96, {i}')
    def srd(r, p, off):
        if off is None:
            a(f's_mov_b32 s{r}, s{p}'); a(f's_mov_b32 s{r+1}, s{p+1}')
        else:
            a(f's_add_u32 s{r}, s{p}, {off}'); a(f's_addc_u32 s{r+1}, s{p+1}, 0')
    def xlane(op, v, tmp):
        a(f'{op}_dpp v{v}, v{v}, v{v} row_ror:8 {DPP}')
        a(f'v_mov_b32 v{tmp}, v{v}')
        a(f'v_permlane16_swap_b32 v{v}, v{tmp}')
        a(f'{op} v{v}, v{v}, v{tmp}')
        a(f'v_mov_b32 v{tmp}, v{v}')
        a(f'v_permlane32_swap_b32 v{v}, v{tmp}')
        a(f'{op} v{v}, v{v}, v{tmp}')
    def masks(M, t0, t1):
        a(f'v_and_b32 v{t0}, 1, v1')
        a(f'v_lshlrev_b32 v{t0}, 4, v{t0}')
        a(f'v_mov_b32 v{t1}, 0xffff')
        a(f'v_lshlrev_b32 v{t0}, v{t0}, v{t1}')
        a(f'v_bfe_u32 v{t1}, v1, 1, 2')
        for r in range(4):
            a(f'v_cmp_eq_u32 vcc, {r}, v{t1}')
            a(f'v_cndmask_b32 v{M+r}, 0, v{t0}, vcc')
    def ws_setup():
        srd(68, 28, None)
        a(f's_mov_b32 s70, {WS_REC}')
        a('s_mov_b32 s71, 0x20000')
        a('s_lshl_b32 s99, s30, 3')
        a('s_add_u32 s99, s99, s31')
        a('s_lshl_b32 s99, s99, 11')
        a(f's_add_u32 s100, s99, {OOFF}')
        if remap & 4:
            a('s_and_b32 s101, s2, 7')
            a('s_lshl_b32 s101, s101, 5')
            a('s_lshr_b32 s76, s2, 3')
            a('s_add_u32 s101, s101, s76')
        else:
            a('s_lshl_b32 s101, s31, 5')
            a('s_add_u32 s101, s101, s30')
        a('s_mul_i32 s101, s101, 640')
        a(f's_add_u32 s101, s101, {YOFF}')
        a(f's_mov_b32 s92, {poll_cap}')
        a(f's_mov_b32 s76, {EOFF}')
        a('s_load_dword s79, s[28:29], s76')
        a(f's_mov_b32 s77, {0xffffffff ^ TM}')
    def tag_finish():
        a('s_add_u32 s79, s79, 1')
        a(f's_and_b32 s78, s79, {TM}')
    def tag_apply(regs, vt):
        for r in regs: a(f'v_and_or_b32 v{r}, v{r}, s77, v{vt}')
    def tag_check(regs, x0, x1):
        regs = list(regs)
        for r in regs: a(f'v_xor_b32 v{r}, s78, v{r}')
        if len(regs) == 4:
            a(f'v_or3_b32 v{x0}, v{regs[0]}, v{regs[1]}, v{regs[2]}')
            a(f'v_or_b32 v{x0}, v{x0}, v{regs[3]}')
        else:
            a(f'v_or3_b32 v{x0}, v{regs[0]}, v{regs[1]}, v{regs[2]}')
            a(f'v_or3_b32 v{x1}, v{regs[3]}, v{regs[4]}, v{regs[5]}')
            rr = regs[6:]; i = 0
            while len(rr) >= 2:
                d = (x0, x1)[i & 1]; i += 1
                a(f'v_or3_b32 v{d}, v{d}, v{rr[0]}, v{rr[1]}'); rr = rr[2:]
            assert not rr
            a(f'v_or_b32 v{x0}, v{x0}, v{x1}')
        a(f'v_and_b32 v{x0}, {TM}, v{x0}')
        a(f'v_cmp_ne_u32 vcc, 0, v{x0}')

    a(f'{KNAME}_kernel:')
    a('s_cmp_ge_u32 s2, 256')
    a('s_cbranch_scc1 L_end')
    a('s_load_dwordx16 s[4:19], s[0:1], 0')
    a('s_load_dwordx8 s[20:27], s[0:1], 64')
    a('s_load_dwordx2 s[28:29], s[0:1], 96')
    if stamps:
        a(f'v_mov_b32 v{VST}, 0')
        stamp(0)
    a('v_lshrrev_b32 v5, 6, v0')
    a('v_and_b32 v1, 63, v0')
    a('v_readfirstlane_b32 s3, v5')
    a('s_and_b32 s82, s2, 7')
    a('s_lshr_b32 s83, s2, 6')
    a('s_lshl_b32 s30, s82, 2')
    a('s_add_u32 s30, s30, s83')
    a(f's_bfe_u32 s31, s2, {3 | (3 << 16)}')
    a('v_lshrrev_b32 v6, 3, v1')
    a('v_and_b32 v7, 7, v1')
    a('v_lshlrev_b32 v5, 4, v7')
    if eb:
        a('v_mov_b32 v8, 0')
        a(f'v_mov_b32 v9, {8*D}')
        a('v_mov_b32 v10, 0')
        a(f'ds_write_b96 v8, v[8:10] offset:{FLAG}')
    a('s_cmp_eq_u32 s3, 8')
    if eb:
        a('s_cbranch_scc0 L_streamer')
        a('s_waitcnt lgkmcnt(0)')
        a('s_barrier')
        a('s_branch L_helper')
        a('L_streamer:')
    else:
        a('s_cbranch_scc1 L_helper')
    a('v_mul_u32_u24 v2, 384, v6')
    a('v_add_u32 v2, v2, v5')
    a(f's_mul_i32 s88, s30, {gm[0]}')
    if gm[1]:
        a(f's_mul_i32 s83, s82, {gm[1]}')
        a('s_add_u32 s88, s88, s83')
    a('s_and_b32 s88, s88, 7')
    a('s_lshl_b32 s82, s30, 6')
    a('s_add_u32 s82, s82, s31')
    a('s_lshl_b32 s82, s82, 3')
    a('s_add_u32 s82, s82, s3')
    a('s_mul_i32 s82, s82, 3072')
    a('s_sub_u32 s34, 100663296, s82')
    a('s_mov_b32 s35, 0x20000')
    a('s_mul_i32 s86, s88, 196608')
    a('s_waitcnt lgkmcnt(0)')
    srd(32, 6, 's82')
    S0 = 8; Q0 = 24; ACC = 24
    M0 = 36; A0 = 40
    vOW, vRA, vRG, vP1, vYW, vYR, vMW, vAC = range(48, 56)
    vRG1, vP2, G0, G1 = 56, 57, 58, 59
    kF = m2b + 1
    vM, vL = 60, 61
    T = list(range(62, 76))
    konly = list(range(36, 76, 4))
    free = konly + list(range(76, top, 4))
    slot = {}
    def alloc(tag):
        r = free.pop(0); slot[tag] = r; return r
    def release(tag):
        if slot[tag] not in konly: free.append(slot[tag])
    cur = {'kv': 0}
    nis = [0]; wcnt = [0]
    def window():
        n = nis[0]; wcnt[0] += 1
        def adj(d):
            if not xfree: return d - 1
            cnt = 0; k = 0
            for t in reversed(a.vm):
                if isinstance(t, tuple) and t[0] in ('k', 'v'):
                    if cnt == d - 1: break
                    cnt += 1
                k += 1
            return k
        if n >= nsp and not spadd:
            a.wait_out(adj(Dsp))
            return
        ex = spadd if n >= nsp else 0
        if boost and boost[0] <= n < boost[1] and (n - boost[0]) % boost[2] == 0: ex += 1
        if ctl and n >= cstart:
            a.wait_out(adj(Dmax + ex))
            a('s_waitcnt lgkmcnt(0)')
            a('v_readfirstlane_b32 s90, v0')
            for (delta, d) in levels:
                a(f's_cmp_lt_i32 s90, {8*n - delta}')
                a(f's_cbranch_scc0 L_go{wcnt[0]}')
                a(f's_waitcnt vmcnt({adj(d + ex)})')
            a(f'L_go{wcnt[0]}:')
        else:
            a.wait_out((D0pat[n % len(D0pat)] if D0pat else D) - 1)
    def issue(tag):
        kind = tag[0]
        r = alloc(tag)
        if kind in ('k', 'v'):
            if cur['kv'] != tag[1]:
                k = tag[1]
                a(f's_add_u32 s85, s88, {k & 7}')
                a('s_and_b32 s85, s85, 7')
                a('s_mul_i32 s86, s85, 196608')
                if k >= 8: a('s_add_u32 s86, s86, 50331648')
                cur['kv'] = k
            s0 = 32 if kind == 'k' else 36
            a.vmem(f'buffer_load_dwordx4 v[{r}:{r+3}], v2, s[{s0}:{s0+3}], s86 offen offset:{tag[2]*128} {kv_cache}', tag)
            nis[0] += 1
            if est and nis[0] in est: stamp(est.index(nis[0]) + 1, True)
            if ctl and nis[0] > D:
                a('s_mov_b64 exec, 1')
                a(f'ds_add_rtn_u32 v0, v{VZ}, v{VZ} offset:{CNT - 1}')
                a('s_mov_b64 exec, -1')
        elif kind == 'wo':
            rg = tag[1]
            if rg: a(f's_mov_b32 s87, {rg*5120}')
            a.vmem(f'buffer_load_dwordx4 v[{r}:{r+3}], v3, s[48:51], {"s87" if rg else "0"} offen {wo_cache}', tag)
        elif kind == 'w2':
            a.vmem(f'buffer_load_dwordx4 v[{r}:{r+3}], v4, s[52:55], 0 offen offset:{tag[1]*1280} {wo_cache}', tag)
    kl = [('k', k, s) for k in range(16) for s in range(3)]
    vl = [('v', k, s) for k in range(16) for s in range(3)]
    for tag in kl[:D]: issue(tag)
    if eb: a('s_barrier')
    if hnear:
        a('s_branch L_stream2')
        a('@HELPER_HEAD@')
        a('L_stream2:')
    srd(36, 8, 's82'); a('s_mov_b32 s38, s34'); a('s_mov_b32 s39, 0x20000')
    ws_setup()
    a(f's_mov_b32 s91, {f2u(LOG2E / math.sqrt(192.0))}')
    if remap & 1:
        a('s_lshr_b32 s30, s2, 3')
        a('s_and_b32 s31, s2, 7')
    a('s_mul_i32 s82, s30, 192')
    a('s_mul_i32 s83, s3, 24')
    a('s_add_u32 s82, s82, s83')
    a('s_mul_i32 s82, s82, 1280')
    a('s_mul_i32 s83, s31, 160')
    a('s_add_u32 s82, s82, s83')
    srd(48, 12, 's82')
    a('s_sub_u32 s50, 7864320, s82')
    a('s_mov_b32 s51, 0x20000')
    a('s_lshl_b32 s82, s30, 3')
    a('s_add_u32 s82, s82, s3')
    a('s_mul_i32 s82, s82, 7680')
    a('s_add_u32 s82, s82, s83')
    srd(52, 20, 's82')
    a('s_sub_u32 s54, 1966080, s82')
    a('s_mov_b32 s55, 0x20000')
    if remap & 2: a('s_lshr_b32 s30, s2, 3')
    elif remap & 1: a('s_lshr_b32 s30, s99, 14')
    a('s_lshl_b32 s93, s30, 14')
    a(f's_add_u32 s93, s93, {OOFF}')
    a('s_add_u32 s94, s93, 4096')
    a('s_add_u32 s95, s93, 8192')
    a('s_add_u32 s98, s93, 12288')
    a('v_lshrrev_b32 v8, 4, v1')
    a('v_and_b32 v9, 15, v1')
    a(f'v_mov_b32 v10, {OOB}')
    a('v_mul_u32_u24 v3, 1280, v8')
    a('v_lshl_add_u32 v3, v9, 4, v3')
    a('v_mul_u32_u24 v4, 2560, v8')
    a('v_lshl_add_u32 v4, v9, 4, v4')
    a('v_cmp_gt_u32 vcc, 3, v8')
    a('v_cndmask_b32 v4, v10, v4, vcc')
    a('v_cmp_gt_u32 vcc, 10, v9')
    a('v_cndmask_b32 v3, v10, v3, vcc')
    a('v_cndmask_b32 v4, v10, v4, vcc')
    a('v_mov_b32 v9, 0')
    a(f'v_mov_b32 v{VZ}, 1')
    if cpre == 1:
        a('s_cmp_lg_u32 s3, 7')
        a('s_cbranch_scc1 L_nocp')
        a('s_getpc_b64 s[40:41]')
        a('L_pc:')
        a(f's_sub_u32 s40, s40, L_pc-{KNAME}_kernel')
        a('s_subb_u32 s41, s41, 0')
        a('s_lshr_b32 s82, s2, 3')
        a('s_mul_i32 s82, s82, 640')
        a('v_lshl_add_u32 v10, v1, 7, s82')
        a(f'v_min_u32 v10, L_codeend-{KNAME}_kernel-4, v10')
        a('s_mov_b64 exec, 31')
        a(f'global_load_dword v{NV-3}, v10, s[40:41]')
        a('s_mov_b64 exec, -1')
        a('L_nocp:')
    if not eb: a('s_barrier')
    for tag in kl[D:nb]:
        window(); issue(tag)
    a('s_waitcnt lgkmcnt(0)')
    tag_finish()
    stamp(1)
    a('L_qw:')
    a(f'ds_read_b32 v8, v9 offset:{FLAG}')
    for s in range(3):
        a(f'ds_read_b128 v[{Q0+4*s}:{Q0+3+4*s}], v5 offset:{QBF + s*128}')
    a('s_waitcnt lgkmcnt(0)')
    a('v_readfirstlane_b32 s89, v8')
    a('s_cmp_lg_u32 s89, 0')
    a('s_cbranch_scc1 L_qwd')
    a('s_sleep 2')
    a('s_sub_u32 s92, s92, 1')
    a('s_cbranch_scc0 L_qw')
    a('s_endpgm')
    a('L_qwd:')
    stamp(2)
    abi = [0]
    def build_A(src):
        A = A0 + 4 * (abi[0] & 1); abi[0] += 1
        for r in range(4):
            a(f'v_and_b32 v{A+r}, {src}, v{M0+r}')
        return A
    def task_k(k):
        S = S0 + k
        if k == 8: a('s_waitcnt lgkmcnt(0)')
        first = True
        for s in range(3):
            r = slot[('k', k, s)]
            for i in range(4):
                c = '0' if first else f'v{S}'
                a(f'v_dot2_f32_bf16 v{S}, v{r+i}, v{Q0 + s*4 + i}, {c}')
                first = False
            release(('k', k, s))
        if k == 7:
            for s in range(3):
                a(f'ds_read_b128 v[{Q0+4*s}:{Q0+3+4*s}], v5 offset:{QBF + 512 + s*128}')
    def flush_acc(b):
        a('s_mov_b32 exec_lo, 0x00ff00ff')
        a('s_mov_b32 exec_hi, 0xff00ff00')
        for s in range(3):
            a(f'ds_write_b128 v{vOW}, v[{ACC+4*s}:{ACC+3+4*s}] offset:{b*OP1 + s*256}')
        if b == 0:
            a('s_mov_b64 exec, 1')
            a(f'ds_add_u32 v{VZ}, v{VZ} offset:{FL - 1}')
        a('s_mov_b64 exec, -1')
    def task_v(k, fine=False, after=None):
        A = build_A(f'v{S0+k}')
        if k == 8: a('s_waitcnt lgkmcnt(0)')
        for s in range(3):
            if fine: a.wait_tag(('v', k, s))
            r = slot[('v', k, s)]; acc = ACC + 4 * s
            c = '0' if k % 8 == 0 else f'v[{acc}:{acc+3}]'
            a(f'v_mfma_f32_16x16x32_bf16 v[{acc}:{acc+3}], v[{A}:{A+3}], v[{r}:{r+3}], {c}')
            release(('v', k, s))
            if after: after(k, s)
    def task_red(b):
        for pat in RED8:
            for k in range(8 * b, 8 * b + 8):
                a(f'v_add_f32_dpp v{S0+k}, v{S0+k}, v{S0+k} {pat} {DPP}')
    t0, t1, t2 = T[0], T[1], T[2]
    def task_sm1(b):
        B = S0 + 8 * b
        a(f'v_max3_f32 v{t0}, v{B}, v{B+1}, v{B+2}')
        a(f'v_max3_f32 v{t0}, v{t0}, v{B+3}, v{B+4}')
        a(f'v_max3_f32 v{t0}, v{t0}, v{B+5}, v{B+6}')
        a(f'v_max_f32 v{t0}, v{t0}, v{B+7}')
        xlane('v_max_f32', t0, t1)
        a(f'v_mul_f32 v{vM}, s91, v{t0}')
        for k in range(8): a(f'v_fma_f32 v{B+k}, v{B+k}, s91, -v{vM}')
        for k in range(8): a(f'v_exp_f32 v{B+k}, v{B+k}')
        a('s_lshl_b32 s82, s3, 2')
        a(f'v_mov_b32 v{t0}, s82')
        a(f'ds_write_b32 v{t0}, v{vM} offset:{MW + 32*b}')
    def task_sm2(b):
        B = S0 + 8 * b
        u = 64
        a(f'v_add_f32 v{u}, v{B}, v{B+1}')
        for k in range(2, 8): a(f'v_add_f32 v{u}, v{u}, v{B+k}')
        for k in range(8):
            if 8 * b + k < kF: a(f'v_cvt_pk_bf16_f32 v{B+k}, v{B+k}, v{B+k}')
        xlane('v_add_f32', u, t1)
        a(f'v_writelane_b32 v{u}, 0, 40')
        a(f'v_mov_b32 v{u+1}, v{u}'); a(f'v_mov_b32 v{u+2}, v{u}'); a(f'v_mov_b32 v{u+3}, v{u}')
        a('s_mov_b32 exec_lo, 1')
        a('s_mov_b32 exec_hi, 0x100')
        a(f'ds_write_b128 v{vOW}, v[{u}:{u+3}] offset:{b*OP1 + 768}')
        a('s_mov_b64 exec, -1')
    def task_addr0():
        a(f'v_lshrrev_b32 v{t0}, 5, v1')
        a('s_lshl_b32 s82, s3, 1')
        a(f'v_add_u32 v{t0}, s82, v{t0}')
        a(f'v_lshlrev_b32 v{t1}, 5, v7')
        a(f'v_bfe_u32 v{t2}, v1, 4, 1')
        a(f'v_lshl_add_u32 v{t1}, v{t2}, 4, v{t1}')
        a(f'v_mul_u32_u24 v{vOW}, {OS}, v{t0}')
        a(f'v_add_u32 v{vOW}, v{vOW}, v{t1}')
        masks(M0, t0, t1)
    g, ob, x, y, z = 68, 69, 70, 71, 72
    vRA0 = 61
    def task_addr1():
        a(f'v_lshrrev_b32 v{g}, 4, v1')
        a(f'v_mov_b32 v{ob}, {OOB}')
        a('s_mul_i32 s82, s3, 6')
        a(f'v_add_u32 v{x}, s82, v6')
        a('v_cmp_gt_u32 vcc, 6, v6')
        a(f'v_cndmask_b32 v{x}, 48, v{x}, vcc')
        a(f'v_lshlrev_b32 v{x}, 4, v{x}')
        a(f'v_mul_u32_u24 v{vRA0}, {2*OS}, v7')
        a(f'v_add_u32 v{vRA0}, v{vRA0}, v{x}')
        a(f'v_add_u32 v{x}, {OP1}, v{vRA0}')
        a('v_cmp_eq_u32 s[80:81], 7, v6')
        a(f'v_cndmask_b32 v{vRA0}, v{vRA0}, v{x}, s[80:81]')
        a(f'v_add_u32 v{x}, s82, v7')
        a('v_cmp_gt_u32 vcc, 6, v7')
        a(f'v_cndmask_b32 v{x}, 48, v{x}, vcc')
        a(f'v_lshlrev_b32 v{x}, 4, v{x}')
        a(f'v_mul_u32_u24 v{vRA}, {2*OS}, v6')
        a(f'v_add_u32 v{vRA}, v{vRA}, v{x}')
        a('s_lshl_b32 s82, s3, 7')
        a(f'v_lshl_add_u32 v{x}, v6, 4, s82')
        if ytr:
            a(f'v_mul_u32_u24 v{vYR}, 640, v6')
            a(f'v_add3_u32 v{vYR}, v{vYR}, v5, s82')
        else:
            a(f'v_mul_u32_u24 v{vYR}, 640, v7')
            a(f'v_add_u32 v{vYR}, v{vYR}, v{x}')
        a('v_cmp_eq_u32 vcc, 0, v7')
        a(f'v_cndmask_b32 v{vRG}, v{ob}, v{x}, vcc')
        a(f'v_lshlrev_b32 v{y}, 11, v6')
        a(f'v_add3_u32 v{vP1}, v{y}, v5, s82')
        a(f'v_lshl_add_u32 v{y}, v{g}, 5, s82')
        a(f'v_lshl_add_u32 v{y}, v7, 2, v{y}')
        a(f'v_and_b32 v{x}, 1, v6')
        a(f'v_lshlrev_b32 v{vAC}, 8, v{x}')
        a(f'v_lshl_add_u32 v{vP2}, v{x}, 11, v{y}')
        a(f'v_cmp_eq_u32 vcc, 0, v{x}')
        a(f'v_cndmask_b32 v{vRG1}, v{ob}, v{y}, vcc')
    def task_addr2():
        a('s_mul_i32 s82, s3, 24')
        a(f'v_lshl_add_u32 v{vAC}, v{g}, 3, v{vAC}')
        a(f'v_add_u32 v{vAC}, s82, v{vAC}')
        a(f'v_and_b32 v{x}, 15, v1')
        a(f'v_lshlrev_b32 v{x}, 5, v{x}')
        a(f'v_lshrrev_b32 v{y}, 5, v1')
        a(f'v_mul_u32_u24 v{y}, 320, v{y}')
        a(f'v_and_b32 v{z}, 1, v{g}')
        a(f'v_lshlrev_b32 v{z}, 4, v{z}')
        a(f'v_add3_u32 v{vYW}, v{x}, v{y}, v{z}')
        a('s_mul_i32 s82, s3, 640')
        a(f'v_add_u32 v{vYW}, s82, v{vYW}')
        a(f'v_lshlrev_b32 v{vMW}, 2, v7')
        a('v_mov_b32 v75, s78')
    R = 8
    def ostore(text, b):
        a(f's_cmp_eq_u32 s89, {77 if remap & 2 else 1}')
        a(f's_cbranch_scc1 L_ofast{b}')
        a(text + ' sc1')
        a(f's_branch L_odone{b}')
        a(f'L_ofast{b}:')
        a.vmem(text)
        a(f'L_odone{b}:')
    def task_m1():
        WG = [62, 63]; MXR = [64, 65]
        a('L_m1:')
        a(f'ds_read_b32 v66, v{VZ} offset:{FL - 1}')
        a(f'ds_read_b32 v{WG[0]}, v{vMW} offset:{MW}')
        a(f'ds_read_b32 v{WG[1]}, v{vMW} offset:{MW+32}')
        a(f'ds_read_b128 v[{R}:{R+3}], v{vRA0}')
        a(f'ds_read_b128 v[{R+4}:{R+7}], v{vRA0} offset:{OS}')
        a(f'ds_read_b64 v[72:73], v{vAC} offset:{ACT}')
        a(f'ds_read_b32 v{G0}, v{VZ} offset:{GV - 1}')
        a(f'ds_read_b32 v{G1}, v{VZ} offset:{GV + 63}')
        a('s_waitcnt lgkmcnt(0)')
        a('v_readfirstlane_b32 s82, v66')
        a('s_cmp_eq_u32 s82, 9')
        a('s_cbranch_scc1 L_m1d')
        a('s_sleep 1')
        a('s_sub_u32 s92, s92, 1')
        a('s_cbranch_scc0 L_m1')
        a('s_endpgm')
        a('L_m1d:')
        for i, pat in enumerate(RED8):
            for b in range(2):
                src = WG[b] if i == 0 else MXR[b]
                a(f'v_max_f32_dpp v{MXR[b]}, v{src}, v{src} {pat} {DPP}')
            a(f'v_add_f32 v{R+i}, v{R+i}, v{R+4+i}')
        a(f'v_add_f32 v{R+3}, v{R+3}, v{R+7}')
        for b in range(2): a(f'v_and_b32 v{MXR[b]}, s77, v{MXR[b]}')
        for b in range(2): a(f'v_sub_f32 v{WG[b]}, v{WG[b]}, v{MXR[b]}')
        a(f'v_cndmask_b32 v{WG[0]}, v{WG[0]}, v{WG[1]}, s[80:81]')
        a(f'v_exp_f32 v{WG[0]}, v{WG[0]}')
        for i in range(4): a(f'v_mul_f32 v{R+i}, v{R+i}, v{WG[0]}')
        for pat in RED8:
            for i in range(4):
                a(f'v_add_f32_dpp v{R+i}, v{R+i}, v{R+i} {pat} {DPP}')
        a(f'v_cndmask_b32 v{R}, v{R}, v{MXR[0]}, s[80:81]')
        a(f'v_cndmask_b32 v{R+1}, v{R+1}, v{MXR[1]}, s[80:81]')
        tag_apply(range(R, R + 4), 75)
        ostore(f'buffer_store_dwordx4 v[{R}:{R+3}], v{vRG}, s[68:71], s100 offen', 0)
    PG = 12
    gat = f'buffer_load_dwordx4 v[{PG}:{PG+3}], v{vP1}, s[68:71], s93 offen sc1'
    def task_m2a():
        a.vmem(gat, 'gat')
    AP = []
    def task_m2b():
        a.wait_tag('gat')
        a('L_m2:')
        tag_check(range(PG, PG + 4), 62, 63)
        a('s_cbranch_vccz L_m2d')
        a(gat)
        a('s_waitcnt vmcnt(0)')
        a('s_sub_u32 s92, s92, 1')
        a('s_cbranch_scc0 L_m2')
        a('s_endpgm')
        a('L_m2d:')
        MQ, MX, M1, L1, TT = 62, 63, 64, 65, 66
        a(f'v_mov_b32_dpp v{MQ}, v{PG} row_newbcast:7 row_mask:0xf bank_mask:0x3')
        a(f'v_mov_b32 v{M1}, v{PG+1}')
        a(f'v_mov_b32_dpp v{MQ}, v{PG} row_newbcast:15 row_mask:0xf bank_mask:0xc')
        xlane('v_max_f32', M1, TT)
        a(f'v_mov_b32 v{MX}, v{MQ}')
        xlane('v_max_f32', MX, TT)
        a(f'v_sub_f32 v{L1}, v{PG+1}, v{M1}')
        a(f'v_sub_f32 v{MQ}, v{MQ}, v{MX}')
        a(f'v_exp_f32 v{L1}, v{L1}')
        a(f'v_exp_f32 v{MQ}, v{MQ}')
        a(f'v_mul_f32 v{L1}, v{L1}, v{PG+2}')
        for i in range(4): a(f'v_mul_f32 v{PG+i}, v{PG+i}, v{MQ}')
        xlane('v_add_f32', L1, TT)
        a(f'v_readlane_b32 s82, v{M1}, 7')
        a(f'v_rcp_f32 v{L1}, v{L1}')
        a(f'v_permlane16_swap_b32 v{PG}, v{PG+1}')
        a(f'v_permlane16_swap_b32 v{PG+2}, v{PG+3}')
        a(f'v_readlane_b32 s83, v{L1}, 7')
        a(f'v_add_f32 v{PG}, v{PG}, v{PG+1}')
        a(f'v_add_f32 v{PG+2}, v{PG+2}, v{PG+3}')
        a(f'v_subrev_f32 v{M1}, s82, v{vM}')
        a(f'v_permlane32_swap_b32 v{PG}, v{PG+2}')
        a(f'v_exp_f32 v{M1}, v{M1}')
        a(f'v_add_f32 v{PG}, v{PG}, v{PG+2}')
        a(f'v_mul_f32 v{G1}, s83, v{G1}')
        a(f'v_mul_f32 v{G1}, v{G1}, v{M1}')
        a(f'v_add_f32_dpp v{PG}, v{PG}, v{PG} row_ror:8 {DPP}')
        a(f'v_rcp_f32 v{MX}, v{PG}')
        a(f'v_mul_f32 v{PG}, v{PG}, v{G0}')
        for k in range(kF, 16): a(f'v_mul_f32 v{S0+k}, v{S0+k}, v{G1}')
        a(f'v_mul_f32_dpp v{PG}, v{MX}, v{PG} row_newbcast:6 {DPP}')
        for k in range(kF, 16): a(f'v_cvt_pk_bf16_f32 v{S0+k}, v{S0+k}, v{S0+k}')
        a(f'v_cvt_pk_bf16_f32 v{PG}, v{PG}, v{PG}')
        for i in range(12): a(f'v_mul_f32 v{ACC+i}, v{ACC+i}, v{G1}')
    def task_m2c():
        for p in range(6):
            AP.append(alloc(('ap', p)))
            for r in range(4):
                a(f'v_and_b32_dpp v{AP[p]+r}, v{PG}, v{M0+r} row_newbcast:{p} {DPP}')
    def run(issue_list, tasks, win, per_issue):
        for tag in issue_list:
            while not free:
                fn, needs = tasks.pop(0)
                for n in needs: a.wait_tag(n)
                fn()
            if win and not (xfree and tag[0] in ('wo', 'w2')): window()
            issue(tag)
            n = 0
            while tasks and n < per_issue and all(a.issued(q) and a.is_done(q) for q in tasks[0][1]):
                fn, needs = tasks.pop(0); fn(); n += 1
    kt = [((lambda k=k: task_k(k)), [('k', k, s) for s in range(3)]) for k in range(16)]
    vt = [((lambda k=k: task_v(k)), [('v', k, s) for s in range(3)]) for k in range(16)]
    N = lambda f: (f, [])
    tasks = kt[:11] + [N(task_addr0), N(lambda: task_red(0))] + kt[11:12] + [N(lambda: task_sm1(0))] + kt[12:13] + [N(lambda: task_sm2(0))] + kt[13:]
    tasks += [N(lambda: stamp(3))] if stamps else []
    tasks += vt[:1] + [N(lambda: task_red(1))] + vt[1:2] + [N(lambda: task_sm1(1))] + vt[2:3] + [N(lambda: task_sm2(1))] + vt[3:5]
    tasks += [N(task_addr1)] + vt[5:6] + [N(task_addr2)] + vt[6:8] + [N(lambda: flush_acc(0))]
    for k in range(8, 14):
        tasks.append(vt[k])
        if k == m1pos: tasks.append(N(task_m1))
        if k == m2a: tasks.append(N(task_m2a))
        if k == m2b and not m2late: tasks += [(task_m2b, ['gat']), N(task_m2c)]
    wl = [('wo', rg) for rg in range(6)] + [('w2', i) for i in range(2)]
    run(kl[nb:], tasks, True, catchup)
    early = wl[nlate:][::-1]; latel = wl[:nlate]
    vseq = []
    for i, tag in enumerate(vl):
        vseq.append(tag)
        if i >= estart and (i - estart) % estep == 0 and early: vseq.append(early.pop())
    run(vseq, tasks, True, catchup)
    a('s_barrier')
    run(latel[:nl1], [], False, 0)
    if m2late: tasks += [(task_m2b, ['gat']), N(task_m2c)]
    while tasks:
        fn, needs = tasks.pop(0)
        for n in needs: a.wait_tag(n)
        fn()
    rest = latel[nl1:]
    def after(k, s):
        pos = (k - 14) * 3 + s
        if l2pos == 2 and pos >= 5 - l2n and pos < 5:
            for _ in range(l2k):
                if rest: issue(rest.pop(0))
    task_v(14, True, after)
    task_v(15, True, after)
    stamp(4)
    flush_acc(1)
    run(rest, [], False, 0)
    a('s_waitcnt lgkmcnt(0)')
    a('s_barrier')
    a(f'ds_read_b128 v[{R}:{R+3}], v{vRA} offset:{OP1}')
    a(f'ds_read_b128 v[{R+4}:{R+7}], v{vRA} offset:{OP1+OS}')
    AW = [build_A('v72'), build_A('v73')]
    a('s_waitcnt lgkmcnt(0)')
    for i in range(4): a(f'v_add_f32 v{R+i}, v{R+i}, v{R+4+i}')
    a(f'v_permlane16_swap_b32 v{R}, v{R+1}')
    a(f'v_permlane16_swap_b32 v{R+2}, v{R+3}')
    a(f'v_add_f32 v{R}, v{R}, v{R+1}')
    a(f'v_add_f32 v{R+2}, v{R+2}, v{R+3}')
    a(f'v_permlane32_swap_b32 v{R}, v{R+2}')
    a(f'v_add_f32 v{R}, v{R}, v{R+2}')
    a(f'v_add_f32_dpp v{R}, v{R}, v{R} row_ror:8 {DPP}')
    tag_apply([R], 75)
    ostore(f'buffer_store_dword v{R}, v{vRG1}, s[68:71], s100 offen offset:1024', 1)
    O = 16; X = 66; X2 = 67; Y = 24
    def poll1():
        for u, so in enumerate(('s93', 's94', 's95', 's98')):
            a(f'buffer_load_dword v{O+u}, v{vP2}, s[68:71], {so} offen offset:1024 sc1')
    poll1()
    stamp(5)
    a('s_waitcnt vmcnt(5)')
    for i in range(2):
        r = slot[('w2', i)]
        a(f'v_mfma_f32_16x16x32_bf16 v[{Y}:{Y+3}], v[{AW[i]}:{AW[i]+3}], v[{r}:{r+3}], {"0" if i == 0 else f"v[{Y}:{Y+3}]"}')
    a('L_poll1:')
    a('s_waitcnt vmcnt(0)')
    tag_check(range(O, O + 4), X, X2)
    a(f'v_add_f32 v{O+4}, v{O}, v{O+1}')
    a(f'v_add_f32 v{O+5}, v{O+2}, v{O+3}')
    a('s_cbranch_vccz L_poll1d')
    if psleep: a(f's_sleep {psleep}')
    poll1()
    a('s_sub_u32 s92, s92, 1')
    a('s_cbranch_scc0 L_poll1')
    a('s_endpgm')
    a('L_poll1d:')
    stamp(6)
    a(f'v_add_f32 v{O}, v{O+4}, v{O+5}')
    a(f'v_add_f32_dpp v{O}, v{O}, v{O} row_ror:8 {DPP}')
    a(f'v_cvt_pk_bf16_f32 v{O}, v{O}, v{O}')
    for p in range(7):
        if p < 6:
            for r in range(4):
                a(f'v_and_b32_dpp v{AP[p]+r}, v{O}, v{M0+r} row_newbcast:{p} row_mask:0xf bank_mask:0xc')
        if p > 0:
            r0 = slot[('wo', p - 1)]; A = AP[p - 1]
            a(f'v_mfma_f32_16x16x32_bf16 v[{Y}:{Y+3}], v[{A}:{A+3}], v[{r0}:{r0+3}], v[{Y}:{Y+3}]')
    a('s_mov_b32 exec_lo, 0x03ff03ff')
    a('s_mov_b32 exec_hi, 0x03ff03ff')
    a('s_cmp_ge_u32 s3, 5')
    a(f'ds_write_b128 v{vYW}, v[{Y}:{Y+3}] offset:{YP}')
    a('s_mov_b64 exec, -1')
    a('s_waitcnt lgkmcnt(0)')
    a('s_barrier')
    a('s_cbranch_scc1 L_fin')
    R2 = 28
    a(f'ds_read_b128 v[{R2}:{R2+3}], v{vYR} offset:{YP}')
    a('s_waitcnt lgkmcnt(0)')
    if ytr:
        a(f'v_permlane16_swap_b32 v{R2}, v{R2+1}')
        a(f'v_permlane16_swap_b32 v{R2+2}, v{R2+3}')
        a(f'v_add_f32 v{R2}, v{R2}, v{R2+1}')
        a(f'v_add_f32 v{R2+2}, v{R2+2}, v{R2+3}')
        a(f'v_permlane32_swap_b32 v{R2}, v{R2+2}')
        a(f'v_add_f32 v{R2}, v{R2}, v{R2+2}')
        a(f'v_add_f32_dpp v{R2}, v{R2}, v{R2} row_ror:8 {DPP}')
        tag_apply([R2], 75)
        a(f'buffer_store_dword v{R2}, v{vRG1}, s[68:71], s101 offen {"" if remap & 4 else "sc1"}')
    else:
        for pat in RED8:
            for i in range(4):
                a(f'v_add_f32_dpp v{R2+i}, v{R2+i}, v{R2+i} {pat} {DPP}')
        tag_apply(range(R2, R2 + 4), 75)
        a(f'buffer_store_dwordx4 v[{R2}:{R2+3}], v{vRG}, s[68:71], s101 offen sc1')
    a('L_fin:')
    if stamps:
        stamp(8, True)
        if not est: a(f'v_writelane_b32 v{VST}, s96, 7')
        a('L_probe:')
        if probe is not None:
            i, K, base, j0, who = probe
            a('s_cmp_eq_u32 s3, 8')
            if who == 's': a('s_cbranch_scc1 L_end')
            if who == 'h': a('s_cbranch_scc0 L_end')
            a(f'v_readlane_b32 s82, v{VST}, 0')
            a(f'v_readlane_b32 s83, v{VST}, {i}')
            a(f'v_readlane_b32 s84, v{VST}, {j0}')
            a('s_sub_u32 s83, s83, s84')
            a(f's_mul_i32 s83, s83, {K}')
            a(f's_add_u32 s83, s83, {base}')
            a('L_spin:')
            a('s_sleep 2')
            a('s_memrealtime s[96:97]')
            a('s_waitcnt lgkmcnt(0)')
            a('s_sub_u32 s84, s96, s82')
            a('s_cmp_lt_u32 s84, s83')
            a('s_cbranch_scc1 L_spin')
        else:
            a('s_cmp_eq_u32 s3, 8')
            a('s_cbranch_scc1 L_nosl')
            a('s_sleep 127')
            a('s_sleep 127')
            a('L_nosl:')
            a('s_mul_i32 s82, s2, 9')
            a('s_add_u32 s82, s82, s3')
            a('s_lshl_b32 s82, s82, 8')
            a(f's_add_u32 s82, s82, {STAMP_OFF}')
            a('v_lshlrev_b32 v5, 2, v1')
            a(f'buffer_store_dword v{VST}, v5, s[68:71], s82 offen')
    a('L_end:')
    a('s_endpgm')

    a.vm = []; a.vm_done = 0
    a('L_helper:')
    inhelper[0] = True
    a('v_mul_u32_u24 v3, 122880, v6')
    a('v_add_u32 v3, v3, v5')
    a('v_mul_u32_u24 v4, 30720, v6')
    a('v_add_u32 v4, v4, v5')
    a(f'v_mov_b32 v2, {OOB}')
    a('v_cmp_gt_u32 vcc, 6, v7')
    a('v_cndmask_b32 v4, v2, v4, vcc')
    a('v_mul_u32_u24 v8, 20, v6')
    a('v_lshlrev_b32 v9, 4, v1')
    a('v_mov_b32 v73, 0')
    if not eb:
        a(f'ds_write_b32 v73, v73 offset:{FLAG}')
        a(f'ds_write_b32 v73, v73 offset:{FL}')
        a(f'v_mov_b32 v10, {8*D}')
        a(f'ds_write_b32 v73, v10 offset:{CNT}')
    HM = 12; HA = 16; HACC = 24; HX = 56
    a('s_mul_i32 s83, s31, 983040')
    a('s_mul_i32 s84, s30, 384')
    a('s_add_u32 s83, s83, s84')
    a('s_mul_i32 s85, s31, 245760')
    a('s_mul_i32 s84, s30, 96')
    a('s_add_u32 s85, s85, s84')
    a('s_mul_i32 s98, s31, 160')
    for r in (43, 47, 59, 63, 67):
        a(f's_mov_b32 s{r}, 0x20000')
    a('s_sub_u32 s42, 7864320, s83')
    a('s_sub_u32 s46, 1966080, s85')
    if dbg_nowq & 1: a('s_mov_b32 s42, 0')
    if dbg_nowq & 2: a('s_mov_b32 s46, 0')
    a('s_sub_u32 s58, 2560, s98')
    a('s_sub_u32 s62, 1280, s98')
    a('s_mov_b32 s66, 96')
    a('s_waitcnt lgkmcnt(0)')
    srd(56, 4, 's98'); srd(40, 10, 's83'); srd(44, 16, 's85'); srd(60, 22, 's98'); srd(64, 18, 's84')
    a.vmem(f'buffer_load_dwordx4 v[{HX}:{HX+3}], v8, s[56:59], 0 offen')
    a.vmem(f'buffer_load_dword v{HX+4}, v8, s[56:59], 0 offen offset:16')
    a.vmem(f'buffer_load_dwordx4 v[{HX+6}:{HX+9}], v8, s[56:59], 0 offen offset:1280')
    a.vmem(f'buffer_load_dword v{HX+10}, v8, s[56:59], 0 offen offset:1296')
    hfree = list(range(76, top, 4))
    hslot = {}
    def hissue(tag):
        r = hfree.pop(0); hslot[tag] = r
        t = tag[0]
        if tag[1] == 0 and t:
            a(f's_mov_b32 s87, {t*12288}'); a(f's_mov_b32 s86, {t*3072}')
        if tag[1] < 3:
            a.vmem(f'buffer_load_dwordx4 v[{r}:{r+3}], v3, s[40:43], {"s87" if t else "0"} offen offset:{tag[1]*128} {w_cache}', tag)
        else:
            a.vmem(f'buffer_load_dwordx4 v[{r}:{r+3}], v4, s[44:47], {"s86" if t else "0"} offen {w_cache}', tag)
    hl = [(t, s) for t in range(10) for s in range(4)]
    nfirst = min(hwin, len(hfree)) // 4 * 4
    for tag in hl[:nfirst]: hissue(tag)
    hl = hl[nfirst:]
    a.vmem(f'buffer_load_dwordx4 v[{HX+12}:{HX+15}], v8, s[60:63], 0 offen')
    a.vmem(f'buffer_load_dword v{HX+16}, v8, s[60:63], 0 offen offset:16')
    a('v_and_b32 v10, 15, v1')
    a('v_lshlrev_b32 v10, 3, v10')
    a.vmem(f'buffer_load_dwordx2 v[74:75], v10, s[64:67], 0 offen', 'b1')
    if not eb: a('s_barrier')
    if hnear:
        a('s_branch L_helper2')
        a('@HEAD_END@')
        a('L_helper2:')
    a('s_mov_b32 s89, 0x01000100')
    a('s_mov_b32 s90, 0x03020302')
    a('s_mov_b32 s91, 0x3f803f80')
    masks(HM, 10, 11)
    ws_setup()
    if qpre:
        a(f's_add_u32 s82, s99, {FAST}')
        a.vmem(f'buffer_load_dword v{top}, v9, s[68:71], s82 offen')
        a.vmem(f'buffer_load_dword v{top}, v9, s[68:71], s82 offen offset:1024')
    stamp(1)
    hai = 0
    for t in range(10):
        a.wait_tag((t, 3))
        for bb in range(2):
            xr = HX + 6 * bb + t // 2
            a(f'v_perm_b32 v11, v{xr}, v{xr}, s{89 + (t & 1)}')
            A = HA + 4 * (hai & 1); hai += 1
            for r in range(4): a(f'v_and_b32 v{A+r}, v11, v{HM+r}')
            for s in range(4):
                r = hslot[(t, s)]; acc = HACC + 16 * bb + 4 * s
                c = '0' if t == 0 else f'v[{acc}:{acc+3}]'
                a(f'v_mfma_f32_16x16x32_bf16 v[{acc}:{acc+3}], v[{A}:{A+3}], v[{r}:{r+3}], {c}')
        for s in range(4): hfree.append(hslot[(t, s)])
        for tag in hl[:4]: hissue(tag)
        hl = hl[4:]
        if t == 6:
            a.wait_tag('b1')
            for bb, Gr in ((0, 61), (1, 67)):
                for i in range(5):
                    if gmimic:
                        xr, gr = HX + 6 * bb + i, HX + 12 + i
                        a(f'v_lshlrev_b32 v2, 16, v{xr}')
                        a(f'v_lshlrev_b32 v10, 16, v{gr}')
                        a('v_mul_f32 v2, v2, v10')
                        a(f'v_and_b32 v8, 0xffff0000, v{xr}')
                        a(f'v_and_b32 v10, 0xffff0000, v{gr}')
                        a('v_mul_f32 v8, v8, v10')
                        a('v_cvt_pk_bf16_f32 v2, v2, v8')
                        a(f'v_dot2_f32_bf16 v{Gr}, v2, s91, {"0" if i == 0 else f"v{Gr}"}')
                    else:
                        a(f'v_dot2_f32_bf16 v{Gr}, v{HX+6*bb+i}, v{HX+12+i}, {"0" if i == 0 else f"v{Gr}"}')
            xlane('v_add_f32', 61, 10)
            xlane('v_add_f32', 67, 10)
    stamp(2)
    a('v_lshrrev_b32 v16, 5, v1')
    a('v_lshlrev_b32 v16, 10, v16')
    a('v_and_b32 v11, 1, v6')
    a('v_lshl_add_u32 v16, v11, 8, v16')
    a('v_lshl_add_u32 v16, v7, 5, v16')
    a('v_bfe_u32 v11, v1, 4, 1')
    a('v_lshl_add_u32 v16, v11, 4, v16')
    for s in range(4):
        for r in range(4):
            a(f'v_permlane32_swap_b32 v{HACC+4*s+r}, v{HACC+16+4*s+r}')
    P = 76
    for u in range(2):
        for r in range(4):
            Ae, Be = HACC + 8 * u + r, HACC + 16 + 8 * u + r
            a(f'v_add_f32_dpp v{P+4*u+r}, v{Be}, v{Ae} row_ror:8 {DPP}')
        for r in range(4):
            Ao, Bo = HACC + 8 * u + 4 + r, HACC + 16 + 8 * u + 4 + r
            a(f'v_add_f32_dpp v{P+4*u+r}, v{Ao}, v{Bo} row_ror:8 row_mask:0xf bank_mask:0xc')
    a(f's_mov_b64 exec, {1 << 14}')
    a(f'v_mov_b32 v{P+4}, v61')
    a('s_mov_b32 exec_lo, 0')
    a(f's_mov_b32 exec_hi, {1 << 14}')
    a(f'v_mov_b32 v{P+4}, v67')
    a('s_mov_b64 exec, -1')
    a('s_getreg_b32 s88, hwreg(HW_REG_XCC_ID)')
    a('s_and_b32 s88, s88, 15')
    a('s_lshl_b32 s88, s88, 23')
    a(f'v_writelane_b32 v{P+5}, s88, 14')
    a('s_waitcnt lgkmcnt(0)')
    tag_finish()
    a('v_mov_b32 v11, s78')
    tag_apply(range(P, P + 8), 11)
    slow_q = [f'buffer_store_dwordx4 v[{P}:{P+3}], v16, s[68:71], s99 offen sc1',
              f'buffer_store_dwordx4 v[{P+4}:{P+7}], v16, s[68:71], s99 offen offset:512 sc1']
    a(f's_add_u32 s82, s99, {FAST}')
    a(f'buffer_store_dwordx4 v[{P}:{P+3}], v16, s[68:71], s82 offen')
    a(f'buffer_store_dwordx4 v[{P+4}:{P+7}], v16, s[68:71], s82 offen offset:512')
    stamp(3)
    a('@TPRE@')
    a('v_add_u32 v12, 4096, v9')
    a('s_lshl_b32 s93, s30, 14')
    a(f's_add_u32 s93, s93, {FAST}')
    a('s_add_u32 s94, s93, 8192')
    a(f's_mov_b32 s76, {nfast}')
    a('v_lshlrev_b32 v17, 11, v6')
    a('v_and_b32 v18, 3, v1')
    a('v_lshl_add_u32 v17, v18, 4, v17')
    a('v_bfe_u32 v18, v1, 2, 1')
    a('v_lshl_add_u32 v17, v18, 9, v17')
    stamp(4)
    QD = [24, 84]
    a('L_qpoll:')
    if sind:
        a('s_add_u32 s40, s28, s93')
        a('s_addc_u32 s41, s29, 0')
        for p in range(8): a(f's_load_dword s{44+p}, s[40:41], {p*2048 + 1536} glc')
        a('s_waitcnt lgkmcnt(0)')
        for p in range(8): a(f's_xor_b32 s{44+p}, s{44+p}, s78')
        for p in range(1, 8): a(f's_or_b32 s44, s44, s{44+p}')
        a(f's_and_b32 s44, s44, {TM}')
        a('s_cbranch_scc1 L_qfail')
    else:
        a(f'buffer_load_dwordx4 v[24:27], v17, s[68:71], s93 offen sc1')
        a('s_waitcnt vmcnt(0)')
        tag_check(range(24, 28), 14, 15)
        a('s_cbranch_vccnz L_qfail')
    for b in range(2):
        for p in range(8):
            vo = 'v9' if (p & 3) < 2 else 'v12'
            so = 's93' if p < 4 else 's94'
            a(f'buffer_load_dwordx4 v[{QD[b]+4*p}:{QD[b]+4*p+3}], {vo}, s[68:71], {so} offen offset:{(p & 1)*2048 + b*1024} sc1')
    a('s_waitcnt vmcnt(0)')
    tag_check(list(range(QD[0], QD[0] + 32)) + list(range(QD[1], QD[1] + 32)), 14, 15)
    a('s_cbranch_vccz L_qok0')
    a('L_qfail:')
    if qsleep: a(f's_sleep {qsleep}')
    a('s_sub_u32 s76, s76, 1')
    a('s_cbranch_scc0 L_qnosw')
    for t in slow_q: a(t)
    a('L_qnosw:')
    a('s_cmp_lt_i32 s76, 0')
    a(f's_cselect_b32 s82, {FAST}, 0')
    for r in (93, 94): a(f's_xor_b32 s{r}, s{r}, s82')
    a('s_sub_u32 s92, s92, 1')
    a('s_cbranch_scc0 L_qpoll')
    a('s_endpgm')
    a('L_qok0:')
    for p in range(8): a(f'v_xor_b32 v{56+p}, s88, v{QD[0]+4*p+1}')
    a('v_or3_b32 v14, v56, v57, v58')
    a('v_or3_b32 v15, v59, v60, v61')
    a('v_or3_b32 v14, v14, v62, v63')
    a('v_or_b32 v14, v14, v15')
    a('v_readlane_b32 s86, v14, 60')
    a('s_cmp_lg_u32 s86, 0')
    a('s_cselect_b32 s86, 2, 1')
    a('s_cbranch_scc0 L_qok')
    a('s_cmp_lt_i32 s76, 0')
    a('s_cbranch_scc1 L_qok')
    for t in slow_q: a(t)
    a('L_qok:')
    a('v_lshlrev_b32 v10, 3, v1')
    for b in range(2):
        for st in (4, 8, 16):
            for b0 in range(QD[b], QD[b] + 32, 2 * st):
                for r in range(4): a(f'v_add_f32 v{b0+r}, v{b0+r}, v{b0+st+r}')
        a(f'v_cvt_pk_bf16_f32 v{QD[b]+4}, v{QD[b]}, v{QD[b]+1}')
        a(f'v_cvt_pk_bf16_f32 v{QD[b]+5}, v{QD[b]+2}, v{QD[b]+3}')
        a(f'ds_write_b64 v10, v[{QD[b]+4}:{QD[b]+5}] offset:{QBF + 512*b}')
    a('v_mov_b32 v10, s86')
    a(f'ds_write_b32 v73, v10 offset:{FLAG}')
    stamp(5)
    HD = QD[1]
    for r in range(4): a(f'v_permlane16_swap_b32 v{QD[0]+r}, v{HD+r}')
    Gq = 32; OMG = 33
    a(f'v_mov_b32_dpp v{Gq}, v{HD} row_newbcast:12 {DPP}')
    a(f'v_cvt_pk_bf16_f32 v{Gq}, v{Gq}, v{Gq}')
    a(f'v_and_b32 v{Gq}, 0xffff0000, v{Gq}')
    a(f'v_mul_f32 v{Gq}, {f2u(-LOG2E)}, v{Gq}')
    a(f'v_exp_f32 v{Gq}, v{Gq}')
    a(f'v_add_f32 v{Gq}, 1.0, v{Gq}')
    a(f'v_rcp_f32 v{Gq}, v{Gq}')
    a(f'v_cvt_pk_bf16_f32 v{Gq}, v{Gq}, v{Gq}')
    a(f'v_and_b32 v{Gq}, 0xffff0000, v{Gq}')
    a(f'v_sub_f32 v{OMG}, 1.0, v{Gq}')
    a(f'v_cvt_pk_bf16_f32 v{OMG}, v{OMG}, v{OMG}')
    a(f'v_and_b32 v{OMG}, 0xffff0000, v{OMG}')
    a(f's_mov_b32 s83, {f2u(-LOG2E)}')
    for pr in range(2):
        h0, h1 = HD + 2 * pr, HD + 2 * pr + 1
        a(f'v_cvt_pk_bf16_f32 v{h0}, v{h0}, v{h1}')
        a(f'v_and_b32 v{h1}, 0xffff0000, v{h0}')
        a(f'v_lshlrev_b32 v{h0}, 16, v{h0}')
        a(f'v_and_b32 v35, 0xffff0000, v{74+pr}')
        a(f'v_lshlrev_b32 v34, 16, v{74+pr}')
        a(f'v_add_f32 v{h0}, v{h0}, v34')
        a(f'v_add_f32 v{h1}, v{h1}, v35')
        a(f'v_cvt_pk_bf16_f32 v{h0}, v{h0}, v{h1}')
        a(f'v_and_b32 v{h1}, 0xffff0000, v{h0}')
        a(f'v_lshlrev_b32 v{h0}, 16, v{h0}')
    for i in range(4):
        h = HD + i; t = 36; tq = 37; nu = 38; de = 39
        a(f'v_mul_f32 v{t}, s83, abs(v{h})')
        a(f'v_exp_f32 v{t}, v{t}')
        a(f'v_cmp_lt_f32 vcc, 0, v{h}')
        a(f'v_mul_f32 v{tq}, v{t}, v{t}')
        a(f'v_cndmask_b32 v{nu}, v{tq}, 1.0, vcc')
        a(f'v_cndmask_b32 v{de}, 1.0, v{tq}, vcc')
        a(f'v_fma_f32 v{nu}, v{t}, 2.0, v{nu}')
        a(f'v_fma_f32 v{de}, v{de}, 2.0, v{nu}')
        a(f'v_rcp_f32 v{de}, v{de}')
        a(f'v_mul_f32 v{nu}, v{nu}, v{h}')
        a(f'v_mul_f32 v{nu}, v{nu}, v{de}')
        a(f'v_cvt_pk_bf16_f32 v{nu}, v{nu}, v{nu}')
        a(f'v_and_b32 v{nu}, 0xffff0000, v{nu}')
        a(f'v_mul_f32 v{nu}, v{nu}, v{OMG}')
        a(f'v_cvt_pk_bf16_f32 v{40+i}, v{nu}, v{nu}')
    a('v_and_b32 v10, 31, v1')
    a('v_lshlrev_b32 v11, 2, v10')
    a('v_lshlrev_b32 v10, 4, v10')
    a('s_mov_b32 exec_lo, 0')
    a(f'ds_write_b32 v11, v{Gq} offset:{GV}')
    a(f'ds_write_b128 v10, v[40:43] offset:{ACT}')
    a('s_mov_b64 exec, 1')
    a('v_mov_b32 v10, 1')
    a(f'ds_add_u32 v73, v10 offset:{FL}')
    a('s_mov_b64 exec, -1')
    a('s_waitcnt lgkmcnt(0)')
    stamp(6)
    def tlbpre():
        a('s_mul_i32 s82, s30, 1572864')
        a('v_and_b32 v21, 1, v1')
        a('v_mul_u32_u24 v21, 1572736, v21')
        a('v_bfe_u32 v22, v1, 1, 1')
        a('s_mov_b32 s83, 50331648')
        a('v_mul_lo_u32 v22, v22, s83')
        a('v_add3_u32 v21, v21, v22, s82')
        a('s_mul_i32 s82, s30, 245760')
        a('v_mov_b32 v22, s82')
        a('s_mul_i32 s82, s30, 61440')
        a('v_mov_b32 v23, s82')
        a('s_mov_b64 exec, 15')
        a(f'global_load_dword v{top}, v21, s[6:7] nt')
        a(f'global_load_dword v{top}, v21, s[8:9] nt')
        a('s_mov_b64 exec, 1')
        a(f'global_load_dword v{top}, v22, s[12:13] nt')
        a(f'global_load_dword v{top}, v23, s[20:21] nt')
        a(f'global_load_dword v{top}, v73, s[24:25] nt')
        a('s_mov_b64 exec, -1')
    if tpre == 2: tlbpre()
    if opre == 1:
        a(f'buffer_load_dword v{top}, v9, s[68:71], s100 offen')
        a(f'buffer_load_dword v{top}, v9, s[68:71], s100 offen offset:1024')
    if opre == 2: a('v_mov_b32 v20, v9')
    if ypre:
        a('s_mov_b32 exec_hi, 0xff')
        a('buffer_load_dwordx4 v[44:47], v9, s[68:71], s101 offen')
    if ctl:
        a('s_and_b32 s82, s2, 7')
        a('s_mul_i32 s82, s82, 4352')
        a(f's_add_u32 s82, s82, {MBOX}')
        a('s_lshr_b32 s83, s2, 3')
        a('s_lshl_b32 s83, s83, 2')
        a('s_add_u32 s83, s83, s82')
        a('s_and_b32 s84, s79, 0x3fffff')
        a('s_mov_b32 s85, 0')
        if glob:
            a('v_lshlrev_b32 v11, 2, v1')
            a(f'v_mul_u32_u24 v13, {GS}, v1')
            a('s_cmp_ge_u32 s2, 248')
            a(f's_cselect_b32 s60, {gP0}, -1')
            a(f's_mov_b32 s61, {GBOX}')
            a('s_and_b32 s59, s2, 7')
            a(f's_mul_i32 s58, s59, {GS}')
            a('s_add_u32 s43, s82, 128')
            a('s_mov_b32 s57, 0')
        a('s_mov_b32 exec_hi, 0')
        a('L_c:')
        a(f'ds_read_b32 v10, v73 offset:{CNT}')
        if xphase: a('s_memrealtime s[62:63]')
        a('s_waitcnt lgkmcnt(0)')
        a('v_subrev_u32 v10, s85, v10')
        if xphase:
            a(f's_mul_i32 s64, s62, {rmul}')
            a('s_lshr_b32 s64, s64, 8')
            a('v_subrev_u32 v16, s64, v10')
            a('v_lshl_or_b32 v12, v16, 22, s84')
        else:
            a('v_lshl_or_b32 v12, v10, 22, s84')
        a('s_mov_b32 exec_lo, 1')
        a('buffer_store_dword v12, off, s[68:71], s83')
        a('s_mov_b32 exec_lo, -1')
        if glob: a('s_mov_b32 exec_hi, 1')
        a('buffer_load_dword v9, v11, s[68:71], s82 offen sc1')
        if glob: a('s_mov_b32 exec_hi, 0')
        a('v_readfirstlane_b32 s86, v10')
        if glob:
            a('s_cmp_lt_u32 s86, s60')
            a('s_cbranch_scc1 L_g1')
            if not xphase: a('s_memrealtime s[62:63]')
            a('s_mov_b32 exec_lo, 0xff')
            a('buffer_load_dword v14, v13, s[68:71], s61 offen sc1')
            a('s_mov_b32 exec_lo, -1')
            a('L_g1:')
        a('s_waitcnt vmcnt(0)')
        if glob:
            a('v_readlane_b32 s44, v9, 32')
            a('s_and_b32 s45, s44, 0x3fffff')
            a('s_ashr_i32 s44, s44, 22')
            a('s_cmp_eq_u32 s45, s84')
            a('s_cselect_b32 s44, s44, 0')
        if xphase:
            a('v_sub_u32 v9, v9, v12')
            a('v_and_b32 v12, 0x3fffff, v9')
            a('v_ashrrev_i32 v9, 22, v9')
            a('v_cmp_eq_u32 vcc, 0, v12')
            a('v_cndmask_b32 v9, 0, v9, vcc')
            a(f'v_add3_u32 v9, v9, v10, {comp}')
        else:
            a('v_and_b32 v12, 0x3fffff, v9')
            a('v_lshrrev_b32 v9, 22, v9')
            a(f'v_add_u32 v9, {comp}, v9')
            a('v_cmp_eq_u32 vcc, s84, v12')
            a('v_cndmask_b32 v9, v10, v9, vcc')
        for pat in RED8 + ('row_mirror',):
            a(f'v_add_u32_dpp v9, v9, v9 {pat} {DPP}')
        a('v_readlane_b32 s87, v9, 0')
        a('v_readlane_b32 s88, v9, 16')
        a('s_add_u32 s87, s87, s88')
        a('s_lshr_b32 s87, s87, 5')
        if glob:
            a('s_cmp_lt_u32 s86, s60')
            a('s_cbranch_scc1 L_g2')
            a('s_waitcnt lgkmcnt(0)')
            a(f's_mul_i32 s64, s62, {rmul}')
            a('s_lshr_b32 s64, s64, 8')
            a('s_sub_u32 s64, s87, s64')
            a('s_lshl_b32 s64, s64, 22')
            a('s_or_b32 s64, s64, s84')
            a(f's_add_u32 s61, s61, {8*GS}')
            a('s_add_u32 s45, s61, s58')
            a('v_mov_b32 v12, s64')
            a('s_mov_b32 exec_lo, 1')
            a('buffer_store_dword v12, off, s[68:71], s45 sc1')
            a('s_mov_b32 exec_lo, 0xff')
            a(f's_add_u32 s60, s60, {gD}')
            a(f's_cmp_gt_u32 s60, {gend}')
            a('s_cselect_b32 s60, -1, s60')
            a('v_subrev_u32 v14, s57, v14')
            a('v_and_b32 v12, 0x3fffff, v14')
            a('v_ashrrev_i32 v14, 22, v14')
            a('v_cmp_eq_u32 vcc, 0, v12')
            a(f'v_cndmask_b32 v14, {-min(gD, 16) if False else 0}, v14, vcc') if False else None
            a(f'v_mov_b32 v15, {-gD}')
            a('v_cndmask_b32 v14, v15, v14, vcc')
            for pat in RED8:
                a(f'v_add_u32_dpp v14, v14, v14 {pat} {DPP}')
            a('v_readfirstlane_b32 s46, v14')
            if gsw:
                a(f's_cmp_ge_u32 s86, {gsw}')
                a(f's_cselect_b32 s45, {gnum2}, {gnum}')
                a('s_mul_i32 s46, s46, s45')
            elif gnum != 1: a(f's_mul_i32 s46, s46, {gnum}')
            a(f's_ashr_i32 s46, s46, {3 + gsh2}')
            a(f's_min_i32 s46, s46, {gclamp}')
            a(f's_max_i32 s46, s46, {-gclamp}')
            a('s_cmp_eq_u32 s57, 0')
            a('s_cselect_b32 s46, 0, s46')
            a('s_mov_b32 s57, s64')
            a('s_lshl_b32 s46, s46, 22')
            a('s_or_b32 s46, s46, s84')
            a('v_mov_b32 v12, s46')
            a('s_mov_b32 exec_lo, 1')
            a('buffer_store_dword v12, off, s[68:71], s43')
            a('s_mov_b32 exec_lo, -1')
            a('L_g2:')
        a('s_sub_i32 s87, s87, s86')
        if glob: a('s_add_i32 s87, s87, s44')
        a('s_sub_i32 s88, s87, s85')
        a('s_mov_b32 s85, s87')
        a('v_mov_b32 v9, s88')
        a('s_mov_b32 exec_lo, 1')
        a(f'ds_add_u32 v73, v9 offset:{CNT}')
        a('s_mov_b32 exec_lo, -1')
        a(f's_cmp_ge_u32 s86, {cend}')
        a('s_cbranch_scc1 L_cd')
        a('s_sub_u32 s92, s92, 1')
        a('s_cbranch_scc0 L_c')
        a('s_endpgm')
        a('L_cd:')
    a('s_mov_b64 exec, -1')
    def wprefetch():
        a('s_lshl_b32 s82, s30, 3')
        a('s_add_u32 s82, s82, s31')
        a('s_mul_i32 s83, s82, 30720')
        srd(48, 12, 's83'); a('s_mov_b32 s50, 30720'); a('s_mov_b32 s51, 0x20000')
        a('s_mul_i32 s83, s82, 7680')
        srd(52, 20, 's83'); a('s_mov_b32 s54, 7680'); a('s_mov_b32 s55, 0x20000')
        a('v_lshlrev_b32 v21, 7, v1')
        if wpre == 2: a('s_barrier')
        for i in range(4):
            if i: a(f's_mov_b32 s83, {i*8192}')
            a(f'buffer_load_dword v{22+i}, v21, s[48:51], {"s83" if i else "0"} offen {wpre_cache}')
        a(f'buffer_load_dword v26, v21, s[52:55], 0 offen {wpre_cache}')
    if wpre: wprefetch()
    if opre == 2:
        a(f'buffer_load_dword v{top}, v20, s[68:71], s100 offen')
        a(f'buffer_load_dword v{top}, v20, s[68:71], s100 offen offset:1024')
    if not wpre:
        a('s_cmp_ge_u32 s2, 160')
        a('s_cbranch_scc1 ' + ('L_end' if (probe is not None or not stamps) else 'L_hend'))
    a('s_lshr_b32 s82, s2, 5')
    a('s_lshl_b32 s82, s82, 3')
    a('s_and_b32 s83, s2, 7')
    a('s_add_u32 s82, s82, s83')
    a('s_lshl_b32 s82, s82, 2')
    a(f's_bfe_u32 s83, s2, {3 | (2 << 16)}')
    a('s_add_u32 s85, s82, s83')
    a('s_mul_i32 s82, s85, 205')
    a('s_lshr_b32 s82, s82, 12')
    a('s_mul_i32 s83, s82, 20')
    a('s_sub_u32 s83, s85, s83')
    if remap & 4:
        a('s_and_b32 s82, s2, 7')
        a('s_lshr_b32 s83, s2, 3')
    a('s_mul_i32 s84, s82, 20480')
    a('s_lshl_b32 s81, s83, 5')
    a('s_add_u32 s84, s84, s81')
    a(f's_add_u32 s98, s84, {YOFF}')
    srd(72, 24, None); a('s_mov_b32 s74, 2560'); a('s_mov_b32 s75, 0x20000')
    vF, vOUT, F = 8, 9, 28
    a(f'v_lshrrev_b32 v{vF}, 1, v1')
    a(f'v_mul_u32_u24 v{vF}, 640, v{vF}')
    a('v_and_b32 v10, 1, v1')
    a(f'v_lshl_add_u32 v{vF}, v10, 4, v{vF}')
    if ytr:
        a('s_mul_i32 s99, s82, 160')
        a('s_lshr_b32 s84, s83, 2')
        a('s_lshl_b32 s84, s84, 5')
        a('s_and_b32 s81, s83, 3')
        a('s_add_u32 s84, s84, s81')
        a(f'v_lshl_add_u32 v{vOUT}, v10, 4, s84')
        a('v_lshrrev_b32 v10, 4, v1')
        a(f'v_lshl_add_u32 v{vOUT}, v10, 2, v{vOUT}')
        a(f'v_cmp_lt_u32 vcc, 79, v{vOUT}')
        a(f'v_add_u32 v10, 560, v{vOUT}')
        a(f'v_cndmask_b32 v{vOUT}, v{vOUT}, v10, vcc')
        a(f'v_lshlrev_b32 v{vOUT}, 1, v{vOUT}')
    else:
        a('s_cmp_ge_u32 s83, 10')
        a('s_cselect_b32 s84, 1120, 0')
        a('s_lshl_b32 s81, s83, 4')
        a('s_add_u32 s84, s84, s81')
        a('s_mul_i32 s81, s82, 160')
        a('s_add_u32 s99, s84, s81')
        a(f'v_lshlrev_b32 v{vOUT}, 3, v10')
        a('v_lshrrev_b32 v10, 4, v1')
        a(f'v_lshl_add_u32 v{vOUT}, v10, 1, v{vOUT}')
    a('v_mov_b32 v11, s79')
    a(f's_mov_b32 s82, {EOFF}')
    a('s_waitcnt lgkmcnt(0)')
    if wpre != 2: a('s_barrier')
    a('s_barrier')
    a('s_barrier')
    if wpre:
        a('s_cmp_ge_u32 s2, 160')
        a('s_cbranch_scc1 ' + ('L_end' if (probe is not None or not stamps) else 'L_hend'))
    stamp(7)
    if np2 > 1:
        FS = [F + 4 + 4 * i for i in range(np2)]
        for i in range(np2):
            a(f'buffer_load_dwordx4 v[{FS[i]}:{FS[i]+3}], v{vF}, s[68:71], s98 offen sc1')
            if i < np2 - 1: a(f's_sleep {p2gap}')
        a('L_poll2:')
        for i in range(np2):
            a(f's_waitcnt vmcnt({np2-1})')
            for r in range(4): a(f'v_xor_b32 v{F+r}, s78, v{FS[i]+r}')
            a(f'v_or3_b32 v14, v{F}, v{F+1}, v{F+2}')
            a(f'v_or_b32 v14, v14, v{F+3}')
            a(f'v_and_b32 v14, {TM}, v14')
            a('v_cmp_ne_u32 vcc, 0, v14')
            a('s_cbranch_vccz L_poll2d')
            a('s_mov_b64 exec, vcc')
            a(f'buffer_load_dwordx4 v[{FS[i]}:{FS[i]+3}], v{vF}, s[68:71], s98 offen sc1')
            if psleep2: a(f's_sleep {psleep2}')
        a('s_sub_u32 s92, s92, 1')
        a('s_cbranch_scc0 L_poll2')
        a('s_endpgm')
    else:
        a('L_poll2:')
        a(f'buffer_load_dwordx4 v[{F}:{F+3}], v{vF}, s[68:71], s98 offen sc1')
        a('s_waitcnt vmcnt(0)')
        tag_check(range(F, F + 4), 14, 15)
        a('s_cbranch_vccz L_poll2d')
        if pmask: a('s_mov_b64 exec, vcc')
        if psleep2: a(f's_sleep {psleep2}')
        a('s_sub_u32 s92, s92, 1')
        a('s_cbranch_scc0 L_poll2')
        a('s_endpgm')
    a('L_poll2d:')
    if pmask: a('s_mov_b64 exec, -1')
    a(f'v_permlane16_swap_b32 v{F}, v{F+1}')
    a(f'v_permlane16_swap_b32 v{F+2}, v{F+3}')
    a(f'v_add_f32 v{F}, v{F}, v{F+1}')
    a(f'v_add_f32 v{F+2}, v{F+2}, v{F+3}')
    a(f'v_permlane32_swap_b32 v{F}, v{F+2}')
    a(f'v_add_f32 v{F}, v{F}, v{F+2}')
    a(f'v_add_f32_dpp v{F}, v{F}, v{F} quad_perm:[2,3,0,1] {DPP}')
    a(f'v_add_f32_dpp v{F}, v{F}, v{F} row_ror:4 {DPP}')
    a(f'v_add_f32_dpp v{F}, v{F}, v{F} row_ror:8 {DPP}')
    a('s_mov_b32 exec_lo, 0x00030003')
    a('s_mov_b32 exec_hi, 0x00030003')
    a(f'v_cvt_pk_bf16_f32 v{F}, v{F}, v{F}')
    a(f'buffer_store_short v{F}, v{vOUT}, s[72:75], s99 offen')
    a('s_cmp_lg_u32 s2, 0')
    a('s_cbranch_scc1 L_hend')
    a('s_mov_b64 exec, 1')
    a('buffer_store_dword v11, off, s[68:71], s82')
    a('L_hend:')
    if stamps:
        a('s_mov_b64 exec, -1')
        stamp(8)
        a('s_branch L_probe')
    a('s_endpgm')

    a('L_codeend:')
    ip = a.lines.index('@TPRE@')
    rest = a.lines[ip+1:]; a.lines = a.lines[:ip]
    if tpre == 1: tlbpre()
    a.lines += rest
    if hnear:
        L = a.lines
        i0 = L.index('L_helper:'); i1 = L.index('@HEAD_END@'); ih = L.index('@HELPER_HEAD@')
        head = L[i0:i1]
        a.lines = L[:ih] + head + L[ih+1:i0] + L[i1+1:]
    body = a.finalize()
    out = HEADER
    out += f'; @launch grid=(256,1,1) block=(576,1,1) lds={LDS_BYTES}\n'
    out += '.amdgcn_target "amdgcn-amd-amdhsa--gfx950"\n.text\n'
    out += f'.globl {KNAME}_kernel\n.p2align 8\n.type {KNAME}_kernel,@function\n'
    for l in body:
        out += (l if l.endswith(':') else '    ' + l) + '\n'
    out += f'''.section .rodata,"a"
.p2align 6
.amdhsa_kernel {KNAME}_kernel
  .amdhsa_next_free_vgpr {NV}
  .amdhsa_next_free_sgpr 102
  .amdhsa_accum_offset {NV}
  .amdhsa_group_segment_fixed_size 0
  .amdhsa_kernarg_size 104
  .amdhsa_user_sgpr_count 2
  .amdhsa_user_sgpr_kernarg_segment_ptr 1
  .amdhsa_system_sgpr_workgroup_id_x 1
  .amdhsa_float_denorm_mode_32 3
.end_amdhsa_kernel
'''
    return out

if __name__ == '__main__':
    kw = eval('dict(' + (sys.argv[2] if len(sys.argv) > 2 else '') + ')')
    open(sys.argv[1], 'w').write(gen(**kw))
```

```python
import sys, math, struct
from asmlib import Asm
KNAME = 'gated_mix__gqa_block_cached__dense_activation_mish__decode'
HEADER = open('cdna_kernels/' + KNAME + '.s.ref').read().split('; Override launch')[0]


DOC = """;
; Design (one launch, 256 workgroups = one per CU, 8 streaming waves + 1 helper wave each)
;   workgroup (h, sub): head h, keys of octant sub for BOTH batches (64 keys per wave and batch).
;   helper    : 80-row slice of x@wq, x@w1 and the gate dot; partials are exchanged between the 8 workgroups
;   hand-offs : through d_ws, every word carries a 10-bit tag = (epoch word found in d_ws) + 1; the epoch
;               word is advanced at the end, so stale words of earlier launches never match. All waits are
;               progress (LDS counter, per-XCD mailbox, and a few time-stamped progress words between XCDs),
"""

def f2u(x): return struct.unpack('<I', struct.pack('<f', x))[0]
LOG2E = 1.4426950408889634
OOB = 0x80000000
OOFF = 512 * 1024
FAST = 1 << 20
YOFF = 1536 * 1024
EOFF = 1792 * 1024
MBOX = 1796 * 1024
GBOX = 1856 * 1024
STAMP_OFF = 2 << 20
WS_REC = 4 << 20
TM = 0x3ff
OS = 848
OP1 = 16 * OS
QBF = 32 * OS
ACT = QBF + 1024
GV = ACT + 512
FLAG = GV + 128
CNT = FLAG + 4
FL = FLAG + 8
MW = FLAG + 16
YP = MW + 64
LDS_BYTES = YP + 8 * 640 + 256
DPP = 'row_mask:0xf bank_mask:0xf'
RED8 = ('quad_perm:[1,0,3,2]', 'quad_perm:[2,3,0,1]', 'row_half_mirror')
NV = 168

def gen(D=3, nb=30, catchup=2, stamps=False, kv_cache='nt', w_cache='nt', wo_cache='', poll_cap=1 << 18, probe=None,
        hwin=16, nfast=48, psleep=0, psleep2=1, qsleep=4, levels=((-4, 3), (13, 2)), Dmax=4, comp=6, cstart=6, cend=712,
        nlate=8, ypre=True, gm=(2, 0), ctl=True, sind=False, qpre=False, opre=0, nl1=8, l2pos=0, xfree=False, estart=9, estep=4, m1pos=9, m2a=12, m2b=13, nsp=200, Dsp=5, spadd=0, D0pat=None, eb=False, cpre=0, hnear=False, ytr=False, pmask=False, gmimic=True, glob=False, gP0=240, gD=64, gend=660, gnum=1, gsh2=1, gclamp=24, rmul=76, GS=256, gint=False, gsw=None, gnum2=1, xphase=False, wpre=0, wpre_cache='', tpre=0, dbg_nowq=0, wqmap=0, est=None, boost=None, l2n=3, l2k=1, m2late=False, remap=0, np2=1, p2gap=1, smimic=False):
    a = Asm()
    inhelper = [False]
    VST = NV - 1
    VZ = NV - 2
    top = NV - 4
    def stamp(i, force=False):
        if est and not force and 0 < i < 8 and not inhelper[0]: return
        if stamps:
            a('s_memrealtime s[96:97]')
            a('s_waitcnt lgkmcnt(0)')
            a(f'v_writelane_b32 v{VST}, s96, {i}')
    def srd(r, p, off):
        if off is None:
            a(f's_mov_b32 s{r}, s{p}'); a(f's_mov_b32 s{r+1}, s{p+1}')
        else:
            a(f's_add_u32 s{r}, s{p}, {off}'); a(f's_addc_u32 s{r+1}, s{p+1}, 0')
    def xlane(op, v, tmp):
        a(f'{op}_dpp v{v}, v{v}, v{v} row_ror:8 {DPP}')
        a(f'v_mov_b32 v{tmp}, v{v}')
        a(f'v_permlane16_swap_b32 v{v}, v{tmp}')
        a(f'{op} v{v}, v{v}, v{tmp}')
        a(f'v_mov_b32 v{tmp}, v{v}')
        a(f'v_permlane32_swap_b32 v{v}, v{tmp}')
        a(f'{op} v{v}, v{v}, v{tmp}')
    def masks(M, t0, t1):
        a(f'v_and_b32 v{t0}, 1, v1')
        a(f'v_lshlrev_b32 v{t0}, 4, v{t0}')
        a(f'v_mov_b32 v{t1}, 0xffff')
        a(f'v_lshlrev_b32 v{t0}, v{t0}, v{t1}')
        a(f'v_bfe_u32 v{t1}, v1, 1, 2')
        for r in range(4):
            a(f'v_cmp_eq_u32 vcc, {r}, v{t1}')
            a(f'v_cndmask_b32 v{M+r}, 0, v{t0}, vcc')
    def ws_setup():
        srd(68, 28, None)
        a(f's_mov_b32 s70, {WS_REC}')
        a('s_mov_b32 s71, 0x20000')
        a('s_lshl_b32 s99, s30, 3')
        a('s_add_u32 s99, s99, s31')
        a('s_lshl_b32 s99, s99, 11')
        a(f's_add_u32 s100, s99, {OOFF}')
        if remap & 4:
            a('s_and_b32 s101, s2, 7')
            a('s_lshl_b32 s101, s101, 5')
            a('s_lshr_b32 s76, s2, 3')
            a('s_add_u32 s101, s101, s76')
        else:
            a('s_lshl_b32 s101, s31, 5')
            a('s_add_u32 s101, s101, s30')
        a('s_mul_i32 s101, s101, 640')
        a(f's_add_u32 s101, s101, {YOFF}')
        a(f's_mov_b32 s92, {poll_cap}')
        a(f's_mov_b32 s76, {EOFF}')
        a('s_load_dword s79, s[28:29], s76')
        a(f's_mov_b32 s77, {0xffffffff ^ TM}')
    def tag_finish():
        a('s_add_u32 s79, s79, 1')
        a(f's_and_b32 s78, s79, {TM}')
    def tag_apply(regs, vt):
        for r in regs: a(f'v_and_or_b32 v{r}, v{r}, s77, v{vt}')
    def tag_check(regs, x0, x1):
        regs = list(regs)
        for r in regs: a(f'v_xor_b32 v{r}, s78, v{r}')
        if len(regs) == 4:
            a(f'v_or3_b32 v{x0}, v{regs[0]}, v{regs[1]}, v{regs[2]}')
            a(f'v_or_b32 v{x0}, v{x0}, v{regs[3]}')
        else:
            a(f'v_or3_b32 v{x0}, v{regs[0]}, v{regs[1]}, v{regs[2]}')
            a(f'v_or3_b32 v{x1}, v{regs[3]}, v{regs[4]}, v{regs[5]}')
            rr = regs[6:]; i = 0
            while len(rr) >= 2:
                d = (x0, x1)[i & 1]; i += 1
                a(f'v_or3_b32 v{d}, v{d}, v{rr[0]}, v{rr[1]}'); rr = rr[2:]
            assert not rr
            a(f'v_or_b32 v{x0}, v{x0}, v{x1}')
        a(f'v_and_b32 v{x0}, {TM}, v{x0}')
        a(f'v_cmp_ne_u32 vcc, 0, v{x0}')

    a(f'{KNAME}_kernel:')
    a('s_cmp_ge_u32 s2, 256')
    a('s_cbranch_scc1 L_end')
    a('s_load_dwordx16 s[4:19], s[0:1], 0')
    a('s_load_dwordx8 s[20:27], s[0:1], 64')
    a('s_load_dwordx2 s[28:29], s[0:1], 96')
    if stamps:
        a(f'v_mov_b32 v{VST}, 0')
        stamp(0)
    a('v_lshrrev_b32 v5, 6, v0')
    a('v_and_b32 v1, 63, v0')
    a('v_readfirstlane_b32 s3, v5')
    a('s_and_b32 s82, s2, 7')
    a('s_lshr_b32 s83, s2, 6')
    a('s_lshl_b32 s30, s82, 2')
    a('s_add_u32 s30, s30, s83')
    a(f's_bfe_u32 s31, s2, {3 | (3 << 16)}')
    a('v_lshrrev_b32 v6, 3, v1')
    a('v_and_b32 v7, 7, v1')
    a('v_lshlrev_b32 v5, 4, v7')
    if eb:
        a('v_mov_b32 v8, 0')
        a(f'v_mov_b32 v9, {8*D}')
        a('v_mov_b32 v10, 0')
        a(f'ds_write_b96 v8, v[8:10] offset:{FLAG}')
    a('s_cmp_eq_u32 s3, 8')
    if eb:
        a('s_cbranch_scc0 L_streamer')
        a('s_waitcnt lgkmcnt(0)')
        a('s_barrier')
        a('s_branch L_helper')
        a('L_streamer:')
    else:
        a('s_cbranch_scc1 L_helper')
    a('v_mul_u32_u24 v2, 384, v6')
    a('v_add_u32 v2, v2, v5')
    a(f's_mul_i32 s88, s30, {gm[0]}')
    if gm[1]:
        a(f's_mul_i32 s83, s82, {gm[1]}')
        a('s_add_u32 s88, s88, s83')
    a('s_and_b32 s88, s88, 7')
    a('s_lshl_b32 s82, s30, 6')
    a('s_add_u32 s82, s82, s31')
    a('s_lshl_b32 s82, s82, 3')
    a('s_add_u32 s82, s82, s3')
    a('s_mul_i32 s82, s82, 3072')
    a('s_sub_u32 s34, 100663296, s82')
    a('s_mov_b32 s35, 0x20000')
    a('s_mul_i32 s86, s88, 196608')
    a('s_waitcnt lgkmcnt(0)')
    srd(32, 6, 's82')
    S0 = 8; Q0 = 24; ACC = 24
    M0 = 36; A0 = 40
    vOW, vRA, vRG, vP1, vYW, vYR, vMW, vAC = range(48, 56)
    vRG1, vP2, G0, G1 = 56, 57, 58, 59
    kF = m2b + 1
    vM, vL = 60, 61
    T = list(range(62, 76))
    konly = list(range(36, 76, 4))
    free = konly + list(range(76, top, 4))
    slot = {}
    def alloc(tag):
        r = free.pop(0); slot[tag] = r; return r
    def release(tag):
        if slot[tag] not in konly: free.append(slot[tag])
    cur = {'kv': 0}
    nis = [0]; wcnt = [0]
    def window():
        n = nis[0]; wcnt[0] += 1
        def adj(d):
            if not xfree: return d - 1
            cnt = 0; k = 0
            for t in reversed(a.vm):
                if isinstance(t, tuple) and t[0] in ('k', 'v'):
                    if cnt == d - 1: break
                    cnt += 1
                k += 1
            return k
        if n >= nsp and not spadd:
            a.wait_out(adj(Dsp))
            return
        ex = spadd if n >= nsp else 0
        if boost and boost[0] <= n < boost[1] and (n - boost[0]) % boost[2] == 0: ex += 1
        if ctl and n >= cstart:
            a.wait_out(adj(Dmax + ex))
            a('s_waitcnt lgkmcnt(0)')
            a('v_readfirstlane_b32 s90, v0')
            for (delta, d) in levels:
                a(f's_cmp_lt_i32 s90, {8*n - delta}')
                a(f's_cbranch_scc0 L_go{wcnt[0]}')
                a(f's_waitcnt vmcnt({adj(d + ex)})')
            a(f'L_go{wcnt[0]}:')
        else:
            a.wait_out((D0pat[n % len(D0pat)] if D0pat else D) - 1)
    def issue(tag):
        kind = tag[0]
        r = alloc(tag)
        if kind in ('k', 'v'):
            if cur['kv'] != tag[1]:
                k = tag[1]
                a(f's_add_u32 s85, s88, {k & 7}')
                a('s_and_b32 s85, s85, 7')
                a('s_mul_i32 s86, s85, 196608')
                if k >= 8: a('s_add_u32 s86, s86, 50331648')
                cur['kv'] = k
            s0 = 32 if kind == 'k' else 36
            a.vmem(f'buffer_load_dwordx4 v[{r}:{r+3}], v2, s[{s0}:{s0+3}], s86 offen offset:{tag[2]*128} {kv_cache}', tag)
            nis[0] += 1
            if est and nis[0] in est: stamp(est.index(nis[0]) + 1, True)
            if ctl and nis[0] > D:
                a('s_mov_b64 exec, 1')
                a(f'ds_add_rtn_u32 v0, v{VZ}, v{VZ} offset:{CNT - 1}')
                a('s_mov_b64 exec, -1')
        elif kind == 'wo':
            rg = tag[1]
            if rg: a(f's_mov_b32 s87, {rg*5120}')
            a.vmem(f'buffer_load_dwordx4 v[{r}:{r+3}], v3, s[48:51], {"s87" if rg else "0"} offen {wo_cache}', tag)
        elif kind == 'w2':
            a.vmem(f'buffer_load_dwordx4 v[{r}:{r+3}], v4, s[52:55], 0 offen offset:{tag[1]*1280} {wo_cache}', tag)
    kl = [('k', k, s) for k in range(16) for s in range(3)]
    vl = [('v', k, s) for k in range(16) for s in range(3)]
    for tag in kl[:D]: issue(tag)
    if eb: a('s_barrier')
    if hnear:
        a('s_branch L_stream2')
        a('@HELPER_HEAD@')
        a('L_stream2:')
    srd(36, 8, 's82'); a('s_mov_b32 s38, s34'); a('s_mov_b32 s39, 0x20000')
    ws_setup()
    a(f's_mov_b32 s91, {f2u(LOG2E if smimic else LOG2E / math.sqrt(192.0))}')
    if remap & 1:
        a('s_lshr_b32 s30, s2, 3')
        a('s_and_b32 s31, s2, 7')
    a('s_mul_i32 s82, s30, 192')
    a('s_mul_i32 s83, s3, 24')
    a('s_add_u32 s82, s82, s83')
    a('s_mul_i32 s82, s82, 1280')
    a('s_mul_i32 s83, s31, 160')
    a('s_add_u32 s82, s82, s83')
    srd(48, 12, 's82')
    a('s_sub_u32 s50, 7864320, s82')
    a('s_mov_b32 s51, 0x20000')
    a('s_lshl_b32 s82, s30, 3')
    a('s_add_u32 s82, s82, s3')
    a('s_mul_i32 s82, s82, 7680')
    a('s_add_u32 s82, s82, s83')
    srd(52, 20, 's82')
    a('s_sub_u32 s54, 1966080, s82')
    a('s_mov_b32 s55, 0x20000')
    if remap & 2: a('s_lshr_b32 s30, s2, 3')
    elif remap & 1: a('s_lshr_b32 s30, s99, 14')
    a('s_lshl_b32 s93, s30, 14')
    a(f's_add_u32 s93, s93, {OOFF}')
    a('s_add_u32 s94, s93, 4096')
    a('s_add_u32 s95, s93, 8192')
    a('s_add_u32 s98, s93, 12288')
    a('v_lshrrev_b32 v8, 4, v1')
    a('v_and_b32 v9, 15, v1')
    a(f'v_mov_b32 v10, {OOB}')
    a('v_mul_u32_u24 v3, 1280, v8')
    a('v_lshl_add_u32 v3, v9, 4, v3')
    a('v_mul_u32_u24 v4, 2560, v8')
    a('v_lshl_add_u32 v4, v9, 4, v4')
    a('v_cmp_gt_u32 vcc, 3, v8')
    a('v_cndmask_b32 v4, v10, v4, vcc')
    a('v_cmp_gt_u32 vcc, 10, v9')
    a('v_cndmask_b32 v3, v10, v3, vcc')
    a('v_cndmask_b32 v4, v10, v4, vcc')
    a('v_mov_b32 v9, 0')
    a(f'v_mov_b32 v{VZ}, 1')
    if cpre == 1:
        a('s_cmp_lg_u32 s3, 7')
        a('s_cbranch_scc1 L_nocp')
        a('s_getpc_b64 s[40:41]')
        a('L_pc:')
        a(f's_sub_u32 s40, s40, L_pc-{KNAME}_kernel')
        a('s_subb_u32 s41, s41, 0')
        a('s_lshr_b32 s82, s2, 3')
        a('s_mul_i32 s82, s82, 640')
        a('v_lshl_add_u32 v10, v1, 7, s82')
        a(f'v_min_u32 v10, L_codeend-{KNAME}_kernel-4, v10')
        a('s_mov_b64 exec, 31')
        a(f'global_load_dword v{NV-3}, v10, s[40:41]')
        a('s_mov_b64 exec, -1')
        a('L_nocp:')
    if not eb: a('s_barrier')
    for tag in kl[D:nb]:
        window(); issue(tag)
    a('s_waitcnt lgkmcnt(0)')
    tag_finish()
    stamp(1)
    a('L_qw:')
    a(f'ds_read_b32 v8, v9 offset:{FLAG}')
    for s in range(3):
        a(f'ds_read_b128 v[{Q0+4*s}:{Q0+3+4*s}], v5 offset:{QBF + s*128}')
    a('s_waitcnt lgkmcnt(0)')
    a('v_readfirstlane_b32 s89, v8')
    a('s_cmp_lg_u32 s89, 0')
    a('s_cbranch_scc1 L_qwd')
    a('s_sleep 2')
    a('s_sub_u32 s92, s92, 1')
    a('s_cbranch_scc0 L_qw')
    a('s_endpgm')
    a('L_qwd:')
    stamp(2)
    abi = [0]
    def build_A(src):
        A = A0 + 4 * (abi[0] & 1); abi[0] += 1
        for r in range(4):
            a(f'v_and_b32 v{A+r}, {src}, v{M0+r}')
        return A
    def task_k(k):
        S = S0 + k
        if k == 8: a('s_waitcnt lgkmcnt(0)')
        first = True
        for s in range(3):
            r = slot[('k', k, s)]
            for i in range(4):
                c = '0' if first else f'v{S}'
                a(f'v_dot2_f32_bf16 v{S}, v{r+i}, v{Q0 + s*4 + i}, {c}')
                first = False
            release(('k', k, s))
        if k == 7:
            for s in range(3):
                a(f'ds_read_b128 v[{Q0+4*s}:{Q0+3+4*s}], v5 offset:{QBF + 512 + s*128}')
    def flush_acc(b):
        a('s_mov_b32 exec_lo, 0x00ff00ff')
        a('s_mov_b32 exec_hi, 0xff00ff00')
        for s in range(3):
            a(f'ds_write_b128 v{vOW}, v[{ACC+4*s}:{ACC+3+4*s}] offset:{b*OP1 + s*256}')
        if b == 0:
            a('s_mov_b64 exec, 1')
            a(f'ds_add_u32 v{VZ}, v{VZ} offset:{FL - 1}')
        a('s_mov_b64 exec, -1')
    def task_v(k, fine=False, after=None):
        A = build_A(f'v{S0+k}')
        if k == 8: a('s_waitcnt lgkmcnt(0)')
        for s in range(3):
            if fine: a.wait_tag(('v', k, s))
            r = slot[('v', k, s)]; acc = ACC + 4 * s
            c = '0' if k % 8 == 0 else f'v[{acc}:{acc+3}]'
            a(f'v_mfma_f32_16x16x32_bf16 v[{acc}:{acc+3}], v[{A}:{A+3}], v[{r}:{r+3}], {c}')
            release(('v', k, s))
            if after: after(k, s)
    def task_red(b):
        for pat in RED8:
            for k in range(8 * b, 8 * b + 8):
                a(f'v_add_f32_dpp v{S0+k}, v{S0+k}, v{S0+k} {pat} {DPP}')
    t0, t1, t2 = T[0], T[1], T[2]
    def task_rnd(b):
        B = S0 + 8 * b
        for k in range(0, 8, 2): a(f'v_cvt_pk_bf16_f32 v{B+k}, v{B+k}, v{B+k+1}')
        for k in range(0, 8, 2):
            a(f'v_and_b32 v{B+k+1}, 0xffff0000, v{B+k}')
            a(f'v_lshlrev_b32 v{B+k}, 16, v{B+k}')
        for k in range(8): a(f'v_mul_f32 v{B+k}, {f2u(192.0 ** -0.5)}, v{B+k}')
        for k in range(0, 8, 2): a(f'v_cvt_pk_bf16_f32 v{B+k}, v{B+k}, v{B+k+1}')
        for k in range(0, 8, 2):
            a(f'v_and_b32 v{B+k+1}, 0xffff0000, v{B+k}')
            a(f'v_lshlrev_b32 v{B+k}, 16, v{B+k}')
    def task_sm1(b):
        B = S0 + 8 * b
        a(f'v_max3_f32 v{t0}, v{B}, v{B+1}, v{B+2}')
        a(f'v_max3_f32 v{t0}, v{t0}, v{B+3}, v{B+4}')
        a(f'v_max3_f32 v{t0}, v{t0}, v{B+5}, v{B+6}')
        a(f'v_max_f32 v{t0}, v{t0}, v{B+7}')
        xlane('v_max_f32', t0, t1)
        a(f'v_mul_f32 v{vM}, s91, v{t0}')
        for k in range(8): a(f'v_fma_f32 v{B+k}, v{B+k}, s91, -v{vM}')
        for k in range(8): a(f'v_exp_f32 v{B+k}, v{B+k}')
        a('s_lshl_b32 s82, s3, 2')
        a(f'v_mov_b32 v{t0}, s82')
        a(f'ds_write_b32 v{t0}, v{vM} offset:{MW + 32*b}')
    def task_sm2(b):
        B = S0 + 8 * b
        u = 64
        a(f'v_add_f32 v{u}, v{B}, v{B+1}')
        for k in range(2, 8): a(f'v_add_f32 v{u}, v{u}, v{B+k}')
        for k in range(8):
            if 8 * b + k < kF: a(f'v_cvt_pk_bf16_f32 v{B+k}, v{B+k}, v{B+k}')
        xlane('v_add_f32', u, t1)
        a(f'v_writelane_b32 v{u}, 0, 40')
        a(f'v_mov_b32 v{u+1}, v{u}'); a(f'v_mov_b32 v{u+2}, v{u}'); a(f'v_mov_b32 v{u+3}, v{u}')
        a('s_mov_b32 exec_lo, 1')
        a('s_mov_b32 exec_hi, 0x100')
        a(f'ds_write_b128 v{vOW}, v[{u}:{u+3}] offset:{b*OP1 + 768}')
        a('s_mov_b64 exec, -1')
    def task_addr0():
        a(f'v_lshrrev_b32 v{t0}, 5, v1')
        a('s_lshl_b32 s82, s3, 1')
        a(f'v_add_u32 v{t0}, s82, v{t0}')
        a(f'v_lshlrev_b32 v{t1}, 5, v7')
        a(f'v_bfe_u32 v{t2}, v1, 4, 1')
        a(f'v_lshl_add_u32 v{t1}, v{t2}, 4, v{t1}')
        a(f'v_mul_u32_u24 v{vOW}, {OS}, v{t0}')
        a(f'v_add_u32 v{vOW}, v{vOW}, v{t1}')
        masks(M0, t0, t1)
    g, ob, x, y, z = 68, 69, 70, 71, 72
    vRA0 = 61
    def task_addr1():
        a(f'v_lshrrev_b32 v{g}, 4, v1')
        a(f'v_mov_b32 v{ob}, {OOB}')
        a('s_mul_i32 s82, s3, 6')
        a(f'v_add_u32 v{x}, s82, v6')
        a('v_cmp_gt_u32 vcc, 6, v6')
        a(f'v_cndmask_b32 v{x}, 48, v{x}, vcc')
        a(f'v_lshlrev_b32 v{x}, 4, v{x}')
        a(f'v_mul_u32_u24 v{vRA0}, {2*OS}, v7')
        a(f'v_add_u32 v{vRA0}, v{vRA0}, v{x}')
        a(f'v_add_u32 v{x}, {OP1}, v{vRA0}')
        a('v_cmp_eq_u32 s[80:81], 7, v6')
        a(f'v_cndmask_b32 v{vRA0}, v{vRA0}, v{x}, s[80:81]')
        a(f'v_add_u32 v{x}, s82, v7')
        a('v_cmp_gt_u32 vcc, 6, v7')
        a(f'v_cndmask_b32 v{x}, 48, v{x}, vcc')
        a(f'v_lshlrev_b32 v{x}, 4, v{x}')
        a(f'v_mul_u32_u24 v{vRA}, {2*OS}, v6')
        a(f'v_add_u32 v{vRA}, v{vRA}, v{x}')
        a('s_lshl_b32 s82, s3, 7')
        a(f'v_lshl_add_u32 v{x}, v6, 4, s82')
        if ytr:
            a(f'v_mul_u32_u24 v{vYR}, 640, v6')
            a(f'v_add3_u32 v{vYR}, v{vYR}, v5, s82')
        else:
            a(f'v_mul_u32_u24 v{vYR}, 640, v7')
            a(f'v_add_u32 v{vYR}, v{vYR}, v{x}')
        a('v_cmp_eq_u32 vcc, 0, v7')
        a(f'v_cndmask_b32 v{vRG}, v{ob}, v{x}, vcc')
        a(f'v_lshlrev_b32 v{y}, 11, v6')
        a(f'v_add3_u32 v{vP1}, v{y}, v5, s82')
        a(f'v_lshl_add_u32 v{y}, v{g}, 5, s82')
        a(f'v_lshl_add_u32 v{y}, v7, 2, v{y}')
        a(f'v_and_b32 v{x}, 1, v6')
        a(f'v_lshlrev_b32 v{vAC}, 8, v{x}')
        a(f'v_lshl_add_u32 v{vP2}, v{x}, 11, v{y}')
        a(f'v_cmp_eq_u32 vcc, 0, v{x}')
        a(f'v_cndmask_b32 v{vRG1}, v{ob}, v{y}, vcc')
    def task_addr2():
        a('s_mul_i32 s82, s3, 24')
        a(f'v_lshl_add_u32 v{vAC}, v{g}, 3, v{vAC}')
        a(f'v_add_u32 v{vAC}, s82, v{vAC}')
        a(f'v_and_b32 v{x}, 15, v1')
        a(f'v_lshlrev_b32 v{x}, 5, v{x}')
        a(f'v_lshrrev_b32 v{y}, 5, v1')
        a(f'v_mul_u32_u24 v{y}, 320, v{y}')
        a(f'v_and_b32 v{z}, 1, v{g}')
        a(f'v_lshlrev_b32 v{z}, 4, v{z}')
        a(f'v_add3_u32 v{vYW}, v{x}, v{y}, v{z}')
        a('s_mul_i32 s82, s3, 640')
        a(f'v_add_u32 v{vYW}, s82, v{vYW}')
        a(f'v_lshlrev_b32 v{vMW}, 2, v7')
        a('v_mov_b32 v75, s78')
    R = 8
    def ostore(text, b):
        a(f's_cmp_eq_u32 s89, {77 if remap & 2 else 1}')
        a(f's_cbranch_scc1 L_ofast{b}')
        a(text + ' sc1')
        a(f's_branch L_odone{b}')
        a(f'L_ofast{b}:')
        a.vmem(text)
        a(f'L_odone{b}:')
    def task_m1():
        WG = [62, 63]; MXR = [64, 65]
        a('L_m1:')
        a(f'ds_read_b32 v66, v{VZ} offset:{FL - 1}')
        a(f'ds_read_b32 v{WG[0]}, v{vMW} offset:{MW}')
        a(f'ds_read_b32 v{WG[1]}, v{vMW} offset:{MW+32}')
        a(f'ds_read_b128 v[{R}:{R+3}], v{vRA0}')
        a(f'ds_read_b128 v[{R+4}:{R+7}], v{vRA0} offset:{OS}')
        a(f'ds_read_b64 v[72:73], v{vAC} offset:{ACT}')
        a(f'ds_read_b32 v{G0}, v{VZ} offset:{GV - 1}')
        a(f'ds_read_b32 v{G1}, v{VZ} offset:{GV + 63}')
        a('s_waitcnt lgkmcnt(0)')
        a('v_readfirstlane_b32 s82, v66')
        a('s_cmp_eq_u32 s82, 9')
        a('s_cbranch_scc1 L_m1d')
        a('s_sleep 1')
        a('s_sub_u32 s92, s92, 1')
        a('s_cbranch_scc0 L_m1')
        a('s_endpgm')
        a('L_m1d:')
        for i, pat in enumerate(RED8):
            for b in range(2):
                src = WG[b] if i == 0 else MXR[b]
                a(f'v_max_f32_dpp v{MXR[b]}, v{src}, v{src} {pat} {DPP}')
            a(f'v_add_f32 v{R+i}, v{R+i}, v{R+4+i}')
        a(f'v_add_f32 v{R+3}, v{R+3}, v{R+7}')
        for b in range(2): a(f'v_and_b32 v{MXR[b]}, s77, v{MXR[b]}')
        for b in range(2): a(f'v_sub_f32 v{WG[b]}, v{WG[b]}, v{MXR[b]}')
        a(f'v_cndmask_b32 v{WG[0]}, v{WG[0]}, v{WG[1]}, s[80:81]')
        a(f'v_exp_f32 v{WG[0]}, v{WG[0]}')
        for i in range(4): a(f'v_mul_f32 v{R+i}, v{R+i}, v{WG[0]}')
        for pat in RED8:
            for i in range(4):
                a(f'v_add_f32_dpp v{R+i}, v{R+i}, v{R+i} {pat} {DPP}')
        a(f'v_cndmask_b32 v{R}, v{R}, v{MXR[0]}, s[80:81]')
        a(f'v_cndmask_b32 v{R+1}, v{R+1}, v{MXR[1]}, s[80:81]')
        tag_apply(range(R, R + 4), 75)
        ostore(f'buffer_store_dwordx4 v[{R}:{R+3}], v{vRG}, s[68:71], s100 offen', 0)
    PG = 12
    gat = f'buffer_load_dwordx4 v[{PG}:{PG+3}], v{vP1}, s[68:71], s93 offen sc1'
    def task_m2a():
        a.vmem(gat, 'gat')
    AP = []
    def task_m2b():
        a.wait_tag('gat')
        a('L_m2:')
        tag_check(range(PG, PG + 4), 62, 63)
        a('s_cbranch_vccz L_m2d')
        a(gat)
        a('s_waitcnt vmcnt(0)')
        a('s_sub_u32 s92, s92, 1')
        a('s_cbranch_scc0 L_m2')
        a('s_endpgm')
        a('L_m2d:')
        MQ, MX, M1, L1, TT = 62, 63, 64, 65, 66
        a(f'v_mov_b32_dpp v{MQ}, v{PG} row_newbcast:7 row_mask:0xf bank_mask:0x3')
        a(f'v_mov_b32 v{M1}, v{PG+1}')
        a(f'v_mov_b32_dpp v{MQ}, v{PG} row_newbcast:15 row_mask:0xf bank_mask:0xc')
        xlane('v_max_f32', M1, TT)
        a(f'v_mov_b32 v{MX}, v{MQ}')
        xlane('v_max_f32', MX, TT)
        a(f'v_sub_f32 v{L1}, v{PG+1}, v{M1}')
        a(f'v_sub_f32 v{MQ}, v{MQ}, v{MX}')
        a(f'v_exp_f32 v{L1}, v{L1}')
        a(f'v_exp_f32 v{MQ}, v{MQ}')
        a(f'v_mul_f32 v{L1}, v{L1}, v{PG+2}')
        for i in range(4): a(f'v_mul_f32 v{PG+i}, v{PG+i}, v{MQ}')
        xlane('v_add_f32', L1, TT)
        a(f'v_readlane_b32 s82, v{M1}, 7')
        a(f'v_rcp_f32 v{L1}, v{L1}')
        a(f'v_permlane16_swap_b32 v{PG}, v{PG+1}')
        a(f'v_permlane16_swap_b32 v{PG+2}, v{PG+3}')
        a(f'v_readlane_b32 s83, v{L1}, 7')
        a(f'v_add_f32 v{PG}, v{PG}, v{PG+1}')
        a(f'v_add_f32 v{PG+2}, v{PG+2}, v{PG+3}')
        a(f'v_subrev_f32 v{M1}, s82, v{vM}')
        a(f'v_permlane32_swap_b32 v{PG}, v{PG+2}')
        a(f'v_exp_f32 v{M1}, v{M1}')
        a(f'v_add_f32 v{PG}, v{PG}, v{PG+2}')
        a(f'v_mul_f32 v{G1}, s83, v{G1}')
        a(f'v_mul_f32 v{G1}, v{G1}, v{M1}')
        a(f'v_add_f32_dpp v{PG}, v{PG}, v{PG} row_ror:8 {DPP}')
        a(f'v_rcp_f32 v{MX}, v{PG}')
        a(f'v_mul_f32 v{PG}, v{PG}, v{G0}')
        for k in range(kF, 16): a(f'v_mul_f32 v{S0+k}, v{S0+k}, v{G1}')
        a(f'v_mul_f32_dpp v{PG}, v{MX}, v{PG} row_newbcast:6 {DPP}')
        for k in range(kF, 16): a(f'v_cvt_pk_bf16_f32 v{S0+k}, v{S0+k}, v{S0+k}')
        a(f'v_cvt_pk_bf16_f32 v{PG}, v{PG}, v{PG}')
        for i in range(12): a(f'v_mul_f32 v{ACC+i}, v{ACC+i}, v{G1}')
    def task_m2c():
        for p in range(6):
            AP.append(alloc(('ap', p)))
            for r in range(4):
                a(f'v_and_b32_dpp v{AP[p]+r}, v{PG}, v{M0+r} row_newbcast:{p} {DPP}')
    def run(issue_list, tasks, win, per_issue):
        for tag in issue_list:
            while not free:
                fn, needs = tasks.pop(0)
                for n in needs: a.wait_tag(n)
                fn()
            if win and not (xfree and tag[0] in ('wo', 'w2')): window()
            issue(tag)
            n = 0
            while tasks and n < per_issue and all(a.issued(q) and a.is_done(q) for q in tasks[0][1]):
                fn, needs = tasks.pop(0); fn(); n += 1
    kt = [((lambda k=k: task_k(k)), [('k', k, s) for s in range(3)]) for k in range(16)]
    vt = [((lambda k=k: task_v(k)), [('v', k, s) for s in range(3)]) for k in range(16)]
    N = lambda f: (f, [])
    if smimic:
        tasks = kt[:11] + [N(task_addr0), N(lambda: task_red(0))] + kt[11:12] + [N(lambda: task_rnd(0))] + kt[12:13] + [N(lambda: task_sm1(0))] + kt[13:14] + [N(lambda: task_sm2(0))] + kt[14:]
        tasks += [N(lambda: stamp(3))] if stamps else []
        tasks += vt[:1] + [N(lambda: task_red(1))] + vt[1:2] + [N(lambda: task_rnd(1))] + vt[2:3] + [N(lambda: task_sm1(1))] + vt[3:4] + [N(lambda: task_sm2(1))] + vt[4:5]
    else:
        tasks = kt[:11] + [N(task_addr0), N(lambda: task_red(0))] + kt[11:12] + [N(lambda: task_sm1(0))] + kt[12:13] + [N(lambda: task_sm2(0))] + kt[13:]
        tasks += [N(lambda: stamp(3))] if stamps else []
        tasks += vt[:1] + [N(lambda: task_red(1))] + vt[1:2] + [N(lambda: task_sm1(1))] + vt[2:3] + [N(lambda: task_sm2(1))] + vt[3:5]
    tasks += [N(task_addr1)] + vt[5:6] + [N(task_addr2)] + vt[6:8] + [N(lambda: flush_acc(0))]
    for k in range(8, 14):
        tasks.append(vt[k])
        if k == m1pos: tasks.append(N(task_m1))
        if k == m2a: tasks.append(N(task_m2a))
        if k == m2b and not m2late: tasks += [(task_m2b, ['gat']), N(task_m2c)]
    wl = [('wo', rg) for rg in range(6)] + [('w2', i) for i in range(2)]
    run(kl[nb:], tasks, True, catchup)
    early = wl[nlate:][::-1]; latel = wl[:nlate]
    vseq = []
    for i, tag in enumerate(vl):
        vseq.append(tag)
        if i >= estart and (i - estart) % estep == 0 and early: vseq.append(early.pop())
    run(vseq, tasks, True, catchup)
    a('s_barrier')
    run(latel[:nl1], [], False, 0)
    if m2late: tasks += [(task_m2b, ['gat']), N(task_m2c)]
    while tasks:
        fn, needs = tasks.pop(0)
        for n in needs: a.wait_tag(n)
        fn()
    rest = latel[nl1:]
    def after(k, s):
        pos = (k - 14) * 3 + s
        if l2pos == 2 and pos >= 5 - l2n and pos < 5:
            for _ in range(l2k):
                if rest: issue(rest.pop(0))
    task_v(14, True, after)
    task_v(15, True, after)
    stamp(4)
    flush_acc(1)
    run(rest, [], False, 0)
    a('s_waitcnt lgkmcnt(0)')
    a('s_barrier')
    a(f'ds_read_b128 v[{R}:{R+3}], v{vRA} offset:{OP1}')
    a(f'ds_read_b128 v[{R+4}:{R+7}], v{vRA} offset:{OP1+OS}')
    AW = [build_A('v72'), build_A('v73')]
    a('s_waitcnt lgkmcnt(0)')
    for i in range(4): a(f'v_add_f32 v{R+i}, v{R+i}, v{R+4+i}')
    a(f'v_permlane16_swap_b32 v{R}, v{R+1}')
    a(f'v_permlane16_swap_b32 v{R+2}, v{R+3}')
    a(f'v_add_f32 v{R}, v{R}, v{R+1}')
    a(f'v_add_f32 v{R+2}, v{R+2}, v{R+3}')
    a(f'v_permlane32_swap_b32 v{R}, v{R+2}')
    a(f'v_add_f32 v{R}, v{R}, v{R+2}')
    a(f'v_add_f32_dpp v{R}, v{R}, v{R} row_ror:8 {DPP}')
    tag_apply([R], 75)
    ostore(f'buffer_store_dword v{R}, v{vRG1}, s[68:71], s100 offen offset:1024', 1)
    O = 16; X = 66; X2 = 67; Y = 24
    def poll1():
        for u, so in enumerate(('s93', 's94', 's95', 's98')):
            a(f'buffer_load_dword v{O+u}, v{vP2}, s[68:71], {so} offen offset:1024 sc1')
    poll1()
    stamp(5)
    a('s_waitcnt vmcnt(5)')
    for i in range(2):
        r = slot[('w2', i)]
        a(f'v_mfma_f32_16x16x32_bf16 v[{Y}:{Y+3}], v[{AW[i]}:{AW[i]+3}], v[{r}:{r+3}], {"0" if i == 0 else f"v[{Y}:{Y+3}]"}')
    a('; gather normalised o of batch 1, project onto an 80-column slice of wo / w2')
    a('L_poll1:')
    a('s_waitcnt vmcnt(0)')
    tag_check(range(O, O + 4), X, X2)
    a(f'v_add_f32 v{O+4}, v{O}, v{O+1}')
    a(f'v_add_f32 v{O+5}, v{O+2}, v{O+3}')
    a('s_cbranch_vccz L_poll1d')
    if psleep: a(f's_sleep {psleep}')
    poll1()
    a('s_sub_u32 s92, s92, 1')
    a('s_cbranch_scc0 L_poll1')
    a('s_endpgm')
    a('L_poll1d:')
    stamp(6)
    a(f'v_add_f32 v{O}, v{O+4}, v{O+5}')
    a(f'v_add_f32_dpp v{O}, v{O}, v{O} row_ror:8 {DPP}')
    a(f'v_cvt_pk_bf16_f32 v{O}, v{O}, v{O}')
    for p in range(7):
        if p < 6:
            for r in range(4):
                a(f'v_and_b32_dpp v{AP[p]+r}, v{O}, v{M0+r} row_newbcast:{p} row_mask:0xf bank_mask:0xc')
        if p > 0:
            r0 = slot[('wo', p - 1)]; A = AP[p - 1]
            a(f'v_mfma_f32_16x16x32_bf16 v[{Y}:{Y+3}], v[{A}:{A+3}], v[{r0}:{r0+3}], v[{Y}:{Y+3}]')
    a('s_mov_b32 exec_lo, 0x03ff03ff')
    a('s_mov_b32 exec_hi, 0x03ff03ff')
    a('s_cmp_ge_u32 s3, 5')
    a(f'ds_write_b128 v{vYW}, v[{Y}:{Y+3}] offset:{YP}')
    a('s_mov_b64 exec, -1')
    a('s_waitcnt lgkmcnt(0)')
    a('s_barrier')
    a('s_cbranch_scc1 L_fin')
    R2 = 28
    a(f'ds_read_b128 v[{R2}:{R2+3}], v{vYR} offset:{YP}')
    a('s_waitcnt lgkmcnt(0)')
    if ytr:
        a(f'v_permlane16_swap_b32 v{R2}, v{R2+1}')
        a(f'v_permlane16_swap_b32 v{R2+2}, v{R2+3}')
        a(f'v_add_f32 v{R2}, v{R2}, v{R2+1}')
        a(f'v_add_f32 v{R2+2}, v{R2+2}, v{R2+3}')
        a(f'v_permlane32_swap_b32 v{R2}, v{R2+2}')
        a(f'v_add_f32 v{R2}, v{R2}, v{R2+2}')
        a(f'v_add_f32_dpp v{R2}, v{R2}, v{R2} row_ror:8 {DPP}')
        tag_apply([R2], 75)
        a(f'buffer_store_dword v{R2}, v{vRG1}, s[68:71], s101 offen {"" if remap & 4 else "sc1"}')
    else:
        for pat in RED8:
            for i in range(4):
                a(f'v_add_f32_dpp v{R2+i}, v{R2+i}, v{R2+i} {pat} {DPP}')
        tag_apply(range(R2, R2 + 4), 75)
        a(f'buffer_store_dwordx4 v[{R2}:{R2+3}], v{vRG}, s[68:71], s101 offen sc1')
    a('L_fin:')
    if stamps:
        stamp(8, True)
        if not est: a(f'v_writelane_b32 v{VST}, s96, 7')
        a('L_probe:')
        if probe is not None:
            i, K, base, j0, who = probe
            a('s_cmp_eq_u32 s3, 8')
            if who == 's': a('s_cbranch_scc1 L_end')
            if who == 'h': a('s_cbranch_scc0 L_end')
            a(f'v_readlane_b32 s82, v{VST}, 0')
            a(f'v_readlane_b32 s83, v{VST}, {i}')
            a(f'v_readlane_b32 s84, v{VST}, {j0}')
            a('s_sub_u32 s83, s83, s84')
            a(f's_mul_i32 s83, s83, {K}')
            a(f's_add_u32 s83, s83, {base}')
            a('L_spin:')
            a('s_sleep 2')
            a('s_memrealtime s[96:97]')
            a('s_waitcnt lgkmcnt(0)')
            a('s_sub_u32 s84, s96, s82')
            a('s_cmp_lt_u32 s84, s83')
            a('s_cbranch_scc1 L_spin')
        else:
            a('s_cmp_eq_u32 s3, 8')
            a('s_cbranch_scc1 L_nosl')
            a('s_sleep 127')
            a('s_sleep 127')
            a('L_nosl:')
            a('s_mul_i32 s82, s2, 9')
            a('s_add_u32 s82, s82, s3')
            a('s_lshl_b32 s82, s82, 8')
            a(f's_add_u32 s82, s82, {STAMP_OFF}')
            a('v_lshlrev_b32 v5, 2, v1')
            a(f'buffer_store_dword v{VST}, v5, s[68:71], s82 offen')
    a('L_end:')
    a('s_endpgm')

    a.vm = []; a.vm_done = 0
    a('L_helper:')
    inhelper[0] = True
    a('v_mul_u32_u24 v3, 122880, v6')
    a('v_add_u32 v3, v3, v5')
    a('v_mul_u32_u24 v4, 30720, v6')
    a('v_add_u32 v4, v4, v5')
    a(f'v_mov_b32 v2, {OOB}')
    a('v_cmp_gt_u32 vcc, 6, v7')
    a('v_cndmask_b32 v4, v2, v4, vcc')
    a('v_mul_u32_u24 v8, 20, v6')
    a('v_lshlrev_b32 v9, 4, v1')
    a('v_mov_b32 v73, 0')
    if not eb:
        a(f'ds_write_b32 v73, v73 offset:{FLAG}')
        a(f'ds_write_b32 v73, v73 offset:{FL}')
        a(f'v_mov_b32 v10, {8*D}')
        a(f'ds_write_b32 v73, v10 offset:{CNT}')
    HM = 12; HA = 16; HACC = 24; HX = 56
    a('s_mul_i32 s83, s31, 983040')
    a('s_mul_i32 s84, s30, 384')
    a('s_add_u32 s83, s83, s84')
    a('s_mul_i32 s85, s31, 245760')
    a('s_mul_i32 s84, s30, 96')
    a('s_add_u32 s85, s85, s84')
    a('s_mul_i32 s98, s31, 160')
    for r in (43, 47, 59, 63, 67):
        a(f's_mov_b32 s{r}, 0x20000')
    a('s_sub_u32 s42, 7864320, s83')
    a('s_sub_u32 s46, 1966080, s85')
    if dbg_nowq & 1: a('s_mov_b32 s42, 0')
    if dbg_nowq & 2: a('s_mov_b32 s46, 0')
    a('s_sub_u32 s58, 2560, s98')
    a('s_sub_u32 s62, 1280, s98')
    a('s_mov_b32 s66, 96')
    a('s_waitcnt lgkmcnt(0)')
    srd(56, 4, 's98'); srd(40, 10, 's83'); srd(44, 16, 's85'); srd(60, 22, 's98'); srd(64, 18, 's84')
    a.vmem(f'buffer_load_dwordx4 v[{HX}:{HX+3}], v8, s[56:59], 0 offen')
    a.vmem(f'buffer_load_dword v{HX+4}, v8, s[56:59], 0 offen offset:16')
    a.vmem(f'buffer_load_dwordx4 v[{HX+6}:{HX+9}], v8, s[56:59], 0 offen offset:1280')
    a.vmem(f'buffer_load_dword v{HX+10}, v8, s[56:59], 0 offen offset:1296')
    hfree = list(range(76, top, 4))
    hslot = {}
    def hissue(tag):
        r = hfree.pop(0); hslot[tag] = r
        t = tag[0]
        if tag[1] == 0 and t:
            a(f's_mov_b32 s87, {t*12288}'); a(f's_mov_b32 s86, {t*3072}')
        if tag[1] < 3:
            a.vmem(f'buffer_load_dwordx4 v[{r}:{r+3}], v3, s[40:43], {"s87" if t else "0"} offen offset:{tag[1]*128} {w_cache}', tag)
        else:
            a.vmem(f'buffer_load_dwordx4 v[{r}:{r+3}], v4, s[44:47], {"s86" if t else "0"} offen {w_cache}', tag)
    hl = [(t, s) for t in range(10) for s in range(4)]
    nfirst = min(hwin, len(hfree)) // 4 * 4
    for tag in hl[:nfirst]: hissue(tag)
    hl = hl[nfirst:]
    a.vmem(f'buffer_load_dwordx4 v[{HX+12}:{HX+15}], v8, s[60:63], 0 offen')
    a.vmem(f'buffer_load_dword v{HX+16}, v8, s[60:63], 0 offen offset:16')
    a('v_and_b32 v10, 15, v1')
    a('v_lshlrev_b32 v10, 3, v10')
    a.vmem(f'buffer_load_dwordx2 v[74:75], v10, s[64:67], 0 offen', 'b1')
    if not eb: a('s_barrier')
    if hnear:
        a('s_branch L_helper2')
        a('@HEAD_END@')
        a('L_helper2:')
    a('s_mov_b32 s89, 0x01000100')
    a('s_mov_b32 s90, 0x03020302')
    a('s_mov_b32 s91, 0x3f803f80')
    masks(HM, 10, 11)
    ws_setup()
    if qpre:
        a(f's_add_u32 s82, s99, {FAST}')
        a.vmem(f'buffer_load_dword v{top}, v9, s[68:71], s82 offen')
        a.vmem(f'buffer_load_dword v{top}, v9, s[68:71], s82 offen offset:1024')
    stamp(1)
    hai = 0
    for t in range(10):
        a.wait_tag((t, 3))
        for bb in range(2):
            xr = HX + 6 * bb + t // 2
            a(f'v_perm_b32 v11, v{xr}, v{xr}, s{89 + (t & 1)}')
            A = HA + 4 * (hai & 1); hai += 1
            for r in range(4): a(f'v_and_b32 v{A+r}, v11, v{HM+r}')
            for s in range(4):
                r = hslot[(t, s)]; acc = HACC + 16 * bb + 4 * s
                c = '0' if t == 0 else f'v[{acc}:{acc+3}]'
                a(f'v_mfma_f32_16x16x32_bf16 v[{acc}:{acc+3}], v[{A}:{A+3}], v[{r}:{r+3}], {c}')
        for s in range(4): hfree.append(hslot[(t, s)])
        for tag in hl[:4]: hissue(tag)
        hl = hl[4:]
        if t == 6:
            a.wait_tag('b1')
            for bb, Gr in ((0, 61), (1, 67)):
                for i in range(5):
                    if gmimic:
                        xr, gr = HX + 6 * bb + i, HX + 12 + i
                        a(f'v_lshlrev_b32 v2, 16, v{xr}')
                        a(f'v_lshlrev_b32 v10, 16, v{gr}')
                        a('v_mul_f32 v2, v2, v10')
                        a(f'v_and_b32 v8, 0xffff0000, v{xr}')
                        a(f'v_and_b32 v10, 0xffff0000, v{gr}')
                        a('v_mul_f32 v8, v8, v10')
                        a('v_cvt_pk_bf16_f32 v2, v2, v8')
                        a(f'v_dot2_f32_bf16 v{Gr}, v2, s91, {"0" if i == 0 else f"v{Gr}"}')
                    else:
                        a(f'v_dot2_f32_bf16 v{Gr}, v{HX+6*bb+i}, v{HX+12+i}, {"0" if i == 0 else f"v{Gr}"}')
            xlane('v_add_f32', 61, 10)
            xlane('v_add_f32', 67, 10)
    stamp(2)
    a('v_lshrrev_b32 v16, 5, v1')
    a('v_lshlrev_b32 v16, 10, v16')
    a('v_and_b32 v11, 1, v6')
    a('v_lshl_add_u32 v16, v11, 8, v16')
    a('v_lshl_add_u32 v16, v7, 5, v16')
    a('v_bfe_u32 v11, v1, 4, 1')
    a('v_lshl_add_u32 v16, v11, 4, v16')
    for s in range(4):
        for r in range(4):
            a(f'v_permlane32_swap_b32 v{HACC+4*s+r}, v{HACC+16+4*s+r}')
    P = 76
    for u in range(2):
        for r in range(4):
            Ae, Be = HACC + 8 * u + r, HACC + 16 + 8 * u + r
            a(f'v_add_f32_dpp v{P+4*u+r}, v{Be}, v{Ae} row_ror:8 {DPP}')
        for r in range(4):
            Ao, Bo = HACC + 8 * u + 4 + r, HACC + 16 + 8 * u + 4 + r
            a(f'v_add_f32_dpp v{P+4*u+r}, v{Ao}, v{Bo} row_ror:8 row_mask:0xf bank_mask:0xc')
    a(f's_mov_b64 exec, {1 << 14}')
    a(f'v_mov_b32 v{P+4}, v61')
    a('s_mov_b32 exec_lo, 0')
    a(f's_mov_b32 exec_hi, {1 << 14}')
    a(f'v_mov_b32 v{P+4}, v67')
    a('s_mov_b64 exec, -1')
    a('s_getreg_b32 s88, hwreg(HW_REG_XCC_ID)')
    a('s_and_b32 s88, s88, 15')
    a('s_lshl_b32 s88, s88, 23')
    a(f'v_writelane_b32 v{P+5}, s88, 14')
    a('s_waitcnt lgkmcnt(0)')
    tag_finish()
    a('v_mov_b32 v11, s78')
    tag_apply(range(P, P + 8), 11)
    slow_q = [f'buffer_store_dwordx4 v[{P}:{P+3}], v16, s[68:71], s99 offen sc1',
              f'buffer_store_dwordx4 v[{P+4}:{P+7}], v16, s[68:71], s99 offen offset:512 sc1']
    a(f's_add_u32 s82, s99, {FAST}')
    a(f'buffer_store_dwordx4 v[{P}:{P+3}], v16, s[68:71], s82 offen')
    a(f'buffer_store_dwordx4 v[{P+4}:{P+7}], v16, s[68:71], s82 offen offset:512')
    stamp(3)
    a('@TPRE@')
    a('v_add_u32 v12, 4096, v9')
    a('s_lshl_b32 s93, s30, 14')
    a(f's_add_u32 s93, s93, {FAST}')
    a('s_add_u32 s94, s93, 8192')
    a(f's_mov_b32 s76, {nfast}')
    a('v_lshlrev_b32 v17, 11, v6')
    a('v_and_b32 v18, 3, v1')
    a('v_lshl_add_u32 v17, v18, 4, v17')
    a('v_bfe_u32 v18, v1, 2, 1')
    a('v_lshl_add_u32 v17, v18, 9, v17')
    stamp(4)
    QD = [24, 84]
    a('; gather q / hidden / gate partials of the 8 workgroups of this head')
    a('L_qpoll:')
    if sind:
        a('s_add_u32 s40, s28, s93')
        a('s_addc_u32 s41, s29, 0')
        for p in range(8): a(f's_load_dword s{44+p}, s[40:41], {p*2048 + 1536} glc')
        a('s_waitcnt lgkmcnt(0)')
        for p in range(8): a(f's_xor_b32 s{44+p}, s{44+p}, s78')
        for p in range(1, 8): a(f's_or_b32 s44, s44, s{44+p}')
        a(f's_and_b32 s44, s44, {TM}')
        a('s_cbranch_scc1 L_qfail')
    else:
        a(f'buffer_load_dwordx4 v[24:27], v17, s[68:71], s93 offen sc1')
        a('s_waitcnt vmcnt(0)')
        tag_check(range(24, 28), 14, 15)
        a('s_cbranch_vccnz L_qfail')
    for b in range(2):
        for p in range(8):
            vo = 'v9' if (p & 3) < 2 else 'v12'
            so = 's93' if p < 4 else 's94'
            a(f'buffer_load_dwordx4 v[{QD[b]+4*p}:{QD[b]+4*p+3}], {vo}, s[68:71], {so} offen offset:{(p & 1)*2048 + b*1024} sc1')
    a('s_waitcnt vmcnt(0)')
    tag_check(list(range(QD[0], QD[0] + 32)) + list(range(QD[1], QD[1] + 32)), 14, 15)
    a('s_cbranch_vccz L_qok0')
    a('L_qfail:')
    if qsleep: a(f's_sleep {qsleep}')
    a('s_sub_u32 s76, s76, 1')
    a('s_cbranch_scc0 L_qnosw')
    for t in slow_q: a(t)
    a('L_qnosw:')
    a('s_cmp_lt_i32 s76, 0')
    a(f's_cselect_b32 s82, {FAST}, 0')
    for r in (93, 94): a(f's_xor_b32 s{r}, s{r}, s82')
    a('s_sub_u32 s92, s92, 1')
    a('s_cbranch_scc0 L_qpoll')
    a('s_endpgm')
    a('L_qok0:')
    for p in range(8): a(f'v_xor_b32 v{56+p}, s88, v{QD[0]+4*p+1}')
    a('v_or3_b32 v14, v56, v57, v58')
    a('v_or3_b32 v15, v59, v60, v61')
    a('v_or3_b32 v14, v14, v62, v63')
    a('v_or_b32 v14, v14, v15')
    a('v_readlane_b32 s86, v14, 60')
    a('s_cmp_lg_u32 s86, 0')
    a('s_cselect_b32 s86, 2, 1')
    a('s_cbranch_scc0 L_qok')
    a('s_cmp_lt_i32 s76, 0')
    a('s_cbranch_scc1 L_qok')
    for t in slow_q: a(t)
    a('L_qok:')
    a('v_lshlrev_b32 v10, 3, v1')
    for b in range(2):
        for st in (4, 8, 16):
            for b0 in range(QD[b], QD[b] + 32, 2 * st):
                for r in range(4): a(f'v_add_f32 v{b0+r}, v{b0+r}, v{b0+st+r}')
        a(f'v_cvt_pk_bf16_f32 v{QD[b]+4}, v{QD[b]}, v{QD[b]+1}')
        a(f'v_cvt_pk_bf16_f32 v{QD[b]+5}, v{QD[b]+2}, v{QD[b]+3}')
        a(f'ds_write_b64 v10, v[{QD[b]+4}:{QD[b]+5}] offset:{QBF + 512*b}')
    a('v_mov_b32 v10, s86')
    a(f'ds_write_b32 v73, v10 offset:{FLAG}')
    stamp(5)
    HD = QD[1]
    for r in range(4): a(f'v_permlane16_swap_b32 v{QD[0]+r}, v{HD+r}')
    Gq = 32; OMG = 33
    a(f'v_mov_b32_dpp v{Gq}, v{HD} row_newbcast:12 {DPP}')
    a(f'v_cvt_pk_bf16_f32 v{Gq}, v{Gq}, v{Gq}')
    a(f'v_and_b32 v{Gq}, 0xffff0000, v{Gq}')
    a(f'v_mul_f32 v{Gq}, {f2u(-LOG2E)}, v{Gq}')
    a(f'v_exp_f32 v{Gq}, v{Gq}')
    a(f'v_add_f32 v{Gq}, 1.0, v{Gq}')
    a(f'v_rcp_f32 v{Gq}, v{Gq}')
    a(f'v_cvt_pk_bf16_f32 v{Gq}, v{Gq}, v{Gq}')
    a(f'v_and_b32 v{Gq}, 0xffff0000, v{Gq}')
    a(f'v_sub_f32 v{OMG}, 1.0, v{Gq}')
    a(f'v_cvt_pk_bf16_f32 v{OMG}, v{OMG}, v{OMG}')
    a(f'v_and_b32 v{OMG}, 0xffff0000, v{OMG}')
    a(f's_mov_b32 s83, {f2u(-LOG2E)}')
    for pr in range(2):
        h0, h1 = HD + 2 * pr, HD + 2 * pr + 1
        a(f'v_cvt_pk_bf16_f32 v{h0}, v{h0}, v{h1}')
        a(f'v_and_b32 v{h1}, 0xffff0000, v{h0}')
        a(f'v_lshlrev_b32 v{h0}, 16, v{h0}')
        a(f'v_and_b32 v35, 0xffff0000, v{74+pr}')
        a(f'v_lshlrev_b32 v34, 16, v{74+pr}')
        a(f'v_add_f32 v{h0}, v{h0}, v34')
        a(f'v_add_f32 v{h1}, v{h1}, v35')
        a(f'v_cvt_pk_bf16_f32 v{h0}, v{h0}, v{h1}')
        a(f'v_and_b32 v{h1}, 0xffff0000, v{h0}')
        a(f'v_lshlrev_b32 v{h0}, 16, v{h0}')
    for i in range(4):
        h = HD + i; t = 36; tq = 37; nu = 38; de = 39
        a(f'v_mul_f32 v{t}, s83, abs(v{h})')
        a(f'v_exp_f32 v{t}, v{t}')
        a(f'v_cmp_lt_f32 vcc, 0, v{h}')
        a(f'v_mul_f32 v{tq}, v{t}, v{t}')
        a(f'v_cndmask_b32 v{nu}, v{tq}, 1.0, vcc')
        a(f'v_cndmask_b32 v{de}, 1.0, v{tq}, vcc')
        a(f'v_fma_f32 v{nu}, v{t}, 2.0, v{nu}')
        a(f'v_fma_f32 v{de}, v{de}, 2.0, v{nu}')
        a(f'v_rcp_f32 v{de}, v{de}')
        a(f'v_mul_f32 v{nu}, v{nu}, v{h}')
        a(f'v_mul_f32 v{nu}, v{nu}, v{de}')
        a(f'v_cvt_pk_bf16_f32 v{nu}, v{nu}, v{nu}')
        a(f'v_and_b32 v{nu}, 0xffff0000, v{nu}')
        a(f'v_mul_f32 v{nu}, v{nu}, v{OMG}')
        a(f'v_cvt_pk_bf16_f32 v{40+i}, v{nu}, v{nu}')
    a('v_and_b32 v10, 31, v1')
    a('v_lshlrev_b32 v11, 2, v10')
    a('v_lshlrev_b32 v10, 4, v10')
    a('s_mov_b32 exec_lo, 0')
    a(f'ds_write_b32 v11, v{Gq} offset:{GV}')
    a(f'ds_write_b128 v10, v[40:43] offset:{ACT}')
    a('s_mov_b64 exec, 1')
    a('v_mov_b32 v10, 1')
    a(f'ds_add_u32 v73, v10 offset:{FL}')
    a('s_mov_b64 exec, -1')
    a('s_waitcnt lgkmcnt(0)')
    stamp(6)
    def tlbpre():
        a('s_mul_i32 s82, s30, 1572864')
        a('v_and_b32 v21, 1, v1')
        a('v_mul_u32_u24 v21, 1572736, v21')
        a('v_bfe_u32 v22, v1, 1, 1')
        a('s_mov_b32 s83, 50331648')
        a('v_mul_lo_u32 v22, v22, s83')
        a('v_add3_u32 v21, v21, v22, s82')
        a('s_mul_i32 s82, s30, 245760')
        a('v_mov_b32 v22, s82')
        a('s_mul_i32 s82, s30, 61440')
        a('v_mov_b32 v23, s82')
        a('s_mov_b64 exec, 15')
        a(f'global_load_dword v{top}, v21, s[6:7] nt')
        a(f'global_load_dword v{top}, v21, s[8:9] nt')
        a('s_mov_b64 exec, 1')
        a(f'global_load_dword v{top}, v22, s[12:13] nt')
        a(f'global_load_dword v{top}, v23, s[20:21] nt')
        a(f'global_load_dword v{top}, v73, s[24:25] nt')
        a('s_mov_b64 exec, -1')
    if tpre == 2: tlbpre()
    if opre == 1:
        a(f'buffer_load_dword v{top}, v9, s[68:71], s100 offen')
        a(f'buffer_load_dword v{top}, v9, s[68:71], s100 offen offset:1024')
    if opre == 2: a('v_mov_b32 v20, v9')
    if ypre:
        a('s_mov_b32 exec_hi, 0xff')
        a('buffer_load_dwordx4 v[44:47], v9, s[68:71], s101 offen')
    if ctl:
        a('s_and_b32 s82, s2, 7')
        a('s_mul_i32 s82, s82, 4352')
        a(f's_add_u32 s82, s82, {MBOX}')
        a('s_lshr_b32 s83, s2, 3')
        a('s_lshl_b32 s83, s83, 2')
        a('s_add_u32 s83, s83, s82')
        a('s_and_b32 s84, s79, 0x3fffff')
        a('s_mov_b32 s85, 0')
        if glob:
            a('v_lshlrev_b32 v11, 2, v1')
            a(f'v_mul_u32_u24 v13, {GS}, v1')
            a('s_cmp_ge_u32 s2, 248')
            a(f's_cselect_b32 s60, {gP0}, -1')
            a(f's_mov_b32 s61, {GBOX}')
            a('s_and_b32 s59, s2, 7')
            a(f's_mul_i32 s58, s59, {GS}')
            a('s_add_u32 s43, s82, 128')
            a('s_mov_b32 s57, 0')
        a('s_mov_b32 exec_hi, 0')
        a('L_c:')
        a(f'ds_read_b32 v10, v73 offset:{CNT}')
        if xphase: a('s_memrealtime s[62:63]')
        a('s_waitcnt lgkmcnt(0)')
        a('v_subrev_u32 v10, s85, v10')
        if xphase:
            a(f's_mul_i32 s64, s62, {rmul}')
            a('s_lshr_b32 s64, s64, 8')
            a('v_subrev_u32 v16, s64, v10')
            a('v_lshl_or_b32 v12, v16, 22, s84')
        else:
            a('v_lshl_or_b32 v12, v10, 22, s84')
        a('s_mov_b32 exec_lo, 1')
        a('buffer_store_dword v12, off, s[68:71], s83')
        a('s_mov_b32 exec_lo, -1')
        if glob: a('s_mov_b32 exec_hi, 1')
        a('buffer_load_dword v9, v11, s[68:71], s82 offen sc1')
        if glob: a('s_mov_b32 exec_hi, 0')
        a('v_readfirstlane_b32 s86, v10')
        if glob:
            a('s_cmp_lt_u32 s86, s60')
            a('s_cbranch_scc1 L_g1')
            if not xphase: a('s_memrealtime s[62:63]')
            a('s_mov_b32 exec_lo, 0xff')
            a('buffer_load_dword v14, v13, s[68:71], s61 offen sc1')
            a('s_mov_b32 exec_lo, -1')
            a('L_g1:')
        a('s_waitcnt vmcnt(0)')
        if glob:
            a('v_readlane_b32 s44, v9, 32')
            a('s_and_b32 s45, s44, 0x3fffff')
            a('s_ashr_i32 s44, s44, 22')
            a('s_cmp_eq_u32 s45, s84')
            a('s_cselect_b32 s44, s44, 0')
        if xphase:
            a('v_sub_u32 v9, v9, v12')
            a('v_and_b32 v12, 0x3fffff, v9')
            a('v_ashrrev_i32 v9, 22, v9')
            a('v_cmp_eq_u32 vcc, 0, v12')
            a('v_cndmask_b32 v9, 0, v9, vcc')
            a(f'v_add3_u32 v9, v9, v10, {comp}')
        else:
            a('v_and_b32 v12, 0x3fffff, v9')
            a('v_lshrrev_b32 v9, 22, v9')
            a(f'v_add_u32 v9, {comp}, v9')
            a('v_cmp_eq_u32 vcc, s84, v12')
            a('v_cndmask_b32 v9, v10, v9, vcc')
        for pat in RED8 + ('row_mirror',):
            a(f'v_add_u32_dpp v9, v9, v9 {pat} {DPP}')
        a('v_readlane_b32 s87, v9, 0')
        a('v_readlane_b32 s88, v9, 16')
        a('s_add_u32 s87, s87, s88')
        a('s_lshr_b32 s87, s87, 5')
        if glob:
            a('s_cmp_lt_u32 s86, s60')
            a('s_cbranch_scc1 L_g2')
            a('s_waitcnt lgkmcnt(0)')
            a(f's_mul_i32 s64, s62, {rmul}')
            a('s_lshr_b32 s64, s64, 8')
            a('s_sub_u32 s64, s87, s64')
            a('s_lshl_b32 s64, s64, 22')
            a('s_or_b32 s64, s64, s84')
            a(f's_add_u32 s61, s61, {8*GS}')
            a('s_add_u32 s45, s61, s58')
            a('v_mov_b32 v12, s64')
            a('s_mov_b32 exec_lo, 1')
            a('buffer_store_dword v12, off, s[68:71], s45 sc1')
            a('s_mov_b32 exec_lo, 0xff')
            a(f's_add_u32 s60, s60, {gD}')
            a(f's_cmp_gt_u32 s60, {gend}')
            a('s_cselect_b32 s60, -1, s60')
            a('v_subrev_u32 v14, s57, v14')
            a('v_and_b32 v12, 0x3fffff, v14')
            a('v_ashrrev_i32 v14, 22, v14')
            a('v_cmp_eq_u32 vcc, 0, v12')
            a(f'v_cndmask_b32 v14, {-min(gD, 16) if False else 0}, v14, vcc') if False else None
            a(f'v_mov_b32 v15, {-gD}')
            a('v_cndmask_b32 v14, v15, v14, vcc')
            for pat in RED8:
                a(f'v_add_u32_dpp v14, v14, v14 {pat} {DPP}')
            a('v_readfirstlane_b32 s46, v14')
            if gsw:
                a(f's_cmp_ge_u32 s86, {gsw}')
                a(f's_cselect_b32 s45, {gnum2}, {gnum}')
                a('s_mul_i32 s46, s46, s45')
            elif gnum != 1: a(f's_mul_i32 s46, s46, {gnum}')
            a(f's_ashr_i32 s46, s46, {3 + gsh2}')
            a(f's_min_i32 s46, s46, {gclamp}')
            a(f's_max_i32 s46, s46, {-gclamp}')
            a('s_cmp_eq_u32 s57, 0')
            a('s_cselect_b32 s46, 0, s46')
            a('s_mov_b32 s57, s64')
            a('s_lshl_b32 s46, s46, 22')
            a('s_or_b32 s46, s46, s84')
            a('v_mov_b32 v12, s46')
            a('s_mov_b32 exec_lo, 1')
            a('buffer_store_dword v12, off, s[68:71], s43')
            a('s_mov_b32 exec_lo, -1')
            a('L_g2:')
        a('s_sub_i32 s87, s87, s86')
        if glob: a('s_add_i32 s87, s87, s44')
        a('s_sub_i32 s88, s87, s85')
        a('s_mov_b32 s85, s87')
        a('v_mov_b32 v9, s88')
        a('s_mov_b32 exec_lo, 1')
        a(f'ds_add_u32 v73, v9 offset:{CNT}')
        a('s_mov_b32 exec_lo, -1')
        a(f's_cmp_ge_u32 s86, {cend}')
        a('s_cbranch_scc1 L_cd')
        a('s_sub_u32 s92, s92, 1')
        a('s_cbranch_scc0 L_c')
        a('s_endpgm')
        a('L_cd:')
    a('s_mov_b64 exec, -1')
    def wprefetch():
        a('s_lshl_b32 s82, s30, 3')
        a('s_add_u32 s82, s82, s31')
        a('s_mul_i32 s83, s82, 30720')
        srd(48, 12, 's83'); a('s_mov_b32 s50, 30720'); a('s_mov_b32 s51, 0x20000')
        a('s_mul_i32 s83, s82, 7680')
        srd(52, 20, 's83'); a('s_mov_b32 s54, 7680'); a('s_mov_b32 s55, 0x20000')
        a('v_lshlrev_b32 v21, 7, v1')
        if wpre == 2: a('s_barrier')
        for i in range(4):
            if i: a(f's_mov_b32 s83, {i*8192}')
            a(f'buffer_load_dword v{22+i}, v21, s[48:51], {"s83" if i else "0"} offen {wpre_cache}')
        a(f'buffer_load_dword v26, v21, s[52:55], 0 offen {wpre_cache}')
    if wpre: wprefetch()
    if opre == 2:
        a(f'buffer_load_dword v{top}, v20, s[68:71], s100 offen')
        a(f'buffer_load_dword v{top}, v20, s[68:71], s100 offen offset:1024')
    if not wpre:
        a('s_cmp_ge_u32 s2, 160')
        a('s_cbranch_scc1 ' + ('L_end' if (probe is not None or not stamps) else 'L_hend'))
    a('s_lshr_b32 s82, s2, 5')
    a('s_lshl_b32 s82, s82, 3')
    a('s_and_b32 s83, s2, 7')
    a('s_add_u32 s82, s82, s83')
    a('s_lshl_b32 s82, s82, 2')
    a(f's_bfe_u32 s83, s2, {3 | (2 << 16)}')
    a('s_add_u32 s85, s82, s83')
    a('s_mul_i32 s82, s85, 205')
    a('s_lshr_b32 s82, s82, 12')
    a('s_mul_i32 s83, s82, 20')
    a('s_sub_u32 s83, s85, s83')
    if remap & 4:
        a('s_and_b32 s82, s2, 7')
        a('s_lshr_b32 s83, s2, 3')
    a('s_mul_i32 s84, s82, 20480')
    a('s_lshl_b32 s81, s83, 5')
    a('s_add_u32 s84, s84, s81')
    a(f's_add_u32 s98, s84, {YOFF}')
    srd(72, 24, None); a('s_mov_b32 s74, 2560'); a('s_mov_b32 s75, 0x20000')
    vF, vOUT, F = 8, 9, 28
    a(f'v_lshrrev_b32 v{vF}, 1, v1')
    a(f'v_mul_u32_u24 v{vF}, 640, v{vF}')
    a('v_and_b32 v10, 1, v1')
    a(f'v_lshl_add_u32 v{vF}, v10, 4, v{vF}')
    if ytr:
        a('s_mul_i32 s99, s82, 160')
        a('s_lshr_b32 s84, s83, 2')
        a('s_lshl_b32 s84, s84, 5')
        a('s_and_b32 s81, s83, 3')
        a('s_add_u32 s84, s84, s81')
        a(f'v_lshl_add_u32 v{vOUT}, v10, 4, s84')
        a('v_lshrrev_b32 v10, 4, v1')
        a(f'v_lshl_add_u32 v{vOUT}, v10, 2, v{vOUT}')
        a(f'v_cmp_lt_u32 vcc, 79, v{vOUT}')
        a(f'v_add_u32 v10, 560, v{vOUT}')
        a(f'v_cndmask_b32 v{vOUT}, v{vOUT}, v10, vcc')
        a(f'v_lshlrev_b32 v{vOUT}, 1, v{vOUT}')
    else:
        a('s_cmp_ge_u32 s83, 10')
        a('s_cselect_b32 s84, 1120, 0')
        a('s_lshl_b32 s81, s83, 4')
        a('s_add_u32 s84, s84, s81')
        a('s_mul_i32 s81, s82, 160')
        a('s_add_u32 s99, s84, s81')
        a(f'v_lshlrev_b32 v{vOUT}, 3, v10')
        a('v_lshrrev_b32 v10, 4, v1')
        a(f'v_lshl_add_u32 v{vOUT}, v10, 1, v{vOUT}')
    a('v_mov_b32 v11, s79')
    a(f's_mov_b32 s82, {EOFF}')
    a('s_waitcnt lgkmcnt(0)')
    if wpre != 2: a('s_barrier')
    a('s_barrier')
    a('s_barrier')
    if wpre:
        a('s_cmp_ge_u32 s2, 160')
        a('s_cbranch_scc1 ' + ('L_end' if (probe is not None or not stamps) else 'L_hend'))
    stamp(7)
    if np2 > 1:
        FS = [F + 4 + 4 * i for i in range(np2)]
        for i in range(np2):
            a(f'buffer_load_dwordx4 v[{FS[i]}:{FS[i]+3}], v{vF}, s[68:71], s98 offen sc1')
            if i < np2 - 1: a(f's_sleep {p2gap}')
        a('L_poll2:')
        for i in range(np2):
            a(f's_waitcnt vmcnt({np2-1})')
            for r in range(4): a(f'v_xor_b32 v{F+r}, s78, v{FS[i]+r}')
            a(f'v_or3_b32 v14, v{F}, v{F+1}, v{F+2}')
            a(f'v_or_b32 v14, v14, v{F+3}')
            a(f'v_and_b32 v14, {TM}, v14')
            a('v_cmp_ne_u32 vcc, 0, v14')
            a('s_cbranch_vccz L_poll2d')
            a('s_mov_b64 exec, vcc')
            a(f'buffer_load_dwordx4 v[{FS[i]}:{FS[i]+3}], v{vF}, s[68:71], s98 offen sc1')
            if psleep2: a(f's_sleep {psleep2}')
        a('s_sub_u32 s92, s92, 1')
        a('s_cbranch_scc0 L_poll2')
        a('s_endpgm')
    else:
        a('; final reduction over the 32 heads')
        a('L_poll2:')
        a(f'buffer_load_dwordx4 v[{F}:{F+3}], v{vF}, s[68:71], s98 offen sc1')
        a('s_waitcnt vmcnt(0)')
        tag_check(range(F, F + 4), 14, 15)
        a('s_cbranch_vccz L_poll2d')
        if pmask: a('s_mov_b64 exec, vcc')
        if psleep2: a(f's_sleep {psleep2}')
        a('s_sub_u32 s92, s92, 1')
        a('s_cbranch_scc0 L_poll2')
        a('s_endpgm')
    a('L_poll2d:')
    if pmask: a('s_mov_b64 exec, -1')
    a(f'v_permlane16_swap_b32 v{F}, v{F+1}')
    a(f'v_permlane16_swap_b32 v{F+2}, v{F+3}')
    a(f'v_add_f32 v{F}, v{F}, v{F+1}')
    a(f'v_add_f32 v{F+2}, v{F+2}, v{F+3}')
    a(f'v_permlane32_swap_b32 v{F}, v{F+2}')
    a(f'v_add_f32 v{F}, v{F}, v{F+2}')
    a(f'v_add_f32_dpp v{F}, v{F}, v{F} quad_perm:[2,3,0,1] {DPP}')
    a(f'v_add_f32_dpp v{F}, v{F}, v{F} row_ror:4 {DPP}')
    a(f'v_add_f32_dpp v{F}, v{F}, v{F} row_ror:8 {DPP}')
    a('s_mov_b32 exec_lo, 0x00030003')
    a('s_mov_b32 exec_hi, 0x00030003')
    a(f'v_cvt_pk_bf16_f32 v{F}, v{F}, v{F}')
    a(f'buffer_store_short v{F}, v{vOUT}, s[72:75], s99 offen')
    a('s_cmp_lg_u32 s2, 0')
    a('s_cbranch_scc1 L_hend')
    a('s_mov_b64 exec, 1')
    a('buffer_store_dword v11, off, s[68:71], s82')
    a('L_hend:')
    if stamps:
        a('s_mov_b64 exec, -1')
        stamp(8)
        a('s_branch L_probe')
    a('s_endpgm')

    a('L_codeend:')
    ip = a.lines.index('@TPRE@')
    rest = a.lines[ip+1:]; a.lines = a.lines[:ip]
    if tpre == 1: tlbpre()
    a.lines += rest
    if hnear:
        L = a.lines
        i0 = L.index('L_helper:'); i1 = L.index('@HEAD_END@'); ih = L.index('@HELPER_HEAD@')
        head = L[i0:i1]
        a.lines = L[:ih] + head + L[ih+1:i0] + L[i1+1:]
    body = a.finalize()
    out = HEADER + DOC
    out += f'; @launch grid=(256,1,1) block=(576,1,1) lds={LDS_BYTES}\n'
    out += '.amdgcn_target "amdgcn-amd-amdhsa--gfx950"\n.text\n'
    out += f'.globl {KNAME}_kernel\n.p2align 8\n.type {KNAME}_kernel,@function\n'
    for l in body:
        out += (l if l.endswith(':') else '    ' + l) + '\n'
    out += f'''.section .rodata,"a"
.p2align 6
.amdhsa_kernel {KNAME}_kernel
  .amdhsa_next_free_vgpr {NV}
  .amdhsa_next_free_sgpr 102
  .amdhsa_accum_offset {NV}
  .amdhsa_group_segment_fixed_size 0
  .amdhsa_kernarg_size 104
  .amdhsa_user_sgpr_count 2
  .amdhsa_user_sgpr_kernarg_segment_ptr 1
  .amdhsa_system_sgpr_workgroup_id_x 1
  .amdhsa_float_denorm_mode_32 3
.end_amdhsa_kernel
'''
    return out

if __name__ == '__main__':
    kw = eval('dict(' + (sys.argv[2] if len(sys.argv) > 2 else '') + ')')
    open(sys.argv[1], 'w').write(gen(**kw))
```

```python
import sys, math, struct
from asmlib import Asm
KNAME = 'gated_mix__gqa_block_cached__dense_activation_mish__decode'
HEADER = open('cdna_kernels/' + KNAME + '.s.ref').read().split('; Override launch')[0]


DOC = """;
; Design (one launch, 256 workgroups = one per CU, 8 streaming waves + 1 helper wave each)
;   workgroup (h, sub): head h, keys of octant sub for BOTH batches (64 keys per wave and batch).
;   helper    : 80-row slice of x@wq, x@w1 and the gate dot; partials are exchanged between the 8 workgroups
;   hand-offs : through d_ws, every word carries a 10-bit tag = (epoch word found in d_ws) + 1; the epoch
;               word is advanced at the end, so stale words of earlier launches never match. All waits are
;               progress (LDS counter, per-XCD mailbox, and a few time-stamped progress words between XCDs),
"""

def f2u(x): return struct.unpack('<I', struct.pack('<f', x))[0]
LOG2E = 1.4426950408889634
OOB = 0x80000000
OOFF = 512 * 1024
FAST = 1 << 20
YOFF = 1536 * 1024
EOFF = 1792 * 1024
MBOX = 1796 * 1024
GBOX = 1856 * 1024
STAMP_OFF = 2 << 20
WS_REC = 4 << 20
TM = 0x3ff
OS = 848
OP1 = 16 * OS
QBF = 32 * OS
ACT = QBF + 1024
GV = ACT + 512
FLAG = GV + 128
CNT = FLAG + 4
FL = FLAG + 8
MW = FLAG + 16
YP = MW + 64
LDS_BYTES = YP + 8 * 640 + 256
DPP = 'row_mask:0xf bank_mask:0xf'
RED8 = ('quad_perm:[1,0,3,2]', 'quad_perm:[2,3,0,1]', 'row_half_mirror')
NV = 168

def gen(D=3, nb=30, catchup=2, stamps=False, kv_cache='nt', w_cache='nt', wo_cache='', poll_cap=1 << 18, probe=None,
        hwin=16, nfast=48, psleep=0, psleep2=1, qsleep=4, levels=((-4, 3), (13, 2)), Dmax=4, comp=6, cstart=6, cend=712,
        nlate=8, ypre=True, gm=(2, 0), ctl=True, sind=False, qpre=False, opre=0, nl1=8, l2pos=0, xfree=False, estart=9, estep=4, m1pos=9, m2a=12, m2b=13, nsp=200, Dsp=5, spadd=0, D0pat=None, eb=False, cpre=0, hnear=False, ytr=False, pmask=False, gmimic=True, glob=False, gP0=240, gD=64, gend=660, gnum=1, gsh2=1, gclamp=24, rmul=76, GS=256, gint=False, gsw=None, gnum2=1, xphase=False, wpre=0, wpre_cache='', tpre=0, dbg_nowq=0, wqmap=0, est=None, boost=None, l2n=3, l2k=1, m2late=False, remap=0, np2=1, p2gap=1, smimic=False, junk=0, junkflag=''):
    a = Asm()
    inhelper = [False]
    VST = NV - 1
    VZ = NV - 2
    top = NV - 4
    def stamp(i, force=False):
        if est and not force and 0 < i < 8 and not inhelper[0]: return
        if stamps:
            a('s_memrealtime s[96:97]')
            a('s_waitcnt lgkmcnt(0)')
            a(f'v_writelane_b32 v{VST}, s96, {i}')
    def srd(r, p, off):
        if off is None:
            a(f's_mov_b32 s{r}, s{p}'); a(f's_mov_b32 s{r+1}, s{p+1}')
        else:
            a(f's_add_u32 s{r}, s{p}, {off}'); a(f's_addc_u32 s{r+1}, s{p+1}, 0')
    def xlane(op, v, tmp):
        a(f'{op}_dpp v{v}, v{v}, v{v} row_ror:8 {DPP}')
        a(f'v_mov_b32 v{tmp}, v{v}')
        a(f'v_permlane16_swap_b32 v{v}, v{tmp}')
        a(f'{op} v{v}, v{v}, v{tmp}')
        a(f'v_mov_b32 v{tmp}, v{v}')
        a(f'v_permlane32_swap_b32 v{v}, v{tmp}')
        a(f'{op} v{v}, v{v}, v{tmp}')
    def masks(M, t0, t1):
        a(f'v_and_b32 v{t0}, 1, v1')
        a(f'v_lshlrev_b32 v{t0}, 4, v{t0}')
        a(f'v_mov_b32 v{t1}, 0xffff')
        a(f'v_lshlrev_b32 v{t0}, v{t0}, v{t1}')
        a(f'v_bfe_u32 v{t1}, v1, 1, 2')
        for r in range(4):
            a(f'v_cmp_eq_u32 vcc, {r}, v{t1}')
            a(f'v_cndmask_b32 v{M+r}, 0, v{t0}, vcc')
    def ws_setup():
        srd(68, 28, None)
        a(f's_mov_b32 s70, {WS_REC}')
        a('s_mov_b32 s71, 0x20000')
        a('s_lshl_b32 s99, s30, 3')
        a('s_add_u32 s99, s99, s31')
        a('s_lshl_b32 s99, s99, 11')
        a(f's_add_u32 s100, s99, {OOFF}')
        if remap & 4:
            a('s_and_b32 s101, s2, 7')
            a('s_lshl_b32 s101, s101, 5')
            a('s_lshr_b32 s76, s2, 3')
            a('s_add_u32 s101, s101, s76')
        else:
            a('s_lshl_b32 s101, s31, 5')
            a('s_add_u32 s101, s101, s30')
        a('s_mul_i32 s101, s101, 640')
        a(f's_add_u32 s101, s101, {YOFF}')
        a(f's_mov_b32 s92, {poll_cap}')
        a(f's_mov_b32 s76, {EOFF}')
        a('s_load_dword s79, s[28:29], s76')
        a(f's_mov_b32 s77, {0xffffffff ^ TM}')
    def tag_finish():
        a('s_add_u32 s79, s79, 1')
        a(f's_and_b32 s78, s79, {TM}')
    def tag_apply(regs, vt):
        for r in regs: a(f'v_and_or_b32 v{r}, v{r}, s77, v{vt}')
    def tag_check(regs, x0, x1):
        regs = list(regs)
        for r in regs: a(f'v_xor_b32 v{r}, s78, v{r}')
        if len(regs) == 4:
            a(f'v_or3_b32 v{x0}, v{regs[0]}, v{regs[1]}, v{regs[2]}')
            a(f'v_or_b32 v{x0}, v{x0}, v{regs[3]}')
        else:
            a(f'v_or3_b32 v{x0}, v{regs[0]}, v{regs[1]}, v{regs[2]}')
            a(f'v_or3_b32 v{x1}, v{regs[3]}, v{regs[4]}, v{regs[5]}')
            rr = regs[6:]; i = 0
            while len(rr) >= 2:
                d = (x0, x1)[i & 1]; i += 1
                a(f'v_or3_b32 v{d}, v{d}, v{rr[0]}, v{rr[1]}'); rr = rr[2:]
            assert not rr
            a(f'v_or_b32 v{x0}, v{x0}, v{x1}')
        a(f'v_and_b32 v{x0}, {TM}, v{x0}')
        a(f'v_cmp_ne_u32 vcc, 0, v{x0}')

    a(f'{KNAME}_kernel:')
    a('s_cmp_ge_u32 s2, 256')
    a('s_cbranch_scc1 L_end')
    a('s_load_dwordx16 s[4:19], s[0:1], 0')
    a('s_load_dwordx8 s[20:27], s[0:1], 64')
    a('s_load_dwordx2 s[28:29], s[0:1], 96')
    if stamps:
        a(f'v_mov_b32 v{VST}, 0')
        stamp(0)
    a('v_lshrrev_b32 v5, 6, v0')
    a('v_and_b32 v1, 63, v0')
    a('v_readfirstlane_b32 s3, v5')
    a('s_and_b32 s82, s2, 7')
    a('s_lshr_b32 s83, s2, 6')
    a('s_lshl_b32 s30, s82, 2')
    a('s_add_u32 s30, s30, s83')
    a(f's_bfe_u32 s31, s2, {3 | (3 << 16)}')
    a('v_lshrrev_b32 v6, 3, v1')
    a('v_and_b32 v7, 7, v1')
    a('v_lshlrev_b32 v5, 4, v7')
    if eb:
        a('v_mov_b32 v8, 0')
        a(f'v_mov_b32 v9, {8*D}')
        a('v_mov_b32 v10, 0')
        a(f'ds_write_b96 v8, v[8:10] offset:{FLAG}')
    a('s_cmp_eq_u32 s3, 8')
    if eb:
        a('s_cbranch_scc0 L_streamer')
        a('s_waitcnt lgkmcnt(0)')
        a('s_barrier')
        a('s_branch L_helper')
        a('L_streamer:')
    else:
        a('s_cbranch_scc1 L_helper')
    a('v_mul_u32_u24 v2, 384, v6')
    a('v_add_u32 v2, v2, v5')
    a(f's_mul_i32 s88, s30, {gm[0]}')
    if gm[1]:
        a(f's_mul_i32 s83, s82, {gm[1]}')
        a('s_add_u32 s88, s88, s83')
    a('s_and_b32 s88, s88, 7')
    a('s_lshl_b32 s82, s30, 6')
    a('s_add_u32 s82, s82, s31')
    a('s_lshl_b32 s82, s82, 3')
    a('s_add_u32 s82, s82, s3')
    a('s_mul_i32 s82, s82, 3072')
    a('s_sub_u32 s34, 100663296, s82')
    a('s_mov_b32 s35, 0x20000')
    a('s_mul_i32 s86, s88, 196608')
    a('s_waitcnt lgkmcnt(0)')
    srd(32, 6, 's82')
    S0 = 8; Q0 = 24; ACC = 24
    M0 = 36; A0 = 40
    vOW, vRA, vRG, vP1, vYW, vYR, vMW, vAC = range(48, 56)
    vRG1, vP2, G0, G1 = 56, 57, 58, 59
    kF = m2b + 1
    vM, vL = 60, 61
    T = list(range(62, 76))
    konly = list(range(36, 76, 4))
    free = konly + list(range(76, top, 4))
    slot = {}
    def alloc(tag):
        r = free.pop(0); slot[tag] = r; return r
    def release(tag):
        if slot[tag] not in konly: free.append(slot[tag])
    cur = {'kv': 0}
    nis = [0]; wcnt = [0]
    def window():
        n = nis[0]; wcnt[0] += 1
        def adj(d):
            if not xfree: return d - 1
            cnt = 0; k = 0
            for t in reversed(a.vm):
                if isinstance(t, tuple) and t[0] in ('k', 'v'):
                    if cnt == d - 1: break
                    cnt += 1
                k += 1
            return k
        if n >= nsp and not spadd:
            a.wait_out(adj(Dsp))
            return
        ex = spadd if n >= nsp else 0
        if boost and boost[0] <= n < boost[1] and (n - boost[0]) % boost[2] == 0: ex += 1
        if ctl and n >= cstart:
            a.wait_out(adj(Dmax + ex))
            a('s_waitcnt lgkmcnt(0)')
            a('v_readfirstlane_b32 s90, v0')
            for (delta, d) in levels:
                a(f's_cmp_lt_i32 s90, {8*n - delta}')
                a(f's_cbranch_scc0 L_go{wcnt[0]}')
                a(f's_waitcnt vmcnt({adj(d + ex)})')
            a(f'L_go{wcnt[0]}:')
        else:
            a.wait_out((D0pat[n % len(D0pat)] if D0pat else D) - 1)
    def issue(tag):
        kind = tag[0]
        r = alloc(tag)
        if kind in ('k', 'v'):
            if cur['kv'] != tag[1]:
                k = tag[1]
                a(f's_add_u32 s85, s88, {k & 7}')
                a('s_and_b32 s85, s85, 7')
                a('s_mul_i32 s86, s85, 196608')
                if k >= 8: a('s_add_u32 s86, s86, 50331648')
                cur['kv'] = k
            s0 = 32 if kind == 'k' else 36
            a.vmem(f'buffer_load_dwordx4 v[{r}:{r+3}], v2, s[{s0}:{s0+3}], s86 offen offset:{tag[2]*128} {kv_cache}', tag)
            nis[0] += 1
            if est and nis[0] in est: stamp(est.index(nis[0]) + 1, True)
            if ctl and nis[0] > D:
                a('s_mov_b64 exec, 1')
                a(f'ds_add_rtn_u32 v0, v{VZ}, v{VZ} offset:{CNT - 1}')
                a('s_mov_b64 exec, -1')
        elif kind == 'wo':
            rg = tag[1]
            if rg: a(f's_mov_b32 s87, {rg*5120}')
            a.vmem(f'buffer_load_dwordx4 v[{r}:{r+3}], v3, s[48:51], {"s87" if rg else "0"} offen {wo_cache}', tag)
        elif kind == 'w2':
            a.vmem(f'buffer_load_dwordx4 v[{r}:{r+3}], v4, s[52:55], 0 offen offset:{tag[1]*1280} {wo_cache}', tag)
    kl = [('k', k, s) for k in range(16) for s in range(3)]
    vl = [('v', k, s) for k in range(16) for s in range(3)]
    for tag in kl[:D]: issue(tag)
    if eb: a('s_barrier')
    if hnear:
        a('s_branch L_stream2')
        a('@HELPER_HEAD@')
        a('L_stream2:')
    srd(36, 8, 's82'); a('s_mov_b32 s38, s34'); a('s_mov_b32 s39, 0x20000')
    ws_setup()
    a(f's_mov_b32 s91, {f2u(LOG2E if smimic else LOG2E / math.sqrt(192.0))}')
    if remap & 1:
        a('s_lshr_b32 s30, s2, 3')
        a('s_and_b32 s31, s2, 7')
    a('s_mul_i32 s82, s30, 192')
    a('s_mul_i32 s83, s3, 24')
    a('s_add_u32 s82, s82, s83')
    a('s_mul_i32 s82, s82, 1280')
    a('s_mul_i32 s83, s31, 160')
    a('s_add_u32 s82, s82, s83')
    srd(48, 12, 's82')
    a('s_sub_u32 s50, 7864320, s82')
    a('s_mov_b32 s51, 0x20000')
    a('s_lshl_b32 s82, s30, 3')
    a('s_add_u32 s82, s82, s3')
    a('s_mul_i32 s82, s82, 7680')
    a('s_add_u32 s82, s82, s83')
    srd(52, 20, 's82')
    a('s_sub_u32 s54, 1966080, s82')
    a('s_mov_b32 s55, 0x20000')
    if remap & 2: a('s_lshr_b32 s30, s2, 3')
    elif remap & 1: a('s_lshr_b32 s30, s99, 14')
    a('s_lshl_b32 s93, s30, 14')
    a(f's_add_u32 s93, s93, {OOFF}')
    a('s_add_u32 s94, s93, 4096')
    a('s_add_u32 s95, s93, 8192')
    a('s_add_u32 s98, s93, 12288')
    a('v_lshrrev_b32 v8, 4, v1')
    a('v_and_b32 v9, 15, v1')
    a(f'v_mov_b32 v10, {OOB}')
    a('v_mul_u32_u24 v3, 1280, v8')
    a('v_lshl_add_u32 v3, v9, 4, v3')
    a('v_mul_u32_u24 v4, 2560, v8')
    a('v_lshl_add_u32 v4, v9, 4, v4')
    a('v_cmp_gt_u32 vcc, 3, v8')
    a('v_cndmask_b32 v4, v10, v4, vcc')
    a('v_cmp_gt_u32 vcc, 10, v9')
    a('v_cndmask_b32 v3, v10, v3, vcc')
    a('v_cndmask_b32 v4, v10, v4, vcc')
    a('v_mov_b32 v9, 0')
    a(f'v_mov_b32 v{VZ}, 1')
    if cpre == 1:
        a('s_cmp_lg_u32 s3, 7')
        a('s_cbranch_scc1 L_nocp')
        a('s_getpc_b64 s[40:41]')
        a('L_pc:')
        a(f's_sub_u32 s40, s40, L_pc-{KNAME}_kernel')
        a('s_subb_u32 s41, s41, 0')
        a('s_lshr_b32 s82, s2, 3')
        a('s_mul_i32 s82, s82, 640')
        a('v_lshl_add_u32 v10, v1, 7, s82')
        a(f'v_min_u32 v10, L_codeend-{KNAME}_kernel-4, v10')
        a('s_mov_b64 exec, 31')
        a(f'global_load_dword v{NV-3}, v10, s[40:41]')
        a('s_mov_b64 exec, -1')
        a('L_nocp:')
    if not eb: a('s_barrier')
    for tag in kl[D:nb]:
        window(); issue(tag)
    a('s_waitcnt lgkmcnt(0)')
    tag_finish()
    stamp(1)
    a('L_qw:')
    a(f'ds_read_b32 v8, v9 offset:{FLAG}')
    for s in range(3):
        a(f'ds_read_b128 v[{Q0+4*s}:{Q0+3+4*s}], v5 offset:{QBF + s*128}')
    a('s_waitcnt lgkmcnt(0)')
    a('v_readfirstlane_b32 s89, v8')
    a('s_cmp_lg_u32 s89, 0')
    a('s_cbranch_scc1 L_qwd')
    a('s_sleep 2')
    a('s_sub_u32 s92, s92, 1')
    a('s_cbranch_scc0 L_qw')
    a('s_endpgm')
    a('L_qwd:')
    stamp(2)
    abi = [0]
    def build_A(src):
        A = A0 + 4 * (abi[0] & 1); abi[0] += 1
        for r in range(4):
            a(f'v_and_b32 v{A+r}, {src}, v{M0+r}')
        return A
    def task_k(k):
        S = S0 + k
        if k == 8: a('s_waitcnt lgkmcnt(0)')
        first = True
        for s in range(3):
            r = slot[('k', k, s)]
            for i in range(4):
                c = '0' if first else f'v{S}'
                a(f'v_dot2_f32_bf16 v{S}, v{r+i}, v{Q0 + s*4 + i}, {c}')
                first = False
            release(('k', k, s))
        if k == 7:
            for s in range(3):
                a(f'ds_read_b128 v[{Q0+4*s}:{Q0+3+4*s}], v5 offset:{QBF + 512 + s*128}')
    def flush_acc(b):
        a('s_mov_b32 exec_lo, 0x00ff00ff')
        a('s_mov_b32 exec_hi, 0xff00ff00')
        for s in range(3):
            a(f'ds_write_b128 v{vOW}, v[{ACC+4*s}:{ACC+3+4*s}] offset:{b*OP1 + s*256}')
        if b == 0:
            a('s_mov_b64 exec, 1')
            a(f'ds_add_u32 v{VZ}, v{VZ} offset:{FL - 1}')
        a('s_mov_b64 exec, -1')
    def task_v(k, fine=False, after=None):
        A = build_A(f'v{S0+k}')
        if k == 8: a('s_waitcnt lgkmcnt(0)')
        for s in range(3):
            if fine: a.wait_tag(('v', k, s))
            r = slot[('v', k, s)]; acc = ACC + 4 * s
            c = '0' if k % 8 == 0 else f'v[{acc}:{acc+3}]'
            a(f'v_mfma_f32_16x16x32_bf16 v[{acc}:{acc+3}], v[{A}:{A+3}], v[{r}:{r+3}], {c}')
            release(('v', k, s))
            if after: after(k, s)
    def task_red(b):
        for pat in RED8:
            for k in range(8 * b, 8 * b + 8):
                a(f'v_add_f32_dpp v{S0+k}, v{S0+k}, v{S0+k} {pat} {DPP}')
    t0, t1, t2 = T[0], T[1], T[2]
    def task_rnd(b):
        B = S0 + 8 * b
        for k in range(0, 8, 2): a(f'v_cvt_pk_bf16_f32 v{B+k}, v{B+k}, v{B+k+1}')
        for k in range(0, 8, 2):
            a(f'v_and_b32 v{B+k+1}, 0xffff0000, v{B+k}')
            a(f'v_lshlrev_b32 v{B+k}, 16, v{B+k}')
        for k in range(8): a(f'v_mul_f32 v{B+k}, {f2u(192.0 ** -0.5)}, v{B+k}')
        for k in range(0, 8, 2): a(f'v_cvt_pk_bf16_f32 v{B+k}, v{B+k}, v{B+k+1}')
        for k in range(0, 8, 2):
            a(f'v_and_b32 v{B+k+1}, 0xffff0000, v{B+k}')
            a(f'v_lshlrev_b32 v{B+k}, 16, v{B+k}')
    def task_sm1(b):
        B = S0 + 8 * b
        a(f'v_max3_f32 v{t0}, v{B}, v{B+1}, v{B+2}')
        a(f'v_max3_f32 v{t0}, v{t0}, v{B+3}, v{B+4}')
        a(f'v_max3_f32 v{t0}, v{t0}, v{B+5}, v{B+6}')
        a(f'v_max_f32 v{t0}, v{t0}, v{B+7}')
        xlane('v_max_f32', t0, t1)
        a(f'v_mul_f32 v{vM}, s91, v{t0}')
        for k in range(8): a(f'v_fma_f32 v{B+k}, v{B+k}, s91, -v{vM}')
        for k in range(8): a(f'v_exp_f32 v{B+k}, v{B+k}')
        a('s_lshl_b32 s82, s3, 2')
        a(f'v_mov_b32 v{t0}, s82')
        a(f'ds_write_b32 v{t0}, v{vM} offset:{MW + 32*b}')
    def task_sm2(b):
        B = S0 + 8 * b
        u = 64
        a(f'v_add_f32 v{u}, v{B}, v{B+1}')
        for k in range(2, 8): a(f'v_add_f32 v{u}, v{u}, v{B+k}')
        for k in range(8):
            if 8 * b + k < kF: a(f'v_cvt_pk_bf16_f32 v{B+k}, v{B+k}, v{B+k}')
        xlane('v_add_f32', u, t1)
        a(f'v_writelane_b32 v{u}, 0, 40')
        a(f'v_mov_b32 v{u+1}, v{u}'); a(f'v_mov_b32 v{u+2}, v{u}'); a(f'v_mov_b32 v{u+3}, v{u}')
        a('s_mov_b32 exec_lo, 1')
        a('s_mov_b32 exec_hi, 0x100')
        a(f'ds_write_b128 v{vOW}, v[{u}:{u+3}] offset:{b*OP1 + 768}')
        a('s_mov_b64 exec, -1')
    def task_addr0():
        a(f'v_lshrrev_b32 v{t0}, 5, v1')
        a('s_lshl_b32 s82, s3, 1')
        a(f'v_add_u32 v{t0}, s82, v{t0}')
        a(f'v_lshlrev_b32 v{t1}, 5, v7')
        a(f'v_bfe_u32 v{t2}, v1, 4, 1')
        a(f'v_lshl_add_u32 v{t1}, v{t2}, 4, v{t1}')
        a(f'v_mul_u32_u24 v{vOW}, {OS}, v{t0}')
        a(f'v_add_u32 v{vOW}, v{vOW}, v{t1}')
        masks(M0, t0, t1)
    g, ob, x, y, z = 68, 69, 70, 71, 72
    vRA0 = 61
    def task_addr1():
        a(f'v_lshrrev_b32 v{g}, 4, v1')
        a(f'v_mov_b32 v{ob}, {OOB}')
        a('s_mul_i32 s82, s3, 6')
        a(f'v_add_u32 v{x}, s82, v6')
        a('v_cmp_gt_u32 vcc, 6, v6')
        a(f'v_cndmask_b32 v{x}, 48, v{x}, vcc')
        a(f'v_lshlrev_b32 v{x}, 4, v{x}')
        a(f'v_mul_u32_u24 v{vRA0}, {2*OS}, v7')
        a(f'v_add_u32 v{vRA0}, v{vRA0}, v{x}')
        a(f'v_add_u32 v{x}, {OP1}, v{vRA0}')
        a('v_cmp_eq_u32 s[80:81], 7, v6')
        a(f'v_cndmask_b32 v{vRA0}, v{vRA0}, v{x}, s[80:81]')
        a(f'v_add_u32 v{x}, s82, v7')
        a('v_cmp_gt_u32 vcc, 6, v7')
        a(f'v_cndmask_b32 v{x}, 48, v{x}, vcc')
        a(f'v_lshlrev_b32 v{x}, 4, v{x}')
        a(f'v_mul_u32_u24 v{vRA}, {2*OS}, v6')
        a(f'v_add_u32 v{vRA}, v{vRA}, v{x}')
        a('s_lshl_b32 s82, s3, 7')
        a(f'v_lshl_add_u32 v{x}, v6, 4, s82')
        if ytr:
            a(f'v_mul_u32_u24 v{vYR}, 640, v6')
            a(f'v_add3_u32 v{vYR}, v{vYR}, v5, s82')
        else:
            a(f'v_mul_u32_u24 v{vYR}, 640, v7')
            a(f'v_add_u32 v{vYR}, v{vYR}, v{x}')
        a('v_cmp_eq_u32 vcc, 0, v7')
        a(f'v_cndmask_b32 v{vRG}, v{ob}, v{x}, vcc')
        a(f'v_lshlrev_b32 v{y}, 11, v6')
        a(f'v_add3_u32 v{vP1}, v{y}, v5, s82')
        a(f'v_lshl_add_u32 v{y}, v{g}, 5, s82')
        a(f'v_lshl_add_u32 v{y}, v7, 2, v{y}')
        a(f'v_and_b32 v{x}, 1, v6')
        a(f'v_lshlrev_b32 v{vAC}, 8, v{x}')
        a(f'v_lshl_add_u32 v{vP2}, v{x}, 11, v{y}')
        a(f'v_cmp_eq_u32 vcc, 0, v{x}')
        a(f'v_cndmask_b32 v{vRG1}, v{ob}, v{y}, vcc')
    def task_addr2():
        a('s_mul_i32 s82, s3, 24')
        a(f'v_lshl_add_u32 v{vAC}, v{g}, 3, v{vAC}')
        a(f'v_add_u32 v{vAC}, s82, v{vAC}')
        a(f'v_and_b32 v{x}, 15, v1')
        a(f'v_lshlrev_b32 v{x}, 5, v{x}')
        a(f'v_lshrrev_b32 v{y}, 5, v1')
        a(f'v_mul_u32_u24 v{y}, 320, v{y}')
        a(f'v_and_b32 v{z}, 1, v{g}')
        a(f'v_lshlrev_b32 v{z}, 4, v{z}')
        a(f'v_add3_u32 v{vYW}, v{x}, v{y}, v{z}')
        a('s_mul_i32 s82, s3, 640')
        a(f'v_add_u32 v{vYW}, s82, v{vYW}')
        a(f'v_lshlrev_b32 v{vMW}, 2, v7')
        a('v_mov_b32 v75, s78')
    R = 8
    def ostore(text, b):
        a(f's_cmp_eq_u32 s89, {77 if remap & 2 else 1}')
        a(f's_cbranch_scc1 L_ofast{b}')
        a(text + ' sc1')
        a(f's_branch L_odone{b}')
        a(f'L_ofast{b}:')
        a.vmem(text)
        a(f'L_odone{b}:')
    def task_m1():
        WG = [62, 63]; MXR = [64, 65]
        a('L_m1:')
        a(f'ds_read_b32 v66, v{VZ} offset:{FL - 1}')
        a(f'ds_read_b32 v{WG[0]}, v{vMW} offset:{MW}')
        a(f'ds_read_b32 v{WG[1]}, v{vMW} offset:{MW+32}')
        a(f'ds_read_b128 v[{R}:{R+3}], v{vRA0}')
        a(f'ds_read_b128 v[{R+4}:{R+7}], v{vRA0} offset:{OS}')
        a(f'ds_read_b64 v[72:73], v{vAC} offset:{ACT}')
        a(f'ds_read_b32 v{G0}, v{VZ} offset:{GV - 1}')
        a(f'ds_read_b32 v{G1}, v{VZ} offset:{GV + 63}')
        a('s_waitcnt lgkmcnt(0)')
        a('v_readfirstlane_b32 s82, v66')
        a('s_cmp_eq_u32 s82, 9')
        a('s_cbranch_scc1 L_m1d')
        a('s_sleep 1')
        a('s_sub_u32 s92, s92, 1')
        a('s_cbranch_scc0 L_m1')
        a('s_endpgm')
        a('L_m1d:')
        for i, pat in enumerate(RED8):
            for b in range(2):
                src = WG[b] if i == 0 else MXR[b]
                a(f'v_max_f32_dpp v{MXR[b]}, v{src}, v{src} {pat} {DPP}')
            a(f'v_add_f32 v{R+i}, v{R+i}, v{R+4+i}')
        a(f'v_add_f32 v{R+3}, v{R+3}, v{R+7}')
        for b in range(2): a(f'v_and_b32 v{MXR[b]}, s77, v{MXR[b]}')
        for b in range(2): a(f'v_sub_f32 v{WG[b]}, v{WG[b]}, v{MXR[b]}')
        a(f'v_cndmask_b32 v{WG[0]}, v{WG[0]}, v{WG[1]}, s[80:81]')
        a(f'v_exp_f32 v{WG[0]}, v{WG[0]}')
        for i in range(4): a(f'v_mul_f32 v{R+i}, v{R+i}, v{WG[0]}')
        for pat in RED8:
            for i in range(4):
                a(f'v_add_f32_dpp v{R+i}, v{R+i}, v{R+i} {pat} {DPP}')
        a(f'v_cndmask_b32 v{R}, v{R}, v{MXR[0]}, s[80:81]')
        a(f'v_cndmask_b32 v{R+1}, v{R+1}, v{MXR[1]}, s[80:81]')
        tag_apply(range(R, R + 4), 75)
        ostore(f'buffer_store_dwordx4 v[{R}:{R+3}], v{vRG}, s[68:71], s100 offen', 0)
    PG = 12
    gat = f'buffer_load_dwordx4 v[{PG}:{PG+3}], v{vP1}, s[68:71], s93 offen sc1'
    def task_m2a():
        a.vmem(gat, 'gat')
    AP = []
    def task_m2b():
        a.wait_tag('gat')
        a('L_m2:')
        tag_check(range(PG, PG + 4), 62, 63)
        a('s_cbranch_vccz L_m2d')
        a(gat)
        a('s_waitcnt vmcnt(0)')
        a('s_sub_u32 s92, s92, 1')
        a('s_cbranch_scc0 L_m2')
        a('s_endpgm')
        a('L_m2d:')
        MQ, MX, M1, L1, TT = 62, 63, 64, 65, 66
        a(f'v_mov_b32_dpp v{MQ}, v{PG} row_newbcast:7 row_mask:0xf bank_mask:0x3')
        a(f'v_mov_b32 v{M1}, v{PG+1}')
        a(f'v_mov_b32_dpp v{MQ}, v{PG} row_newbcast:15 row_mask:0xf bank_mask:0xc')
        xlane('v_max_f32', M1, TT)
        a(f'v_mov_b32 v{MX}, v{MQ}')
        xlane('v_max_f32', MX, TT)
        a(f'v_sub_f32 v{L1}, v{PG+1}, v{M1}')
        a(f'v_sub_f32 v{MQ}, v{MQ}, v{MX}')
        a(f'v_exp_f32 v{L1}, v{L1}')
        a(f'v_exp_f32 v{MQ}, v{MQ}')
        a(f'v_mul_f32 v{L1}, v{L1}, v{PG+2}')
        for i in range(4): a(f'v_mul_f32 v{PG+i}, v{PG+i}, v{MQ}')
        xlane('v_add_f32', L1, TT)
        a(f'v_readlane_b32 s82, v{M1}, 7')
        a(f'v_rcp_f32 v{L1}, v{L1}')
        a(f'v_permlane16_swap_b32 v{PG}, v{PG+1}')
        a(f'v_permlane16_swap_b32 v{PG+2}, v{PG+3}')
        a(f'v_readlane_b32 s83, v{L1}, 7')
        a(f'v_add_f32 v{PG}, v{PG}, v{PG+1}')
        a(f'v_add_f32 v{PG+2}, v{PG+2}, v{PG+3}')
        a(f'v_subrev_f32 v{M1}, s82, v{vM}')
        a(f'v_permlane32_swap_b32 v{PG}, v{PG+2}')
        a(f'v_exp_f32 v{M1}, v{M1}')
        a(f'v_add_f32 v{PG}, v{PG}, v{PG+2}')
        a(f'v_mul_f32 v{G1}, s83, v{G1}')
        a(f'v_mul_f32 v{G1}, v{G1}, v{M1}')
        a(f'v_add_f32_dpp v{PG}, v{PG}, v{PG} row_ror:8 {DPP}')
        a(f'v_rcp_f32 v{MX}, v{PG}')
        a(f'v_mul_f32 v{PG}, v{PG}, v{G0}')
        for k in range(kF, 16): a(f'v_mul_f32 v{S0+k}, v{S0+k}, v{G1}')
        a(f'v_mul_f32_dpp v{PG}, v{MX}, v{PG} row_newbcast:6 {DPP}')
        for k in range(kF, 16): a(f'v_cvt_pk_bf16_f32 v{S0+k}, v{S0+k}, v{S0+k}')
        a(f'v_cvt_pk_bf16_f32 v{PG}, v{PG}, v{PG}')
        for i in range(12): a(f'v_mul_f32 v{ACC+i}, v{ACC+i}, v{G1}')
    def task_m2c():
        for p in range(6):
            AP.append(alloc(('ap', p)))
            for r in range(4):
                a(f'v_and_b32_dpp v{AP[p]+r}, v{PG}, v{M0+r} row_newbcast:{p} {DPP}')
    def run(issue_list, tasks, win, per_issue):
        for tag in issue_list:
            while not free:
                fn, needs = tasks.pop(0)
                for n in needs: a.wait_tag(n)
                fn()
            if win and not (xfree and tag[0] in ('wo', 'w2')): window()
            issue(tag)
            n = 0
            while tasks and n < per_issue and all(a.issued(q) and a.is_done(q) for q in tasks[0][1]):
                fn, needs = tasks.pop(0); fn(); n += 1
    kt = [((lambda k=k: task_k(k)), [('k', k, s) for s in range(3)]) for k in range(16)]
    vt = [((lambda k=k: task_v(k)), [('v', k, s) for s in range(3)]) for k in range(16)]
    N = lambda f: (f, [])
    if smimic:
        tasks = kt[:11] + [N(task_addr0), N(lambda: task_red(0))] + kt[11:12] + [N(lambda: task_rnd(0))] + kt[12:13] + [N(lambda: task_sm1(0))] + kt[13:14] + [N(lambda: task_sm2(0))] + kt[14:]
        tasks += [N(lambda: stamp(3))] if stamps else []
        tasks += vt[:1] + [N(lambda: task_red(1))] + vt[1:2] + [N(lambda: task_rnd(1))] + vt[2:3] + [N(lambda: task_sm1(1))] + vt[3:4] + [N(lambda: task_sm2(1))] + vt[4:5]
    else:
        tasks = kt[:11] + [N(task_addr0), N(lambda: task_red(0))] + kt[11:12] + [N(lambda: task_sm1(0))] + kt[12:13] + [N(lambda: task_sm2(0))] + kt[13:]
        tasks += [N(lambda: stamp(3))] if stamps else []
        tasks += vt[:1] + [N(lambda: task_red(1))] + vt[1:2] + [N(lambda: task_sm1(1))] + vt[2:3] + [N(lambda: task_sm2(1))] + vt[3:5]
    tasks += [N(task_addr1)] + vt[5:6] + [N(task_addr2)] + vt[6:8] + [N(lambda: flush_acc(0))]
    for k in range(8, 14):
        tasks.append(vt[k])
        if k == m1pos: tasks.append(N(task_m1))
        if k == m2a: tasks.append(N(task_m2a))
        if k == m2b and not m2late: tasks += [(task_m2b, ['gat']), N(task_m2c)]
    wl = [('wo', rg) for rg in range(6)] + [('w2', i) for i in range(2)]
    run(kl[nb:], tasks, True, catchup)
    early = wl[nlate:][::-1]; latel = wl[:nlate]
    vseq = []
    for i, tag in enumerate(vl):
        vseq.append(tag)
        if i >= estart and (i - estart) % estep == 0 and early: vseq.append(early.pop())
    run(vseq, tasks, True, catchup)
    a('s_barrier')
    run(latel[:nl1], [], False, 0)
    if m2late: tasks += [(task_m2b, ['gat']), N(task_m2c)]
    while tasks:
        fn, needs = tasks.pop(0)
        for n in needs: a.wait_tag(n)
        fn()
    rest = latel[nl1:]
    def after(k, s):
        pos = (k - 14) * 3 + s
        if l2pos == 2 and pos >= 5 - l2n and pos < 5:
            for _ in range(l2k):
                if rest: issue(rest.pop(0))
    task_v(14, True, after)
    task_v(15, True, after)
    stamp(4)
    flush_acc(1)
    run(rest, [], False, 0)
    a('s_waitcnt lgkmcnt(0)')
    a('s_barrier')
    a(f'ds_read_b128 v[{R}:{R+3}], v{vRA} offset:{OP1}')
    a(f'ds_read_b128 v[{R+4}:{R+7}], v{vRA} offset:{OP1+OS}')
    AW = [build_A('v72'), build_A('v73')]
    a('s_waitcnt lgkmcnt(0)')
    for i in range(4): a(f'v_add_f32 v{R+i}, v{R+i}, v{R+4+i}')
    a(f'v_permlane16_swap_b32 v{R}, v{R+1}')
    a(f'v_permlane16_swap_b32 v{R+2}, v{R+3}')
    a(f'v_add_f32 v{R}, v{R}, v{R+1}')
    a(f'v_add_f32 v{R+2}, v{R+2}, v{R+3}')
    a(f'v_permlane32_swap_b32 v{R}, v{R+2}')
    a(f'v_add_f32 v{R}, v{R}, v{R+2}')
    a(f'v_add_f32_dpp v{R}, v{R}, v{R} row_ror:8 {DPP}')
    tag_apply([R], 75)
    ostore(f'buffer_store_dword v{R}, v{vRG1}, s[68:71], s100 offen offset:1024', 1)
    O = 16; X = 66; X2 = 67; Y = 24
    def poll1():
        for u, so in enumerate(('s93', 's94', 's95', 's98')):
            a(f'buffer_load_dword v{O+u}, v{vP2}, s[68:71], {so} offen offset:1024 sc1')
    poll1()
    stamp(5)
    a('s_waitcnt vmcnt(5)')
    for i in range(2):
        r = slot[('w2', i)]
        a(f'v_mfma_f32_16x16x32_bf16 v[{Y}:{Y+3}], v[{AW[i]}:{AW[i]+3}], v[{r}:{r+3}], {"0" if i == 0 else f"v[{Y}:{Y+3}]"}')
    a('; gather normalised o of batch 1, project onto an 80-column slice of wo / w2')
    a('L_poll1:')
    a('s_waitcnt vmcnt(0)')
    tag_check(range(O, O + 4), X, X2)
    a(f'v_add_f32 v{O+4}, v{O}, v{O+1}')
    a(f'v_add_f32 v{O+5}, v{O+2}, v{O+3}')
    a('s_cbranch_vccz L_poll1d')
    if psleep: a(f's_sleep {psleep}')
    poll1()
    a('s_sub_u32 s92, s92, 1')
    a('s_cbranch_scc0 L_poll1')
    a('s_endpgm')
    a('L_poll1d:')
    stamp(6)
    a(f'v_add_f32 v{O}, v{O+4}, v{O+5}')
    a(f'v_add_f32_dpp v{O}, v{O}, v{O} row_ror:8 {DPP}')
    a(f'v_cvt_pk_bf16_f32 v{O}, v{O}, v{O}')
    for p in range(7):
        if p < 6:
            for r in range(4):
                a(f'v_and_b32_dpp v{AP[p]+r}, v{O}, v{M0+r} row_newbcast:{p} row_mask:0xf bank_mask:0xc')
        if p > 0:
            r0 = slot[('wo', p - 1)]; A = AP[p - 1]
            a(f'v_mfma_f32_16x16x32_bf16 v[{Y}:{Y+3}], v[{A}:{A+3}], v[{r0}:{r0+3}], v[{Y}:{Y+3}]')
    a('s_mov_b32 exec_lo, 0x03ff03ff')
    a('s_mov_b32 exec_hi, 0x03ff03ff')
    a('s_cmp_ge_u32 s3, 5')
    a(f'ds_write_b128 v{vYW}, v[{Y}:{Y+3}] offset:{YP}')
    a('s_mov_b64 exec, -1')
    a('s_waitcnt lgkmcnt(0)')
    a('s_barrier')
    if junk:
        a('s_cbranch_scc0 L_nojunk')
        a('s_cmp_lg_u32 s3, 7')
        a('s_cbranch_scc1 L_fin')
        a('s_lshl_b32 s82, s2, 12')
        a(f's_add_u32 s82, s82, {3 << 20}')
        a('v_lshlrev_b32 v5, 4, v1')
        for i in range(junk): a(f'buffer_store_dwordx4 v[24:27], v5, s[68:71], s82 offen offset:{i*1024} {junkflag}')
        a('s_branch L_fin')
        a('L_nojunk:')
    else:
        a('s_cbranch_scc1 L_fin')
    R2 = 28
    a(f'ds_read_b128 v[{R2}:{R2+3}], v{vYR} offset:{YP}')
    a('s_waitcnt lgkmcnt(0)')
    if ytr:
        a(f'v_permlane16_swap_b32 v{R2}, v{R2+1}')
        a(f'v_permlane16_swap_b32 v{R2+2}, v{R2+3}')
        a(f'v_add_f32 v{R2}, v{R2}, v{R2+1}')
        a(f'v_add_f32 v{R2+2}, v{R2+2}, v{R2+3}')
        a(f'v_permlane32_swap_b32 v{R2}, v{R2+2}')
        a(f'v_add_f32 v{R2}, v{R2}, v{R2+2}')
        a(f'v_add_f32_dpp v{R2}, v{R2}, v{R2} row_ror:8 {DPP}')
        tag_apply([R2], 75)
        a(f'buffer_store_dword v{R2}, v{vRG1}, s[68:71], s101 offen {"" if remap & 4 else "sc1"}')
    else:
        for pat in RED8:
            for i in range(4):
                a(f'v_add_f32_dpp v{R2+i}, v{R2+i}, v{R2+i} {pat} {DPP}')
        tag_apply(range(R2, R2 + 4), 75)
        a(f'buffer_store_dwordx4 v[{R2}:{R2+3}], v{vRG}, s[68:71], s101 offen sc1')
    a('L_fin:')
    if stamps:
        stamp(8, True)
        if not est: a(f'v_writelane_b32 v{VST}, s96, 7')
        a('L_probe:')
        if probe is not None:
            i, K, base, j0, who = probe
            a('s_cmp_eq_u32 s3, 8')
            if who == 's': a('s_cbranch_scc1 L_end')
            if who == 'h': a('s_cbranch_scc0 L_end')
            a(f'v_readlane_b32 s82, v{VST}, 0')
            a(f'v_readlane_b32 s83, v{VST}, {i}')
            a(f'v_readlane_b32 s84, v{VST}, {j0}')
            a('s_sub_u32 s83, s83, s84')
            a(f's_mul_i32 s83, s83, {K}')
            a(f's_add_u32 s83, s83, {base}')
            a('L_spin:')
            a('s_sleep 2')
            a('s_memrealtime s[96:97]')
            a('s_waitcnt lgkmcnt(0)')
            a('s_sub_u32 s84, s96, s82')
            a('s_cmp_lt_u32 s84, s83')
            a('s_cbranch_scc1 L_spin')
        else:
            a('s_cmp_eq_u32 s3, 8')
            a('s_cbranch_scc1 L_nosl')
            a('s_sleep 127')
            a('s_sleep 127')
            a('L_nosl:')
            a('s_mul_i32 s82, s2, 9')
            a('s_add_u32 s82, s82, s3')
            a('s_lshl_b32 s82, s82, 8')
            a(f's_add_u32 s82, s82, {STAMP_OFF}')
            a('v_lshlrev_b32 v5, 2, v1')
            a(f'buffer_store_dword v{VST}, v5, s[68:71], s82 offen')
    a('L_end:')
    a('s_endpgm')

    a.vm = []; a.vm_done = 0
    a('L_helper:')
    inhelper[0] = True
    a('v_mul_u32_u24 v3, 122880, v6')
    a('v_add_u32 v3, v3, v5')
    a('v_mul_u32_u24 v4, 30720, v6')
    a('v_add_u32 v4, v4, v5')
    a(f'v_mov_b32 v2, {OOB}')
    a('v_cmp_gt_u32 vcc, 6, v7')
    a('v_cndmask_b32 v4, v2, v4, vcc')
    a('v_mul_u32_u24 v8, 20, v6')
    a('v_lshlrev_b32 v9, 4, v1')
    a('v_mov_b32 v73, 0')
    if not eb:
        a(f'ds_write_b32 v73, v73 offset:{FLAG}')
        a(f'ds_write_b32 v73, v73 offset:{FL}')
        a(f'v_mov_b32 v10, {8*D}')
        a(f'ds_write_b32 v73, v10 offset:{CNT}')
    HM = 12; HA = 16; HACC = 24; HX = 56
    a('s_mul_i32 s83, s31, 983040')
    a('s_mul_i32 s84, s30, 384')
    a('s_add_u32 s83, s83, s84')
    a('s_mul_i32 s85, s31, 245760')
    a('s_mul_i32 s84, s30, 96')
    a('s_add_u32 s85, s85, s84')
    a('s_mul_i32 s98, s31, 160')
    for r in (43, 47, 59, 63, 67):
        a(f's_mov_b32 s{r}, 0x20000')
    a('s_sub_u32 s42, 7864320, s83')
    a('s_sub_u32 s46, 1966080, s85')
    if dbg_nowq & 1: a('s_mov_b32 s42, 0')
    if dbg_nowq & 2: a('s_mov_b32 s46, 0')
    a('s_sub_u32 s58, 2560, s98')
    a('s_sub_u32 s62, 1280, s98')
    a('s_mov_b32 s66, 96')
    a('s_waitcnt lgkmcnt(0)')
    srd(56, 4, 's98'); srd(40, 10, 's83'); srd(44, 16, 's85'); srd(60, 22, 's98'); srd(64, 18, 's84')
    a.vmem(f'buffer_load_dwordx4 v[{HX}:{HX+3}], v8, s[56:59], 0 offen')
    a.vmem(f'buffer_load_dword v{HX+4}, v8, s[56:59], 0 offen offset:16')
    a.vmem(f'buffer_load_dwordx4 v[{HX+6}:{HX+9}], v8, s[56:59], 0 offen offset:1280')
    a.vmem(f'buffer_load_dword v{HX+10}, v8, s[56:59], 0 offen offset:1296')
    hfree = list(range(76, top, 4))
    hslot = {}
    def hissue(tag):
        r = hfree.pop(0); hslot[tag] = r
        t = tag[0]
        if tag[1] == 0 and t:
            a(f's_mov_b32 s87, {t*12288}'); a(f's_mov_b32 s86, {t*3072}')
        if tag[1] < 3:
            a.vmem(f'buffer_load_dwordx4 v[{r}:{r+3}], v3, s[40:43], {"s87" if t else "0"} offen offset:{tag[1]*128} {w_cache}', tag)
        else:
            a.vmem(f'buffer_load_dwordx4 v[{r}:{r+3}], v4, s[44:47], {"s86" if t else "0"} offen {w_cache}', tag)
    hl = [(t, s) for t in range(10) for s in range(4)]
    nfirst = min(hwin, len(hfree)) // 4 * 4
    for tag in hl[:nfirst]: hissue(tag)
    hl = hl[nfirst:]
    a.vmem(f'buffer_load_dwordx4 v[{HX+12}:{HX+15}], v8, s[60:63], 0 offen')
    a.vmem(f'buffer_load_dword v{HX+16}, v8, s[60:63], 0 offen offset:16')
    a('v_and_b32 v10, 15, v1')
    a('v_lshlrev_b32 v10, 3, v10')
    a.vmem(f'buffer_load_dwordx2 v[74:75], v10, s[64:67], 0 offen', 'b1')
    if not eb: a('s_barrier')
    if hnear:
        a('s_branch L_helper2')
        a('@HEAD_END@')
        a('L_helper2:')
    a('s_mov_b32 s89, 0x01000100')
    a('s_mov_b32 s90, 0x03020302')
    a('s_mov_b32 s91, 0x3f803f80')
    masks(HM, 10, 11)
    ws_setup()
    if qpre:
        a(f's_add_u32 s82, s99, {FAST}')
        a.vmem(f'buffer_load_dword v{top}, v9, s[68:71], s82 offen')
        a.vmem(f'buffer_load_dword v{top}, v9, s[68:71], s82 offen offset:1024')
    stamp(1)
    hai = 0
    for t in range(10):
        a.wait_tag((t, 3))
        for bb in range(2):
            xr = HX + 6 * bb + t // 2
            a(f'v_perm_b32 v11, v{xr}, v{xr}, s{89 + (t & 1)}')
            A = HA + 4 * (hai & 1); hai += 1
            for r in range(4): a(f'v_and_b32 v{A+r}, v11, v{HM+r}')
            for s in range(4):
                r = hslot[(t, s)]; acc = HACC + 16 * bb + 4 * s
                c = '0' if t == 0 else f'v[{acc}:{acc+3}]'
                a(f'v_mfma_f32_16x16x32_bf16 v[{acc}:{acc+3}], v[{A}:{A+3}], v[{r}:{r+3}], {c}')
        for s in range(4): hfree.append(hslot[(t, s)])
        for tag in hl[:4]: hissue(tag)
        hl = hl[4:]
        if t == 6:
            a.wait_tag('b1')
            for bb, Gr in ((0, 61), (1, 67)):
                for i in range(5):
                    if gmimic:
                        xr, gr = HX + 6 * bb + i, HX + 12 + i
                        a(f'v_lshlrev_b32 v2, 16, v{xr}')
                        a(f'v_lshlrev_b32 v10, 16, v{gr}')
                        a('v_mul_f32 v2, v2, v10')
                        a(f'v_and_b32 v8, 0xffff0000, v{xr}')
                        a(f'v_and_b32 v10, 0xffff0000, v{gr}')
                        a('v_mul_f32 v8, v8, v10')
                        a('v_cvt_pk_bf16_f32 v2, v2, v8')
                        a(f'v_dot2_f32_bf16 v{Gr}, v2, s91, {"0" if i == 0 else f"v{Gr}"}')
                    else:
                        a(f'v_dot2_f32_bf16 v{Gr}, v{HX+6*bb+i}, v{HX+12+i}, {"0" if i == 0 else f"v{Gr}"}')
            xlane('v_add_f32', 61, 10)
            xlane('v_add_f32', 67, 10)
    stamp(2)
    a('v_lshrrev_b32 v16, 5, v1')
    a('v_lshlrev_b32 v16, 10, v16')
    a('v_and_b32 v11, 1, v6')
    a('v_lshl_add_u32 v16, v11, 8, v16')
    a('v_lshl_add_u32 v16, v7, 5, v16')
    a('v_bfe_u32 v11, v1, 4, 1')
    a('v_lshl_add_u32 v16, v11, 4, v16')
    for s in range(4):
        for r in range(4):
            a(f'v_permlane32_swap_b32 v{HACC+4*s+r}, v{HACC+16+4*s+r}')
    P = 76
    for u in range(2):
        for r in range(4):
            Ae, Be = HACC + 8 * u + r, HACC + 16 + 8 * u + r
            a(f'v_add_f32_dpp v{P+4*u+r}, v{Be}, v{Ae} row_ror:8 {DPP}')
        for r in range(4):
            Ao, Bo = HACC + 8 * u + 4 + r, HACC + 16 + 8 * u + 4 + r
            a(f'v_add_f32_dpp v{P+4*u+r}, v{Ao}, v{Bo} row_ror:8 row_mask:0xf bank_mask:0xc')
    a(f's_mov_b64 exec, {1 << 14}')
    a(f'v_mov_b32 v{P+4}, v61')
    a('s_mov_b32 exec_lo, 0')
    a(f's_mov_b32 exec_hi, {1 << 14}')
    a(f'v_mov_b32 v{P+4}, v67')
    a('s_mov_b64 exec, -1')
    a('s_getreg_b32 s88, hwreg(HW_REG_XCC_ID)')
    a('s_and_b32 s88, s88, 15')
    a('s_lshl_b32 s88, s88, 23')
    a(f'v_writelane_b32 v{P+5}, s88, 14')
    a('s_waitcnt lgkmcnt(0)')
    tag_finish()
    a('v_mov_b32 v11, s78')
    tag_apply(range(P, P + 8), 11)
    slow_q = [f'buffer_store_dwordx4 v[{P}:{P+3}], v16, s[68:71], s99 offen sc1',
              f'buffer_store_dwordx4 v[{P+4}:{P+7}], v16, s[68:71], s99 offen offset:512 sc1']
    a(f's_add_u32 s82, s99, {FAST}')
    a(f'buffer_store_dwordx4 v[{P}:{P+3}], v16, s[68:71], s82 offen')
    a(f'buffer_store_dwordx4 v[{P+4}:{P+7}], v16, s[68:71], s82 offen offset:512')
    stamp(3)
    a('@TPRE@')
    a('v_add_u32 v12, 4096, v9')
    a('s_lshl_b32 s93, s30, 14')
    a(f's_add_u32 s93, s93, {FAST}')
    a('s_add_u32 s94, s93, 8192')
    a(f's_mov_b32 s76, {nfast}')
    a('v_lshlrev_b32 v17, 11, v6')
    a('v_and_b32 v18, 3, v1')
    a('v_lshl_add_u32 v17, v18, 4, v17')
    a('v_bfe_u32 v18, v1, 2, 1')
    a('v_lshl_add_u32 v17, v18, 9, v17')
    stamp(4)
    QD = [24, 84]
    a('; gather q / hidden / gate partials of the 8 workgroups of this head')
    a('L_qpoll:')
    if sind:
        a('s_add_u32 s40, s28, s93')
        a('s_addc_u32 s41, s29, 0')
        for p in range(8): a(f's_load_dword s{44+p}, s[40:41], {p*2048 + 1536} glc')
        a('s_waitcnt lgkmcnt(0)')
        for p in range(8): a(f's_xor_b32 s{44+p}, s{44+p}, s78')
        for p in range(1, 8): a(f's_or_b32 s44, s44, s{44+p}')
        a(f's_and_b32 s44, s44, {TM}')
        a('s_cbranch_scc1 L_qfail')
    else:
        a(f'buffer_load_dwordx4 v[24:27], v17, s[68:71], s93 offen sc1')
        a('s_waitcnt vmcnt(0)')
        tag_check(range(24, 28), 14, 15)
        a('s_cbranch_vccnz L_qfail')
    for b in range(2):
        for p in range(8):
            vo = 'v9' if (p & 3) < 2 else 'v12'
            so = 's93' if p < 4 else 's94'
            a(f'buffer_load_dwordx4 v[{QD[b]+4*p}:{QD[b]+4*p+3}], {vo}, s[68:71], {so} offen offset:{(p & 1)*2048 + b*1024} sc1')
    a('s_waitcnt vmcnt(0)')
    tag_check(list(range(QD[0], QD[0] + 32)) + list(range(QD[1], QD[1] + 32)), 14, 15)
    a('s_cbranch_vccz L_qok0')
    a('L_qfail:')
    if qsleep: a(f's_sleep {qsleep}')
    a('s_sub_u32 s76, s76, 1')
    a('s_cbranch_scc0 L_qnosw')
    for t in slow_q: a(t)
    a('L_qnosw:')
    a('s_cmp_lt_i32 s76, 0')
    a(f's_cselect_b32 s82, {FAST}, 0')
    for r in (93, 94): a(f's_xor_b32 s{r}, s{r}, s82')
    a('s_sub_u32 s92, s92, 1')
    a('s_cbranch_scc0 L_qpoll')
    a('s_endpgm')
    a('L_qok0:')
    for p in range(8): a(f'v_xor_b32 v{56+p}, s88, v{QD[0]+4*p+1}')
    a('v_or3_b32 v14, v56, v57, v58')
    a('v_or3_b32 v15, v59, v60, v61')
    a('v_or3_b32 v14, v14, v62, v63')
    a('v_or_b32 v14, v14, v15')
    a('v_readlane_b32 s86, v14, 60')
    a('s_cmp_lg_u32 s86, 0')
    a('s_cselect_b32 s86, 2, 1')
    a('s_cbranch_scc0 L_qok')
    a('s_cmp_lt_i32 s76, 0')
    a('s_cbranch_scc1 L_qok')
    for t in slow_q: a(t)
    a('L_qok:')
    a('v_lshlrev_b32 v10, 3, v1')
    for b in range(2):
        for st in (4, 8, 16):
            for b0 in range(QD[b], QD[b] + 32, 2 * st):
                for r in range(4): a(f'v_add_f32 v{b0+r}, v{b0+r}, v{b0+st+r}')
        a(f'v_cvt_pk_bf16_f32 v{QD[b]+4}, v{QD[b]}, v{QD[b]+1}')
        a(f'v_cvt_pk_bf16_f32 v{QD[b]+5}, v{QD[b]+2}, v{QD[b]+3}')
        a(f'ds_write_b64 v10, v[{QD[b]+4}:{QD[b]+5}] offset:{QBF + 512*b}')
    a('v_mov_b32 v10, s86')
    a(f'ds_write_b32 v73, v10 offset:{FLAG}')
    stamp(5)
    HD = QD[1]
    for r in range(4): a(f'v_permlane16_swap_b32 v{QD[0]+r}, v{HD+r}')
    Gq = 32; OMG = 33
    a(f'v_mov_b32_dpp v{Gq}, v{HD} row_newbcast:12 {DPP}')
    a(f'v_cvt_pk_bf16_f32 v{Gq}, v{Gq}, v{Gq}')
    a(f'v_and_b32 v{Gq}, 0xffff0000, v{Gq}')
    a(f'v_mul_f32 v{Gq}, {f2u(-LOG2E)}, v{Gq}')
    a(f'v_exp_f32 v{Gq}, v{Gq}')
    a(f'v_add_f32 v{Gq}, 1.0, v{Gq}')
    a(f'v_rcp_f32 v{Gq}, v{Gq}')
    a(f'v_cvt_pk_bf16_f32 v{Gq}, v{Gq}, v{Gq}')
    a(f'v_and_b32 v{Gq}, 0xffff0000, v{Gq}')
    a(f'v_sub_f32 v{OMG}, 1.0, v{Gq}')
    a(f'v_cvt_pk_bf16_f32 v{OMG}, v{OMG}, v{OMG}')
    a(f'v_and_b32 v{OMG}, 0xffff0000, v{OMG}')
    a(f's_mov_b32 s83, {f2u(-LOG2E)}')
    for pr in range(2):
        h0, h1 = HD + 2 * pr, HD + 2 * pr + 1
        a(f'v_cvt_pk_bf16_f32 v{h0}, v{h0}, v{h1}')
        a(f'v_and_b32 v{h1}, 0xffff0000, v{h0}')
        a(f'v_lshlrev_b32 v{h0}, 16, v{h0}')
        a(f'v_and_b32 v35, 0xffff0000, v{74+pr}')
        a(f'v_lshlrev_b32 v34, 16, v{74+pr}')
        a(f'v_add_f32 v{h0}, v{h0}, v34')
        a(f'v_add_f32 v{h1}, v{h1}, v35')
        a(f'v_cvt_pk_bf16_f32 v{h0}, v{h0}, v{h1}')
        a(f'v_and_b32 v{h1}, 0xffff0000, v{h0}')
        a(f'v_lshlrev_b32 v{h0}, 16, v{h0}')
    for i in range(4):
        h = HD + i; t = 36; tq = 37; nu = 38; de = 39
        a(f'v_mul_f32 v{t}, s83, abs(v{h})')
        a(f'v_exp_f32 v{t}, v{t}')
        a(f'v_cmp_lt_f32 vcc, 0, v{h}')
        a(f'v_mul_f32 v{tq}, v{t}, v{t}')
        a(f'v_cndmask_b32 v{nu}, v{tq}, 1.0, vcc')
        a(f'v_cndmask_b32 v{de}, 1.0, v{tq}, vcc')
        a(f'v_fma_f32 v{nu}, v{t}, 2.0, v{nu}')
        a(f'v_fma_f32 v{de}, v{de}, 2.0, v{nu}')
        a(f'v_rcp_f32 v{de}, v{de}')
        a(f'v_mul_f32 v{nu}, v{nu}, v{h}')
        a(f'v_mul_f32 v{nu}, v{nu}, v{de}')
        a(f'v_cvt_pk_bf16_f32 v{nu}, v{nu}, v{nu}')
        a(f'v_and_b32 v{nu}, 0xffff0000, v{nu}')
        a(f'v_mul_f32 v{nu}, v{nu}, v{OMG}')
        a(f'v_cvt_pk_bf16_f32 v{40+i}, v{nu}, v{nu}')
    a('v_and_b32 v10, 31, v1')
    a('v_lshlrev_b32 v11, 2, v10')
    a('v_lshlrev_b32 v10, 4, v10')
    a('s_mov_b32 exec_lo, 0')
    a(f'ds_write_b32 v11, v{Gq} offset:{GV}')
    a(f'ds_write_b128 v10, v[40:43] offset:{ACT}')
    a('s_mov_b64 exec, 1')
    a('v_mov_b32 v10, 1')
    a(f'ds_add_u32 v73, v10 offset:{FL}')
    a('s_mov_b64 exec, -1')
    a('s_waitcnt lgkmcnt(0)')
    stamp(6)
    def tlbpre():
        a('s_mul_i32 s82, s30, 1572864')
        a('v_and_b32 v21, 1, v1')
        a('v_mul_u32_u24 v21, 1572736, v21')
        a('v_bfe_u32 v22, v1, 1, 1')
        a('s_mov_b32 s83, 50331648')
        a('v_mul_lo_u32 v22, v22, s83')
        a('v_add3_u32 v21, v21, v22, s82')
        a('s_mul_i32 s82, s30, 245760')
        a('v_mov_b32 v22, s82')
        a('s_mul_i32 s82, s30, 61440')
        a('v_mov_b32 v23, s82')
        a('s_mov_b64 exec, 15')
        a(f'global_load_dword v{top}, v21, s[6:7] nt')
        a(f'global_load_dword v{top}, v21, s[8:9] nt')
        a('s_mov_b64 exec, 1')
        a(f'global_load_dword v{top}, v22, s[12:13] nt')
        a(f'global_load_dword v{top}, v23, s[20:21] nt')
        a(f'global_load_dword v{top}, v73, s[24:25] nt')
        a('s_mov_b64 exec, -1')
    if tpre == 2: tlbpre()
    if opre == 1:
        a(f'buffer_load_dword v{top}, v9, s[68:71], s100 offen')
        a(f'buffer_load_dword v{top}, v9, s[68:71], s100 offen offset:1024')
    if opre == 2: a('v_mov_b32 v20, v9')
    if ypre:
        a('s_mov_b32 exec_hi, 0xff')
        a('buffer_load_dwordx4 v[44:47], v9, s[68:71], s101 offen')
    if ctl:
        a('s_and_b32 s82, s2, 7')
        a('s_mul_i32 s82, s82, 4352')
        a(f's_add_u32 s82, s82, {MBOX}')
        a('s_lshr_b32 s83, s2, 3')
        a('s_lshl_b32 s83, s83, 2')
        a('s_add_u32 s83, s83, s82')
        a('s_and_b32 s84, s79, 0x3fffff')
        a('s_mov_b32 s85, 0')
        if glob:
            a('v_lshlrev_b32 v11, 2, v1')
            a(f'v_mul_u32_u24 v13, {GS}, v1')
            a('s_cmp_ge_u32 s2, 248')
            a(f's_cselect_b32 s60, {gP0}, -1')
            a(f's_mov_b32 s61, {GBOX}')
            a('s_and_b32 s59, s2, 7')
            a(f's_mul_i32 s58, s59, {GS}')
            a('s_add_u32 s43, s82, 128')
            a('s_mov_b32 s57, 0')
        a('s_mov_b32 exec_hi, 0')
        a('L_c:')
        a(f'ds_read_b32 v10, v73 offset:{CNT}')
        if xphase: a('s_memrealtime s[62:63]')
        a('s_waitcnt lgkmcnt(0)')
        a('v_subrev_u32 v10, s85, v10')
        if xphase:
            a(f's_mul_i32 s64, s62, {rmul}')
            a('s_lshr_b32 s64, s64, 8')
            a('v_subrev_u32 v16, s64, v10')
            a('v_lshl_or_b32 v12, v16, 22, s84')
        else:
            a('v_lshl_or_b32 v12, v10, 22, s84')
        a('s_mov_b32 exec_lo, 1')
        a('buffer_store_dword v12, off, s[68:71], s83')
        a('s_mov_b32 exec_lo, -1')
        if glob: a('s_mov_b32 exec_hi, 1')
        a('buffer_load_dword v9, v11, s[68:71], s82 offen sc1')
        if glob: a('s_mov_b32 exec_hi, 0')
        a('v_readfirstlane_b32 s86, v10')
        if glob:
            a('s_cmp_lt_u32 s86, s60')
            a('s_cbranch_scc1 L_g1')
            if not xphase: a('s_memrealtime s[62:63]')
            a('s_mov_b32 exec_lo, 0xff')
            a('buffer_load_dword v14, v13, s[68:71], s61 offen sc1')
            a('s_mov_b32 exec_lo, -1')
            a('L_g1:')
        a('s_waitcnt vmcnt(0)')
        if glob:
            a('v_readlane_b32 s44, v9, 32')
            a('s_and_b32 s45, s44, 0x3fffff')
            a('s_ashr_i32 s44, s44, 22')
            a('s_cmp_eq_u32 s45, s84')
            a('s_cselect_b32 s44, s44, 0')
        if xphase:
            a('v_sub_u32 v9, v9, v12')
            a('v_and_b32 v12, 0x3fffff, v9')
            a('v_ashrrev_i32 v9, 22, v9')
            a('v_cmp_eq_u32 vcc, 0, v12')
            a('v_cndmask_b32 v9, 0, v9, vcc')
            a(f'v_add3_u32 v9, v9, v10, {comp}')
        else:
            a('v_and_b32 v12, 0x3fffff, v9')
            a('v_lshrrev_b32 v9, 22, v9')
            a(f'v_add_u32 v9, {comp}, v9')
            a('v_cmp_eq_u32 vcc, s84, v12')
            a('v_cndmask_b32 v9, v10, v9, vcc')
        for pat in RED8 + ('row_mirror',):
            a(f'v_add_u32_dpp v9, v9, v9 {pat} {DPP}')
        a('v_readlane_b32 s87, v9, 0')
        a('v_readlane_b32 s88, v9, 16')
        a('s_add_u32 s87, s87, s88')
        a('s_lshr_b32 s87, s87, 5')
        if glob:
            a('s_cmp_lt_u32 s86, s60')
            a('s_cbranch_scc1 L_g2')
            a('s_waitcnt lgkmcnt(0)')
            a(f's_mul_i32 s64, s62, {rmul}')
            a('s_lshr_b32 s64, s64, 8')
            a('s_sub_u32 s64, s87, s64')
            a('s_lshl_b32 s64, s64, 22')
            a('s_or_b32 s64, s64, s84')
            a(f's_add_u32 s61, s61, {8*GS}')
            a('s_add_u32 s45, s61, s58')
            a('v_mov_b32 v12, s64')
            a('s_mov_b32 exec_lo, 1')
            a('buffer_store_dword v12, off, s[68:71], s45 sc1')
            a('s_mov_b32 exec_lo, 0xff')
            a(f's_add_u32 s60, s60, {gD}')
            a(f's_cmp_gt_u32 s60, {gend}')
            a('s_cselect_b32 s60, -1, s60')
            a('v_subrev_u32 v14, s57, v14')
            a('v_and_b32 v12, 0x3fffff, v14')
            a('v_ashrrev_i32 v14, 22, v14')
            a('v_cmp_eq_u32 vcc, 0, v12')
            a(f'v_cndmask_b32 v14, {-min(gD, 16) if False else 0}, v14, vcc') if False else None
            a(f'v_mov_b32 v15, {-gD}')
            a('v_cndmask_b32 v14, v15, v14, vcc')
            for pat in RED8:
                a(f'v_add_u32_dpp v14, v14, v14 {pat} {DPP}')
            a('v_readfirstlane_b32 s46, v14')
            if gsw:
                a(f's_cmp_ge_u32 s86, {gsw}')
                a(f's_cselect_b32 s45, {gnum2}, {gnum}')
                a('s_mul_i32 s46, s46, s45')
            elif gnum != 1: a(f's_mul_i32 s46, s46, {gnum}')
            a(f's_ashr_i32 s46, s46, {3 + gsh2}')
            a(f's_min_i32 s46, s46, {gclamp}')
            a(f's_max_i32 s46, s46, {-gclamp}')
            a('s_cmp_eq_u32 s57, 0')
            a('s_cselect_b32 s46, 0, s46')
            a('s_mov_b32 s57, s64')
            a('s_lshl_b32 s46, s46, 22')
            a('s_or_b32 s46, s46, s84')
            a('v_mov_b32 v12, s46')
            a('s_mov_b32 exec_lo, 1')
            a('buffer_store_dword v12, off, s[68:71], s43')
            a('s_mov_b32 exec_lo, -1')
            a('L_g2:')
        a('s_sub_i32 s87, s87, s86')
        if glob: a('s_add_i32 s87, s87, s44')
        a('s_sub_i32 s88, s87, s85')
        a('s_mov_b32 s85, s87')
        a('v_mov_b32 v9, s88')
        a('s_mov_b32 exec_lo, 1')
        a(f'ds_add_u32 v73, v9 offset:{CNT}')
        a('s_mov_b32 exec_lo, -1')
        a(f's_cmp_ge_u32 s86, {cend}')
        a('s_cbranch_scc1 L_cd')
        a('s_sub_u32 s92, s92, 1')
        a('s_cbranch_scc0 L_c')
        a('s_endpgm')
        a('L_cd:')
    a('s_mov_b64 exec, -1')
    def wprefetch():
        a('s_lshl_b32 s82, s30, 3')
        a('s_add_u32 s82, s82, s31')
        a('s_mul_i32 s83, s82, 30720')
        srd(48, 12, 's83'); a('s_mov_b32 s50, 30720'); a('s_mov_b32 s51, 0x20000')
        a('s_mul_i32 s83, s82, 7680')
        srd(52, 20, 's83'); a('s_mov_b32 s54, 7680'); a('s_mov_b32 s55, 0x20000')
        a('v_lshlrev_b32 v21, 7, v1')
        if wpre == 2: a('s_barrier')
        for i in range(4):
            if i: a(f's_mov_b32 s83, {i*8192}')
            a(f'buffer_load_dword v{22+i}, v21, s[48:51], {"s83" if i else "0"} offen {wpre_cache}')
        a(f'buffer_load_dword v26, v21, s[52:55], 0 offen {wpre_cache}')
    if wpre: wprefetch()
    if opre == 2:
        a(f'buffer_load_dword v{top}, v20, s[68:71], s100 offen')
        a(f'buffer_load_dword v{top}, v20, s[68:71], s100 offen offset:1024')
    if not wpre:
        a('s_cmp_ge_u32 s2, 160')
        a('s_cbranch_scc1 ' + ('L_end' if (probe is not None or not stamps) else 'L_hend'))
    a('s_lshr_b32 s82, s2, 5')
    a('s_lshl_b32 s82, s82, 3')
    a('s_and_b32 s83, s2, 7')
    a('s_add_u32 s82, s82, s83')
    a('s_lshl_b32 s82, s82, 2')
    a(f's_bfe_u32 s83, s2, {3 | (2 << 16)}')
    a('s_add_u32 s85, s82, s83')
    a('s_mul_i32 s82, s85, 205')
    a('s_lshr_b32 s82, s82, 12')
    a('s_mul_i32 s83, s82, 20')
    a('s_sub_u32 s83, s85, s83')
    if remap & 4:
        a('s_and_b32 s82, s2, 7')
        a('s_lshr_b32 s83, s2, 3')
    a('s_mul_i32 s84, s82, 20480')
    a('s_lshl_b32 s81, s83, 5')
    a('s_add_u32 s84, s84, s81')
    a(f's_add_u32 s98, s84, {YOFF}')
    srd(72, 24, None); a('s_mov_b32 s74, 2560'); a('s_mov_b32 s75, 0x20000')
    vF, vOUT, F = 8, 9, 28
    a(f'v_lshrrev_b32 v{vF}, 1, v1')
    a(f'v_mul_u32_u24 v{vF}, 640, v{vF}')
    a('v_and_b32 v10, 1, v1')
    a(f'v_lshl_add_u32 v{vF}, v10, 4, v{vF}')
    if ytr:
        a('s_mul_i32 s99, s82, 160')
        a('s_lshr_b32 s84, s83, 2')
        a('s_lshl_b32 s84, s84, 5')
        a('s_and_b32 s81, s83, 3')
        a('s_add_u32 s84, s84, s81')
        a(f'v_lshl_add_u32 v{vOUT}, v10, 4, s84')
        a('v_lshrrev_b32 v10, 4, v1')
        a(f'v_lshl_add_u32 v{vOUT}, v10, 2, v{vOUT}')
        a(f'v_cmp_lt_u32 vcc, 79, v{vOUT}')
        a(f'v_add_u32 v10, 560, v{vOUT}')
        a(f'v_cndmask_b32 v{vOUT}, v{vOUT}, v10, vcc')
        a(f'v_lshlrev_b32 v{vOUT}, 1, v{vOUT}')
    else:
        a('s_cmp_ge_u32 s83, 10')
        a('s_cselect_b32 s84, 1120, 0')
        a('s_lshl_b32 s81, s83, 4')
        a('s_add_u32 s84, s84, s81')
        a('s_mul_i32 s81, s82, 160')
        a('s_add_u32 s99, s84, s81')
        a(f'v_lshlrev_b32 v{vOUT}, 3, v10')
        a('v_lshrrev_b32 v10, 4, v1')
        a(f'v_lshl_add_u32 v{vOUT}, v10, 1, v{vOUT}')
    a('v_mov_b32 v11, s79')
    a(f's_mov_b32 s82, {EOFF}')
    a('s_waitcnt lgkmcnt(0)')
    if wpre != 2: a('s_barrier')
    a('s_barrier')
    a('s_barrier')
    if wpre:
        a('s_cmp_ge_u32 s2, 160')
        a('s_cbranch_scc1 ' + ('L_end' if (probe is not None or not stamps) else 'L_hend'))
    stamp(7)
    if np2 > 1:
        FS = [F + 4 + 4 * i for i in range(np2)]
        for i in range(np2):
            a(f'buffer_load_dwordx4 v[{FS[i]}:{FS[i]+3}], v{vF}, s[68:71], s98 offen sc1')
            if i < np2 - 1: a(f's_sleep {p2gap}')
        a('L_poll2:')
        for i in range(np2):
            a(f's_waitcnt vmcnt({np2-1})')
            for r in range(4): a(f'v_xor_b32 v{F+r}, s78, v{FS[i]+r}')
            a(f'v_or3_b32 v14, v{F}, v{F+1}, v{F+2}')
            a(f'v_or_b32 v14, v14, v{F+3}')
            a(f'v_and_b32 v14, {TM}, v14')
            a('v_cmp_ne_u32 vcc, 0, v14')
            a('s_cbranch_vccz L_poll2d')
            a('s_mov_b64 exec, vcc')
            a(f'buffer_load_dwordx4 v[{FS[i]}:{FS[i]+3}], v{vF}, s[68:71], s98 offen sc1')
            if psleep2: a(f's_sleep {psleep2}')
        a('s_sub_u32 s92, s92, 1')
        a('s_cbranch_scc0 L_poll2')
        a('s_endpgm')
    else:
        a('; final reduction over the 32 heads')
        a('L_poll2:')
        a(f'buffer_load_dwordx4 v[{F}:{F+3}], v{vF}, s[68:71], s98 offen sc1')
        a('s_waitcnt vmcnt(0)')
        tag_check(range(F, F + 4), 14, 15)
        a('s_cbranch_vccz L_poll2d')
        if pmask: a('s_mov_b64 exec, vcc')
        if psleep2: a(f's_sleep {psleep2}')
        a('s_sub_u32 s92, s92, 1')
        a('s_cbranch_scc0 L_poll2')
        a('s_endpgm')
    a('L_poll2d:')
    if pmask: a('s_mov_b64 exec, -1')
    a(f'v_permlane16_swap_b32 v{F}, v{F+1}')
    a(f'v_permlane16_swap_b32 v{F+2}, v{F+3}')
    a(f'v_add_f32 v{F}, v{F}, v{F+1}')
    a(f'v_add_f32 v{F+2}, v{F+2}, v{F+3}')
    a(f'v_permlane32_swap_b32 v{F}, v{F+2}')
    a(f'v_add_f32 v{F}, v{F}, v{F+2}')
    a(f'v_add_f32_dpp v{F}, v{F}, v{F} quad_perm:[2,3,0,1] {DPP}')
    a(f'v_add_f32_dpp v{F}, v{F}, v{F} row_ror:4 {DPP}')
    a(f'v_add_f32_dpp v{F}, v{F}, v{F} row_ror:8 {DPP}')
    a('s_mov_b32 exec_lo, 0x00030003')
    a('s_mov_b32 exec_hi, 0x00030003')
    a(f'v_cvt_pk_bf16_f32 v{F}, v{F}, v{F}')
    a(f'buffer_store_short v{F}, v{vOUT}, s[72:75], s99 offen')
    a('s_cmp_lg_u32 s2, 0')
    a('s_cbranch_scc1 L_hend')
    a('s_mov_b64 exec, 1')
    a('buffer_store_dword v11, off, s[68:71], s82')
    a('L_hend:')
    if stamps:
        a('s_mov_b64 exec, -1')
        stamp(8)
        a('s_branch L_probe')
    a('s_endpgm')

    a('L_codeend:')
    ip = a.lines.index('@TPRE@')
    rest = a.lines[ip+1:]; a.lines = a.lines[:ip]
    if tpre == 1: tlbpre()
    a.lines += rest
    if hnear:
        L = a.lines
        i0 = L.index('L_helper:'); i1 = L.index('@HEAD_END@'); ih = L.index('@HELPER_HEAD@')
        head = L[i0:i1]
        a.lines = L[:ih] + head + L[ih+1:i0] + L[i1+1:]
    body = a.finalize()
    out = HEADER + DOC
    out += f'; @launch grid=(256,1,1) block=(576,1,1) lds={LDS_BYTES}\n'
    out += '.amdgcn_target "amdgcn-amd-amdhsa--gfx950"\n.text\n'
    out += f'.globl {KNAME}_kernel\n.p2align 8\n.type {KNAME}_kernel,@function\n'
    for l in body:
        out += (l if l.endswith(':') else '    ' + l) + '\n'
    out += f'''.section .rodata,"a"
.p2align 6
.amdhsa_kernel {KNAME}_kernel
  .amdhsa_next_free_vgpr {NV}
  .amdhsa_next_free_sgpr 102
  .amdhsa_accum_offset {NV}
  .amdhsa_group_segment_fixed_size 0
  .amdhsa_kernarg_size 104
  .amdhsa_user_sgpr_count 2
  .amdhsa_user_sgpr_kernarg_segment_ptr 1
  .amdhsa_system_sgpr_workgroup_id_x 1
  .amdhsa_float_denorm_mode_32 3
.end_amdhsa_kernel
'''
    return out

if __name__ == '__main__':
    kw = eval('dict(' + (sys.argv[2] if len(sys.argv) > 2 else '') + ')')
    open(sys.argv[1], 'w').write(gen(**kw))
```

```python
import sys, math, struct
from asmlib import Asm
KNAME = 'gated_mix__gqa_block_cached__dense_activation_mish__decode'
HEADER = open('cdna_kernels/' + KNAME + '.s.ref').read().split('; Override launch')[0]


DOC = """;
; Design (one launch, 256 workgroups = one per CU, 8 streaming waves + 1 helper wave each)
;   workgroup (h, sub): head h, keys of octant sub for BOTH batches (64 keys per wave and batch).
;   helper    : 80-row slice of x@wq, x@w1 and the gate dot; partials are exchanged between the 8 workgroups
;   hand-offs : through d_ws, every word carries a 10-bit tag = (epoch word found in d_ws) + 1; the epoch
;               word is advanced at the end, so stale words of earlier launches never match. All waits are
;               progress (LDS counter, per-XCD mailbox, and a few time-stamped progress words between XCDs),
"""

def f2u(x): return struct.unpack('<I', struct.pack('<f', x))[0]
LOG2E = 1.4426950408889634
OOB = 0x80000000
OOFF = 512 * 1024
FAST = 1 << 20
YOFF = 1536 * 1024
EOFF = 1792 * 1024
MBOX = 1796 * 1024
GBOX = 1856 * 1024
STAMP_OFF = 2 << 20
WS_REC = 4 << 20
TM = 0x3ff
OS = 848
OP1 = 16 * OS
QBF = 32 * OS
ACT = QBF + 1024
GV = ACT + 512
FLAG = GV + 128
CNT = FLAG + 4
FL = FLAG + 8
MW = FLAG + 16
YP = MW + 64
LDS_BYTES = YP + 8 * 640 + 256
DPP = 'row_mask:0xf bank_mask:0xf'
RED8 = ('quad_perm:[1,0,3,2]', 'quad_perm:[2,3,0,1]', 'row_half_mirror')
NV = 168

def gen(D=3, nb=30, catchup=2, stamps=False, kv_cache='nt', w_cache='nt', wo_cache='', poll_cap=1 << 18, probe=None,
        hwin=16, nfast=48, psleep=0, psleep2=1, qsleep=4, levels=((-4, 3), (13, 2)), Dmax=4, comp=6, cstart=6, cend=712,
        nlate=8, ypre=True, gm=(2, 0), ctl=True, sind=False, qpre=False, opre=0, nl1=8, l2pos=0, xfree=False, estart=9, estep=4, m1pos=9, m2a=12, m2b=13, nsp=200, Dsp=5, spadd=0, D0pat=None, eb=False, cpre=0, hnear=False, ytr=False, pmask=False, gmimic=True, glob=False, gP0=240, gD=64, gend=660, gnum=1, gsh2=1, gclamp=24, rmul=76, GS=256, gint=False, gsw=None, gnum2=1, xphase=False, wpre=0, wpre_cache='', tpre=0, dbg_nowq=0, wqmap=0, est=None, boost=None, l2n=3, l2k=1, m2late=False, remap=0, np2=1, p2gap=1, smimic=False, junk=0, junkflag='', outflag='', ehack=0, ycon=0, ymap2=False, outpre=0, ymapn=0, p2first=0, ebump=0, kfirst=False):
    a = Asm()
    inhelper = [False]
    VST = NV - 1
    VZ = NV - 2
    top = NV - 4
    def stamp(i, force=False):
        if est and not force and 0 < i < 8 and not inhelper[0]: return
        if stamps:
            a('s_memrealtime s[96:97]')
            a('s_waitcnt lgkmcnt(0)')
            a(f'v_writelane_b32 v{VST}, s96, {i}')
    def srd(r, p, off):
        if off is None:
            a(f's_mov_b32 s{r}, s{p}'); a(f's_mov_b32 s{r+1}, s{p+1}')
        else:
            a(f's_add_u32 s{r}, s{p}, {off}'); a(f's_addc_u32 s{r+1}, s{p+1}, 0')
    def xlane(op, v, tmp):
        a(f'{op}_dpp v{v}, v{v}, v{v} row_ror:8 {DPP}')
        a(f'v_mov_b32 v{tmp}, v{v}')
        a(f'v_permlane16_swap_b32 v{v}, v{tmp}')
        a(f'{op} v{v}, v{v}, v{tmp}')
        a(f'v_mov_b32 v{tmp}, v{v}')
        a(f'v_permlane32_swap_b32 v{v}, v{tmp}')
        a(f'{op} v{v}, v{v}, v{tmp}')
    def masks(M, t0, t1):
        a(f'v_and_b32 v{t0}, 1, v1')
        a(f'v_lshlrev_b32 v{t0}, 4, v{t0}')
        a(f'v_mov_b32 v{t1}, 0xffff')
        a(f'v_lshlrev_b32 v{t0}, v{t0}, v{t1}')
        a(f'v_bfe_u32 v{t1}, v1, 1, 2')
        for r in range(4):
            a(f'v_cmp_eq_u32 vcc, {r}, v{t1}')
            a(f'v_cndmask_b32 v{M+r}, 0, v{t0}, vcc')
    def ws_setup():
        srd(68, 28, None)
        a(f's_mov_b32 s70, {WS_REC}')
        a('s_mov_b32 s71, 0x20000')
        a('s_lshl_b32 s99, s30, 3')
        a('s_add_u32 s99, s99, s31')
        a('s_lshl_b32 s99, s99, 11')
        a(f's_add_u32 s100, s99, {OOFF}')
        if remap & 4:
            a('s_and_b32 s101, s2, 7')
            a('s_lshl_b32 s101, s101, 5')
            a('s_lshr_b32 s76, s2, 3')
            a('s_add_u32 s101, s101, s76')
        else:
            a('s_lshl_b32 s101, s31, 5')
            a('s_add_u32 s101, s101, s30')
        a('s_mul_i32 s101, s101, 640')
        a(f's_add_u32 s101, s101, {YOFF}')
        a(f's_mov_b32 s92, {poll_cap}')
        a(f's_mov_b32 s76, {EOFF}')
        a('s_load_dword s79, s[28:29], s76')
        a(f's_mov_b32 s77, {0xffffffff ^ TM}')
    def tag_finish():
        a('s_add_u32 s79, s79, 1')
        a(f's_and_b32 s78, s79, {TM}')
    def tag_apply(regs, vt):
        for r in regs: a(f'v_and_or_b32 v{r}, v{r}, s77, v{vt}')
    def tag_check(regs, x0, x1):
        regs = list(regs)
        for r in regs: a(f'v_xor_b32 v{r}, s78, v{r}')
        if len(regs) == 4:
            a(f'v_or3_b32 v{x0}, v{regs[0]}, v{regs[1]}, v{regs[2]}')
            a(f'v_or_b32 v{x0}, v{x0}, v{regs[3]}')
        else:
            a(f'v_or3_b32 v{x0}, v{regs[0]}, v{regs[1]}, v{regs[2]}')
            a(f'v_or3_b32 v{x1}, v{regs[3]}, v{regs[4]}, v{regs[5]}')
            rr = regs[6:]; i = 0
            while len(rr) >= 2:
                d = (x0, x1)[i & 1]; i += 1
                a(f'v_or3_b32 v{d}, v{d}, v{rr[0]}, v{rr[1]}'); rr = rr[2:]
            assert not rr
            a(f'v_or_b32 v{x0}, v{x0}, v{x1}')
        a(f'v_and_b32 v{x0}, {TM}, v{x0}')
        a(f'v_cmp_ne_u32 vcc, 0, v{x0}')

    a(f'{KNAME}_kernel:')
    def kargs():
        a('s_load_dwordx16 s[4:19], s[0:1], 0')
        a('s_load_dwordx8 s[20:27], s[0:1], 64')
        a('s_load_dwordx2 s[28:29], s[0:1], 96')
    if kfirst: a('s_load_dwordx2 s[44:45], s[0:1], 8')
    a('s_cmp_ge_u32 s2, 256')
    a('s_cbranch_scc1 L_end')
    if not kfirst: kargs()
    if stamps:
        a(f'v_mov_b32 v{VST}, 0')
        stamp(0)
    a('v_lshrrev_b32 v5, 6, v0')
    a('v_and_b32 v1, 63, v0')
    a('v_readfirstlane_b32 s3, v5')
    a('s_and_b32 s82, s2, 7')
    a('s_lshr_b32 s83, s2, 6')
    a('s_lshl_b32 s30, s82, 2')
    a('s_add_u32 s30, s30, s83')
    a(f's_bfe_u32 s31, s2, {3 | (3 << 16)}')
    a('v_lshrrev_b32 v6, 3, v1')
    a('v_and_b32 v7, 7, v1')
    a('v_lshlrev_b32 v5, 4, v7')
    if eb:
        a('v_mov_b32 v8, 0')
        a(f'v_mov_b32 v9, {8*D}')
        a('v_mov_b32 v10, 0')
        a(f'ds_write_b96 v8, v[8:10] offset:{FLAG}')
    a('s_cmp_eq_u32 s3, 8')
    if eb:
        a('s_cbranch_scc0 L_streamer')
        a('s_waitcnt lgkmcnt(0)')
        a('s_barrier')
        a('s_branch L_helper')
        a('L_streamer:')
    else:
        a('s_cbranch_scc1 L_helper')
    a('v_mul_u32_u24 v2, 384, v6')
    a('v_add_u32 v2, v2, v5')
    a(f's_mul_i32 s88, s30, {gm[0]}')
    if gm[1]:
        a(f's_mul_i32 s83, s82, {gm[1]}')
        a('s_add_u32 s88, s88, s83')
    a('s_and_b32 s88, s88, 7')
    a('s_lshl_b32 s82, s30, 6')
    a('s_add_u32 s82, s82, s31')
    a('s_lshl_b32 s82, s82, 3')
    a('s_add_u32 s82, s82, s3')
    a('s_mul_i32 s82, s82, 3072')
    a('s_sub_u32 s34, 100663296, s82')
    a('s_mov_b32 s35, 0x20000')
    a('s_mul_i32 s86, s88, 196608')
    a('s_waitcnt lgkmcnt(0)')
    srd(32, 44 if kfirst else 6, 's82')
    S0 = 8; Q0 = 24; ACC = 24
    M0 = 36; A0 = 40
    vOW, vRA, vRG, vP1, vYW, vYR, vMW, vAC = range(48, 56)
    vRG1, vP2, G0, G1 = 56, 57, 58, 59
    kF = m2b + 1
    vM, vL = 60, 61
    T = list(range(62, 76))
    konly = list(range(36, 76, 4))
    free = konly + list(range(76, top, 4))
    slot = {}
    def alloc(tag):
        r = free.pop(0); slot[tag] = r; return r
    def release(tag):
        if slot[tag] not in konly: free.append(slot[tag])
    cur = {'kv': 0}
    nis = [0]; wcnt = [0]
    def window():
        n = nis[0]; wcnt[0] += 1
        def adj(d):
            if not xfree: return d - 1
            cnt = 0; k = 0
            for t in reversed(a.vm):
                if isinstance(t, tuple) and t[0] in ('k', 'v'):
                    if cnt == d - 1: break
                    cnt += 1
                k += 1
            return k
        if n >= nsp and not spadd:
            a.wait_out(adj(Dsp))
            return
        ex = spadd if n >= nsp else 0
        if boost and boost[0] <= n < boost[1] and (n - boost[0]) % boost[2] == 0: ex += 1
        if ctl and n >= cstart:
            a.wait_out(adj(Dmax + ex))
            a('s_waitcnt lgkmcnt(0)')
            a('v_readfirstlane_b32 s90, v0')
            for (delta, d) in levels:
                a(f's_cmp_lt_i32 s90, {8*n - delta}')
                a(f's_cbranch_scc0 L_go{wcnt[0]}')
                a(f's_waitcnt vmcnt({adj(d + ex)})')
            a(f'L_go{wcnt[0]}:')
        else:
            a.wait_out((D0pat[n % len(D0pat)] if D0pat else D) - 1)
    def issue(tag):
        kind = tag[0]
        r = alloc(tag)
        if kind in ('k', 'v'):
            if cur['kv'] != tag[1]:
                k = tag[1]
                a(f's_add_u32 s85, s88, {k & 7}')
                a('s_and_b32 s85, s85, 7')
                a('s_mul_i32 s86, s85, 196608')
                if k >= 8: a('s_add_u32 s86, s86, 50331648')
                cur['kv'] = k
            s0 = 32 if kind == 'k' else 36
            a.vmem(f'buffer_load_dwordx4 v[{r}:{r+3}], v2, s[{s0}:{s0+3}], s86 offen offset:{tag[2]*128} {kv_cache}', tag)
            nis[0] += 1
            if est and nis[0] in est: stamp(est.index(nis[0]) + 1, True)
            if ctl and nis[0] > D:
                a('s_mov_b64 exec, 1')
                a(f'ds_add_rtn_u32 v0, v{VZ}, v{VZ} offset:{CNT - 1}')
                a('s_mov_b64 exec, -1')
        elif kind == 'wo':
            rg = tag[1]
            if rg: a(f's_mov_b32 s87, {(rg >> 1)*5120 + (rg & 1)*160 if ehack == 1 else rg*5120}')
            a.vmem(f'buffer_load_dwordx4 v[{r}:{r+3}], v3, s[48:51], {"s87" if rg else "0"} offen {wo_cache}', tag)
        elif kind == 'w2':
            a.vmem(f'buffer_load_dwordx4 v[{r}:{r+3}], v4, s[52:55], 0 offen offset:{tag[1]*(160 if ehack == 1 else 1280)} {wo_cache}', tag)
    kl = [('k', k, s) for k in range(16) for s in range(3)]
    vl = [('v', k, s) for k in range(16) for s in range(3)]
    for tag in kl[:D]: issue(tag)
    if kfirst:
        kargs()
        a('s_waitcnt lgkmcnt(0)')
    if eb: a('s_barrier')
    if hnear:
        a('s_branch L_stream2')
        a('@HELPER_HEAD@')
        a('L_stream2:')
    srd(36, 8, 's82'); a('s_mov_b32 s38, s34'); a('s_mov_b32 s39, 0x20000')
    ws_setup()
    a(f's_mov_b32 s91, {f2u(LOG2E if smimic else LOG2E / math.sqrt(192.0))}')
    if remap & 1:
        a('s_lshr_b32 s30, s2, 3')
        a('s_and_b32 s31, s2, 7')
    if ehack == 1:
        a('s_mul_i32 s82, s30, 192')
        a('s_and_b32 s83, s31, 1')
        a('s_mul_i32 s83, s83, 96')
        a('s_add_u32 s82, s82, s83')
        a('s_mul_i32 s83, s3, 12')
        a('s_add_u32 s82, s82, s83')
        a('s_mul_i32 s82, s82, 1280')
        a('s_lshr_b32 s83, s31, 1')
        a('s_mul_i32 s83, s83, 320')
        a('s_add_u32 s82, s82, s83')
    else:
        a('s_mul_i32 s82, s30, 192')
        a('s_mul_i32 s83, s3, 24')
        a('s_add_u32 s82, s82, s83')
        a('s_mul_i32 s82, s82, 1280')
        a(f's_mul_i32 s83, s31, {128 if ehack == 2 else 160}')
        a('s_add_u32 s82, s82, s83')
    srd(48, 12, 's82')
    a('s_sub_u32 s50, 7864320, s82')
    a('s_mov_b32 s51, 0x20000')
    if ehack == 1:
        a('s_lshl_b32 s82, s30, 1')
        a('s_and_b32 s84, s31, 1')
        a('s_add_u32 s82, s82, s84')
        a('s_lshl_b32 s82, s82, 3')
        a('s_add_u32 s82, s82, s3')
        a('s_mul_i32 s82, s82, 3840')
        a('s_add_u32 s82, s82, s83')
    else:
        a('s_lshl_b32 s82, s30, 3')
        a('s_add_u32 s82, s82, s3')
        a('s_mul_i32 s82, s82, 7680')
        a('s_add_u32 s82, s82, s83')
    srd(52, 20, 's82')
    a('s_sub_u32 s54, 1966080, s82')
    a('s_mov_b32 s55, 0x20000')
    if remap & 2: a('s_lshr_b32 s30, s2, 3')
    elif remap & 1: a('s_lshr_b32 s30, s99, 14')
    a('s_lshl_b32 s93, s30, 14')
    a(f's_add_u32 s93, s93, {OOFF}')
    a('s_add_u32 s94, s93, 4096')
    a('s_add_u32 s95, s93, 8192')
    a('s_add_u32 s98, s93, 12288')
    a('v_lshrrev_b32 v8, 4, v1')
    a('v_and_b32 v9, 15, v1')
    a(f'v_mov_b32 v10, {OOB}')
    a('v_mul_u32_u24 v3, 1280, v8')
    a('v_lshl_add_u32 v3, v9, 4, v3')
    a(f'v_mul_u32_u24 v4, {1280 if ehack == 1 else 2560}, v8')
    a('v_lshl_add_u32 v4, v9, 4, v4')
    a('v_cmp_gt_u32 vcc, 3, v8')
    a('v_cndmask_b32 v4, v10, v4, vcc')
    a(f'v_cmp_gt_u32 vcc, {8 if ehack == 2 else 10}, v9')
    a('v_cndmask_b32 v3, v10, v3, vcc')
    a('v_cndmask_b32 v4, v10, v4, vcc')
    a('v_mov_b32 v9, 0')
    a(f'v_mov_b32 v{VZ}, 1')
    if cpre == 1:
        a('s_cmp_lg_u32 s3, 7')
        a('s_cbranch_scc1 L_nocp')
        a('s_getpc_b64 s[40:41]')
        a('L_pc:')
        a(f's_sub_u32 s40, s40, L_pc-{KNAME}_kernel')
        a('s_subb_u32 s41, s41, 0')
        a('s_lshr_b32 s82, s2, 3')
        a('s_mul_i32 s82, s82, 640')
        a('v_lshl_add_u32 v10, v1, 7, s82')
        a(f'v_min_u32 v10, L_codeend-{KNAME}_kernel-4, v10')
        a('s_mov_b64 exec, 31')
        a(f'global_load_dword v{NV-3}, v10, s[40:41]')
        a('s_mov_b64 exec, -1')
        a('L_nocp:')
    if not eb: a('s_barrier')
    for tag in kl[D:nb]:
        window(); issue(tag)
    a('s_waitcnt lgkmcnt(0)')
    tag_finish()
    stamp(1)
    a('L_qw:')
    a(f'ds_read_b32 v8, v9 offset:{FLAG}')
    for s in range(3):
        a(f'ds_read_b128 v[{Q0+4*s}:{Q0+3+4*s}], v5 offset:{QBF + s*128}')
    a('s_waitcnt lgkmcnt(0)')
    a('v_readfirstlane_b32 s89, v8')
    a('s_cmp_lg_u32 s89, 0')
    a('s_cbranch_scc1 L_qwd')
    a('s_sleep 2')
    a('s_sub_u32 s92, s92, 1')
    a('s_cbranch_scc0 L_qw')
    a('s_endpgm')
    a('L_qwd:')
    stamp(2)
    abi = [0]
    def build_A(src):
        A = A0 + 4 * (abi[0] & 1); abi[0] += 1
        for r in range(4):
            a(f'v_and_b32 v{A+r}, {src}, v{M0+r}')
        return A
    def task_k(k):
        S = S0 + k
        if k == 8: a('s_waitcnt lgkmcnt(0)')
        first = True
        for s in range(3):
            r = slot[('k', k, s)]
            for i in range(4):
                c = '0' if first else f'v{S}'
                a(f'v_dot2_f32_bf16 v{S}, v{r+i}, v{Q0 + s*4 + i}, {c}')
                first = False
            release(('k', k, s))
        if k == 7:
            for s in range(3):
                a(f'ds_read_b128 v[{Q0+4*s}:{Q0+3+4*s}], v5 offset:{QBF + 512 + s*128}')
    def flush_acc(b):
        a('s_mov_b32 exec_lo, 0x00ff00ff')
        a('s_mov_b32 exec_hi, 0xff00ff00')
        for s in range(3):
            a(f'ds_write_b128 v{vOW}, v[{ACC+4*s}:{ACC+3+4*s}] offset:{b*OP1 + s*256}')
        if b == 0:
            a('s_mov_b64 exec, 1')
            a(f'ds_add_u32 v{VZ}, v{VZ} offset:{FL - 1}')
        a('s_mov_b64 exec, -1')
    def task_v(k, fine=False, after=None):
        A = build_A(f'v{S0+k}')
        if k == 8: a('s_waitcnt lgkmcnt(0)')
        for s in range(3):
            if fine: a.wait_tag(('v', k, s))
            r = slot[('v', k, s)]; acc = ACC + 4 * s
            c = '0' if k % 8 == 0 else f'v[{acc}:{acc+3}]'
            a(f'v_mfma_f32_16x16x32_bf16 v[{acc}:{acc+3}], v[{A}:{A+3}], v[{r}:{r+3}], {c}')
            release(('v', k, s))
            if after: after(k, s)
    def task_red(b):
        for pat in RED8:
            for k in range(8 * b, 8 * b + 8):
                a(f'v_add_f32_dpp v{S0+k}, v{S0+k}, v{S0+k} {pat} {DPP}')
    t0, t1, t2 = T[0], T[1], T[2]
    def task_rnd(b):
        B = S0 + 8 * b
        for k in range(0, 8, 2): a(f'v_cvt_pk_bf16_f32 v{B+k}, v{B+k}, v{B+k+1}')
        for k in range(0, 8, 2):
            a(f'v_and_b32 v{B+k+1}, 0xffff0000, v{B+k}')
            a(f'v_lshlrev_b32 v{B+k}, 16, v{B+k}')
        for k in range(8): a(f'v_mul_f32 v{B+k}, {f2u(192.0 ** -0.5)}, v{B+k}')
        for k in range(0, 8, 2): a(f'v_cvt_pk_bf16_f32 v{B+k}, v{B+k}, v{B+k+1}')
        for k in range(0, 8, 2):
            a(f'v_and_b32 v{B+k+1}, 0xffff0000, v{B+k}')
            a(f'v_lshlrev_b32 v{B+k}, 16, v{B+k}')
    def task_sm1(b):
        B = S0 + 8 * b
        a(f'v_max3_f32 v{t0}, v{B}, v{B+1}, v{B+2}')
        a(f'v_max3_f32 v{t0}, v{t0}, v{B+3}, v{B+4}')
        a(f'v_max3_f32 v{t0}, v{t0}, v{B+5}, v{B+6}')
        a(f'v_max_f32 v{t0}, v{t0}, v{B+7}')
        xlane('v_max_f32', t0, t1)
        a(f'v_mul_f32 v{vM}, s91, v{t0}')
        for k in range(8): a(f'v_fma_f32 v{B+k}, v{B+k}, s91, -v{vM}')
        for k in range(8): a(f'v_exp_f32 v{B+k}, v{B+k}')
        a('s_lshl_b32 s82, s3, 2')
        a(f'v_mov_b32 v{t0}, s82')
        a(f'ds_write_b32 v{t0}, v{vM} offset:{MW + 32*b}')
    def task_sm2(b):
        B = S0 + 8 * b
        u = 64
        a(f'v_add_f32 v{u}, v{B}, v{B+1}')
        for k in range(2, 8): a(f'v_add_f32 v{u}, v{u}, v{B+k}')
        for k in range(8):
            if 8 * b + k < kF: a(f'v_cvt_pk_bf16_f32 v{B+k}, v{B+k}, v{B+k}')
        xlane('v_add_f32', u, t1)
        a(f'v_writelane_b32 v{u}, 0, 40')
        a(f'v_mov_b32 v{u+1}, v{u}'); a(f'v_mov_b32 v{u+2}, v{u}'); a(f'v_mov_b32 v{u+3}, v{u}')
        a('s_mov_b32 exec_lo, 1')
        a('s_mov_b32 exec_hi, 0x100')
        a(f'ds_write_b128 v{vOW}, v[{u}:{u+3}] offset:{b*OP1 + 768}')
        a('s_mov_b64 exec, -1')
    def task_addr0():
        a(f'v_lshrrev_b32 v{t0}, 5, v1')
        a('s_lshl_b32 s82, s3, 1')
        a(f'v_add_u32 v{t0}, s82, v{t0}')
        a(f'v_lshlrev_b32 v{t1}, 5, v7')
        a(f'v_bfe_u32 v{t2}, v1, 4, 1')
        a(f'v_lshl_add_u32 v{t1}, v{t2}, 4, v{t1}')
        a(f'v_mul_u32_u24 v{vOW}, {OS}, v{t0}')
        a(f'v_add_u32 v{vOW}, v{vOW}, v{t1}')
        masks(M0, t0, t1)
    g, ob, x, y, z = 68, 69, 70, 71, 72
    vRA0 = 61
    def task_addr1():
        a(f'v_lshrrev_b32 v{g}, 4, v1')
        a(f'v_mov_b32 v{ob}, {OOB}')
        a('s_mul_i32 s82, s3, 6')
        a(f'v_add_u32 v{x}, s82, v6')
        a('v_cmp_gt_u32 vcc, 6, v6')
        a(f'v_cndmask_b32 v{x}, 48, v{x}, vcc')
        a(f'v_lshlrev_b32 v{x}, 4, v{x}')
        a(f'v_mul_u32_u24 v{vRA0}, {2*OS}, v7')
        a(f'v_add_u32 v{vRA0}, v{vRA0}, v{x}')
        a(f'v_add_u32 v{x}, {OP1}, v{vRA0}')
        a('v_cmp_eq_u32 s[80:81], 7, v6')
        a(f'v_cndmask_b32 v{vRA0}, v{vRA0}, v{x}, s[80:81]')
        a(f'v_add_u32 v{x}, s82, v7')
        a('v_cmp_gt_u32 vcc, 6, v7')
        a(f'v_cndmask_b32 v{x}, 48, v{x}, vcc')
        a(f'v_lshlrev_b32 v{x}, 4, v{x}')
        a(f'v_mul_u32_u24 v{vRA}, {2*OS}, v6')
        a(f'v_add_u32 v{vRA}, v{vRA}, v{x}')
        a('s_lshl_b32 s82, s3, 7')
        a(f'v_lshl_add_u32 v{x}, v6, 4, s82')
        if ycon == 1:
            a(f'v_lshlrev_b32 v{vYR}, 4, v1')
        elif ycon == 2:
            a(f'v_and_b32 v{y}, 31, v1')
            a(f'v_lshlrev_b32 v{y}, 4, v{y}')
            a(f'v_lshrrev_b32 v{vYR}, 5, v1')
            a(f'v_mul_u32_u24 v{vYR}, 2560, v{vYR}')
            a('s_mul_i32 s83, s3, 320')
            a(f'v_add3_u32 v{vYR}, v{vYR}, v{y}, s83')
        elif ytr:
            a(f'v_mul_u32_u24 v{vYR}, 640, v6')
            a(f'v_add3_u32 v{vYR}, v{vYR}, v5, s82')
        else:
            a(f'v_mul_u32_u24 v{vYR}, 640, v7')
            a(f'v_add_u32 v{vYR}, v{vYR}, v{x}')
        a('v_cmp_eq_u32 vcc, 0, v7')
        a(f'v_cndmask_b32 v{vRG}, v{ob}, v{x}, vcc')
        a(f'v_lshlrev_b32 v{y}, 11, v6')
        a(f'v_add3_u32 v{vP1}, v{y}, v5, s82')
        a(f'v_lshl_add_u32 v{y}, v{g}, 5, s82')
        a(f'v_lshl_add_u32 v{y}, v7, 2, v{y}')
        a(f'v_and_b32 v{x}, 1, v6')
        a(f'v_lshlrev_b32 v{vAC}, 8, v{x}')
        a(f'v_lshl_add_u32 v{vP2}, v{x}, 11, v{y}')
        a(f'v_cmp_eq_u32 vcc, 0, v{x}')
        a(f'v_cndmask_b32 v{vRG1}, v{ob}, v{y}, vcc')
    def task_addr2():
        a('s_mul_i32 s82, s3, 24')
        a(f'v_lshl_add_u32 v{vAC}, v{g}, 3, v{vAC}')
        a(f'v_add_u32 v{vAC}, s82, v{vAC}')
        a(f'v_and_b32 v{x}, 15, v1')
        a(f'v_lshlrev_b32 v{x}, 5, v{x}')
        a(f'v_lshrrev_b32 v{y}, 5, v1')
        a(f'v_mul_u32_u24 v{y}, 320, v{y}')
        a(f'v_and_b32 v{z}, 1, v{g}')
        a(f'v_lshlrev_b32 v{z}, 4, v{z}')
        a(f'v_add3_u32 v{vYW}, v{x}, v{y}, v{z}')
        a('s_mul_i32 s82, s3, 640')
        a(f'v_add_u32 v{vYW}, s82, v{vYW}')
        a(f'v_lshlrev_b32 v{vMW}, 2, v7')
        a('v_mov_b32 v75, s78')
    R = 8
    def ostore(text, b):
        a(f's_cmp_eq_u32 s89, {77 if remap & 2 else 1}')
        a(f's_cbranch_scc1 L_ofast{b}')
        a(text + ' sc1')
        a(f's_branch L_odone{b}')
        a(f'L_ofast{b}:')
        a.vmem(text)
        a(f'L_odone{b}:')
    def task_m1():
        WG = [62, 63]; MXR = [64, 65]
        a('L_m1:')
        a(f'ds_read_b32 v66, v{VZ} offset:{FL - 1}')
        a(f'ds_read_b32 v{WG[0]}, v{vMW} offset:{MW}')
        a(f'ds_read_b32 v{WG[1]}, v{vMW} offset:{MW+32}')
        a(f'ds_read_b128 v[{R}:{R+3}], v{vRA0}')
        a(f'ds_read_b128 v[{R+4}:{R+7}], v{vRA0} offset:{OS}')
        a(f'ds_read_b64 v[72:73], v{vAC} offset:{ACT}')
        a(f'ds_read_b32 v{G0}, v{VZ} offset:{GV - 1}')
        a(f'ds_read_b32 v{G1}, v{VZ} offset:{GV + 63}')
        a('s_waitcnt lgkmcnt(0)')
        a('v_readfirstlane_b32 s82, v66')
        a('s_cmp_eq_u32 s82, 9')
        a('s_cbranch_scc1 L_m1d')
        a('s_sleep 1')
        a('s_sub_u32 s92, s92, 1')
        a('s_cbranch_scc0 L_m1')
        a('s_endpgm')
        a('L_m1d:')
        for i, pat in enumerate(RED8):
            for b in range(2):
                src = WG[b] if i == 0 else MXR[b]
                a(f'v_max_f32_dpp v{MXR[b]}, v{src}, v{src} {pat} {DPP}')
            a(f'v_add_f32 v{R+i}, v{R+i}, v{R+4+i}')
        a(f'v_add_f32 v{R+3}, v{R+3}, v{R+7}')
        for b in range(2): a(f'v_and_b32 v{MXR[b]}, s77, v{MXR[b]}')
        for b in range(2): a(f'v_sub_f32 v{WG[b]}, v{WG[b]}, v{MXR[b]}')
        a(f'v_cndmask_b32 v{WG[0]}, v{WG[0]}, v{WG[1]}, s[80:81]')
        a(f'v_exp_f32 v{WG[0]}, v{WG[0]}')
        for i in range(4): a(f'v_mul_f32 v{R+i}, v{R+i}, v{WG[0]}')
        for pat in RED8:
            for i in range(4):
                a(f'v_add_f32_dpp v{R+i}, v{R+i}, v{R+i} {pat} {DPP}')
        a(f'v_cndmask_b32 v{R}, v{R}, v{MXR[0]}, s[80:81]')
        a(f'v_cndmask_b32 v{R+1}, v{R+1}, v{MXR[1]}, s[80:81]')
        tag_apply(range(R, R + 4), 75)
        ostore(f'buffer_store_dwordx4 v[{R}:{R+3}], v{vRG}, s[68:71], s100 offen', 0)
    PG = 12
    gat = f'buffer_load_dwordx4 v[{PG}:{PG+3}], v{vP1}, s[68:71], s93 offen sc1'
    def task_m2a():
        a.vmem(gat, 'gat')
    AP = []
    def task_m2b():
        a.wait_tag('gat')
        a('L_m2:')
        tag_check(range(PG, PG + 4), 62, 63)
        a('s_cbranch_vccz L_m2d')
        a(gat)
        a('s_waitcnt vmcnt(0)')
        a('s_sub_u32 s92, s92, 1')
        a('s_cbranch_scc0 L_m2')
        a('s_endpgm')
        a('L_m2d:')
        MQ, MX, M1, L1, TT = 62, 63, 64, 65, 66
        a(f'v_mov_b32_dpp v{MQ}, v{PG} row_newbcast:7 row_mask:0xf bank_mask:0x3')
        a(f'v_mov_b32 v{M1}, v{PG+1}')
        a(f'v_mov_b32_dpp v{MQ}, v{PG} row_newbcast:15 row_mask:0xf bank_mask:0xc')
        xlane('v_max_f32', M1, TT)
        a(f'v_mov_b32 v{MX}, v{MQ}')
        xlane('v_max_f32', MX, TT)
        a(f'v_sub_f32 v{L1}, v{PG+1}, v{M1}')
        a(f'v_sub_f32 v{MQ}, v{MQ}, v{MX}')
        a(f'v_exp_f32 v{L1}, v{L1}')
        a(f'v_exp_f32 v{MQ}, v{MQ}')
        a(f'v_mul_f32 v{L1}, v{L1}, v{PG+2}')
        for i in range(4): a(f'v_mul_f32 v{PG+i}, v{PG+i}, v{MQ}')
        xlane('v_add_f32', L1, TT)
        a(f'v_readlane_b32 s82, v{M1}, 7')
        a(f'v_rcp_f32 v{L1}, v{L1}')
        a(f'v_permlane16_swap_b32 v{PG}, v{PG+1}')
        a(f'v_permlane16_swap_b32 v{PG+2}, v{PG+3}')
        a(f'v_readlane_b32 s83, v{L1}, 7')
        a(f'v_add_f32 v{PG}, v{PG}, v{PG+1}')
        a(f'v_add_f32 v{PG+2}, v{PG+2}, v{PG+3}')
        a(f'v_subrev_f32 v{M1}, s82, v{vM}')
        a(f'v_permlane32_swap_b32 v{PG}, v{PG+2}')
        a(f'v_exp_f32 v{M1}, v{M1}')
        a(f'v_add_f32 v{PG}, v{PG}, v{PG+2}')
        a(f'v_mul_f32 v{G1}, s83, v{G1}')
        a(f'v_mul_f32 v{G1}, v{G1}, v{M1}')
        a(f'v_add_f32_dpp v{PG}, v{PG}, v{PG} row_ror:8 {DPP}')
        a(f'v_rcp_f32 v{MX}, v{PG}')
        a(f'v_mul_f32 v{PG}, v{PG}, v{G0}')
        for k in range(kF, 16): a(f'v_mul_f32 v{S0+k}, v{S0+k}, v{G1}')
        a(f'v_mul_f32_dpp v{PG}, v{MX}, v{PG} row_newbcast:6 {DPP}')
        for k in range(kF, 16): a(f'v_cvt_pk_bf16_f32 v{S0+k}, v{S0+k}, v{S0+k}')
        a(f'v_cvt_pk_bf16_f32 v{PG}, v{PG}, v{PG}')
        for i in range(12): a(f'v_mul_f32 v{ACC+i}, v{ACC+i}, v{G1}')
    def task_m2c():
        for p in range(6):
            AP.append(alloc(('ap', p)))
            for r in range(4):
                a(f'v_and_b32_dpp v{AP[p]+r}, v{PG}, v{M0+r} row_newbcast:{p} {DPP}')
    def run(issue_list, tasks, win, per_issue):
        for tag in issue_list:
            while not free:
                fn, needs = tasks.pop(0)
                for n in needs: a.wait_tag(n)
                fn()
            if win and not (xfree and tag[0] in ('wo', 'w2')): window()
            issue(tag)
            n = 0
            while tasks and n < per_issue and all(a.issued(q) and a.is_done(q) for q in tasks[0][1]):
                fn, needs = tasks.pop(0); fn(); n += 1
    kt = [((lambda k=k: task_k(k)), [('k', k, s) for s in range(3)]) for k in range(16)]
    vt = [((lambda k=k: task_v(k)), [('v', k, s) for s in range(3)]) for k in range(16)]
    N = lambda f: (f, [])
    if smimic:
        tasks = kt[:11] + [N(task_addr0), N(lambda: task_red(0))] + kt[11:12] + [N(lambda: task_rnd(0))] + kt[12:13] + [N(lambda: task_sm1(0))] + kt[13:14] + [N(lambda: task_sm2(0))] + kt[14:]
        tasks += [N(lambda: stamp(3))] if stamps else []
        tasks += vt[:1] + [N(lambda: task_red(1))] + vt[1:2] + [N(lambda: task_rnd(1))] + vt[2:3] + [N(lambda: task_sm1(1))] + vt[3:4] + [N(lambda: task_sm2(1))] + vt[4:5]
    else:
        tasks = kt[:11] + [N(task_addr0), N(lambda: task_red(0))] + kt[11:12] + [N(lambda: task_sm1(0))] + kt[12:13] + [N(lambda: task_sm2(0))] + kt[13:]
        tasks += [N(lambda: stamp(3))] if stamps else []
        tasks += vt[:1] + [N(lambda: task_red(1))] + vt[1:2] + [N(lambda: task_sm1(1))] + vt[2:3] + [N(lambda: task_sm2(1))] + vt[3:5]
    tasks += [N(task_addr1)] + vt[5:6] + [N(task_addr2)] + vt[6:8] + [N(lambda: flush_acc(0))]
    for k in range(8, 14):
        tasks.append(vt[k])
        if k == m1pos: tasks.append(N(task_m1))
        if k == m2a: tasks.append(N(task_m2a))
        if k == m2b and not m2late: tasks += [(task_m2b, ['gat']), N(task_m2c)]
    wl = [('wo', rg) for rg in range(6)] + [('w2', i) for i in range(2)]
    run(kl[nb:], tasks, True, catchup)
    early = wl[nlate:][::-1]; latel = wl[:nlate]
    vseq = []
    for i, tag in enumerate(vl):
        vseq.append(tag)
        if i >= estart and (i - estart) % estep == 0 and early: vseq.append(early.pop())
    run(vseq, tasks, True, catchup)
    a('s_barrier')
    run(latel[:nl1], [], False, 0)
    if m2late: tasks += [(task_m2b, ['gat']), N(task_m2c)]
    while tasks:
        fn, needs = tasks.pop(0)
        for n in needs: a.wait_tag(n)
        fn()
    rest = latel[nl1:]
    def after(k, s):
        pos = (k - 14) * 3 + s
        if l2pos == 2 and pos >= 5 - l2n and pos < 5:
            for _ in range(l2k):
                if rest: issue(rest.pop(0))
    task_v(14, True, after)
    task_v(15, True, after)
    stamp(4)
    flush_acc(1)
    run(rest, [], False, 0)
    a('s_waitcnt lgkmcnt(0)')
    a('s_barrier')
    a(f'ds_read_b128 v[{R}:{R+3}], v{vRA} offset:{OP1}')
    a(f'ds_read_b128 v[{R+4}:{R+7}], v{vRA} offset:{OP1+OS}')
    AW = [build_A('v72'), build_A('v73')]
    a('s_waitcnt lgkmcnt(0)')
    for i in range(4): a(f'v_add_f32 v{R+i}, v{R+i}, v{R+4+i}')
    a(f'v_permlane16_swap_b32 v{R}, v{R+1}')
    a(f'v_permlane16_swap_b32 v{R+2}, v{R+3}')
    a(f'v_add_f32 v{R}, v{R}, v{R+1}')
    a(f'v_add_f32 v{R+2}, v{R+2}, v{R+3}')
    a(f'v_permlane32_swap_b32 v{R}, v{R+2}')
    a(f'v_add_f32 v{R}, v{R}, v{R+2}')
    a(f'v_add_f32_dpp v{R}, v{R}, v{R} row_ror:8 {DPP}')
    tag_apply([R], 75)
    ostore(f'buffer_store_dword v{R}, v{vRG1}, s[68:71], s100 offen offset:1024', 1)
    O = 16; X = 66; X2 = 67; Y = 24
    def poll1():
        for u, so in enumerate(('s93', 's94', 's95', 's98')):
            a(f'buffer_load_dword v{O+u}, v{vP2}, s[68:71], {so} offen offset:1024 sc1')
    poll1()
    stamp(5)
    a('s_waitcnt vmcnt(5)')
    for i in range(2):
        r = slot[('w2', i)]
        a(f'v_mfma_f32_16x16x32_bf16 v[{Y}:{Y+3}], v[{AW[i]}:{AW[i]+3}], v[{r}:{r+3}], {"0" if i == 0 else f"v[{Y}:{Y+3}]"}')
    a('; gather normalised o of batch 1, project onto an 80-column slice of wo / w2')
    a('L_poll1:')
    a('s_waitcnt vmcnt(0)')
    tag_check(range(O, O + 4), X, X2)
    a(f'v_add_f32 v{O+4}, v{O}, v{O+1}')
    a(f'v_add_f32 v{O+5}, v{O+2}, v{O+3}')
    a('s_cbranch_vccz L_poll1d')
    if psleep: a(f's_sleep {psleep}')
    poll1()
    a('s_sub_u32 s92, s92, 1')
    a('s_cbranch_scc0 L_poll1')
    a('s_endpgm')
    a('L_poll1d:')
    stamp(6)
    a(f'v_add_f32 v{O}, v{O+4}, v{O+5}')
    a(f'v_add_f32_dpp v{O}, v{O}, v{O} row_ror:8 {DPP}')
    a(f'v_cvt_pk_bf16_f32 v{O}, v{O}, v{O}')
    for p in range(7):
        if p < 6:
            for r in range(4):
                a(f'v_and_b32_dpp v{AP[p]+r}, v{O}, v{M0+r} row_newbcast:{p} row_mask:0xf bank_mask:0xc')
        if p > 0:
            r0 = slot[('wo', p - 1)]; A = AP[p - 1]
            a(f'v_mfma_f32_16x16x32_bf16 v[{Y}:{Y+3}], v[{A}:{A+3}], v[{r0}:{r0+3}], v[{Y}:{Y+3}]')
    a('s_mov_b32 exec_lo, 0x03ff03ff')
    a('s_mov_b32 exec_hi, 0x03ff03ff')
    a(f's_cmp_ge_u32 s3, {ycon if ycon else 5}')
    a(f'ds_write_b128 v{vYW}, v[{Y}:{Y+3}] offset:{YP}')
    a('s_mov_b64 exec, -1')
    a('s_waitcnt lgkmcnt(0)')
    a('s_barrier')
    if junk:
        a('s_cbranch_scc0 L_nojunk')
        a('s_cmp_lg_u32 s3, 7')
        a('s_cbranch_scc1 L_fin')
        a('s_lshl_b32 s82, s2, 12')
        a(f's_add_u32 s82, s82, {3 << 20}')
        a('v_lshlrev_b32 v5, 4, v1')
        for i in range(junk): a(f'buffer_store_dwordx4 v[24:27], v5, s[68:71], s82 offen offset:{i*1024} {junkflag}')
        a('s_branch L_fin')
        a('L_nojunk:')
    else:
        a('s_cbranch_scc1 L_fin')
    R2 = 28
    if ycon == 1:
        YB = [8, 12, 16, 20, 28, 32, 40, 44]
        a('s_mov_b32 exec_hi, 0xff')
        for p in range(8): a(f'ds_read_b128 v[{YB[p]}:{YB[p]+3}], v{vYR} offset:{YP + p*640}')
        for st, w in ((1, (6, 4, 2, 0)), (2, None), (4, None)):
            for i, p in enumerate(range(0, 8, 2 * st)):
                if w: a(f's_waitcnt lgkmcnt({w[i]})')
                for r in (0, 2): a(f'v_pk_add_f32 v[{YB[p]+r}:{YB[p]+r+1}], v[{YB[p]+r}:{YB[p]+r+1}], v[{YB[p+st]+r}:{YB[p+st]+r+1}]')
        tag_apply(range(8, 12), 75)
        a(f'buffer_store_dwordx4 v[8:11], v{vYR}, s[68:71], s101 offen sc1')
        a('s_mov_b32 exec_hi, -1')
    elif ycon == 2:
        YB = [8, 12, 16, 20]
        for p in range(4): a(f'ds_read_b128 v[{YB[p]}:{YB[p]+3}], v{vYR} offset:{YP + p*640}')
        for st, w in ((1, (2, 0)), (2, None)):
            for i, p in enumerate(range(0, 4, 2 * st)):
                if w: a(f's_waitcnt lgkmcnt({w[i]})')
                for r in (0, 2): a(f'v_pk_add_f32 v[{YB[p]+r}:{YB[p]+r+1}], v[{YB[p]+r}:{YB[p]+r+1}], v[{YB[p+st]+r}:{YB[p+st]+r+1}]')
        for r in range(4): a(f'v_permlane32_swap_b32 v{8+r}, v{12+r}')
        for r in (0, 2): a(f'v_pk_add_f32 v[{8+r}:{9+r}], v[{8+r}:{9+r}], v[{12+r}:{13+r}]')
        tag_apply(range(8, 12), 75)
        a('s_mov_b64 exec, 0xfffff')
        a(f'buffer_store_dwordx4 v[8:11], v{vYR}, s[68:71], s101 offen sc1')
        a('s_mov_b64 exec, -1')
    else:
        a(f'ds_read_b128 v[{R2}:{R2+3}], v{vYR} offset:{YP}')
        a('s_waitcnt lgkmcnt(0)')
    if ycon: pass
    elif ytr:
        a(f'v_permlane16_swap_b32 v{R2}, v{R2+1}')
        a(f'v_permlane16_swap_b32 v{R2+2}, v{R2+3}')
        a(f'v_add_f32 v{R2}, v{R2}, v{R2+1}')
        a(f'v_add_f32 v{R2+2}, v{R2+2}, v{R2+3}')
        a(f'v_permlane32_swap_b32 v{R2}, v{R2+2}')
        a(f'v_add_f32 v{R2}, v{R2}, v{R2+2}')
        a(f'v_add_f32_dpp v{R2}, v{R2}, v{R2} row_ror:8 {DPP}')
        tag_apply([R2], 75)
        a(f'buffer_store_dword v{R2}, v{vRG1}, s[68:71], s101 offen {"" if remap & 4 else "sc1"}')
    else:
        for pat in RED8:
            for i in range(4):
                a(f'v_add_f32_dpp v{R2+i}, v{R2+i}, v{R2+i} {pat} {DPP}')
        tag_apply(range(R2, R2 + 4), 75)
        a(f'buffer_store_dwordx4 v[{R2}:{R2+3}], v{vRG}, s[68:71], s101 offen sc1')
    a('L_fin:')
    if stamps:
        stamp(8, True)
        if not est: a(f'v_writelane_b32 v{VST}, s96, 7')
        a('L_probe:')
        if probe is not None:
            i, K, base, j0, who = probe
            a('s_cmp_eq_u32 s3, 8')
            if who == 's': a('s_cbranch_scc1 L_end')
            if who == 'h': a('s_cbranch_scc0 L_end')
            a(f'v_readlane_b32 s82, v{VST}, 0')
            a(f'v_readlane_b32 s83, v{VST}, {i}')
            a(f'v_readlane_b32 s84, v{VST}, {j0}')
            a('s_sub_u32 s83, s83, s84')
            a(f's_mul_i32 s83, s83, {K}')
            a(f's_add_u32 s83, s83, {base}')
            a('L_spin:')
            a('s_sleep 2')
            a('s_memrealtime s[96:97]')
            a('s_waitcnt lgkmcnt(0)')
            a('s_sub_u32 s84, s96, s82')
            a('s_cmp_lt_u32 s84, s83')
            a('s_cbranch_scc1 L_spin')
        else:
            a('s_cmp_eq_u32 s3, 8')
            a('s_cbranch_scc1 L_nosl')
            a('s_sleep 127')
            a('s_sleep 127')
            a('L_nosl:')
            a('s_mul_i32 s82, s2, 9')
            a('s_add_u32 s82, s82, s3')
            a('s_lshl_b32 s82, s82, 8')
            a(f's_add_u32 s82, s82, {STAMP_OFF}')
            a('v_lshlrev_b32 v5, 2, v1')
            a(f'buffer_store_dword v{VST}, v5, s[68:71], s82 offen')
    a('L_end:')
    a('s_endpgm')

    a.vm = []; a.vm_done = 0
    a('L_helper:')
    inhelper[0] = True
    if kfirst: kargs()
    a('v_mul_u32_u24 v3, 122880, v6')
    a('v_add_u32 v3, v3, v5')
    a('v_mul_u32_u24 v4, 30720, v6')
    a('v_add_u32 v4, v4, v5')
    a(f'v_mov_b32 v2, {OOB}')
    a('v_cmp_gt_u32 vcc, 6, v7')
    a('v_cndmask_b32 v4, v2, v4, vcc')
    a('v_mul_u32_u24 v8, 20, v6')
    a('v_lshlrev_b32 v9, 4, v1')
    a('v_mov_b32 v73, 0')
    if not eb:
        a(f'ds_write_b32 v73, v73 offset:{FLAG}')
        a(f'ds_write_b32 v73, v73 offset:{FL}')
        a(f'v_mov_b32 v10, {8*D}')
        a(f'ds_write_b32 v73, v10 offset:{CNT}')
    HM = 12; HA = 16; HACC = 24; HX = 56
    a('s_mul_i32 s83, s31, 983040')
    a('s_mul_i32 s84, s30, 384')
    a('s_add_u32 s83, s83, s84')
    a('s_mul_i32 s85, s31, 245760')
    a('s_mul_i32 s84, s30, 96')
    a('s_add_u32 s85, s85, s84')
    a('s_mul_i32 s98, s31, 160')
    for r in (43, 47, 59, 63, 67):
        a(f's_mov_b32 s{r}, 0x20000')
    a('s_sub_u32 s42, 7864320, s83')
    a('s_sub_u32 s46, 1966080, s85')
    if dbg_nowq & 1: a('s_mov_b32 s42, 0')
    if dbg_nowq & 2: a('s_mov_b32 s46, 0')
    a('s_sub_u32 s58, 2560, s98')
    a('s_sub_u32 s62, 1280, s98')
    a('s_mov_b32 s66, 96')
    a('s_waitcnt lgkmcnt(0)')
    srd(56, 4, 's98'); srd(40, 10, 's83'); srd(44, 16, 's85'); srd(60, 22, 's98'); srd(64, 18, 's84')
    a.vmem(f'buffer_load_dwordx4 v[{HX}:{HX+3}], v8, s[56:59], 0 offen')
    a.vmem(f'buffer_load_dword v{HX+4}, v8, s[56:59], 0 offen offset:16')
    a.vmem(f'buffer_load_dwordx4 v[{HX+6}:{HX+9}], v8, s[56:59], 0 offen offset:1280')
    a.vmem(f'buffer_load_dword v{HX+10}, v8, s[56:59], 0 offen offset:1296')
    hfree = list(range(76, top, 4))
    hslot = {}
    def hissue(tag):
        r = hfree.pop(0); hslot[tag] = r
        t = tag[0]
        if tag[1] == 0 and t:
            a(f's_mov_b32 s87, {t*12288}'); a(f's_mov_b32 s86, {t*3072}')
        if tag[1] < 3:
            a.vmem(f'buffer_load_dwordx4 v[{r}:{r+3}], v3, s[40:43], {"s87" if t else "0"} offen offset:{tag[1]*128} {w_cache}', tag)
        else:
            a.vmem(f'buffer_load_dwordx4 v[{r}:{r+3}], v4, s[44:47], {"s86" if t else "0"} offen {w_cache}', tag)
    hl = [(t, s) for t in range(10) for s in range(4)]
    nfirst = min(hwin, len(hfree)) // 4 * 4
    for tag in hl[:nfirst]: hissue(tag)
    hl = hl[nfirst:]
    a.vmem(f'buffer_load_dwordx4 v[{HX+12}:{HX+15}], v8, s[60:63], 0 offen')
    a.vmem(f'buffer_load_dword v{HX+16}, v8, s[60:63], 0 offen offset:16')
    a('v_and_b32 v10, 15, v1')
    a('v_lshlrev_b32 v10, 3, v10')
    a.vmem(f'buffer_load_dwordx2 v[74:75], v10, s[64:67], 0 offen', 'b1')
    if not eb: a('s_barrier')
    if hnear:
        a('s_branch L_helper2')
        a('@HEAD_END@')
        a('L_helper2:')
    a('s_mov_b32 s89, 0x01000100')
    a('s_mov_b32 s90, 0x03020302')
    a('s_mov_b32 s91, 0x3f803f80')
    masks(HM, 10, 11)
    ws_setup()
    if qpre:
        a(f's_add_u32 s82, s99, {FAST}')
        a.vmem(f'buffer_load_dword v{top}, v9, s[68:71], s82 offen')
        a.vmem(f'buffer_load_dword v{top}, v9, s[68:71], s82 offen offset:1024')
    stamp(1)
    hai = 0
    for t in range(10):
        a.wait_tag((t, 3))
        for bb in range(2):
            xr = HX + 6 * bb + t // 2
            a(f'v_perm_b32 v11, v{xr}, v{xr}, s{89 + (t & 1)}')
            A = HA + 4 * (hai & 1); hai += 1
            for r in range(4): a(f'v_and_b32 v{A+r}, v11, v{HM+r}')
            for s in range(4):
                r = hslot[(t, s)]; acc = HACC + 16 * bb + 4 * s
                c = '0' if t == 0 else f'v[{acc}:{acc+3}]'
                a(f'v_mfma_f32_16x16x32_bf16 v[{acc}:{acc+3}], v[{A}:{A+3}], v[{r}:{r+3}], {c}')
        for s in range(4): hfree.append(hslot[(t, s)])
        for tag in hl[:4]: hissue(tag)
        hl = hl[4:]
        if t == 6:
            a.wait_tag('b1')
            for bb, Gr in ((0, 61), (1, 67)):
                for i in range(5):
                    if gmimic:
                        xr, gr = HX + 6 * bb + i, HX + 12 + i
                        a(f'v_lshlrev_b32 v2, 16, v{xr}')
                        a(f'v_lshlrev_b32 v10, 16, v{gr}')
                        a('v_mul_f32 v2, v2, v10')
                        a(f'v_and_b32 v8, 0xffff0000, v{xr}')
                        a(f'v_and_b32 v10, 0xffff0000, v{gr}')
                        a('v_mul_f32 v8, v8, v10')
                        a('v_cvt_pk_bf16_f32 v2, v2, v8')
                        a(f'v_dot2_f32_bf16 v{Gr}, v2, s91, {"0" if i == 0 else f"v{Gr}"}')
                    else:
                        a(f'v_dot2_f32_bf16 v{Gr}, v{HX+6*bb+i}, v{HX+12+i}, {"0" if i == 0 else f"v{Gr}"}')
            xlane('v_add_f32', 61, 10)
            xlane('v_add_f32', 67, 10)
    stamp(2)
    a('v_lshrrev_b32 v16, 5, v1')
    a('v_lshlrev_b32 v16, 10, v16')
    a('v_and_b32 v11, 1, v6')
    a('v_lshl_add_u32 v16, v11, 8, v16')
    a('v_lshl_add_u32 v16, v7, 5, v16')
    a('v_bfe_u32 v11, v1, 4, 1')
    a('v_lshl_add_u32 v16, v11, 4, v16')
    for s in range(4):
        for r in range(4):
            a(f'v_permlane32_swap_b32 v{HACC+4*s+r}, v{HACC+16+4*s+r}')
    P = 76
    for u in range(2):
        for r in range(4):
            Ae, Be = HACC + 8 * u + r, HACC + 16 + 8 * u + r
            a(f'v_add_f32_dpp v{P+4*u+r}, v{Be}, v{Ae} row_ror:8 {DPP}')
        for r in range(4):
            Ao, Bo = HACC + 8 * u + 4 + r, HACC + 16 + 8 * u + 4 + r
            a(f'v_add_f32_dpp v{P+4*u+r}, v{Ao}, v{Bo} row_ror:8 row_mask:0xf bank_mask:0xc')
    a(f's_mov_b64 exec, {1 << 14}')
    a(f'v_mov_b32 v{P+4}, v61')
    a('s_mov_b32 exec_lo, 0')
    a(f's_mov_b32 exec_hi, {1 << 14}')
    a(f'v_mov_b32 v{P+4}, v67')
    a('s_mov_b64 exec, -1')
    a('s_getreg_b32 s88, hwreg(HW_REG_XCC_ID)')
    a('s_and_b32 s88, s88, 15')
    a('s_lshl_b32 s88, s88, 23')
    a(f'v_writelane_b32 v{P+5}, s88, 14')
    a('s_waitcnt lgkmcnt(0)')
    tag_finish()
    a('v_mov_b32 v11, s78')
    tag_apply(range(P, P + 8), 11)
    slow_q = [f'buffer_store_dwordx4 v[{P}:{P+3}], v16, s[68:71], s99 offen sc1',
              f'buffer_store_dwordx4 v[{P+4}:{P+7}], v16, s[68:71], s99 offen offset:512 sc1']
    a(f's_add_u32 s82, s99, {FAST}')
    a(f'buffer_store_dwordx4 v[{P}:{P+3}], v16, s[68:71], s82 offen')
    a(f'buffer_store_dwordx4 v[{P+4}:{P+7}], v16, s[68:71], s82 offen offset:512')
    stamp(3)
    a('@TPRE@')
    a('v_add_u32 v12, 4096, v9')
    a('s_lshl_b32 s93, s30, 14')
    a(f's_add_u32 s93, s93, {FAST}')
    a('s_add_u32 s94, s93, 8192')
    a(f's_mov_b32 s76, {nfast}')
    a('v_lshlrev_b32 v17, 11, v6')
    a('v_and_b32 v18, 3, v1')
    a('v_lshl_add_u32 v17, v18, 4, v17')
    a('v_bfe_u32 v18, v1, 2, 1')
    a('v_lshl_add_u32 v17, v18, 9, v17')
    stamp(4)
    QD = [24, 84]
    a('; gather q / hidden / gate partials of the 8 workgroups of this head')
    a('L_qpoll:')
    if sind:
        a('s_add_u32 s40, s28, s93')
        a('s_addc_u32 s41, s29, 0')
        for p in range(8): a(f's_load_dword s{44+p}, s[40:41], {p*2048 + 1536} glc')
        a('s_waitcnt lgkmcnt(0)')
        for p in range(8): a(f's_xor_b32 s{44+p}, s{44+p}, s78')
        for p in range(1, 8): a(f's_or_b32 s44, s44, s{44+p}')
        a(f's_and_b32 s44, s44, {TM}')
        a('s_cbranch_scc1 L_qfail')
    else:
        a(f'buffer_load_dwordx4 v[24:27], v17, s[68:71], s93 offen sc1')
        a('s_waitcnt vmcnt(0)')
        tag_check(range(24, 28), 14, 15)
        a('s_cbranch_vccnz L_qfail')
    for b in range(2):
        for p in range(8):
            vo = 'v9' if (p & 3) < 2 else 'v12'
            so = 's93' if p < 4 else 's94'
            a(f'buffer_load_dwordx4 v[{QD[b]+4*p}:{QD[b]+4*p+3}], {vo}, s[68:71], {so} offen offset:{(p & 1)*2048 + b*1024} sc1')
    a('s_waitcnt vmcnt(0)')
    tag_check(list(range(QD[0], QD[0] + 32)) + list(range(QD[1], QD[1] + 32)), 14, 15)
    a('s_cbranch_vccz L_qok0')
    a('L_qfail:')
    if qsleep: a(f's_sleep {qsleep}')
    a('s_sub_u32 s76, s76, 1')
    a('s_cbranch_scc0 L_qnosw')
    for t in slow_q: a(t)
    a('L_qnosw:')
    a('s_cmp_lt_i32 s76, 0')
    a(f's_cselect_b32 s82, {FAST}, 0')
    for r in (93, 94): a(f's_xor_b32 s{r}, s{r}, s82')
    a('s_sub_u32 s92, s92, 1')
    a('s_cbranch_scc0 L_qpoll')
    a('s_endpgm')
    a('L_qok0:')
    for p in range(8): a(f'v_xor_b32 v{56+p}, s88, v{QD[0]+4*p+1}')
    a('v_or3_b32 v14, v56, v57, v58')
    a('v_or3_b32 v15, v59, v60, v61')
    a('v_or3_b32 v14, v14, v62, v63')
    a('v_or_b32 v14, v14, v15')
    a('v_readlane_b32 s86, v14, 60')
    a('s_cmp_lg_u32 s86, 0')
    a('s_cselect_b32 s86, 2, 1')
    a('s_cbranch_scc0 L_qok')
    a('s_cmp_lt_i32 s76, 0')
    a('s_cbranch_scc1 L_qok')
    for t in slow_q: a(t)
    a('L_qok:')
    a('v_lshlrev_b32 v10, 3, v1')
    for b in range(2):
        for st in (4, 8, 16):
            for b0 in range(QD[b], QD[b] + 32, 2 * st):
                for r in range(4): a(f'v_add_f32 v{b0+r}, v{b0+r}, v{b0+st+r}')
        a(f'v_cvt_pk_bf16_f32 v{QD[b]+4}, v{QD[b]}, v{QD[b]+1}')
        a(f'v_cvt_pk_bf16_f32 v{QD[b]+5}, v{QD[b]+2}, v{QD[b]+3}')
        a(f'ds_write_b64 v10, v[{QD[b]+4}:{QD[b]+5}] offset:{QBF + 512*b}')
    a('v_mov_b32 v10, s86')
    a(f'ds_write_b32 v73, v10 offset:{FLAG}')
    stamp(5)
    HD = QD[1]
    for r in range(4): a(f'v_permlane16_swap_b32 v{QD[0]+r}, v{HD+r}')
    Gq = 32; OMG = 33
    a(f'v_mov_b32_dpp v{Gq}, v{HD} row_newbcast:12 {DPP}')
    a(f'v_cvt_pk_bf16_f32 v{Gq}, v{Gq}, v{Gq}')
    a(f'v_and_b32 v{Gq}, 0xffff0000, v{Gq}')
    a(f'v_mul_f32 v{Gq}, {f2u(-LOG2E)}, v{Gq}')
    a(f'v_exp_f32 v{Gq}, v{Gq}')
    a(f'v_add_f32 v{Gq}, 1.0, v{Gq}')
    a(f'v_rcp_f32 v{Gq}, v{Gq}')
    a(f'v_cvt_pk_bf16_f32 v{Gq}, v{Gq}, v{Gq}')
    a(f'v_and_b32 v{Gq}, 0xffff0000, v{Gq}')
    a(f'v_sub_f32 v{OMG}, 1.0, v{Gq}')
    a(f'v_cvt_pk_bf16_f32 v{OMG}, v{OMG}, v{OMG}')
    a(f'v_and_b32 v{OMG}, 0xffff0000, v{OMG}')
    a(f's_mov_b32 s83, {f2u(-LOG2E)}')
    for pr in range(2):
        h0, h1 = HD + 2 * pr, HD + 2 * pr + 1
        a(f'v_cvt_pk_bf16_f32 v{h0}, v{h0}, v{h1}')
        a(f'v_and_b32 v{h1}, 0xffff0000, v{h0}')
        a(f'v_lshlrev_b32 v{h0}, 16, v{h0}')
        a(f'v_and_b32 v35, 0xffff0000, v{74+pr}')
        a(f'v_lshlrev_b32 v34, 16, v{74+pr}')
        a(f'v_add_f32 v{h0}, v{h0}, v34')
        a(f'v_add_f32 v{h1}, v{h1}, v35')
        a(f'v_cvt_pk_bf16_f32 v{h0}, v{h0}, v{h1}')
        a(f'v_and_b32 v{h1}, 0xffff0000, v{h0}')
        a(f'v_lshlrev_b32 v{h0}, 16, v{h0}')
    for i in range(4):
        h = HD + i; t = 36; tq = 37; nu = 38; de = 39
        a(f'v_mul_f32 v{t}, s83, abs(v{h})')
        a(f'v_exp_f32 v{t}, v{t}')
        a(f'v_cmp_lt_f32 vcc, 0, v{h}')
        a(f'v_mul_f32 v{tq}, v{t}, v{t}')
        a(f'v_cndmask_b32 v{nu}, v{tq}, 1.0, vcc')
        a(f'v_cndmask_b32 v{de}, 1.0, v{tq}, vcc')
        a(f'v_fma_f32 v{nu}, v{t}, 2.0, v{nu}')
        a(f'v_fma_f32 v{de}, v{de}, 2.0, v{nu}')
        a(f'v_rcp_f32 v{de}, v{de}')
        a(f'v_mul_f32 v{nu}, v{nu}, v{h}')
        a(f'v_mul_f32 v{nu}, v{nu}, v{de}')
        a(f'v_cvt_pk_bf16_f32 v{nu}, v{nu}, v{nu}')
        a(f'v_and_b32 v{nu}, 0xffff0000, v{nu}')
        a(f'v_mul_f32 v{nu}, v{nu}, v{OMG}')
        a(f'v_cvt_pk_bf16_f32 v{40+i}, v{nu}, v{nu}')
    a('v_and_b32 v10, 31, v1')
    a('v_lshlrev_b32 v11, 2, v10')
    a('v_lshlrev_b32 v10, 4, v10')
    a('s_mov_b32 exec_lo, 0')
    a(f'ds_write_b32 v11, v{Gq} offset:{GV}')
    a(f'ds_write_b128 v10, v[40:43] offset:{ACT}')
    a('s_mov_b64 exec, 1')
    a('v_mov_b32 v10, 1')
    a(f'ds_add_u32 v73, v10 offset:{FL}')
    a('s_mov_b64 exec, -1')
    a('s_waitcnt lgkmcnt(0)')
    stamp(6)
    def tlbpre():
        a('s_mul_i32 s82, s30, 1572864')
        a('v_and_b32 v21, 1, v1')
        a('v_mul_u32_u24 v21, 1572736, v21')
        a('v_bfe_u32 v22, v1, 1, 1')
        a('s_mov_b32 s83, 50331648')
        a('v_mul_lo_u32 v22, v22, s83')
        a('v_add3_u32 v21, v21, v22, s82')
        a('s_mul_i32 s82, s30, 245760')
        a('v_mov_b32 v22, s82')
        a('s_mul_i32 s82, s30, 61440')
        a('v_mov_b32 v23, s82')
        a('s_mov_b64 exec, 15')
        a(f'global_load_dword v{top}, v21, s[6:7] nt')
        a(f'global_load_dword v{top}, v21, s[8:9] nt')
        a('s_mov_b64 exec, 1')
        a(f'global_load_dword v{top}, v22, s[12:13] nt')
        a(f'global_load_dword v{top}, v23, s[20:21] nt')
        a(f'global_load_dword v{top}, v73, s[24:25] nt')
        a('s_mov_b64 exec, -1')
    if tpre == 2: tlbpre()
    if opre == 1:
        a(f'buffer_load_dword v{top}, v9, s[68:71], s100 offen')
        a(f'buffer_load_dword v{top}, v9, s[68:71], s100 offen offset:1024')
    if opre == 2: a('v_mov_b32 v20, v9')
    if ypre:
        a('s_mov_b32 exec_hi, 0xff')
        a('buffer_load_dwordx4 v[44:47], v9, s[68:71], s101 offen')
    if ctl:
        a('s_and_b32 s82, s2, 7')
        a('s_mul_i32 s82, s82, 4352')
        a(f's_add_u32 s82, s82, {MBOX}')
        a('s_lshr_b32 s83, s2, 3')
        a('s_lshl_b32 s83, s83, 2')
        a('s_add_u32 s83, s83, s82')
        a('s_and_b32 s84, s79, 0x3fffff')
        a('s_mov_b32 s85, 0')
        if glob:
            a('v_lshlrev_b32 v11, 2, v1')
            a(f'v_mul_u32_u24 v13, {GS}, v1')
            a('s_cmp_ge_u32 s2, 248')
            a(f's_cselect_b32 s60, {gP0}, -1')
            a(f's_mov_b32 s61, {GBOX}')
            a('s_and_b32 s59, s2, 7')
            a(f's_mul_i32 s58, s59, {GS}')
            a('s_add_u32 s43, s82, 128')
            a('s_mov_b32 s57, 0')
        a('s_mov_b32 exec_hi, 0')
        a('L_c:')
        a(f'ds_read_b32 v10, v73 offset:{CNT}')
        if xphase: a('s_memrealtime s[62:63]')
        a('s_waitcnt lgkmcnt(0)')
        a('v_subrev_u32 v10, s85, v10')
        if xphase:
            a(f's_mul_i32 s64, s62, {rmul}')
            a('s_lshr_b32 s64, s64, 8')
            a('v_subrev_u32 v16, s64, v10')
            a('v_lshl_or_b32 v12, v16, 22, s84')
        else:
            a('v_lshl_or_b32 v12, v10, 22, s84')
        a('s_mov_b32 exec_lo, 1')
        a('buffer_store_dword v12, off, s[68:71], s83')
        a('s_mov_b32 exec_lo, -1')
        if glob: a('s_mov_b32 exec_hi, 1')
        a('buffer_load_dword v9, v11, s[68:71], s82 offen sc1')
        if glob: a('s_mov_b32 exec_hi, 0')
        a('v_readfirstlane_b32 s86, v10')
        if glob:
            a('s_cmp_lt_u32 s86, s60')
            a('s_cbranch_scc1 L_g1')
            if not xphase: a('s_memrealtime s[62:63]')
            a('s_mov_b32 exec_lo, 0xff')
            a('buffer_load_dword v14, v13, s[68:71], s61 offen sc1')
            a('s_mov_b32 exec_lo, -1')
            a('L_g1:')
        a('s_waitcnt vmcnt(0)')
        if glob:
            a('v_readlane_b32 s44, v9, 32')
            a('s_and_b32 s45, s44, 0x3fffff')
            a('s_ashr_i32 s44, s44, 22')
            a('s_cmp_eq_u32 s45, s84')
            a('s_cselect_b32 s44, s44, 0')
        if xphase:
            a('v_sub_u32 v9, v9, v12')
            a('v_and_b32 v12, 0x3fffff, v9')
            a('v_ashrrev_i32 v9, 22, v9')
            a('v_cmp_eq_u32 vcc, 0, v12')
            a('v_cndmask_b32 v9, 0, v9, vcc')
            a(f'v_add3_u32 v9, v9, v10, {comp}')
        else:
            a('v_and_b32 v12, 0x3fffff, v9')
            a('v_lshrrev_b32 v9, 22, v9')
            a(f'v_add_u32 v9, {comp}, v9')
            a('v_cmp_eq_u32 vcc, s84, v12')
            a('v_cndmask_b32 v9, v10, v9, vcc')
        for pat in RED8 + ('row_mirror',):
            a(f'v_add_u32_dpp v9, v9, v9 {pat} {DPP}')
        a('v_readlane_b32 s87, v9, 0')
        a('v_readlane_b32 s88, v9, 16')
        a('s_add_u32 s87, s87, s88')
        a('s_lshr_b32 s87, s87, 5')
        if glob:
            a('s_cmp_lt_u32 s86, s60')
            a('s_cbranch_scc1 L_g2')
            a('s_waitcnt lgkmcnt(0)')
            a(f's_mul_i32 s64, s62, {rmul}')
            a('s_lshr_b32 s64, s64, 8')
            a('s_sub_u32 s64, s87, s64')
            a('s_lshl_b32 s64, s64, 22')
            a('s_or_b32 s64, s64, s84')
            a(f's_add_u32 s61, s61, {8*GS}')
            a('s_add_u32 s45, s61, s58')
            a('v_mov_b32 v12, s64')
            a('s_mov_b32 exec_lo, 1')
            a('buffer_store_dword v12, off, s[68:71], s45 sc1')
            a('s_mov_b32 exec_lo, 0xff')
            a(f's_add_u32 s60, s60, {gD}')
            a(f's_cmp_gt_u32 s60, {gend}')
            a('s_cselect_b32 s60, -1, s60')
            a('v_subrev_u32 v14, s57, v14')
            a('v_and_b32 v12, 0x3fffff, v14')
            a('v_ashrrev_i32 v14, 22, v14')
            a('v_cmp_eq_u32 vcc, 0, v12')
            a(f'v_cndmask_b32 v14, {-min(gD, 16) if False else 0}, v14, vcc') if False else None
            a(f'v_mov_b32 v15, {-gD}')
            a('v_cndmask_b32 v14, v15, v14, vcc')
            for pat in RED8:
                a(f'v_add_u32_dpp v14, v14, v14 {pat} {DPP}')
            a('v_readfirstlane_b32 s46, v14')
            if gsw:
                a(f's_cmp_ge_u32 s86, {gsw}')
                a(f's_cselect_b32 s45, {gnum2}, {gnum}')
                a('s_mul_i32 s46, s46, s45')
            elif gnum != 1: a(f's_mul_i32 s46, s46, {gnum}')
            a(f's_ashr_i32 s46, s46, {3 + gsh2}')
            a(f's_min_i32 s46, s46, {gclamp}')
            a(f's_max_i32 s46, s46, {-gclamp}')
            a('s_cmp_eq_u32 s57, 0')
            a('s_cselect_b32 s46, 0, s46')
            a('s_mov_b32 s57, s64')
            a('s_lshl_b32 s46, s46, 22')
            a('s_or_b32 s46, s46, s84')
            a('v_mov_b32 v12, s46')
            a('s_mov_b32 exec_lo, 1')
            a('buffer_store_dword v12, off, s[68:71], s43')
            a('s_mov_b32 exec_lo, -1')
            a('L_g2:')
        a('s_sub_i32 s87, s87, s86')
        if glob: a('s_add_i32 s87, s87, s44')
        a('s_sub_i32 s88, s87, s85')
        a('s_mov_b32 s85, s87')
        a('v_mov_b32 v9, s88')
        a('s_mov_b32 exec_lo, 1')
        a(f'ds_add_u32 v73, v9 offset:{CNT}')
        a('s_mov_b32 exec_lo, -1')
        a(f's_cmp_ge_u32 s86, {cend}')
        a('s_cbranch_scc1 L_cd')
        a('s_sub_u32 s92, s92, 1')
        a('s_cbranch_scc0 L_c')
        a('s_endpgm')
        a('L_cd:')
    a('s_mov_b64 exec, -1')
    def wprefetch():
        a('s_lshl_b32 s82, s30, 3')
        a('s_add_u32 s82, s82, s31')
        a('s_mul_i32 s83, s82, 30720')
        srd(48, 12, 's83'); a('s_mov_b32 s50, 30720'); a('s_mov_b32 s51, 0x20000')
        a('s_mul_i32 s83, s82, 7680')
        srd(52, 20, 's83'); a('s_mov_b32 s54, 7680'); a('s_mov_b32 s55, 0x20000')
        a('v_lshlrev_b32 v21, 7, v1')
        if wpre == 2: a('s_barrier')
        for i in range(4):
            if i: a(f's_mov_b32 s83, {i*8192}')
            a(f'buffer_load_dword v{22+i}, v21, s[48:51], {"s83" if i else "0"} offen {wpre_cache}')
        a(f'buffer_load_dword v26, v21, s[52:55], 0 offen {wpre_cache}')
    if wpre: wprefetch()
    if opre == 2:
        a(f'buffer_load_dword v{top}, v20, s[68:71], s100 offen')
        a(f'buffer_load_dword v{top}, v20, s[68:71], s100 offen offset:1024')
    EXIT = 'L_end' if (probe is not None or not stamps) else 'L_hend'
    if ymapn in (3, 4):
        a('s_and_b32 s83, s2, 7')
        if ymapn == 3:
            a('s_lshr_b32 s82, s2, 6')
            a('s_lshl_b32 s82, s82, 3')
            a('s_add_u32 s82, s82, s83')
            a('s_cmp_ge_u32 s82, 20')
            a(f's_cbranch_scc1 {EXIT}')
        else:
            a('s_cmp_ge_u32 s83, 5')
            a(f's_cbranch_scc1 {EXIT}')
            a('s_lshl_b32 s82, s83, 1')
            a(f's_bfe_u32 s84, s2, {6 | (1 << 16)}')
            a('s_add_u32 s82, s82, s84')
            a('s_lshr_b32 s84, s2, 7')
            a('s_mul_i32 s84, s84, 10')
            a('s_add_u32 s82, s82, s84')
        a('s_lshl_b32 s85, s82, 3')
        a('s_add_u32 s85, s85, s31')
        a('s_cmp_ge_u32 s85, 80')
        a('s_cselect_b32 s84, 80, 0')
        a('s_cselect_b32 s81, 10, 0')
        a('s_sub_u32 s85, s85, s84')
        a('s_mul_i32 s82, s85, 205')
        a('s_lshr_b32 s82, s82, 11')
        a('s_mul_i32 s83, s82, 10')
        a('s_sub_u32 s83, s85, s83')
        a('s_add_u32 s83, s83, s81')
    elif (remap & 4) or ymap2:
        if not wpre:
            a('s_cmp_ge_u32 s2, 160')
            a(f's_cbranch_scc1 {EXIT}')
        a('s_and_b32 s82, s2, 7')
        a('s_lshr_b32 s83, s2, 3')
    else:
        if not wpre:
            a('s_cmp_ge_u32 s2, 160')
            a(f's_cbranch_scc1 {EXIT}')
        a('s_lshr_b32 s82, s2, 5')
        a('s_lshl_b32 s82, s82, 3')
        a('s_and_b32 s83, s2, 7')
        a('s_add_u32 s82, s82, s83')
        a('s_lshl_b32 s82, s82, 2')
        a(f's_bfe_u32 s83, s2, {3 | (2 << 16)}')
        a('s_add_u32 s85, s82, s83')
        a('s_mul_i32 s82, s85, 205')
        a('s_lshr_b32 s82, s82, 12')
        a('s_mul_i32 s83, s82, 20')
        a('s_sub_u32 s83, s85, s83')
    a('s_mul_i32 s84, s82, 20480')
    a('s_lshl_b32 s81, s83, 5')
    a('s_add_u32 s84, s84, s81')
    a(f's_add_u32 s98, s84, {YOFF}')
    srd(72, 24, None); a('s_mov_b32 s74, 2560'); a('s_mov_b32 s75, 0x20000')
    vF, vOUT, F = 8, 9, 28
    a(f'v_lshrrev_b32 v{vF}, 1, v1')
    a(f'v_mul_u32_u24 v{vF}, 640, v{vF}')
    a('v_and_b32 v10, 1, v1')
    a(f'v_lshl_add_u32 v{vF}, v10, 4, v{vF}')
    if ytr:
        a('s_mul_i32 s99, s82, 160')
        a('s_lshr_b32 s84, s83, 2')
        a('s_lshl_b32 s84, s84, 5')
        a('s_and_b32 s81, s83, 3')
        a('s_add_u32 s84, s84, s81')
        a(f'v_lshl_add_u32 v{vOUT}, v10, 4, s84')
        a('v_lshrrev_b32 v10, 4, v1')
        a(f'v_lshl_add_u32 v{vOUT}, v10, 2, v{vOUT}')
        a(f'v_cmp_lt_u32 vcc, 79, v{vOUT}')
        a(f'v_add_u32 v10, 560, v{vOUT}')
        a(f'v_cndmask_b32 v{vOUT}, v{vOUT}, v10, vcc')
        a(f'v_lshlrev_b32 v{vOUT}, 1, v{vOUT}')
    else:
        a('s_cmp_ge_u32 s83, 10')
        a('s_cselect_b32 s84, 1120, 0')
        a('s_lshl_b32 s81, s83, 4')
        a('s_add_u32 s84, s84, s81')
        a('s_mul_i32 s81, s82, 160')
        a('s_add_u32 s99, s84, s81')
        a(f'v_lshlrev_b32 v{vOUT}, 3, v10')
        a('v_lshrrev_b32 v10, 4, v1')
        a(f'v_lshl_add_u32 v{vOUT}, v10, 1, v{vOUT}')
    a('v_mov_b32 v11, s79')
    if outpre:
        a('s_mov_b64 exec, 1')
        a(f'buffer_load_ushort v27, v{vOUT}, s[72:75], s99 offen {"sc1" if outpre == 2 else ""}')
        a('s_mov_b64 exec, -1')
    a(f's_mov_b32 s82, {EOFF}')
    if ebump:
        a('s_cmp_lg_u32 s2, 0')
        a('s_cbranch_scc1 L_nobump')
        a('s_mov_b64 exec, 1')
        a(f'buffer_store_dword v11, off, s[68:71], s82 {"sc1" if ebump == 2 else ""}')
        a('s_mov_b64 exec, -1')
        a('L_nobump:')
    a('s_waitcnt lgkmcnt(0)')
    if wpre != 2: a('s_barrier')
    a('s_barrier')
    a('s_barrier')
    if wpre:
        a('s_cmp_ge_u32 s2, 160')
        a('s_cbranch_scc1 ' + ('L_end' if (probe is not None or not stamps) else 'L_hend'))
    stamp(7)
    if p2first: a(f's_sleep {p2first}')
    if np2 > 1:
        FS = [F + 4 + 4 * i for i in range(np2)]
        for i in range(np2):
            a(f'buffer_load_dwordx4 v[{FS[i]}:{FS[i]+3}], v{vF}, s[68:71], s98 offen sc1')
            if i < np2 - 1: a(f's_sleep {p2gap}')
        a('L_poll2:')
        for i in range(np2):
            a(f's_waitcnt vmcnt({np2-1})')
            for r in range(4): a(f'v_xor_b32 v{F+r}, s78, v{FS[i]+r}')
            a(f'v_or3_b32 v14, v{F}, v{F+1}, v{F+2}')
            a(f'v_or_b32 v14, v14, v{F+3}')
            a(f'v_and_b32 v14, {TM}, v14')
            a('v_cmp_ne_u32 vcc, 0, v14')
            a('s_cbranch_vccz L_poll2d')
            a('s_mov_b64 exec, vcc')
            a(f'buffer_load_dwordx4 v[{FS[i]}:{FS[i]+3}], v{vF}, s[68:71], s98 offen sc1')
            if psleep2: a(f's_sleep {psleep2}')
        a('s_sub_u32 s92, s92, 1')
        a('s_cbranch_scc0 L_poll2')
        a('s_endpgm')
    else:
        a('; final reduction over the 32 heads')
        a('L_poll2:')
        a(f'buffer_load_dwordx4 v[{F}:{F+3}], v{vF}, s[68:71], s98 offen sc1')
        a('s_waitcnt vmcnt(0)')
        tag_check(range(F, F + 4), 14, 15)
        a('s_cbranch_vccz L_poll2d')
        if pmask: a('s_mov_b64 exec, vcc')
        if psleep2: a(f's_sleep {psleep2}')
        a('s_sub_u32 s92, s92, 1')
        a('s_cbranch_scc0 L_poll2')
        a('s_endpgm')
    a('L_poll2d:')
    if pmask: a('s_mov_b64 exec, -1')
    a(f'v_permlane16_swap_b32 v{F}, v{F+1}')
    a(f'v_permlane16_swap_b32 v{F+2}, v{F+3}')
    a(f'v_add_f32 v{F}, v{F}, v{F+1}')
    a(f'v_add_f32 v{F+2}, v{F+2}, v{F+3}')
    a(f'v_permlane32_swap_b32 v{F}, v{F+2}')
    a(f'v_add_f32 v{F}, v{F}, v{F+2}')
    a(f'v_add_f32_dpp v{F}, v{F}, v{F} quad_perm:[2,3,0,1] {DPP}')
    a(f'v_add_f32_dpp v{F}, v{F}, v{F} row_ror:4 {DPP}')
    a(f'v_add_f32_dpp v{F}, v{F}, v{F} row_ror:8 {DPP}')
    a('s_mov_b32 exec_lo, 0x00030003')
    a('s_mov_b32 exec_hi, 0x00030003')
    a(f'v_cvt_pk_bf16_f32 v{F}, v{F}, v{F}')
    a(f'buffer_store_short v{F}, v{vOUT}, s[72:75], s99 offen {outflag}')
    if not ebump:
        a('s_cmp_lg_u32 s2, 0')
        a('s_cbranch_scc1 L_hend')
        a('s_mov_b64 exec, 1')
        a('buffer_store_dword v11, off, s[68:71], s82')
    a('L_hend:')
    if stamps:
        a('s_mov_b64 exec, -1')
        stamp(8)
        a('s_branch L_probe')
    a('s_endpgm')

    a('L_codeend:')
    ip = a.lines.index('@TPRE@')
    rest = a.lines[ip+1:]; a.lines = a.lines[:ip]
    if tpre == 1: tlbpre()
    a.lines += rest
    if hnear:
        L = a.lines
        i0 = L.index('L_helper:'); i1 = L.index('@HEAD_END@'); ih = L.index('@HELPER_HEAD@')
        head = L[i0:i1]
        a.lines = L[:ih] + head + L[ih+1:i0] + L[i1+1:]
    body = a.finalize()
    out = HEADER + DOC
    out += f'; @launch grid=(256,1,1) block=(576,1,1) lds={LDS_BYTES}\n'
    out += '.amdgcn_target "amdgcn-amd-amdhsa--gfx950"\n.text\n'
    out += f'.globl {KNAME}_kernel\n.p2align 8\n.type {KNAME}_kernel,@function\n'
    for l in body:
        out += (l if l.endswith(':') else '    ' + l) + '\n'
    out += f'''.section .rodata,"a"
.p2align 6
.amdhsa_kernel {KNAME}_kernel
  .amdhsa_next_free_vgpr {NV}
  .amdhsa_next_free_sgpr 102
  .amdhsa_accum_offset {NV}
  .amdhsa_group_segment_fixed_size 0
  .amdhsa_kernarg_size 104
  .amdhsa_user_sgpr_count 2
  .amdhsa_user_sgpr_kernarg_segment_ptr 1
  .amdhsa_system_sgpr_workgroup_id_x 1
  .amdhsa_float_denorm_mode_32 3
.end_amdhsa_kernel
'''
    return out

if __name__ == '__main__':
    kw = eval('dict(' + (sys.argv[2] if len(sys.argv) > 2 else '') + ')')
    open(sys.argv[1], 'w').write(gen(**kw))
```

```python
import sys, math, struct
from asmlib import Asm
KNAME = 'gated_mix__gqa_block_cached__dense_activation_mish__decode'
HEADER = open('cdna_kernels/' + KNAME + '.s.ref').read().split('; Override launch')[0]


DOC = """;
; Design (one launch, 256 workgroups = one per CU, 8 streaming waves + 1 helper wave each)
;   workgroup (h, sub): head h, keys of octant sub for BOTH batches (64 keys per wave and batch).
;   helper    : 80-row slice of x@wq, x@w1 and the gate dot; partials are exchanged between the 8 workgroups
;   hand-offs : through d_ws, every word carries a 10-bit tag = (epoch word found in d_ws) + 1; the epoch
;               word is advanced at the end, so stale words of earlier launches never match. All waits are
;               progress (LDS counter, per-XCD mailbox, and a few time-stamped progress words between XCDs),
"""

def f2u(x): return struct.unpack('<I', struct.pack('<f', x))[0]
LOG2E = 1.4426950408889634
OOB = 0x80000000
OOFF = 512 * 1024
FAST = 1 << 20
YOFF = 1536 * 1024
EOFF = 1792 * 1024
MBOX = 1796 * 1024
GBOX = 1856 * 1024
STAMP_OFF = 2 << 20
WS_REC = 4 << 20
TM = 0x3ff
OS = 848
OP1 = 16 * OS
QBF = 32 * OS
ACT = QBF + 1024
GV = ACT + 512
FLAG = GV + 128
CNT = FLAG + 4
FL = FLAG + 8
MW = FLAG + 16
YP = MW + 64
LDS_BYTES = YP + 8 * 640 + 256
DPP = 'row_mask:0xf bank_mask:0xf'
RED8 = ('quad_perm:[1,0,3,2]', 'quad_perm:[2,3,0,1]', 'row_half_mirror')
NV = 168

def gen(D=3, nb=30, catchup=2, stamps=False, kv_cache='nt', w_cache='nt', wo_cache='', poll_cap=1 << 18, probe=None,
        hwin=16, nfast=48, psleep=0, psleep2=1, qsleep=4, levels=((-4, 3), (13, 2)), Dmax=4, comp=6, cstart=6, cend=712,
        nlate=8, ypre=True, gm=(2, 0), ctl=True, sind=False, qpre=False, opre=0, nl1=8, l2pos=0, xfree=False, estart=9, estep=4, m1pos=9, m2a=12, m2b=13, nsp=200, Dsp=5, spadd=0, D0pat=None, eb=False, cpre=0, hnear=False, ytr=False, pmask=False, gmimic=True, glob=False, gP0=240, gD=64, gend=660, gnum=1, gsh2=1, gclamp=24, rmul=76, GS=256, gint=False, gsw=None, gnum2=1, xphase=False, wpre=0, wpre_cache='', tpre=0, dbg_nowq=0, wqmap=0, est=None, boost=None, l2n=3, l2k=1, m2late=False, remap=0, np2=1, p2gap=1, smimic=False, junk=0, junkflag='', outflag='', ehack=0, ycon=0, ymap2=False, outpre=0, ymapn=0, p2first=0, ebump=0, kfirst=False, hdma=False, kpre=None, hbar=-1, csleep=0, dbg_nowo=False, warm=0, padb=256, allpre=0, hprio=0):
    a = Asm()
    inhelper = [False]
    VST = NV - 1
    VZ = NV - 2
    top = NV - 4
    def stamp(i, force=False):
        if est and not force and 0 < i < 8 and not inhelper[0]: return
        if stamps:
            a('s_memrealtime s[96:97]')
            a('s_waitcnt lgkmcnt(0)')
            a(f'v_writelane_b32 v{VST}, s96, {i}')
    def srd(r, p, off):
        if off is None:
            a(f's_mov_b32 s{r}, s{p}'); a(f's_mov_b32 s{r+1}, s{p+1}')
        else:
            a(f's_add_u32 s{r}, s{p}, {off}'); a(f's_addc_u32 s{r+1}, s{p+1}, 0')
    def xlane(op, v, tmp):
        a(f'{op}_dpp v{v}, v{v}, v{v} row_ror:8 {DPP}')
        a(f'v_mov_b32 v{tmp}, v{v}')
        a(f'v_permlane16_swap_b32 v{v}, v{tmp}')
        a(f'{op} v{v}, v{v}, v{tmp}')
        a(f'v_mov_b32 v{tmp}, v{v}')
        a(f'v_permlane32_swap_b32 v{v}, v{tmp}')
        a(f'{op} v{v}, v{v}, v{tmp}')
    def masks(M, t0, t1):
        a(f'v_and_b32 v{t0}, 1, v1')
        a(f'v_lshlrev_b32 v{t0}, 4, v{t0}')
        a(f'v_mov_b32 v{t1}, 0xffff')
        a(f'v_lshlrev_b32 v{t0}, v{t0}, v{t1}')
        a(f'v_bfe_u32 v{t1}, v1, 1, 2')
        for r in range(4):
            a(f'v_cmp_eq_u32 vcc, {r}, v{t1}')
            a(f'v_cndmask_b32 v{M+r}, 0, v{t0}, vcc')
    def ws_setup():
        srd(68, 28, None)
        a(f's_mov_b32 s70, {WS_REC}')
        a('s_mov_b32 s71, 0x20000')
        a('s_lshl_b32 s99, s30, 3')
        a('s_add_u32 s99, s99, s31')
        a('s_lshl_b32 s99, s99, 11')
        a(f's_add_u32 s100, s99, {OOFF}')
        if remap & 4:
            a('s_and_b32 s101, s2, 7')
            a('s_lshl_b32 s101, s101, 5')
            a('s_lshr_b32 s76, s2, 3')
            a('s_add_u32 s101, s101, s76')
        else:
            a('s_lshl_b32 s101, s31, 5')
            a('s_add_u32 s101, s101, s30')
        a('s_mul_i32 s101, s101, 640')
        a(f's_add_u32 s101, s101, {YOFF}')
        a(f's_mov_b32 s92, {poll_cap}')
        a(f's_mov_b32 s76, {EOFF}')
        a('s_load_dword s79, s[28:29], s76')
        a(f's_mov_b32 s77, {0xffffffff ^ TM}')
    def tag_finish():
        a('s_add_u32 s79, s79, 1')
        a(f's_and_b32 s78, s79, {TM}')
    def tag_apply(regs, vt):
        for r in regs: a(f'v_and_or_b32 v{r}, v{r}, s77, v{vt}')
    def tag_check(regs, x0, x1):
        regs = list(regs)
        for r in regs: a(f'v_xor_b32 v{r}, s78, v{r}')
        if len(regs) == 4:
            a(f'v_or3_b32 v{x0}, v{regs[0]}, v{regs[1]}, v{regs[2]}')
            a(f'v_or_b32 v{x0}, v{x0}, v{regs[3]}')
        else:
            a(f'v_or3_b32 v{x0}, v{regs[0]}, v{regs[1]}, v{regs[2]}')
            a(f'v_or3_b32 v{x1}, v{regs[3]}, v{regs[4]}, v{regs[5]}')
            rr = regs[6:]; i = 0
            while len(rr) >= 2:
                d = (x0, x1)[i & 1]; i += 1
                a(f'v_or3_b32 v{d}, v{d}, v{rr[0]}, v{rr[1]}'); rr = rr[2:]
            assert not rr
            a(f'v_or_b32 v{x0}, v{x0}, v{x1}')
        a(f'v_and_b32 v{x0}, {TM}, v{x0}')
        a(f'v_cmp_ne_u32 vcc, 0, v{x0}')

    a(f'{KNAME}_kernel:')
    def kargs():
        a('s_load_dwordx16 s[4:19], s[0:1], 0')
        a('s_load_dwordx8 s[20:27], s[0:1], 64')
        a('s_load_dwordx2 s[28:29], s[0:1], 96')
    if kfirst: a('s_load_dwordx2 s[44:45], s[0:1], 8')
    a('s_cmp_ge_u32 s2, 256')
    a('s_cbranch_scc1 L_end')
    if not kfirst: kargs()
    if stamps:
        a(f'v_mov_b32 v{VST}, 0')
        stamp(0)
    a('v_lshrrev_b32 v5, 6, v0')
    a('v_and_b32 v1, 63, v0')
    a('v_readfirstlane_b32 s3, v5')
    a('s_and_b32 s82, s2, 7')
    a('s_lshr_b32 s83, s2, 6')
    a('s_lshl_b32 s30, s82, 2')
    a('s_add_u32 s30, s30, s83')
    a(f's_bfe_u32 s31, s2, {3 | (3 << 16)}')
    a('v_lshrrev_b32 v6, 3, v1')
    a('v_and_b32 v7, 7, v1')
    a('v_lshlrev_b32 v5, 4, v7')
    def code_base(lbl):
        a('s_getpc_b64 s[40:41]')
        a(f'{lbl}:')
        a(f's_sub_u32 s40, s40, {lbl}-{KNAME}_kernel')
        a('s_subb_u32 s41, s41, 0')
    if cpre >= 2:
        a('s_cmp_lg_u32 s3, 7')
        a('s_cbranch_scc1 L_nocp')
        code_base('L_pc')
        a('s_lshr_b32 s83, s2, 3')
        a('s_mul_i32 s83, s83, 640')
        a('v_lshl_add_u32 v10, v1, 7, s83')
        a(f'v_min_u32 v10, L_codeend-{KNAME}_kernel-4, v10')
        a('s_mov_b64 exec, 31')
        a(f'global_load_dword v{NV-3}, v10, s[40:41]')
        a('s_mov_b64 exec, -1')
        a('L_nocp:')
    if warm:
        a('s_cmp_lg_u32 s3, 9')
        a('s_cbranch_scc1 L_nowarm')
        a('s_barrier')
        a('s_mov_b64 exec, 0')
        a('s_cbranch_execz L_pad0')
        a('L_nowarm:')
    if eb:
        a('v_mov_b32 v8, 0')
        a(f'v_mov_b32 v9, {8*D}')
        a('v_mov_b32 v10, 0')
        a(f'ds_write_b96 v8, v[8:10] offset:{FLAG}')
    a('s_cmp_eq_u32 s3, 8')
    if eb:
        a('s_cbranch_scc0 L_streamer')
        a('s_waitcnt lgkmcnt(0)')
        a('s_barrier')
        a('s_branch L_helper')
        a('L_streamer:')
    else:
        a('s_cbranch_scc1 L_helper')
    a('v_mul_u32_u24 v2, 384, v6')
    a('v_add_u32 v2, v2, v5')
    a(f's_mul_i32 s88, s30, {gm[0]}')
    if gm[1]:
        a(f's_mul_i32 s83, s82, {gm[1]}')
        a('s_add_u32 s88, s88, s83')
    a('s_and_b32 s88, s88, 7')
    a('s_lshl_b32 s82, s30, 6')
    a('s_add_u32 s82, s82, s31')
    a('s_lshl_b32 s82, s82, 3')
    a('s_add_u32 s82, s82, s3')
    a('s_mul_i32 s82, s82, 3072')
    a('s_sub_u32 s34, 100663296, s82')
    a('s_mov_b32 s35, 0x20000')
    a('s_mul_i32 s86, s88, 196608')
    a('s_waitcnt lgkmcnt(0)')
    srd(32, 44 if kfirst else 6, 's82')
    S0 = 8; Q0 = 24; ACC = 24
    M0 = 36; A0 = 40
    vOW, vRA, vRG, vP1, vYW, vYR, vMW, vAC = range(48, 56)
    vRG1, vP2, G0, G1 = 56, 57, 58, 59
    kF = m2b + 1
    vM, vL = 60, 61
    T = list(range(62, 76))
    konly = list(range(36, 76, 4))
    free = konly + list(range(76, top, 4))
    slot = {}
    def alloc(tag):
        r = free.pop(0); slot[tag] = r; return r
    def release(tag):
        if slot[tag] not in konly: free.append(slot[tag])
    cur = {'kv': 0}
    nis = [0]; wcnt = [0]
    def window():
        n = nis[0]; wcnt[0] += 1
        def adj(d):
            if not xfree: return d - 1
            cnt = 0; k = 0
            for t in reversed(a.vm):
                if isinstance(t, tuple) and t[0] in ('k', 'v'):
                    if cnt == d - 1: break
                    cnt += 1
                k += 1
            return k
        if n >= nsp and not spadd:
            a.wait_out(adj(Dsp))
            return
        ex = spadd if n >= nsp else 0
        if boost and boost[0] <= n < boost[1] and (n - boost[0]) % boost[2] == 0: ex += 1
        if ctl and n >= cstart:
            a.wait_out(adj(Dmax + ex))
            a('s_waitcnt lgkmcnt(0)')
            a('v_readfirstlane_b32 s90, v0')
            for (delta, d) in levels:
                a(f's_cmp_lt_i32 s90, {8*n - delta}')
                a(f's_cbranch_scc0 L_go{wcnt[0]}')
                a(f's_waitcnt vmcnt({adj(d + ex)})')
            a(f'L_go{wcnt[0]}:')
        else:
            a.wait_out((D0pat[n % len(D0pat)] if D0pat else D) - 1)
    def issue(tag):
        kind = tag[0]
        r = alloc(tag)
        if kind in ('k', 'v'):
            if cur['kv'] != tag[1]:
                k = tag[1]
                a(f's_add_u32 s85, s88, {k & 7}')
                a('s_and_b32 s85, s85, 7')
                a('s_mul_i32 s86, s85, 196608')
                if k >= 8: a('s_add_u32 s86, s86, 50331648')
                cur['kv'] = k
            s0 = 32 if kind == 'k' else 36
            a.vmem(f'buffer_load_dwordx4 v[{r}:{r+3}], v2, s[{s0}:{s0+3}], s86 offen offset:{tag[2]*128} {kv_cache}', tag)
            nis[0] += 1
            if est and nis[0] in est: stamp(est.index(nis[0]) + 1, True)
            if ctl and nis[0] > D:
                a('s_mov_b64 exec, 1')
                a(f'ds_add_rtn_u32 v0, v{VZ}, v{VZ} offset:{CNT - 1}')
                a('s_mov_b64 exec, -1')
        elif kind == 'wo':
            rg = tag[1]
            if rg: a(f's_mov_b32 s87, {(rg >> 1)*5120 + (rg & 1)*160 if ehack == 1 else rg*5120}')
            a.vmem(f'buffer_load_dwordx4 v[{r}:{r+3}], v3, s[48:51], {"s87" if rg else "0"} offen {wo_cache}', tag)
        elif kind == 'w2':
            a.vmem(f'buffer_load_dwordx4 v[{r}:{r+3}], v4, s[52:55], 0 offen offset:{tag[1]*(160 if ehack == 1 else 1280)} {wo_cache}', tag)
    kl = [('k', k, s) for k in range(16) for s in range(3)]
    vl = [('v', k, s) for k in range(16) for s in range(3)]
    if kpre is None: kpre = D
    for tag in kl[:kpre]: issue(tag)
    if kfirst:
        kargs()
        a('s_waitcnt lgkmcnt(0)')
    if eb: a('s_barrier')
    if hnear:
        a('s_branch L_stream2')
        a('@HELPER_HEAD@')
        a('L_stream2:')
    srd(36, 8, 's82'); a('s_mov_b32 s38, s34'); a('s_mov_b32 s39, 0x20000')
    ws_setup()
    a(f's_mov_b32 s91, {f2u(LOG2E if smimic else LOG2E / math.sqrt(192.0))}')
    if remap & 1:
        a('s_lshr_b32 s30, s2, 3')
        a('s_and_b32 s31, s2, 7')
    if ehack == 1:
        a('s_mul_i32 s82, s30, 192')
        a('s_and_b32 s83, s31, 1')
        a('s_mul_i32 s83, s83, 96')
        a('s_add_u32 s82, s82, s83')
        a('s_mul_i32 s83, s3, 12')
        a('s_add_u32 s82, s82, s83')
        a('s_mul_i32 s82, s82, 1280')
        a('s_lshr_b32 s83, s31, 1')
        a('s_mul_i32 s83, s83, 320')
        a('s_add_u32 s82, s82, s83')
    else:
        a('s_mul_i32 s82, s30, 192')
        a('s_mul_i32 s83, s3, 24')
        a('s_add_u32 s82, s82, s83')
        a('s_mul_i32 s82, s82, 1280')
        a(f's_mul_i32 s83, s31, {128 if ehack == 2 else 160}')
        a('s_add_u32 s82, s82, s83')
    srd(48, 12, 's82')
    a('s_sub_u32 s50, 7864320, s82')
    a('s_mov_b32 s51, 0x20000')
    if ehack == 1:
        a('s_lshl_b32 s82, s30, 1')
        a('s_and_b32 s84, s31, 1')
        a('s_add_u32 s82, s82, s84')
        a('s_lshl_b32 s82, s82, 3')
        a('s_add_u32 s82, s82, s3')
        a('s_mul_i32 s82, s82, 3840')
        a('s_add_u32 s82, s82, s83')
    else:
        a('s_lshl_b32 s82, s30, 3')
        a('s_add_u32 s82, s82, s3')
        a('s_mul_i32 s82, s82, 7680')
        a('s_add_u32 s82, s82, s83')
    srd(52, 20, 's82')
    a('s_sub_u32 s54, 1966080, s82')
    if dbg_nowo: a('s_mov_b32 s54, 0'); a('s_mov_b32 s50, 0')
    a('s_mov_b32 s55, 0x20000')
    if remap & 2: a('s_lshr_b32 s30, s2, 3')
    elif remap & 1: a('s_lshr_b32 s30, s99, 14')
    a('s_lshl_b32 s93, s30, 14')
    a(f's_add_u32 s93, s93, {OOFF}')
    a('s_add_u32 s94, s93, 4096')
    a('s_add_u32 s95, s93, 8192')
    a('s_add_u32 s98, s93, 12288')
    a('v_lshrrev_b32 v8, 4, v1')
    a('v_and_b32 v9, 15, v1')
    a(f'v_mov_b32 v10, {OOB}')
    a('v_mul_u32_u24 v3, 1280, v8')
    a('v_lshl_add_u32 v3, v9, 4, v3')
    a(f'v_mul_u32_u24 v4, {1280 if ehack == 1 else 2560}, v8')
    a('v_lshl_add_u32 v4, v9, 4, v4')
    a('v_cmp_gt_u32 vcc, 3, v8')
    a('v_cndmask_b32 v4, v10, v4, vcc')
    a(f'v_cmp_gt_u32 vcc, {8 if ehack == 2 else 10}, v9')
    a('v_cndmask_b32 v3, v10, v3, vcc')
    a('v_cndmask_b32 v4, v10, v4, vcc')
    a('v_mov_b32 v9, 0')
    a(f'v_mov_b32 v{VZ}, 1')
    if cpre == 1:
        a('; each workgroup pulls 5 lines of the (cold) code into L2 so later instruction fetches hit')
        a('s_cmp_lg_u32 s3, 7')
        a('s_cbranch_scc1 L_nocp')
        a('s_getpc_b64 s[40:41]')
        a('L_pc:')
        a(f's_sub_u32 s40, s40, L_pc-{KNAME}_kernel')
        a('s_subb_u32 s41, s41, 0')
        a('s_lshr_b32 s82, s2, 3')
        a('s_mul_i32 s82, s82, 640')
        a('v_lshl_add_u32 v10, v1, 7, s82')
        a(f'v_min_u32 v10, L_codeend-{KNAME}_kernel-4, v10')
        a('s_mov_b64 exec, 31')
        a(f'global_load_dword v{NV-3}, v10, s[40:41]')
        a('s_mov_b64 exec, -1')
        a('L_nocp:')
    if not eb: a('s_barrier')
    for tag in kl[kpre:D]: issue(tag)
    for tag in kl[D:nb]:
        window(); issue(tag)
    a('s_waitcnt lgkmcnt(0)')
    tag_finish()
    stamp(1)
    a('L_qw:')
    a(f'ds_read_b32 v8, v9 offset:{FLAG}')
    for s in range(3):
        a(f'ds_read_b128 v[{Q0+4*s}:{Q0+3+4*s}], v5 offset:{QBF + s*128}')
    a('s_waitcnt lgkmcnt(0)')
    a('v_readfirstlane_b32 s89, v8')
    a('s_cmp_lg_u32 s89, 0')
    a('s_cbranch_scc1 L_qwd')
    a('s_sleep 2')
    a('s_sub_u32 s92, s92, 1')
    a('s_cbranch_scc0 L_qw')
    a('s_endpgm')
    a('L_qwd:')
    stamp(2)
    abi = [0]
    def build_A(src):
        A = A0 + 4 * (abi[0] & 1); abi[0] += 1
        for r in range(4):
            a(f'v_and_b32 v{A+r}, {src}, v{M0+r}')
        return A
    def task_k(k):
        S = S0 + k
        if k == 8: a('s_waitcnt lgkmcnt(0)')
        first = True
        for s in range(3):
            r = slot[('k', k, s)]
            for i in range(4):
                c = '0' if first else f'v{S}'
                a(f'v_dot2_f32_bf16 v{S}, v{r+i}, v{Q0 + s*4 + i}, {c}')
                first = False
            release(('k', k, s))
        if k == 7:
            for s in range(3):
                a(f'ds_read_b128 v[{Q0+4*s}:{Q0+3+4*s}], v5 offset:{QBF + 512 + s*128}')
    def flush_acc(b):
        a('s_mov_b32 exec_lo, 0x00ff00ff')
        a('s_mov_b32 exec_hi, 0xff00ff00')
        for s in range(3):
            a(f'ds_write_b128 v{vOW}, v[{ACC+4*s}:{ACC+3+4*s}] offset:{b*OP1 + s*256}')
        if b == 0:
            a('s_mov_b64 exec, 1')
            a(f'ds_add_u32 v{VZ}, v{VZ} offset:{FL - 1}')
        a('s_mov_b64 exec, -1')
    def task_v(k, fine=False, after=None):
        A = build_A(f'v{S0+k}')
        if k == 8: a('s_waitcnt lgkmcnt(0)')
        for s in range(3):
            if fine: a.wait_tag(('v', k, s))
            r = slot[('v', k, s)]; acc = ACC + 4 * s
            c = '0' if k % 8 == 0 else f'v[{acc}:{acc+3}]'
            a(f'v_mfma_f32_16x16x32_bf16 v[{acc}:{acc+3}], v[{A}:{A+3}], v[{r}:{r+3}], {c}')
            release(('v', k, s))
            if after: after(k, s)
    def task_red(b):
        for pat in RED8:
            for k in range(8 * b, 8 * b + 8):
                a(f'v_add_f32_dpp v{S0+k}, v{S0+k}, v{S0+k} {pat} {DPP}')
    t0, t1, t2 = T[0], T[1], T[2]
    def task_rnd(b):
        B = S0 + 8 * b
        for k in range(0, 8, 2): a(f'v_cvt_pk_bf16_f32 v{B+k}, v{B+k}, v{B+k+1}')
        for k in range(0, 8, 2):
            a(f'v_and_b32 v{B+k+1}, 0xffff0000, v{B+k}')
            a(f'v_lshlrev_b32 v{B+k}, 16, v{B+k}')
        for k in range(8): a(f'v_mul_f32 v{B+k}, {f2u(192.0 ** -0.5)}, v{B+k}')
        for k in range(0, 8, 2): a(f'v_cvt_pk_bf16_f32 v{B+k}, v{B+k}, v{B+k+1}')
        for k in range(0, 8, 2):
            a(f'v_and_b32 v{B+k+1}, 0xffff0000, v{B+k}')
            a(f'v_lshlrev_b32 v{B+k}, 16, v{B+k}')
    def task_sm1(b):
        B = S0 + 8 * b
        a(f'v_max3_f32 v{t0}, v{B}, v{B+1}, v{B+2}')
        a(f'v_max3_f32 v{t0}, v{t0}, v{B+3}, v{B+4}')
        a(f'v_max3_f32 v{t0}, v{t0}, v{B+5}, v{B+6}')
        a(f'v_max_f32 v{t0}, v{t0}, v{B+7}')
        xlane('v_max_f32', t0, t1)
        a(f'v_mul_f32 v{vM}, s91, v{t0}')
        for k in range(8): a(f'v_fma_f32 v{B+k}, v{B+k}, s91, -v{vM}')
        for k in range(8): a(f'v_exp_f32 v{B+k}, v{B+k}')
        a('s_lshl_b32 s82, s3, 2')
        a(f'v_mov_b32 v{t0}, s82')
        a(f'ds_write_b32 v{t0}, v{vM} offset:{MW + 32*b}')
    def task_sm2(b):
        B = S0 + 8 * b
        u = 64
        a(f'v_add_f32 v{u}, v{B}, v{B+1}')
        for k in range(2, 8): a(f'v_add_f32 v{u}, v{u}, v{B+k}')
        for k in range(8):
            if 8 * b + k < kF: a(f'v_cvt_pk_bf16_f32 v{B+k}, v{B+k}, v{B+k}')
        xlane('v_add_f32', u, t1)
        a(f'v_writelane_b32 v{u}, 0, 40')
        a(f'v_mov_b32 v{u+1}, v{u}'); a(f'v_mov_b32 v{u+2}, v{u}'); a(f'v_mov_b32 v{u+3}, v{u}')
        a('s_mov_b32 exec_lo, 1')
        a('s_mov_b32 exec_hi, 0x100')
        a(f'ds_write_b128 v{vOW}, v[{u}:{u+3}] offset:{b*OP1 + 768}')
        a('s_mov_b64 exec, -1')
    def task_addr0():
        a(f'v_lshrrev_b32 v{t0}, 5, v1')
        a('s_lshl_b32 s82, s3, 1')
        a(f'v_add_u32 v{t0}, s82, v{t0}')
        a(f'v_lshlrev_b32 v{t1}, 5, v7')
        a(f'v_bfe_u32 v{t2}, v1, 4, 1')
        a(f'v_lshl_add_u32 v{t1}, v{t2}, 4, v{t1}')
        a(f'v_mul_u32_u24 v{vOW}, {OS}, v{t0}')
        a(f'v_add_u32 v{vOW}, v{vOW}, v{t1}')
        masks(M0, t0, t1)
    g, ob, x, y, z = 68, 69, 70, 71, 72
    vRA0 = 61
    def task_addr1():
        a(f'v_lshrrev_b32 v{g}, 4, v1')
        a(f'v_mov_b32 v{ob}, {OOB}')
        a('s_mul_i32 s82, s3, 6')
        a(f'v_add_u32 v{x}, s82, v6')
        a('v_cmp_gt_u32 vcc, 6, v6')
        a(f'v_cndmask_b32 v{x}, 48, v{x}, vcc')
        a(f'v_lshlrev_b32 v{x}, 4, v{x}')
        a(f'v_mul_u32_u24 v{vRA0}, {2*OS}, v7')
        a(f'v_add_u32 v{vRA0}, v{vRA0}, v{x}')
        a(f'v_add_u32 v{x}, {OP1}, v{vRA0}')
        a('v_cmp_eq_u32 s[80:81], 7, v6')
        a(f'v_cndmask_b32 v{vRA0}, v{vRA0}, v{x}, s[80:81]')
        a(f'v_add_u32 v{x}, s82, v7')
        a('v_cmp_gt_u32 vcc, 6, v7')
        a(f'v_cndmask_b32 v{x}, 48, v{x}, vcc')
        a(f'v_lshlrev_b32 v{x}, 4, v{x}')
        a(f'v_mul_u32_u24 v{vRA}, {2*OS}, v6')
        a(f'v_add_u32 v{vRA}, v{vRA}, v{x}')
        a('s_lshl_b32 s82, s3, 7')
        a(f'v_lshl_add_u32 v{x}, v6, 4, s82')
        if ycon == 1:
            a(f'v_lshlrev_b32 v{vYR}, 4, v1')
        elif ycon == 2:
            a(f'v_and_b32 v{y}, 31, v1')
            a(f'v_lshlrev_b32 v{y}, 4, v{y}')
            a(f'v_lshrrev_b32 v{vYR}, 5, v1')
            a(f'v_mul_u32_u24 v{vYR}, 2560, v{vYR}')
            a('s_mul_i32 s83, s3, 320')
            a(f'v_add3_u32 v{vYR}, v{vYR}, v{y}, s83')
        elif ytr:
            a(f'v_mul_u32_u24 v{vYR}, 640, v6')
            a(f'v_add3_u32 v{vYR}, v{vYR}, v5, s82')
        else:
            a(f'v_mul_u32_u24 v{vYR}, 640, v7')
            a(f'v_add_u32 v{vYR}, v{vYR}, v{x}')
        a('v_cmp_eq_u32 vcc, 0, v7')
        a(f'v_cndmask_b32 v{vRG}, v{ob}, v{x}, vcc')
        a(f'v_lshlrev_b32 v{y}, 11, v6')
        a(f'v_add3_u32 v{vP1}, v{y}, v5, s82')
        a(f'v_lshl_add_u32 v{y}, v{g}, 5, s82')
        a(f'v_lshl_add_u32 v{y}, v7, 2, v{y}')
        a(f'v_and_b32 v{x}, 1, v6')
        a(f'v_lshlrev_b32 v{vAC}, 8, v{x}')
        a(f'v_lshl_add_u32 v{vP2}, v{x}, 11, v{y}')
        a(f'v_cmp_eq_u32 vcc, 0, v{x}')
        a(f'v_cndmask_b32 v{vRG1}, v{ob}, v{y}, vcc')
    def task_addr2():
        a('s_mul_i32 s82, s3, 24')
        a(f'v_lshl_add_u32 v{vAC}, v{g}, 3, v{vAC}')
        a(f'v_add_u32 v{vAC}, s82, v{vAC}')
        a(f'v_and_b32 v{x}, 15, v1')
        a(f'v_lshlrev_b32 v{x}, 5, v{x}')
        a(f'v_lshrrev_b32 v{y}, 5, v1')
        a(f'v_mul_u32_u24 v{y}, 320, v{y}')
        a(f'v_and_b32 v{z}, 1, v{g}')
        a(f'v_lshlrev_b32 v{z}, 4, v{z}')
        a(f'v_add3_u32 v{vYW}, v{x}, v{y}, v{z}')
        a('s_mul_i32 s82, s3, 640')
        a(f'v_add_u32 v{vYW}, s82, v{vYW}')
        a(f'v_lshlrev_b32 v{vMW}, 2, v7')
        a('v_mov_b32 v75, s78')
    R = 8
    def ostore(text, b):
        a(f's_cmp_eq_u32 s89, {77 if remap & 2 else 1}')
        a(f's_cbranch_scc1 L_ofast{b}')
        a(text + ' sc1')
        a(f's_branch L_odone{b}')
        a(f'L_ofast{b}:')
        a.vmem(text)
        a(f'L_odone{b}:')
    def task_m1():
        WG = [62, 63]; MXR = [64, 65]
        a('L_m1:')
        a(f'ds_read_b32 v66, v{VZ} offset:{FL - 1}')
        a(f'ds_read_b32 v{WG[0]}, v{vMW} offset:{MW}')
        a(f'ds_read_b32 v{WG[1]}, v{vMW} offset:{MW+32}')
        a(f'ds_read_b128 v[{R}:{R+3}], v{vRA0}')
        a(f'ds_read_b128 v[{R+4}:{R+7}], v{vRA0} offset:{OS}')
        a(f'ds_read_b64 v[72:73], v{vAC} offset:{ACT}')
        a(f'ds_read_b32 v{G0}, v{VZ} offset:{GV - 1}')
        a(f'ds_read_b32 v{G1}, v{VZ} offset:{GV + 63}')
        a('s_waitcnt lgkmcnt(0)')
        a('v_readfirstlane_b32 s82, v66')
        a('s_cmp_eq_u32 s82, 9')
        a('s_cbranch_scc1 L_m1d')
        a('s_sleep 1')
        a('s_sub_u32 s92, s92, 1')
        a('s_cbranch_scc0 L_m1')
        a('s_endpgm')
        a('L_m1d:')
        for i, pat in enumerate(RED8):
            for b in range(2):
                src = WG[b] if i == 0 else MXR[b]
                a(f'v_max_f32_dpp v{MXR[b]}, v{src}, v{src} {pat} {DPP}')
            a(f'v_add_f32 v{R+i}, v{R+i}, v{R+4+i}')
        a(f'v_add_f32 v{R+3}, v{R+3}, v{R+7}')
        for b in range(2): a(f'v_and_b32 v{MXR[b]}, s77, v{MXR[b]}')
        for b in range(2): a(f'v_sub_f32 v{WG[b]}, v{WG[b]}, v{MXR[b]}')
        a(f'v_cndmask_b32 v{WG[0]}, v{WG[0]}, v{WG[1]}, s[80:81]')
        a(f'v_exp_f32 v{WG[0]}, v{WG[0]}')
        for i in range(4): a(f'v_mul_f32 v{R+i}, v{R+i}, v{WG[0]}')
        for pat in RED8:
            for i in range(4):
                a(f'v_add_f32_dpp v{R+i}, v{R+i}, v{R+i} {pat} {DPP}')
        a(f'v_cndmask_b32 v{R}, v{R}, v{MXR[0]}, s[80:81]')
        a(f'v_cndmask_b32 v{R+1}, v{R+1}, v{MXR[1]}, s[80:81]')
        tag_apply(range(R, R + 4), 75)
        ostore(f'buffer_store_dwordx4 v[{R}:{R+3}], v{vRG}, s[68:71], s100 offen', 0)
    PG = 12
    gat = f'buffer_load_dwordx4 v[{PG}:{PG+3}], v{vP1}, s[68:71], s93 offen sc1'
    def task_m2a():
        a.vmem(gat, 'gat')
    AP = []
    def task_m2b():
        a.wait_tag('gat')
        a('L_m2:')
        tag_check(range(PG, PG + 4), 62, 63)
        a('s_cbranch_vccz L_m2d')
        a(gat)
        a('s_waitcnt vmcnt(0)')
        a('s_sub_u32 s92, s92, 1')
        a('s_cbranch_scc0 L_m2')
        a('s_endpgm')
        a('L_m2d:')
        MQ, MX, M1, L1, TT = 62, 63, 64, 65, 66
        a(f'v_mov_b32_dpp v{MQ}, v{PG} row_newbcast:7 row_mask:0xf bank_mask:0x3')
        a(f'v_mov_b32 v{M1}, v{PG+1}')
        a(f'v_mov_b32_dpp v{MQ}, v{PG} row_newbcast:15 row_mask:0xf bank_mask:0xc')
        xlane('v_max_f32', M1, TT)
        a(f'v_mov_b32 v{MX}, v{MQ}')
        xlane('v_max_f32', MX, TT)
        a(f'v_sub_f32 v{L1}, v{PG+1}, v{M1}')
        a(f'v_sub_f32 v{MQ}, v{MQ}, v{MX}')
        a(f'v_exp_f32 v{L1}, v{L1}')
        a(f'v_exp_f32 v{MQ}, v{MQ}')
        a(f'v_mul_f32 v{L1}, v{L1}, v{PG+2}')
        for i in range(4): a(f'v_mul_f32 v{PG+i}, v{PG+i}, v{MQ}')
        xlane('v_add_f32', L1, TT)
        a(f'v_readlane_b32 s82, v{M1}, 7')
        a(f'v_rcp_f32 v{L1}, v{L1}')
        a(f'v_permlane16_swap_b32 v{PG}, v{PG+1}')
        a(f'v_permlane16_swap_b32 v{PG+2}, v{PG+3}')
        a(f'v_readlane_b32 s83, v{L1}, 7')
        a(f'v_add_f32 v{PG}, v{PG}, v{PG+1}')
        a(f'v_add_f32 v{PG+2}, v{PG+2}, v{PG+3}')
        a(f'v_subrev_f32 v{M1}, s82, v{vM}')
        a(f'v_permlane32_swap_b32 v{PG}, v{PG+2}')
        a(f'v_exp_f32 v{M1}, v{M1}')
        a(f'v_add_f32 v{PG}, v{PG}, v{PG+2}')
        a(f'v_mul_f32 v{G1}, s83, v{G1}')
        a(f'v_mul_f32 v{G1}, v{G1}, v{M1}')
        a(f'v_add_f32_dpp v{PG}, v{PG}, v{PG} row_ror:8 {DPP}')
        a(f'v_rcp_f32 v{MX}, v{PG}')
        a(f'v_mul_f32 v{PG}, v{PG}, v{G0}')
        for k in range(kF, 16): a(f'v_mul_f32 v{S0+k}, v{S0+k}, v{G1}')
        a(f'v_mul_f32_dpp v{PG}, v{MX}, v{PG} row_newbcast:6 {DPP}')
        for k in range(kF, 16): a(f'v_cvt_pk_bf16_f32 v{S0+k}, v{S0+k}, v{S0+k}')
        a(f'v_cvt_pk_bf16_f32 v{PG}, v{PG}, v{PG}')
        for i in range(12): a(f'v_mul_f32 v{ACC+i}, v{ACC+i}, v{G1}')
    def task_m2c():
        for p in range(6):
            AP.append(alloc(('ap', p)))
            for r in range(4):
                a(f'v_and_b32_dpp v{AP[p]+r}, v{PG}, v{M0+r} row_newbcast:{p} {DPP}')
    def run(issue_list, tasks, win, per_issue):
        for tag in issue_list:
            while not free:
                fn, needs = tasks.pop(0)
                for n in needs: a.wait_tag(n)
                fn()
            if win and not (xfree and tag[0] in ('wo', 'w2')): window()
            issue(tag)
            n = 0
            while tasks and n < per_issue and all(a.issued(q) and a.is_done(q) for q in tasks[0][1]):
                fn, needs = tasks.pop(0); fn(); n += 1
    kt = [((lambda k=k: task_k(k)), [('k', k, s) for s in range(3)]) for k in range(16)]
    vt = [((lambda k=k: task_v(k)), [('v', k, s) for s in range(3)]) for k in range(16)]
    N = lambda f: (f, [])
    if smimic:
        tasks = kt[:11] + [N(task_addr0), N(lambda: task_red(0))] + kt[11:12] + [N(lambda: task_rnd(0))] + kt[12:13] + [N(lambda: task_sm1(0))] + kt[13:14] + [N(lambda: task_sm2(0))] + kt[14:]
        tasks += [N(lambda: stamp(3))] if stamps else []
        tasks += vt[:1] + [N(lambda: task_red(1))] + vt[1:2] + [N(lambda: task_rnd(1))] + vt[2:3] + [N(lambda: task_sm1(1))] + vt[3:4] + [N(lambda: task_sm2(1))] + vt[4:5]
    else:
        tasks = kt[:11] + [N(task_addr0), N(lambda: task_red(0))] + kt[11:12] + [N(lambda: task_sm1(0))] + kt[12:13] + [N(lambda: task_sm2(0))] + kt[13:]
        tasks += [N(lambda: stamp(3))] if stamps else []
        tasks += vt[:1] + [N(lambda: task_red(1))] + vt[1:2] + [N(lambda: task_sm1(1))] + vt[2:3] + [N(lambda: task_sm2(1))] + vt[3:5]
    tasks += [N(task_addr1)] + vt[5:6] + [N(task_addr2)] + vt[6:8] + [N(lambda: flush_acc(0))]
    for k in range(8, 14):
        tasks.append(vt[k])
        if k == m1pos: tasks.append(N(task_m1))
        if k == m2a: tasks.append(N(task_m2a))
        if k == m2b and not m2late: tasks += [(task_m2b, ['gat']), N(task_m2c)]
    wl = [('wo', rg) for rg in range(6)] + [('w2', i) for i in range(2)]
    run(kl[nb:], tasks, True, catchup)
    early = wl[nlate:][::-1]; latel = wl[:nlate]
    vseq = []
    for i, tag in enumerate(vl):
        vseq.append(tag)
        if i >= estart and (i - estart) % estep == 0 and early: vseq.append(early.pop())
    run(vseq, tasks, True, catchup)
    a('s_barrier')
    run(latel[:nl1], [], False, 0)
    if m2late: tasks += [(task_m2b, ['gat']), N(task_m2c)]
    while tasks:
        fn, needs = tasks.pop(0)
        for n in needs: a.wait_tag(n)
        fn()
    rest = latel[nl1:]
    def after(k, s):
        pos = (k - 14) * 3 + s
        if l2pos == 2 and pos >= 5 - l2n and pos < 5:
            for _ in range(l2k):
                if rest: issue(rest.pop(0))
    task_v(14, True, after)
    task_v(15, True, after)
    stamp(4)
    flush_acc(1)
    run(rest, [], False, 0)
    a('s_waitcnt lgkmcnt(0)')
    a('s_barrier')
    a(f'ds_read_b128 v[{R}:{R+3}], v{vRA} offset:{OP1}')
    a(f'ds_read_b128 v[{R+4}:{R+7}], v{vRA} offset:{OP1+OS}')
    AW = [build_A('v72'), build_A('v73')]
    a('s_waitcnt lgkmcnt(0)')
    for i in range(4): a(f'v_add_f32 v{R+i}, v{R+i}, v{R+4+i}')
    a(f'v_permlane16_swap_b32 v{R}, v{R+1}')
    a(f'v_permlane16_swap_b32 v{R+2}, v{R+3}')
    a(f'v_add_f32 v{R}, v{R}, v{R+1}')
    a(f'v_add_f32 v{R+2}, v{R+2}, v{R+3}')
    a(f'v_permlane32_swap_b32 v{R}, v{R+2}')
    a(f'v_add_f32 v{R}, v{R}, v{R+2}')
    a(f'v_add_f32_dpp v{R}, v{R}, v{R} row_ror:8 {DPP}')
    tag_apply([R], 75)
    ostore(f'buffer_store_dword v{R}, v{vRG1}, s[68:71], s100 offen offset:1024', 1)
    O = 16; X = 66; X2 = 67; Y = 24
    def poll1():
        for u, so in enumerate(('s93', 's94', 's95', 's98')):
            a(f'buffer_load_dword v{O+u}, v{vP2}, s[68:71], {so} offen offset:1024 sc1')
    poll1()
    stamp(5)
    a('s_waitcnt vmcnt(5)')
    for i in range(2):
        r = slot[('w2', i)]
        a(f'v_mfma_f32_16x16x32_bf16 v[{Y}:{Y+3}], v[{AW[i]}:{AW[i]+3}], v[{r}:{r+3}], {"0" if i == 0 else f"v[{Y}:{Y+3}]"}')
    a('; gather normalised o of batch 1, project onto an 80-column slice of wo / w2')
    a('L_poll1:')
    a('s_waitcnt vmcnt(0)')
    tag_check(range(O, O + 4), X, X2)
    a(f'v_add_f32 v{O+4}, v{O}, v{O+1}')
    a(f'v_add_f32 v{O+5}, v{O+2}, v{O+3}')
    a('s_cbranch_vccz L_poll1d')
    if psleep: a(f's_sleep {psleep}')
    poll1()
    a('s_sub_u32 s92, s92, 1')
    a('s_cbranch_scc0 L_poll1')
    a('s_endpgm')
    a('L_poll1d:')
    stamp(6)
    a(f'v_add_f32 v{O}, v{O+4}, v{O+5}')
    a(f'v_add_f32_dpp v{O}, v{O}, v{O} row_ror:8 {DPP}')
    a(f'v_cvt_pk_bf16_f32 v{O}, v{O}, v{O}')
    for p in range(7):
        if p < 6:
            for r in range(4):
                a(f'v_and_b32_dpp v{AP[p]+r}, v{O}, v{M0+r} row_newbcast:{p} row_mask:0xf bank_mask:0xc')
        if p > 0:
            r0 = slot[('wo', p - 1)]; A = AP[p - 1]
            a(f'v_mfma_f32_16x16x32_bf16 v[{Y}:{Y+3}], v[{A}:{A+3}], v[{r0}:{r0+3}], v[{Y}:{Y+3}]')
    a('s_mov_b32 exec_lo, 0x03ff03ff')
    a('s_mov_b32 exec_hi, 0x03ff03ff')
    a(f's_cmp_ge_u32 s3, {ycon if ycon else 5}')
    a(f'ds_write_b128 v{vYW}, v[{Y}:{Y+3}] offset:{YP}')
    a('s_mov_b64 exec, -1')
    a('s_waitcnt lgkmcnt(0)')
    a('s_barrier')
    if junk:
        a('s_cbranch_scc0 L_nojunk')
        a('s_cmp_lg_u32 s3, 7')
        a('s_cbranch_scc1 L_fin')
        a('s_lshl_b32 s82, s2, 12')
        a(f's_add_u32 s82, s82, {3 << 20}')
        a('v_lshlrev_b32 v5, 4, v1')
        for i in range(junk): a(f'buffer_store_dwordx4 v[24:27], v5, s[68:71], s82 offen offset:{i*1024} {junkflag}')
        a('s_branch L_fin')
        a('L_nojunk:')
    else:
        a('s_cbranch_scc1 L_fin')
    R2 = 28
    if ycon == 1:
        YB = [8, 12, 16, 20, 28, 32, 40, 44]
        a('s_mov_b32 exec_hi, 0xff')
        for p in range(8): a(f'ds_read_b128 v[{YB[p]}:{YB[p]+3}], v{vYR} offset:{YP + p*640}')
        for st, w in ((1, (6, 4, 2, 0)), (2, None), (4, None)):
            for i, p in enumerate(range(0, 8, 2 * st)):
                if w: a(f's_waitcnt lgkmcnt({w[i]})')
                for r in (0, 2): a(f'v_pk_add_f32 v[{YB[p]+r}:{YB[p]+r+1}], v[{YB[p]+r}:{YB[p]+r+1}], v[{YB[p+st]+r}:{YB[p+st]+r+1}]')
        tag_apply(range(8, 12), 75)
        a(f'buffer_store_dwordx4 v[8:11], v{vYR}, s[68:71], s101 offen sc1')
        a('s_mov_b32 exec_hi, -1')
    elif ycon == 2:
        YB = [8, 12, 16, 20]
        for p in range(4): a(f'ds_read_b128 v[{YB[p]}:{YB[p]+3}], v{vYR} offset:{YP + p*640}')
        for st, w in ((1, (2, 0)), (2, None)):
            for i, p in enumerate(range(0, 4, 2 * st)):
                if w: a(f's_waitcnt lgkmcnt({w[i]})')
                for r in (0, 2): a(f'v_pk_add_f32 v[{YB[p]+r}:{YB[p]+r+1}], v[{YB[p]+r}:{YB[p]+r+1}], v[{YB[p+st]+r}:{YB[p+st]+r+1}]')
        for r in range(4): a(f'v_permlane32_swap_b32 v{8+r}, v{12+r}')
        for r in (0, 2): a(f'v_pk_add_f32 v[{8+r}:{9+r}], v[{8+r}:{9+r}], v[{12+r}:{13+r}]')
        tag_apply(range(8, 12), 75)
        a('s_mov_b64 exec, 0xfffff')
        a(f'buffer_store_dwordx4 v[8:11], v{vYR}, s[68:71], s101 offen sc1')
        a('s_mov_b64 exec, -1')
    else:
        a(f'ds_read_b128 v[{R2}:{R2+3}], v{vYR} offset:{YP}')
        a('s_waitcnt lgkmcnt(0)')
    if ycon: pass
    elif ytr:
        a(f'v_permlane16_swap_b32 v{R2}, v{R2+1}')
        a(f'v_permlane16_swap_b32 v{R2+2}, v{R2+3}')
        a(f'v_add_f32 v{R2}, v{R2}, v{R2+1}')
        a(f'v_add_f32 v{R2+2}, v{R2+2}, v{R2+3}')
        a(f'v_permlane32_swap_b32 v{R2}, v{R2+2}')
        a(f'v_add_f32 v{R2}, v{R2}, v{R2+2}')
        a(f'v_add_f32_dpp v{R2}, v{R2}, v{R2} row_ror:8 {DPP}')
        tag_apply([R2], 75)
        a(f'buffer_store_dword v{R2}, v{vRG1}, s[68:71], s101 offen {"" if remap & 4 else "sc1"}')
    else:
        for pat in RED8:
            for i in range(4):
                a(f'v_add_f32_dpp v{R2+i}, v{R2+i}, v{R2+i} {pat} {DPP}')
        tag_apply(range(R2, R2 + 4), 75)
        a(f'buffer_store_dwordx4 v[{R2}:{R2+3}], v{vRG}, s[68:71], s101 offen sc1')
    a('L_fin:')
    if stamps:
        stamp(8, True)
        if not est: a(f'v_writelane_b32 v{VST}, s96, 7')
        a('L_probe:')
        if probe is not None:
            i, K, base, j0, who = probe
            a('s_cmp_eq_u32 s3, 8')
            if who == 's': a('s_cbranch_scc1 L_end')
            if who == 'h': a('s_cbranch_scc0 L_end')
            a(f'v_readlane_b32 s82, v{VST}, 0')
            a(f'v_readlane_b32 s83, v{VST}, {i}')
            a(f'v_readlane_b32 s84, v{VST}, {j0}')
            a('s_sub_u32 s83, s83, s84')
            a(f's_mul_i32 s83, s83, {K}')
            a(f's_add_u32 s83, s83, {base}')
            a('L_spin:')
            a('s_sleep 2')
            a('s_memrealtime s[96:97]')
            a('s_waitcnt lgkmcnt(0)')
            a('s_sub_u32 s84, s96, s82')
            a('s_cmp_lt_u32 s84, s83')
            a('s_cbranch_scc1 L_spin')
        else:
            a('s_cmp_eq_u32 s3, 8')
            a('s_cbranch_scc1 L_nosl')
            a('s_sleep 127')
            a('s_sleep 127')
            a('L_nosl:')
            a('s_mul_i32 s82, s2, 9')
            a('s_add_u32 s82, s82, s3')
            a('s_lshl_b32 s82, s82, 8')
            a(f's_add_u32 s82, s82, {STAMP_OFF}')
            a('v_lshlrev_b32 v5, 2, v1')
            a(f'buffer_store_dword v{VST}, v5, s[68:71], s82 offen')
    a('L_end:')
    a('s_endpgm')

    a.vm = []; a.vm_done = 0
    a('L_helper:')
    inhelper[0] = True
    if hprio: a(f's_setprio {hprio}')
    if kfirst: kargs()
    a('v_mul_u32_u24 v3, 122880, v6')
    a('v_add_u32 v3, v3, v5')
    a('v_mul_u32_u24 v4, 30720, v6')
    a('v_add_u32 v4, v4, v5')
    a(f'v_mov_b32 v2, {OOB}')
    a('v_cmp_gt_u32 vcc, 6, v7')
    a('v_cndmask_b32 v4, v2, v4, vcc')
    a('v_mul_u32_u24 v8, 20, v6')
    a('v_lshlrev_b32 v9, 4, v1')
    a('v_mov_b32 v73, 0')
    if not eb:
        a(f'ds_write_b32 v73, v73 offset:{FLAG}')
        a(f'ds_write_b32 v73, v73 offset:{FL}')
        a(f'v_mov_b32 v10, {8*D}')
        a(f'ds_write_b32 v73, v10 offset:{CNT}')
    HM = 12; HA = 16; HACC = 24; HX = 56
    a('s_mul_i32 s83, s31, 983040')
    a('s_mul_i32 s84, s30, 384')
    a('s_add_u32 s83, s83, s84')
    a('s_mul_i32 s85, s31, 245760')
    a('s_mul_i32 s84, s30, 96')
    a('s_add_u32 s85, s85, s84')
    a('s_mul_i32 s98, s31, 160')
    for r in (43, 47, 59, 63, 67):
        a(f's_mov_b32 s{r}, 0x20000')
    a('s_sub_u32 s42, 7864320, s83')
    a('s_sub_u32 s46, 1966080, s85')
    if dbg_nowq & 1: a('s_mov_b32 s42, 0')
    if dbg_nowq & 2: a('s_mov_b32 s46, 0')
    a('s_sub_u32 s58, 2560, s98')
    a('s_sub_u32 s62, 1280, s98')
    a('s_mov_b32 s66, 96')
    a('s_waitcnt lgkmcnt(0)')
    srd(56, 4, 's98'); srd(40, 10, 's83'); srd(44, 16, 's85'); srd(60, 22, 's98'); srd(64, 18, 's84')
    a.vmem(f'buffer_load_dwordx4 v[{HX}:{HX+3}], v8, s[56:59], 0 offen')
    a.vmem(f'buffer_load_dword v{HX+4}, v8, s[56:59], 0 offen offset:16')
    a.vmem(f'buffer_load_dwordx4 v[{HX+6}:{HX+9}], v8, s[56:59], 0 offen offset:1280')
    a.vmem(f'buffer_load_dword v{HX+10}, v8, s[56:59], 0 offen offset:1296')
    hfree = list(range(76, top, 4))
    hslot = {}
    def hissue(tag):
        r = hfree.pop(0); hslot[tag] = r
        t = tag[0]
        if tag[1] == 0 and t:
            a(f's_mov_b32 s87, {t*12288}'); a(f's_mov_b32 s86, {t*3072}')
        if tag[1] < 3:
            a.vmem(f'buffer_load_dwordx4 v[{r}:{r+3}], v3, s[40:43], {"s87" if t else "0"} offen offset:{tag[1]*128} {w_cache}', tag)
        else:
            a.vmem(f'buffer_load_dwordx4 v[{r}:{r+3}], v4, s[44:47], {"s86" if t else "0"} offen {w_cache}', tag)
    hl = [(t, s) for t in range(10) for s in range(4)]
    nfirst = min(hwin, len(hfree)) // 4 * 4
    for tag in hl[:nfirst]: hissue(tag)
    hl = hl[nfirst:]
    dma = []
    if hdma:
        dma = list(hl); hl = []
        for i, tag in enumerate(dma):
            t = tag[0]
            if tag[1] == 0:
                a(f's_mov_b32 s87, {t*12288}'); a(f's_mov_b32 s86, {t*3072}')
            if tag[1] < 3:
                a(f's_mov_b32 m0, {i*1024 - tag[1]*128}')
                a.vmem(f'buffer_load_dwordx4 v3, s[40:43], s87 offen offset:{tag[1]*128} {w_cache} lds', tag)
            else:
                a(f's_mov_b32 m0, {i*1024}')
                a.vmem(f'buffer_load_dwordx4 v4, s[44:47], s86 offen {w_cache} lds', tag)
    a.vmem(f'buffer_load_dwordx4 v[{HX+12}:{HX+15}], v8, s[60:63], 0 offen')
    a.vmem(f'buffer_load_dword v{HX+16}, v8, s[60:63], 0 offen offset:16')
    a('v_and_b32 v10, 15, v1')
    a('v_lshlrev_b32 v10, 3, v10')
    a.vmem(f'buffer_load_dwordx2 v[74:75], v10, s[64:67], 0 offen', 'b1')
    if not eb and hbar < 0: a('s_barrier')
    if hnear:
        a('s_branch L_helper2')
        a('@HEAD_END@')
        a('L_helper2:')
    a('s_mov_b32 s89, 0x01000100')
    a('s_mov_b32 s90, 0x03020302')
    a('s_mov_b32 s91, 0x3f803f80')
    masks(HM, 10, 11)
    ws_setup()
    if qpre:
        a(f's_add_u32 s82, s99, {FAST}')
        a.vmem(f'buffer_load_dword v{top}, v9, s[68:71], s82 offen')
        a.vmem(f'buffer_load_dword v{top}, v9, s[68:71], s82 offen offset:1024')
    if allpre:
        a('; touch the hand-off lines this workgroup writes later (values are not used)')
        a('v_lshlrev_b32 v2, 7, v1')
        if allpre & 16:
            a(f's_add_u32 s82, s99, {FAST}')
            a('s_mov_b64 exec, 0xffff')
            a.vmem(f'buffer_load_dword v{top}, v2, s[68:71], s82 offen')
        if allpre & 1:
            a('s_mov_b64 exec, 0xffff')
            a.vmem(f'buffer_load_dword v{top}, v2, s[68:71], s100 offen')
        if allpre & 2:
            a('s_mov_b64 exec, 31')
            a.vmem(f'buffer_load_dword v{top}, v2, s[68:71], s101 offen')
        if allpre & 4:
            a('s_and_b32 s82, s2, 7')
            a('s_mul_i32 s83, s82, 4352')
            a(f's_add_u32 s83, s83, {MBOX}')
            a('s_mov_b64 exec, 3')
            a.vmem(f'buffer_load_dword v{top}, v2, s[68:71], s83 offen')
        if allpre & 8:
            a('s_and_b32 s82, s2, 7')
            a(f's_mul_i32 s83, s82, {GS}')
            a(f's_add_u32 s83, s83, {GBOX}')
            a('s_mov_b64 exec, -1')
            a(f'v_mul_u32_u24 v2, {8*GS}, v1')
            a('s_cmp_ge_u32 s2, 248')
            a('s_cselect_b32 s82, 0x3ff, 0')
            a('s_cbranch_scc0 L_nogp')
            a('s_mov_b64 exec, 0x3ff')
            a(f'buffer_load_dword v{top}, v2, s[68:71], s83 offen')
            a('L_nogp:')
        a('s_mov_b64 exec, -1')
    stamp(1)
    hai = 0
    for t in range(10):
        a.wait_tag((t, 3))
        if not eb and hbar == t: a('s_barrier')
        if (t, 0) in dma:
            for s in range(4):
                r = hfree.pop(0); hslot[(t, s)] = r
                a(f'ds_read_b128 v[{r}:{r+3}], v9 offset:{dma.index((t, s))*1024}')
            a('s_waitcnt lgkmcnt(0)')
        for bb in range(2):
            xr = HX + 6 * bb + t // 2
            a(f'v_perm_b32 v11, v{xr}, v{xr}, s{89 + (t & 1)}')
            A = HA + 4 * (hai & 1); hai += 1
            for r in range(4): a(f'v_and_b32 v{A+r}, v11, v{HM+r}')
            for s in range(4):
                r = hslot[(t, s)]; acc = HACC + 16 * bb + 4 * s
                c = '0' if t == 0 else f'v[{acc}:{acc+3}]'
                a(f'v_mfma_f32_16x16x32_bf16 v[{acc}:{acc+3}], v[{A}:{A+3}], v[{r}:{r+3}], {c}')
        for s in range(4): hfree.append(hslot[(t, s)])
        for tag in hl[:4]: hissue(tag)
        hl = hl[4:]
        if t == (9 if hdma else 6):
            a.wait_tag('b1')
            for bb, Gr in ((0, 61), (1, 67)):
                for i in range(5):
                    if gmimic:
                        xr, gr = HX + 6 * bb + i, HX + 12 + i
                        a(f'v_lshlrev_b32 v2, 16, v{xr}')
                        a(f'v_lshlrev_b32 v10, 16, v{gr}')
                        a('v_mul_f32 v2, v2, v10')
                        a(f'v_and_b32 v8, 0xffff0000, v{xr}')
                        a(f'v_and_b32 v10, 0xffff0000, v{gr}')
                        a('v_mul_f32 v8, v8, v10')
                        a('v_cvt_pk_bf16_f32 v2, v2, v8')
                        a(f'v_dot2_f32_bf16 v{Gr}, v2, s91, {"0" if i == 0 else f"v{Gr}"}')
                    else:
                        a(f'v_dot2_f32_bf16 v{Gr}, v{HX+6*bb+i}, v{HX+12+i}, {"0" if i == 0 else f"v{Gr}"}')
            xlane('v_add_f32', 61, 10)
            xlane('v_add_f32', 67, 10)
    stamp(2)
    a('v_lshrrev_b32 v16, 5, v1')
    a('v_lshlrev_b32 v16, 10, v16')
    a('v_and_b32 v11, 1, v6')
    a('v_lshl_add_u32 v16, v11, 8, v16')
    a('v_lshl_add_u32 v16, v7, 5, v16')
    a('v_bfe_u32 v11, v1, 4, 1')
    a('v_lshl_add_u32 v16, v11, 4, v16')
    for s in range(4):
        for r in range(4):
            a(f'v_permlane32_swap_b32 v{HACC+4*s+r}, v{HACC+16+4*s+r}')
    P = 76
    for u in range(2):
        for r in range(4):
            Ae, Be = HACC + 8 * u + r, HACC + 16 + 8 * u + r
            a(f'v_add_f32_dpp v{P+4*u+r}, v{Be}, v{Ae} row_ror:8 {DPP}')
        for r in range(4):
            Ao, Bo = HACC + 8 * u + 4 + r, HACC + 16 + 8 * u + 4 + r
            a(f'v_add_f32_dpp v{P+4*u+r}, v{Ao}, v{Bo} row_ror:8 row_mask:0xf bank_mask:0xc')
    a(f's_mov_b64 exec, {1 << 14}')
    a(f'v_mov_b32 v{P+4}, v61')
    a('s_mov_b32 exec_lo, 0')
    a(f's_mov_b32 exec_hi, {1 << 14}')
    a(f'v_mov_b32 v{P+4}, v67')
    a('s_mov_b64 exec, -1')
    a('s_getreg_b32 s88, hwreg(HW_REG_XCC_ID)')
    a('s_and_b32 s88, s88, 15')
    a('s_lshl_b32 s88, s88, 23')
    a(f'v_writelane_b32 v{P+5}, s88, 14')
    a('s_waitcnt lgkmcnt(0)')
    tag_finish()
    a('v_mov_b32 v11, s78')
    tag_apply(range(P, P + 8), 11)
    slow_q = [f'buffer_store_dwordx4 v[{P}:{P+3}], v16, s[68:71], s99 offen sc1',
              f'buffer_store_dwordx4 v[{P+4}:{P+7}], v16, s[68:71], s99 offen offset:512 sc1']
    a(f's_add_u32 s82, s99, {FAST}')
    a(f'buffer_store_dwordx4 v[{P}:{P+3}], v16, s[68:71], s82 offen')
    a(f'buffer_store_dwordx4 v[{P+4}:{P+7}], v16, s[68:71], s82 offen offset:512')
    stamp(3)
    a('@TPRE@')
    a('v_add_u32 v12, 4096, v9')
    a('s_lshl_b32 s93, s30, 14')
    a(f's_add_u32 s93, s93, {FAST}')
    a('s_add_u32 s94, s93, 8192')
    a(f's_mov_b32 s76, {nfast}')
    a('v_lshlrev_b32 v17, 11, v6')
    a('v_and_b32 v18, 3, v1')
    a('v_lshl_add_u32 v17, v18, 4, v17')
    a('v_bfe_u32 v18, v1, 2, 1')
    a('v_lshl_add_u32 v17, v18, 9, v17')
    stamp(4)
    QD = [24, 84]
    a('; gather q / hidden / gate partials of the 8 workgroups of this head')
    a('L_qpoll:')
    if sind:
        a('s_add_u32 s40, s28, s93')
        a('s_addc_u32 s41, s29, 0')
        for p in range(8): a(f's_load_dword s{44+p}, s[40:41], {p*2048 + 1536} glc')
        a('s_waitcnt lgkmcnt(0)')
        for p in range(8): a(f's_xor_b32 s{44+p}, s{44+p}, s78')
        for p in range(1, 8): a(f's_or_b32 s44, s44, s{44+p}')
        a(f's_and_b32 s44, s44, {TM}')
        a('s_cbranch_scc1 L_qfail')
    else:
        a(f'buffer_load_dwordx4 v[24:27], v17, s[68:71], s93 offen sc1')
        a('s_waitcnt vmcnt(0)')
        tag_check(range(24, 28), 14, 15)
        a('s_cbranch_vccnz L_qfail')
    for b in range(2):
        for p in range(8):
            vo = 'v9' if (p & 3) < 2 else 'v12'
            so = 's93' if p < 4 else 's94'
            a(f'buffer_load_dwordx4 v[{QD[b]+4*p}:{QD[b]+4*p+3}], {vo}, s[68:71], {so} offen offset:{(p & 1)*2048 + b*1024} sc1')
    a('s_waitcnt vmcnt(0)')
    tag_check(list(range(QD[0], QD[0] + 32)) + list(range(QD[1], QD[1] + 32)), 14, 15)
    a('s_cbranch_vccz L_qok0')
    a('L_qfail:')
    if qsleep: a(f's_sleep {qsleep}')
    a('s_sub_u32 s76, s76, 1')
    a('s_cbranch_scc0 L_qnosw')
    for t in slow_q: a(t)
    a('L_qnosw:')
    a('s_cmp_lt_i32 s76, 0')
    a(f's_cselect_b32 s82, {FAST}, 0')
    for r in (93, 94): a(f's_xor_b32 s{r}, s{r}, s82')
    a('s_sub_u32 s92, s92, 1')
    a('s_cbranch_scc0 L_qpoll')
    a('s_endpgm')
    a('L_qok0:')
    for p in range(8): a(f'v_xor_b32 v{56+p}, s88, v{QD[0]+4*p+1}')
    a('v_or3_b32 v14, v56, v57, v58')
    a('v_or3_b32 v15, v59, v60, v61')
    a('v_or3_b32 v14, v14, v62, v63')
    a('v_or_b32 v14, v14, v15')
    a('v_readlane_b32 s86, v14, 60')
    a('s_cmp_lg_u32 s86, 0')
    a('s_cselect_b32 s86, 2, 1')
    a('s_cbranch_scc0 L_qok')
    a('s_cmp_lt_i32 s76, 0')
    a('s_cbranch_scc1 L_qok')
    for t in slow_q: a(t)
    a('L_qok:')
    a('v_lshlrev_b32 v10, 3, v1')
    for b in range(2):
        for st in (4, 8, 16):
            for b0 in range(QD[b], QD[b] + 32, 2 * st):
                for r in range(4): a(f'v_add_f32 v{b0+r}, v{b0+r}, v{b0+st+r}')
        a(f'v_cvt_pk_bf16_f32 v{QD[b]+4}, v{QD[b]}, v{QD[b]+1}')
        a(f'v_cvt_pk_bf16_f32 v{QD[b]+5}, v{QD[b]+2}, v{QD[b]+3}')
        a(f'ds_write_b64 v10, v[{QD[b]+4}:{QD[b]+5}] offset:{QBF + 512*b}')
    a('v_mov_b32 v10, s86')
    a(f'ds_write_b32 v73, v10 offset:{FLAG}')
    stamp(5)
    HD = QD[1]
    for r in range(4): a(f'v_permlane16_swap_b32 v{QD[0]+r}, v{HD+r}')
    Gq = 32; OMG = 33
    a(f'v_mov_b32_dpp v{Gq}, v{HD} row_newbcast:12 {DPP}')
    a(f'v_cvt_pk_bf16_f32 v{Gq}, v{Gq}, v{Gq}')
    a(f'v_and_b32 v{Gq}, 0xffff0000, v{Gq}')
    a(f'v_mul_f32 v{Gq}, {f2u(-LOG2E)}, v{Gq}')
    a(f'v_exp_f32 v{Gq}, v{Gq}')
    a(f'v_add_f32 v{Gq}, 1.0, v{Gq}')
    a(f'v_rcp_f32 v{Gq}, v{Gq}')
    a(f'v_cvt_pk_bf16_f32 v{Gq}, v{Gq}, v{Gq}')
    a(f'v_and_b32 v{Gq}, 0xffff0000, v{Gq}')
    a(f'v_sub_f32 v{OMG}, 1.0, v{Gq}')
    a(f'v_cvt_pk_bf16_f32 v{OMG}, v{OMG}, v{OMG}')
    a(f'v_and_b32 v{OMG}, 0xffff0000, v{OMG}')
    a(f's_mov_b32 s83, {f2u(-LOG2E)}')
    for pr in range(2):
        h0, h1 = HD + 2 * pr, HD + 2 * pr + 1
        a(f'v_cvt_pk_bf16_f32 v{h0}, v{h0}, v{h1}')
        a(f'v_and_b32 v{h1}, 0xffff0000, v{h0}')
        a(f'v_lshlrev_b32 v{h0}, 16, v{h0}')
        a(f'v_and_b32 v35, 0xffff0000, v{74+pr}')
        a(f'v_lshlrev_b32 v34, 16, v{74+pr}')
        a(f'v_add_f32 v{h0}, v{h0}, v34')
        a(f'v_add_f32 v{h1}, v{h1}, v35')
        a(f'v_cvt_pk_bf16_f32 v{h0}, v{h0}, v{h1}')
        a(f'v_and_b32 v{h1}, 0xffff0000, v{h0}')
        a(f'v_lshlrev_b32 v{h0}, 16, v{h0}')
    for i in range(4):
        h = HD + i; t = 36; tq = 37; nu = 38; de = 39
        a(f'v_mul_f32 v{t}, s83, abs(v{h})')
        a(f'v_exp_f32 v{t}, v{t}')
        a(f'v_cmp_lt_f32 vcc, 0, v{h}')
        a(f'v_mul_f32 v{tq}, v{t}, v{t}')
        a(f'v_cndmask_b32 v{nu}, v{tq}, 1.0, vcc')
        a(f'v_cndmask_b32 v{de}, 1.0, v{tq}, vcc')
        a(f'v_fma_f32 v{nu}, v{t}, 2.0, v{nu}')
        a(f'v_fma_f32 v{de}, v{de}, 2.0, v{nu}')
        a(f'v_rcp_f32 v{de}, v{de}')
        a(f'v_mul_f32 v{nu}, v{nu}, v{h}')
        a(f'v_mul_f32 v{nu}, v{nu}, v{de}')
        a(f'v_cvt_pk_bf16_f32 v{nu}, v{nu}, v{nu}')
        a(f'v_and_b32 v{nu}, 0xffff0000, v{nu}')
        a(f'v_mul_f32 v{nu}, v{nu}, v{OMG}')
        a(f'v_cvt_pk_bf16_f32 v{40+i}, v{nu}, v{nu}')
    a('v_and_b32 v10, 31, v1')
    a('v_lshlrev_b32 v11, 2, v10')
    a('v_lshlrev_b32 v10, 4, v10')
    a('s_mov_b32 exec_lo, 0')
    a(f'ds_write_b32 v11, v{Gq} offset:{GV}')
    a(f'ds_write_b128 v10, v[40:43] offset:{ACT}')
    a('s_mov_b64 exec, 1')
    a('v_mov_b32 v10, 1')
    a(f'ds_add_u32 v73, v10 offset:{FL}')
    a('s_mov_b64 exec, -1')
    a('s_waitcnt lgkmcnt(0)')
    stamp(6)
    def tlbpre():
        a('s_mul_i32 s82, s30, 1572864')
        a('v_and_b32 v21, 1, v1')
        a('v_mul_u32_u24 v21, 1572736, v21')
        a('v_bfe_u32 v22, v1, 1, 1')
        a('s_mov_b32 s83, 50331648')
        a('v_mul_lo_u32 v22, v22, s83')
        a('v_add3_u32 v21, v21, v22, s82')
        a('s_mul_i32 s82, s30, 245760')
        a('v_mov_b32 v22, s82')
        a('s_mul_i32 s82, s30, 61440')
        a('v_mov_b32 v23, s82')
        a('s_mov_b64 exec, 15')
        a(f'global_load_dword v{top}, v21, s[6:7] nt')
        a(f'global_load_dword v{top}, v21, s[8:9] nt')
        a('s_mov_b64 exec, 1')
        a(f'global_load_dword v{top}, v22, s[12:13] nt')
        a(f'global_load_dword v{top}, v23, s[20:21] nt')
        a(f'global_load_dword v{top}, v73, s[24:25] nt')
        a('s_mov_b64 exec, -1')
    if tpre == 2: tlbpre()
    if opre == 1:
        a(f'buffer_load_dword v{top}, v9, s[68:71], s100 offen')
        a(f'buffer_load_dword v{top}, v9, s[68:71], s100 offen offset:1024')
    if opre == 2: a('v_mov_b32 v20, v9')
    if ypre:
        a('s_mov_b32 exec_hi, 0xff')
        a('buffer_load_dwordx4 v[44:47], v9, s[68:71], s101 offen')
    if ctl:
        a('s_and_b32 s82, s2, 7')
        a('s_mul_i32 s82, s82, 4352')
        a(f's_add_u32 s82, s82, {MBOX}')
        a('s_lshr_b32 s83, s2, 3')
        a('s_lshl_b32 s83, s83, 2')
        a('s_add_u32 s83, s83, s82')
        a('s_and_b32 s84, s79, 0x3fffff')
        a('s_mov_b32 s85, 0')
        if glob:
            a('v_lshlrev_b32 v11, 2, v1')
            a(f'v_mul_u32_u24 v13, {GS}, v1')
            a('s_cmp_ge_u32 s2, 248')
            a(f's_cselect_b32 s60, {gP0}, -1')
            a(f's_mov_b32 s61, {GBOX}')
            a('s_and_b32 s59, s2, 7')
            a(f's_mul_i32 s58, s59, {GS}')
            a('s_add_u32 s43, s82, 128')
            a('s_mov_b32 s57, 0')
        a('s_mov_b32 exec_hi, 0')
        if cpre == 3:
            code_base('L_pc2')
            a('s_lshr_b32 s45, s2, 3')
            a('s_mul_i32 s45, s45, 640')
            a('v_lshl_add_u32 v17, v1, 7, s45')
            a(f'v_min_u32 v17, L_codeend-{KNAME}_kernel-4, v17')
        a('L_c:')
        if cpre == 3:
            a('s_mov_b32 exec_lo, 31')
            a('global_load_dword v18, v17, s[40:41] sc1')
            a('s_mov_b32 exec_lo, -1')
        a(f'ds_read_b32 v10, v73 offset:{CNT}')
        if xphase: a('s_memrealtime s[62:63]')
        a('s_waitcnt lgkmcnt(0)')
        a('v_subrev_u32 v10, s85, v10')
        if xphase:
            a(f's_mul_i32 s64, s62, {rmul}')
            a('s_lshr_b32 s64, s64, 8')
            a('v_subrev_u32 v16, s64, v10')
            a('v_lshl_or_b32 v12, v16, 22, s84')
        else:
            a('v_lshl_or_b32 v12, v10, 22, s84')
        a('s_mov_b32 exec_lo, 1')
        a('buffer_store_dword v12, off, s[68:71], s83')
        a('s_mov_b32 exec_lo, -1')
        if glob: a('s_mov_b32 exec_hi, 1')
        a('buffer_load_dword v9, v11, s[68:71], s82 offen sc1')
        if glob: a('s_mov_b32 exec_hi, 0')
        a('v_readfirstlane_b32 s86, v10')
        if glob:
            a('s_cmp_lt_u32 s86, s60')
            a('s_cbranch_scc1 L_g1')
            if not xphase: a('s_memrealtime s[62:63]')
            a('s_mov_b32 exec_lo, 0xff')
            a('buffer_load_dword v14, v13, s[68:71], s61 offen sc1')
            a('s_mov_b32 exec_lo, -1')
            a('L_g1:')
        a('s_waitcnt vmcnt(0)')
        if glob:
            a('v_readlane_b32 s44, v9, 32')
            a('s_and_b32 s45, s44, 0x3fffff')
            a('s_ashr_i32 s44, s44, 22')
            a('s_cmp_eq_u32 s45, s84')
            a('s_cselect_b32 s44, s44, 0')
        if xphase:
            a('v_sub_u32 v9, v9, v12')
            a('v_and_b32 v12, 0x3fffff, v9')
            a('v_ashrrev_i32 v9, 22, v9')
            a('v_cmp_eq_u32 vcc, 0, v12')
            a('v_cndmask_b32 v9, 0, v9, vcc')
            a(f'v_add3_u32 v9, v9, v10, {comp}')
        else:
            a('v_and_b32 v12, 0x3fffff, v9')
            a('v_lshrrev_b32 v9, 22, v9')
            a(f'v_add_u32 v9, {comp}, v9')
            a('v_cmp_eq_u32 vcc, s84, v12')
            a('v_cndmask_b32 v9, v10, v9, vcc')
        for pat in RED8 + ('row_mirror',):
            a(f'v_add_u32_dpp v9, v9, v9 {pat} {DPP}')
        a('v_readlane_b32 s87, v9, 0')
        a('v_readlane_b32 s88, v9, 16')
        a('s_add_u32 s87, s87, s88')
        a('s_lshr_b32 s87, s87, 5')
        if glob:
            a('s_cmp_lt_u32 s86, s60')
            a('s_cbranch_scc1 L_g2')
            a('s_waitcnt lgkmcnt(0)')
            a(f's_mul_i32 s64, s62, {rmul}')
            a('s_lshr_b32 s64, s64, 8')
            a('s_sub_u32 s64, s87, s64')
            a('s_lshl_b32 s64, s64, 22')
            a('s_or_b32 s64, s64, s84')
            a(f's_add_u32 s61, s61, {8*GS}')
            a('s_add_u32 s45, s61, s58')
            a('v_mov_b32 v12, s64')
            a('s_mov_b32 exec_lo, 1')
            a('buffer_store_dword v12, off, s[68:71], s45 sc1')
            a('s_mov_b32 exec_lo, 0xff')
            a(f's_add_u32 s60, s60, {gD}')
            a(f's_cmp_gt_u32 s60, {gend}')
            a('s_cselect_b32 s60, -1, s60')
            a('v_subrev_u32 v14, s57, v14')
            a('v_and_b32 v12, 0x3fffff, v14')
            a('v_ashrrev_i32 v14, 22, v14')
            a('v_cmp_eq_u32 vcc, 0, v12')
            a(f'v_cndmask_b32 v14, {-min(gD, 16) if False else 0}, v14, vcc') if False else None
            a(f'v_mov_b32 v15, {-gD}')
            a('v_cndmask_b32 v14, v15, v14, vcc')
            for pat in RED8:
                a(f'v_add_u32_dpp v14, v14, v14 {pat} {DPP}')
            a('v_readfirstlane_b32 s46, v14')
            if gsw:
                a(f's_cmp_ge_u32 s86, {gsw}')
                a(f's_cselect_b32 s45, {gnum2}, {gnum}')
                a('s_mul_i32 s46, s46, s45')
            elif gnum != 1: a(f's_mul_i32 s46, s46, {gnum}')
            a(f's_ashr_i32 s46, s46, {3 + gsh2}')
            a(f's_min_i32 s46, s46, {gclamp}')
            a(f's_max_i32 s46, s46, {-gclamp}')
            a('s_cmp_eq_u32 s57, 0')
            a('s_cselect_b32 s46, 0, s46')
            a('s_mov_b32 s57, s64')
            a('s_lshl_b32 s46, s46, 22')
            a('s_or_b32 s46, s46, s84')
            a('v_mov_b32 v12, s46')
            a('s_mov_b32 exec_lo, 1')
            a('buffer_store_dword v12, off, s[68:71], s43')
            a('s_mov_b32 exec_lo, -1')
            a('L_g2:')
        a('s_sub_i32 s87, s87, s86')
        if glob: a('s_add_i32 s87, s87, s44')
        a('s_sub_i32 s88, s87, s85')
        a('s_mov_b32 s85, s87')
        a('v_mov_b32 v9, s88')
        a('s_mov_b32 exec_lo, 1')
        a(f'ds_add_u32 v73, v9 offset:{CNT}')
        a('s_mov_b32 exec_lo, -1')
        if csleep: a(f's_sleep {csleep}')
        a(f's_cmp_ge_u32 s86, {cend}')
        a('s_cbranch_scc1 L_cd')
        a('s_sub_u32 s92, s92, 1')
        a('s_cbranch_scc0 L_c')
        a('s_endpgm')
        a('L_cd:')
    a('s_mov_b64 exec, -1')
    def wprefetch():
        a('s_lshl_b32 s82, s30, 3')
        a('s_add_u32 s82, s82, s31')
        a('s_mul_i32 s83, s82, 30720')
        srd(48, 12, 's83'); a('s_mov_b32 s50, 30720'); a('s_mov_b32 s51, 0x20000')
        a('s_mul_i32 s83, s82, 7680')
        srd(52, 20, 's83'); a('s_mov_b32 s54, 7680'); a('s_mov_b32 s55, 0x20000')
        a('v_lshlrev_b32 v21, 7, v1')
        if wpre == 2: a('s_barrier')
        for i in range(4):
            if i: a(f's_mov_b32 s83, {i*8192}')
            a(f'buffer_load_dword v{22+i}, v21, s[48:51], {"s83" if i else "0"} offen {wpre_cache}')
        a(f'buffer_load_dword v26, v21, s[52:55], 0 offen {wpre_cache}')
    if wpre: wprefetch()
    if opre == 2:
        a(f'buffer_load_dword v{top}, v20, s[68:71], s100 offen')
        a(f'buffer_load_dword v{top}, v20, s[68:71], s100 offen offset:1024')
    EXIT = 'L_end' if (probe is not None or not stamps) else 'L_hend'
    if ymapn in (3, 4):
        a('s_and_b32 s83, s2, 7')
        if ymapn == 3:
            a('s_lshr_b32 s82, s2, 6')
            a('s_lshl_b32 s82, s82, 3')
            a('s_add_u32 s82, s82, s83')
            a('s_cmp_ge_u32 s82, 20')
            a(f's_cbranch_scc1 {EXIT}')
        else:
            a('s_cmp_ge_u32 s83, 5')
            a(f's_cbranch_scc1 {EXIT}')
            a('s_lshl_b32 s82, s83, 1')
            a(f's_bfe_u32 s84, s2, {6 | (1 << 16)}')
            a('s_add_u32 s82, s82, s84')
            a('s_lshr_b32 s84, s2, 7')
            a('s_mul_i32 s84, s84, 10')
            a('s_add_u32 s82, s82, s84')
        a('s_lshl_b32 s85, s82, 3')
        a('s_add_u32 s85, s85, s31')
        a('s_cmp_ge_u32 s85, 80')
        a('s_cselect_b32 s84, 80, 0')
        a('s_cselect_b32 s81, 10, 0')
        a('s_sub_u32 s85, s85, s84')
        a('s_mul_i32 s82, s85, 205')
        a('s_lshr_b32 s82, s82, 11')
        a('s_mul_i32 s83, s82, 10')
        a('s_sub_u32 s83, s85, s83')
        a('s_add_u32 s83, s83, s81')
    elif (remap & 4) or ymap2:
        if not wpre:
            a('s_cmp_ge_u32 s2, 160')
            a(f's_cbranch_scc1 {EXIT}')
        a('s_and_b32 s82, s2, 7')
        a('s_lshr_b32 s83, s2, 3')
    else:
        if not wpre:
            a('s_cmp_ge_u32 s2, 160')
            a(f's_cbranch_scc1 {EXIT}')
        a('s_lshr_b32 s82, s2, 5')
        a('s_lshl_b32 s82, s82, 3')
        a('s_and_b32 s83, s2, 7')
        a('s_add_u32 s82, s82, s83')
        a('s_lshl_b32 s82, s82, 2')
        a(f's_bfe_u32 s83, s2, {3 | (2 << 16)}')
        a('s_add_u32 s85, s82, s83')
        a('s_mul_i32 s82, s85, 205')
        a('s_lshr_b32 s82, s82, 12')
        a('s_mul_i32 s83, s82, 20')
        a('s_sub_u32 s83, s85, s83')
    a('s_mul_i32 s84, s82, 20480')
    a('s_lshl_b32 s81, s83, 5')
    a('s_add_u32 s84, s84, s81')
    a(f's_add_u32 s98, s84, {YOFF}')
    srd(72, 24, None); a('s_mov_b32 s74, 2560'); a('s_mov_b32 s75, 0x20000')
    vF, vOUT, F = 8, 9, 28
    a(f'v_lshrrev_b32 v{vF}, 1, v1')
    a(f'v_mul_u32_u24 v{vF}, 640, v{vF}')
    a('v_and_b32 v10, 1, v1')
    a(f'v_lshl_add_u32 v{vF}, v10, 4, v{vF}')
    if ytr:
        a('s_mul_i32 s99, s82, 160')
        a('s_lshr_b32 s84, s83, 2')
        a('s_lshl_b32 s84, s84, 5')
        a('s_and_b32 s81, s83, 3')
        a('s_add_u32 s84, s84, s81')
        a(f'v_lshl_add_u32 v{vOUT}, v10, 4, s84')
        a('v_lshrrev_b32 v10, 4, v1')
        a(f'v_lshl_add_u32 v{vOUT}, v10, 2, v{vOUT}')
        a(f'v_cmp_lt_u32 vcc, 79, v{vOUT}')
        a(f'v_add_u32 v10, 560, v{vOUT}')
        a(f'v_cndmask_b32 v{vOUT}, v{vOUT}, v10, vcc')
        a(f'v_lshlrev_b32 v{vOUT}, 1, v{vOUT}')
    else:
        a('s_cmp_ge_u32 s83, 10')
        a('s_cselect_b32 s84, 1120, 0')
        a('s_lshl_b32 s81, s83, 4')
        a('s_add_u32 s84, s84, s81')
        a('s_mul_i32 s81, s82, 160')
        a('s_add_u32 s99, s84, s81')
        a(f'v_lshlrev_b32 v{vOUT}, 3, v10')
        a('v_lshrrev_b32 v10, 4, v1')
        a(f'v_lshl_add_u32 v{vOUT}, v10, 1, v{vOUT}')
    a('v_mov_b32 v11, s79')
    if outpre:
        a('s_mov_b64 exec, 1')
        a(f'buffer_load_ushort v27, v{vOUT}, s[72:75], s99 offen {"sc1" if outpre == 2 else ""}')
        a('s_mov_b64 exec, -1')
    a(f's_mov_b32 s82, {EOFF}')
    if ebump:
        a('s_cmp_lg_u32 s2, 0')
        a('s_cbranch_scc1 L_nobump')
        a('s_mov_b64 exec, 1')
        a(f'buffer_store_dword v11, off, s[68:71], s82 {"sc1" if ebump == 2 else ""}')
        a('s_mov_b64 exec, -1')
        a('L_nobump:')
    a('s_waitcnt lgkmcnt(0)')
    if wpre != 2: a('s_barrier')
    a('s_barrier')
    a('s_barrier')
    if wpre:
        a('s_cmp_ge_u32 s2, 160')
        a('s_cbranch_scc1 ' + ('L_end' if (probe is not None or not stamps) else 'L_hend'))
    stamp(7)
    if p2first: a(f's_sleep {p2first}')
    if np2 > 1:
        FS = [F + 4 + 4 * i for i in range(np2)]
        for i in range(np2):
            a(f'buffer_load_dwordx4 v[{FS[i]}:{FS[i]+3}], v{vF}, s[68:71], s98 offen sc1')
            if i < np2 - 1: a(f's_sleep {p2gap}')
        a('L_poll2:')
        for i in range(np2):
            a(f's_waitcnt vmcnt({np2-1})')
            for r in range(4): a(f'v_xor_b32 v{F+r}, s78, v{FS[i]+r}')
            a(f'v_or3_b32 v14, v{F}, v{F+1}, v{F+2}')
            a(f'v_or_b32 v14, v14, v{F+3}')
            a(f'v_and_b32 v14, {TM}, v14')
            a('v_cmp_ne_u32 vcc, 0, v14')
            a('s_cbranch_vccz L_poll2d')
            a('s_mov_b64 exec, vcc')
            a(f'buffer_load_dwordx4 v[{FS[i]}:{FS[i]+3}], v{vF}, s[68:71], s98 offen sc1')
            if psleep2: a(f's_sleep {psleep2}')
        a('s_sub_u32 s92, s92, 1')
        a('s_cbranch_scc0 L_poll2')
        a('s_endpgm')
    else:
        a('; final reduction over the 32 heads')
        a('L_poll2:')
        a(f'buffer_load_dwordx4 v[{F}:{F+3}], v{vF}, s[68:71], s98 offen sc1')
        a('s_waitcnt vmcnt(0)')
        tag_check(range(F, F + 4), 14, 15)
        a('s_cbranch_vccz L_poll2d')
        if pmask: a('s_mov_b64 exec, vcc')
        if psleep2: a(f's_sleep {psleep2}')
        a('s_sub_u32 s92, s92, 1')
        a('s_cbranch_scc0 L_poll2')
        a('s_endpgm')
    a('L_poll2d:')
    if pmask: a('s_mov_b64 exec, -1')
    a(f'v_permlane16_swap_b32 v{F}, v{F+1}')
    a(f'v_permlane16_swap_b32 v{F+2}, v{F+3}')
    a(f'v_add_f32 v{F}, v{F}, v{F+1}')
    a(f'v_add_f32 v{F+2}, v{F+2}, v{F+3}')
    a(f'v_permlane32_swap_b32 v{F}, v{F+2}')
    a(f'v_add_f32 v{F}, v{F}, v{F+2}')
    a(f'v_add_f32_dpp v{F}, v{F}, v{F} quad_perm:[2,3,0,1] {DPP}')
    a(f'v_add_f32_dpp v{F}, v{F}, v{F} row_ror:4 {DPP}')
    a(f'v_add_f32_dpp v{F}, v{F}, v{F} row_ror:8 {DPP}')
    a('s_mov_b32 exec_lo, 0x00030003')
    a('s_mov_b32 exec_hi, 0x00030003')
    a(f'v_cvt_pk_bf16_f32 v{F}, v{F}, v{F}')
    a(f'buffer_store_short v{F}, v{vOUT}, s[72:75], s99 offen {outflag}')
    if not ebump:
        a('s_cmp_lg_u32 s2, 0')
        a('s_cbranch_scc1 L_hend')
        a('s_mov_b64 exec, 1')
        a('buffer_store_dword v11, off, s[68:71], s82')
    a('L_hend:')
    if stamps:
        a('s_mov_b64 exec, -1')
        stamp(8)
        a('s_branch L_probe')
    a('s_endpgm')

    a('L_codeend:')
    ip = a.lines.index('@TPRE@')
    rest = a.lines[ip+1:]; a.lines = a.lines[:ip]
    if tpre == 1: tlbpre()
    a.lines += rest
    if hnear:
        L = a.lines
        i0 = L.index('L_helper:'); i1 = L.index('@HEAD_END@'); ih = L.index('@HELPER_HEAD@')
        head = L[i0:i1]
        a.lines = L[:ih] + head + L[ih+1:i0] + L[i1+1:]
    body = a.finalize()
    if warm:
        from asmlib import Ins
        def size(t):
            i = Ins(t)
            if i.label or i.directive or not i.op: return 0
            if i.vmem or i.ds or i.mfma or i.dpp or i.op.startswith('s_load') or i.op.startswith('s_mem'): return 8
            if i.op in ('v_dot2_f32_bf16', 'v_fma_f32', 'v_max3_f32', 'v_or3_b32', 'v_and_or_b32', 'v_cvt_pk_bf16_f32', 'v_perm_b32', 'v_lshl_add_u32', 'v_add3_u32', 'v_bfe_u32', 'v_readlane_b32', 'v_writelane_b32', 'v_pk_add_f32', 'v_lshl_or_b32'): return 8
            import re as _re
            for o in i.ops:
                if _re.fullmatch(r'-?(0x[0-9a-fA-F]+|\d+)', o) and not (-16 <= int(o, 0) <= 64) and i.op not in ('s_nop', 's_sleep'): return 8
            return 4
        i0 = body.index('L_nowarm:') + 1
        ih = body.index('L_helper:')
        pos = []; acc = 0
        for i in range(i0, len(body) - 2):
            acc += size(body[i])
            prev = body[i]
            if acc >= padb and 'exec_lo, 0' not in prev and not prev.startswith('s_getpc') :
                pos.append(i + 1); acc = 0
        order = [p for p in pos if p > ih] + [p for p in pos if p <= ih] if warm == 1 else pos
        name = {p: k for k, p in enumerate(order)}
        nb_ = []
        for i, l in enumerate(body):
            if i in name:
                k = name[i]
                nb_.append(f'L_pad{k}:')
                nb_.append(f's_cbranch_execz ' + (f'L_pad{k+1}' if k + 1 < len(order) else 'L_end'))
            nb_.append(l)
        body = nb_
    out = HEADER + DOC
    out += f'; @launch grid=(256,1,1) block=({640 if warm else 576},1,1) lds={LDS_BYTES}\n'
    out += '.amdgcn_target "amdgcn-amd-amdhsa--gfx950"\n.text\n'
    out += f'.globl {KNAME}_kernel\n.p2align 8\n.type {KNAME}_kernel,@function\n'
    for l in body:
        out += (l if l.endswith(':') else '    ' + l) + '\n'
    out += f'''.section .rodata,"a"
.p2align 6
.amdhsa_kernel {KNAME}_kernel
  .amdhsa_next_free_vgpr {NV}
  .amdhsa_next_free_sgpr 102
  .amdhsa_accum_offset {NV}
  .amdhsa_group_segment_fixed_size 0
  .amdhsa_kernarg_size 104
  .amdhsa_user_sgpr_count 2
  .amdhsa_user_sgpr_kernarg_segment_ptr 1
  .amdhsa_system_sgpr_workgroup_id_x 1
  .amdhsa_float_denorm_mode_32 3
.end_amdhsa_kernel
'''
    return out

if __name__ == '__main__':
    kw = eval('dict(' + (sys.argv[2] if len(sys.argv) > 2 else '') + ')')
    open(sys.argv[1], 'w').write(gen(**kw))
```
